```python
import torch

def _softmax(x, axis=-1):
    return torch.softmax(x, dim=axis)
def _gelu(x):
    return torch.nn.functional.gelu(x, approximate="tanh")
def _silu(x):
    return torch.nn.functional.silu(x)
def _sigmoid(x):
    return torch.sigmoid(x)
def _layernorm(x, axis=-1, eps=1e-5):
    m = x.mean(dim=axis, keepdim=True)
    v = x.var(dim=axis, keepdim=True, unbiased=False)
    return (x - m) / torch.sqrt(v + eps)
def _scatter_add(tgt, idx, src, axis=0):
    return tgt.clone().index_add_(axis, idx, src)
def _segment_sum(src, seg, n):
    out = torch.zeros((n,) + src.shape[1:], dtype=src.dtype)
    return out.index_add_(0, seg, src)
def _pad(x, pw):
    flat = tuple(v for pair in reversed(pw) for v in pair)
    return torch.nn.functional.pad(x, flat)

kernel_name = 'sequential_preLN__mha_block_cached__mixer_token_mlp__decode'

def setup_inputs():

    _w = (lambda a: (lambda t: t.to(torch.bfloat16) if t.is_floating_point() else t)(torch.as_tensor(a)))
    def _A_setup():
        B, Sq, D = 4, 1, 640
        H, Sk, Dh = 32, 4096, 192
        return {
            "x": _w((lambda *s: torch.randn(*s, dtype=torch.bfloat16) * 0.05)(B, Sq, D)),
            "k_cache": _w((lambda *s: torch.randn(*s, dtype=torch.bfloat16) * 1.6)(B, H, Sk, Dh)),
            "v_cache": _w((lambda *s: torch.randn(*s, dtype=torch.bfloat16) * 0.8)(B, H, Sk, Dh)),
            "wq": _w((lambda *s: torch.randn(*s, dtype=torch.bfloat16) * 1.6)(D, H * Dh) * (D ** -0.5)),
            "wo": _w((lambda *s: torch.randn(*s, dtype=torch.bfloat16) * 0.8)(H * Dh, D) * ((H * Dh) ** -0.5)),
        }
    _A_in = _A_setup()

    def _B_setup():
        B, S, D, F = 4, 1, 640, 1536
        return {
            "x": _w((lambda *s: torch.randn(*s, dtype=torch.bfloat16) * 0.05)(B, S, D)),
            "w1": _w((lambda *s: torch.randn(*s, dtype=torch.bfloat16) * 3.2)(S, F) * (S ** -0.5)),
            "b1": _w((lambda *s: torch.randn(*s, dtype=torch.bfloat16) * 3.2)(F) * 0.02),
            "w2": _w((lambda *s: torch.randn(*s, dtype=torch.bfloat16) * 0.4)(F, S) * (F ** -0.5)),
            "b2": _w((lambda *s: torch.randn(*s, dtype=torch.bfloat16) * 0.4)(S) * 0.02),
        }
    _B_in = _B_setup()

    return {
        "A_x": _A_in["x"],
        "A_k_cache": _A_in["k_cache"],
        "A_v_cache": _A_in["v_cache"],
        "A_wq": _A_in["wq"],
        "A_wo": _A_in["wo"],
        "B_x": _B_in["x"],
        "B_w1": _B_in["w1"],
        "B_b1": _B_in["b1"],
        "B_w2": _B_in["w2"],
        "B_b2": _B_in["b2"],
    }

def reference(A_x, A_k_cache, A_v_cache, A_wq, A_wo, B_x, B_w1, B_b1, B_w2, B_b2):
    def _A_ref(x, k_cache, v_cache, wq, wo):
        B, Sq, D = x.shape
        H, Dh = 32, 192
        q = (lambda x, *d: x.permute(*d))((x @ wq).reshape(B, Sq, H, Dh), 0, 2, 1, 3)
        scores = torch.einsum("bhqd,bhkd->bhqk", q, k_cache) * (Dh ** -0.5)
        p = _softmax(scores, axis=-1)
        o = torch.einsum("bhqk,bhkd->bhqd", p, v_cache)
        return (lambda x, *d: x.permute(*d))(o, 0, 2, 1, 3).reshape(B, Sq, H * Dh) @ wo

    def _B_ref(x, w1, b1, w2, b2):
        B, S, D = x.shape
        h = _layernorm(x, axis=-1)
        u = torch.einsum("bsd,sf->bdf", h, w1) + b1
        u = _gelu(u)
        y = torch.einsum("bdf,fs->bds", u, w2) + b2
        return (lambda x, *d: x.permute(*d))(y, 0, 2, 1)

    x = A_x
    h = x + _A_ref(_layernorm(x, axis=-1), A_k_cache, A_v_cache, A_wq, A_wo)
    h2 = h + _B_ref(_layernorm(h, axis=-1), B_w1, B_b1, B_w2, B_b2)
    return h2
```

```python
import struct
def f2u(x):
    return struct.unpack("<I", struct.pack("<f", x))[0]
def F(x):
    return "0x%08x" % f2u(x)

class Asm:
    def __init__(self):
        self.L = []
        self.nlabel = 0
    def __call__(self, s):
        self.L.append("  " + s)
    def raw(self, s):
        self.L.append(s)
    def label(self, name):
        self.L.append(name + ":")
    def c(self, s):
        self.L.append("  ; " + s)
    def newlabel(self, p="L"):
        self.nlabel += 1
        return f"{p}_{self.nlabel}"
    def text(self):
        return "\n".join(self.L) + "\n"

    def srd(self, s, lo, hi, size):
        if lo != f"s{s}": self(f"s_mov_b32 s{s}, {lo}")
        if hi != f"s{s+1}": self(f"s_mov_b32 s{s+1}, {hi}")
        self(f"s_mov_b32 s{s+2}, {size}")
        self(f"s_mov_b32 s{s+3}, 0x20000")
    def srd_off(self, s, plo, off, size):
        self(f"s_add_u32 s{s}, s{plo}, {off}")
        self(f"s_addc_u32 s{s+1}, s{plo+1}, 0")
        self(f"s_mov_b32 s{s+2}, {size}")
        self(f"s_mov_b32 s{s+3}, 0x20000")
    def setexec(self, mask):
        lo, hi = mask & 0xffffffff, mask >> 32
        if mask == (1 << 64) - 1:
            self("s_mov_b64 exec, -1")
        elif hi == 0 and lo <= 64:
            self(f"s_mov_b64 exec, {lo}")
        else:
            self(f"s_mov_b32 exec_lo, 0x{lo:08x}")
            self(f"s_mov_b32 exec_hi, 0x{hi:08x}")
    def rb(self, d, s):
        self(f"v_cvt_pk_bf16_f32 {d}, 0, {s}")
    DPP_STEPS = ["quad_perm:[1,0,3,2] row_mask:0xf bank_mask:0xf",
                 "quad_perm:[2,3,0,1] row_mask:0xf bank_mask:0xf",
                 "row_half_mirror row_mask:0xf bank_mask:0xf",
                 "row_mirror row_mask:0xf bank_mask:0xf",
                 "row_bcast:15 row_mask:0xa bank_mask:0xf",
                 "row_bcast:31 row_mask:0xc bank_mask:0xf"]
    def wave_red(self, op, regs, sdst, steps=None):
        if isinstance(regs, str):
            regs = [regs]; sdst = [sdst]
        n = len(regs)
        for st in (steps or self.DPP_STEPS):
            if n < 3:
                self(f"s_nop {2-n}")
            for r in regs:
                self(f"v_{op}_f32_dpp {r}, {r}, {r} {st}")
        if n < 2:
            self("s_nop 0")
        for r, s in zip(regs, sdst):
            self(f"v_readlane_b32 {s}, {r}, 63")
        self("s_nop 1")
    def layernorm(self, src, dst, t0, t1, t2, s0):
        A = self
        A(f"v_add_f32 {t0}, {src[0]}, {src[1]}")
        A(f"v_add_f32 {t1}, {src[2]}, {src[3]}")
        for i in range(4, 10, 2):
            A(f"v_add_f32 {t0}, {t0}, {src[i]}")
            A(f"v_add_f32 {t1}, {t1}, {src[i+1]}")
        A(f"v_add_f32 {t0}, {t0}, {t1}")
        A.wave_red("add", t0, s0)
        A(f"v_mov_b32 {t2}, {F(1.0/640)}")
        A(f"v_mul_f32 {t2}, {s0}, {t2}")
        A(f"v_sub_f32 {t1}, {src[0]}, {t2}")
        A(f"v_mul_f32 {t0}, {t1}, {t1}")
        for i in range(1, 10):
            A(f"v_sub_f32 {t1}, {src[i]}, {t2}")
            A(f"v_fmac_f32 {t0}, {t1}, {t1}")
        A.rb(t2, t2)
        A.wave_red("add", t0, s0)
        A(f"v_mov_b32 {t0}, {F(1.0/640)}")
        A(f"v_mul_f32 {t0}, {s0}, {t0}")
        A.rb(t0, t0)
        A(f"v_add_f32 {t0}, {F(1e-5)}, {t0}")
        A.rb(t0, t0)
        A(f"v_sqrt_f32 {t0}, {t0}")
        A("s_nop 0")
        A.rb(t0, t0)
        A(f"v_rcp_f32 {t0}, {t0}")
        for i in range(10):
            A(f"v_sub_f32 {dst[i]}, {src[i]}, {t2}")
        for i in range(10):
            A.rb(dst[i], dst[i])
        for i in range(10):
            A(f"v_mul_f32 {dst[i]}, {dst[i]}, {t0}")
        for i in range(10):
            A.rb(dst[i], dst[i])

def kd(name, nvgpr, nsgpr, accum):
    return f""".section .rodata,"a"
.p2align 6
.amdhsa_kernel {name}
  .amdhsa_next_free_vgpr {nvgpr}
  .amdhsa_next_free_sgpr {nsgpr}
  .amdhsa_accum_offset {accum}
  .amdhsa_group_segment_fixed_size 0
  .amdhsa_kernarg_size 104
  .amdhsa_user_sgpr_count 2
  .amdhsa_user_sgpr_kernarg_segment_ptr 1
  .amdhsa_system_sgpr_workgroup_id_x 1
  .amdhsa_float_denorm_mode_32 3
.end_amdhsa_kernel
"""
```

```python
import sys
from asmlib import *

KN = "sequential_preLN__mha_block_cached__mixer_token_mlp__decode_kernel"
HDR = open("sequential_preLN__mha_block_cached__mixer_token_mlp__decode.s.ref").read().split("; Override launch")[0]
LOG2E = 1.4426950408889634
WS_ACC, WS_CNT, WS_ML, WS_ZEND = 0, 10240, 12288, 28672
WS_SIZE = 1 << 20
L_XN, L_QS, L_OS, L_YS, L_ZB, L_SC, L_END = 0, 2560, 3328, 4096, 2560, 7680, 15872
M_LO, M_HI, M_T1 = 0x00FF00FF00FF00FF, 0xFF00FF00FF00FF00, 0xFF00FF0000FF00FF
ALL = (1 << 64) - 1

class VQ:
    def __init__(self, A): self.A = A; self.q = []
    CAP = 54
    def pre(self):
        if len(self.q) >= self.CAP:
            self.A(f"s_waitcnt vmcnt({self.CAP - 1})")
            self.q = self.q[-(self.CAP - 1):]
    def issue(self, tag): self.q.append(tag)
    def wait(self, tag):
        if tag not in self.q: return
        pos = len(self.q) - 1 - self.q[::-1].index(tag)
        n = len(self.q) - 1 - pos
        self.A(f"s_waitcnt vmcnt({min(n, 63)})")
        self.q = self.q[pos + 1:] if n <= 63 else self.q[-63:]

def gen_k1(A, name, T=12, kpre=12, rot=1, wo_start=0):
    NT = 64
    STEP = 12288
    REGION = 786432
    sX, sK, sV, sWQ, sWO, sWS, sDBG = 24, 28, 32, 36, 40, 44, 48
    sWAVE, sB, sH, sHALF, sBH, sT0, sT1 = "s52", "s53", "s54", "s55", "s56", "s57", "s58"
    sKREL, sVREL, sWB, sOFF, sWQOFF, sWOOFF, sM, sL, sF, sSPIN = "s59", "s60", "s61", "s62", "s63", "s64", "s65", "s66", "s67", "s68"
    vLANE, vKO, vVO, vQ0, vQ1, vQ2, vWO = "v1", "v2", "v3", "v4", "v5", "v6", "v7"
    vM = ["v8", "v9", "v10", "v11"]
    vA0, vA1, vAY, vSC, vXN, vMAX, vZ = "v12", "v13", "v14", "v15", "v16", "v17", "v18"
    vT = [f"v{i}" for i in range(19, 24)]
    QB = 24
    D = 36
    O = 40
    B = 52
    ML = 60
    R0 = 64
    NV = R0 + 12 * T
    assert NV <= 256
    vq = VQ(A)

    A.raw(".p2align 8")
    A.raw(f".type {name},@function")
    A.label(name)
    A("s_cmp_ge_u32 s2, 256")
    A("s_cbranch_scc1 K1_end")
    A("s_load_dwordx8 s[8:15], s[0:1], 0")
    A("s_load_dwordx2 s[16:17], s[0:1], 32")
    A("s_load_dwordx4 s[20:23], s[0:1], 88")
    A(f"v_lshrrev_b32 {vT[0]}, 6, v0")
    A(f"v_and_b32 {vLANE}, 63, v0")
    A(f"v_readfirstlane_b32 {sWAVE}, {vT[0]}")
    A(f"s_and_b32 {sH}, s2, 7")
    A(f"s_lshr_b32 {sT0}, s2, 3")
    A(f"s_lshl_b32 {sH}, {sH}, 2")
    A(f"s_and_b32 {sT1}, {sT0}, 3")
    A(f"s_add_u32 {sH}, {sH}, {sT1}")
    A(f"s_lshr_b32 {sB}, {sT0}, 3")
    A(f"s_bfe_u32 {sHALF}, {sT0}, 0x10002")
    A(f"s_lshl_b32 {sBH}, {sB}, 5")
    A(f"s_add_u32 {sBH}, {sBH}, {sH}")
    q, i, t0, t1 = vT[0], vT[1], vT[2], vT[3]
    A(f"v_lshrrev_b32 {q}, 4, {vLANE}")
    A(f"v_and_b32 {i}, 15, {vLANE}")
    A(f"v_lshrrev_b32 {t0}, 2, {i}")
    A(f"v_mul_u32_u24 {vKO}, 768, {t0}")
    A(f"v_lshl_add_u32 {vKO}, {q}, 6, {vKO}")
    A(f"v_and_b32 {t0}, 3, {i}")
    A(f"v_lshl_add_u32 {vKO}, {t0}, 4, {vKO}")
    A(f"v_mul_u32_u24 {vVO}, 768, {q}")
    A(f"v_lshl_add_u32 {vVO}, {i}, 4, {vVO}")
    A(f"v_mul_u32_u24 {vQ0}, 24576, {q}")
    A(f"v_lshl_add_u32 {vQ0}, {i}, 4, {vQ0}")
    A(f"v_add_u32 {vQ1}, 256, {vQ0}")
    A(f"v_add_u32 {vQ2}, {12288-128}, {vQ0}")
    A(f"v_cmp_gt_u32 vcc, 8, {i}")
    A(f"v_mul_u32_u24 {vWO}, 15360, {q}")
    A(f"v_lshl_add_u32 {vWO}, {i}, 4, {vWO}")
    A(f"v_cndmask_b32 {vQ1}, {vQ2}, {vQ1}, vcc")
    A(f"v_add_u32 {vQ2}, {12288+128}, {vQ0}")
    A("s_waitcnt lgkmcnt(0)")
    A(f"s_mul_i32 {sT0}, {sB}, 1280")
    A.srd_off(sX, 8, sT0, 1280)
    A(f"s_lshl_b32 {sT0}, {sBH}, 1")
    A(f"s_add_u32 {sT0}, {sT0}, {sHALF}")
    A(f"s_mul_i32 {sKREL}, {sT0}, {rot}")
    A(f"s_and_b32 {sKREL}, {sKREL}, 63")
    A(f"s_mul_i32 {sKREL}, {sKREL}, {STEP}")
    A(f"s_mov_b32 {sVREL}, {sKREL}")
    A(f"s_mul_i32 {sT0}, {sT0}, {REGION}")
    A.srd_off(sK, 10, sT0, REGION)
    A.srd_off(sV, 12, sT0, REGION)
    A.srd(sWQ, "s14", "s15", 640 * 12288)
    A(f"s_mul_i32 {sT0}, {sH}, 245760")
    A.srd_off(sWO, 16, sT0, 245760)
    A.srd(sWS, "s22", "s23", WS_SIZE)
    A.srd(sDBG, "s20", "s21", 256)
    A(f"s_mul_i32 {sWB}, {sWAVE}, 3072")
    A(f"s_mul_i32 {sWQOFF}, {sH}, 384")
    A(f"s_mul_i32 {sT0}, {sWAVE}, {160*12288}")
    A(f"s_add_u32 {sWQOFF}, {sWQOFF}, {sT0}")
    A(f"s_mul_i32 {sWOOFF}, {sWAVE}, {48*1280}")
    for r in range(O, O + 12):
        A(f"v_mov_b32 v{r}, 0")
    A(f"v_lshlrev_b32 {t0}, 4, v0")
    A("s_cmp_lg_u32 s2, 0")
    A("s_cbranch_scc1 K1_nozero")
    for n in range(WS_ZEND // 4096):
        A(f"s_movk_i32 {sT0}, {n*4096}")
        A(f"buffer_store_dwordx4 v[{O}:{O+3}], {t0}, s[{sWS}:{sWS+3}], {sT0} offen sc1")
    A.label("K1_nozero")
    A(f"v_lshlrev_b32 {t1}, 2, {vLANE}")
    for n in range(5):
        A(f"buffer_load_dword v{B+n}, {t1}, s[{sX}:{sX+3}], 0 offen offset:{n*256}")
        vq.issue("x")
    A(f"ds_write_b128 {t0}, v[{O}:{O+3}] offset:{L_ZB}")
    A(f"v_lshlrev_b32 {t0}, 2, v0")
    A(f"ds_write_b32 {t0}, v{O} offset:{L_ZB+4096}")

    def ld_tile(slot, isv, n):
        rel, srd, off = (sVREL, sV, vVO) if isv else (sKREL, sK, vKO)
        A(f"s_add_u32 {sOFF}, {sWB}, {rel}")
        for t in range(3):
            r = R0 + slot * 12 + t * 4
            vq.pre()
            A(f"buffer_load_dwordx4 v[{r}:{r+3}], {off}, s[{srd}:{srd+3}], {sOFF} offen offset:{t*256} nt")
            vq.issue(("v" if isv else "k", n))
        A(f"s_add_u32 {rel}, {rel}, {STEP}")
        A(f"s_cmp_ge_u32 {rel}, {REGION}")
        A(f"s_cselect_b32 {rel}, 0, {rel}")
    def ld_wq(n):
        for t, o in enumerate((vQ0, vQ1, vQ2)):
            r = n * 12 + t * 4
            vq.pre()
            A(f"buffer_load_dwordx4 a[{r}:{r+3}], {o}, s[{sWQ}:{sWQ+3}], {sWQOFF} offen nt")
            vq.issue(("wq", n))
        A(f"s_add_u32 {sWQOFF}, {sWQOFF}, {8*12288}")
    def ld_wo(n):
        rg, c = divmod(n, 5)
        vq.pre()
        A(f"buffer_load_dwordx4 a[{4*n}:{4*n+3}], {vWO}, s[{sWO}:{sWO+3}], {sWOOFF} offen offset:{c*256} nt")
        vq.issue("wo")
        if c == 4:
            A(f"s_add_u32 {sWOOFF}, {sWOOFF}, 1280")

    head = []
    ki = 0
    for n in range(20):
        head.append(("wq", n))
        if ki < kpre and (n + 1) * kpre >= (ki + 1) * 20:
            head.append(("k", ki)); ki += 1
    while ki < T:
        head.append(("k", ki)); ki += 1
    def do_head(items):
        for kind, n in items:
            if kind == "wq": ld_wq(n)
            else: ld_tile(n, False, n)
    nfirst = 12
    do_head(head[:nfirst])
    jl = vT[2]
    A(f"v_and_b32 {jl}, 7, {vLANE}")
    A(f"v_and_b32 {t1}, 1, {vLANE}")
    A(f"v_cmp_eq_u32 vcc, 1, {t1}")
    A(f"v_mov_b32 {vT[4]}, 0xffff")
    A(f"v_mov_b32 {vM[3]}, 0xffff0000")
    A(f"v_cndmask_b32 {vT[4]}, {vT[4]}, {vM[3]}, vcc")
    A(f"v_lshrrev_b32 {t1}, 1, {jl}")
    for r in range(4):
        A(f"v_cmp_eq_u32 vcc, {r}, {t1}")
        A("s_nop 1")
        A(f"v_cndmask_b32 {vM[r]}, 0, {vT[4]}, vcc")
    A(f"v_lshl_add_u32 {vA0}, {q}, 5, {jl}")
    A(f"v_lshlrev_b32 {vA0}, 2, {vA0}")
    A(f"v_cmp_gt_u32 vcc, 2, {q}")
    A(f"v_add_u32 {vA1}, 512, {vA0}")
    A(f"v_subrev_u32 {t1}, 256, {vA0}")
    A(f"v_cndmask_b32 {vA1}, {t1}, {vA1}, vcc")
    A(f"v_mul_u32_u24 {vAY}, 40, {q}")
    A(f"v_add_lshl_u32 {vAY}, {vAY}, {jl}, 2")
    A(f"v_lshrrev_b32 {t1}, 3, {vLANE}")
    A(f"s_lshl_b32 {sT0}, {sWAVE}, 11")
    A(f"s_add_u32 {sT0}, {sT0}, {L_SC}")
    A(f"v_lshl_add_u32 {vSC}, {t1}, 2, {sT0}")
    A(f"s_mul_i32 {sT0}, {sWAVE}, 640")
    A(f"v_lshl_add_u32 {vXN}, {t1}, 2, {sT0}")
    A(f"v_mov_b32 {vMAX}, 0xff800000")
    vq.wait("x")
    xs = [f"v{QB+n}" for n in range(10)]
    for n in range(5):
        A(f"v_lshlrev_b32 {xs[2*n]}, 16, v{B+n}")
        A(f"v_and_b32 {xs[2*n+1]}, 0xffff0000, v{B+n}")
    A.layernorm(xs, xs, vT[2], vT[3], vT[4], sT0)
    A(f"v_lshlrev_b32 {vT[2]}, 3, {vLANE}")
    for n in range(10):
        A(f"v_cvt_pk_bf16_f32 {xs[n]}, {xs[n]}, {xs[n]}")
    for n in range(5):
        A(f"ds_write_b64 {vT[2]}, v[{QB+2*n}:{QB+2*n+1}] offset:{L_XN + n*512}")
    do_head(head[nfirst:])
    A("s_waitcnt lgkmcnt(0)")
    A("s_barrier")
    XP = [QB + n for n in range(12)] + [ML + n for n in range(4)] + [D + n for n in range(4)]
    for n in range(20):
        if n == 12: A("s_waitcnt lgkmcnt(4)")
        A(f"ds_read_b32 v{XP[n]}, {vXN} offset:{L_XN + n*32}")
    A("s_waitcnt lgkmcnt(0)")
    for n in range(20):
        bb = B + 4 * (n & 1)
        for r in range(4):
            A(f"v_and_b32 v{bb+r}, v{XP[n]}, {vM[r]}")
        vq.wait(("wq", n))
        A("s_nop 1")
        for t in range(3):
            r = n * 12 + t * 4
            A(f"v_mfma_f32_16x16x32_bf16 v[{O+4*t}:{O+4*t+3}], a[{r}:{r+3}], v[{bb}:{bb+3}], v[{O+4*t}:{O+4*t+3}]")
    def lds_add3(base):
        A.setexec(M_LO)
        for r in range(4):
            A(f"ds_add_f32 {vA0}, v{O+r} offset:{base + r*32}")
        A.setexec(M_T1)
        for r in range(4):
            A(f"ds_add_f32 {vA1}, v{O+4+r} offset:{base + r*32}")
        A.setexec(M_HI)
        for r in range(4):
            A(f"ds_add_f32 {vA0}, v{O+8+r} offset:{base + 256 + r*32}")
        A.setexec(ALL)
    A("s_nop 7")
    lds_add3(L_QS)
    q, i, t0, t1 = vT[0], vT[1], vT[2], vT[3]
    A(f"v_and_b32 {t0}, 3, {vLANE}")
    A(f"v_lshl_add_u32 {t0}, {q}, 2, {t0}")
    A(f"v_and_b32 {t1}, 8, {vLANE}")
    A(f"v_add_lshl_u32 {vT[4]}, {t0}, {t1}, 5")
    A(f"v_cmp_gt_u32 vcc, 8, {i}")
    A(f"v_add_u32 {t1}, 16, {t0}")
    A(f"v_subrev_u32 {t0}, 8, {t0}")
    A(f"v_cndmask_b32 {t0}, {t0}, {t1}, vcc")
    A(f"v_lshlrev_b32 {t0}, 5, {t0}")
    A("s_waitcnt lgkmcnt(0)")
    A("s_barrier")
    A("s_cmp_lg_u32 s2, 0")
    A("s_cbranch_scc1 K1_noflag")
    A(f"s_cmp_lg_u32 {sWAVE}, 0")
    A("s_cbranch_scc1 K1_noflag")
    A(f"v_mov_b32 {vZ}, 1")
    A(f"v_mov_b32 {t1}, 0")
    A.setexec(1)
    A(f"buffer_store_dword {vZ}, {t1}, s[{sDBG}:{sDBG+3}], 0 offen sc1")
    A.setexec(ALL)
    A.label("K1_noflag")
    A(f"ds_read_b128 v[{O}:{O+3}], {vT[4]} offset:{L_QS}")
    A(f"ds_read_b128 v[{O+4}:{O+7}], {vT[4]} offset:{L_QS+16}")
    A.setexec(M_T1)
    A(f"ds_read_b128 v[{B}:{B+3}], {t0} offset:{L_QS}")
    A(f"ds_read_b128 v[{B+4}:{B+7}], {t0} offset:{L_QS+16}")
    A.setexec(ALL)
    for r in range(12):
        A(f"v_mov_b32 v{QB+r}, 0")
    A("s_waitcnt lgkmcnt(0)")
    A.setexec(M_LO)
    for r in range(4):
        A(f"v_cvt_pk_bf16_f32 v{QB+r}, v{O+2*r}, v{O+2*r+1}")
    A.setexec(M_HI)
    for r in range(4):
        A(f"v_cvt_pk_bf16_f32 v{QB+8+r}, v{O+2*r}, v{O+2*r+1}")
    A.setexec(M_T1)
    for r in range(4):
        A(f"v_cvt_pk_bf16_f32 v{QB+4+r}, v{B+2*r}, v{B+2*r+1}")
    A.setexec(ALL)
    for r in range(O, O + 12):
        A(f"v_mov_b32 v{r}, 0")
    A(f"v_mov_b32 {vT[4]}, 0")

    won = 0
    s, t = vT[0], vT[1]
    for n in range(NT):
        slot = n % T
        vq.wait(("k", n))
        for tt in range(3):
            r = R0 + slot * 12 + tt * 4
            c = "0" if tt == 0 else f"v[{D}:{D+3}]"
            A(f"v_mfma_f32_16x16x32_bf16 v[{D}:{D+3}], v[{r}:{r+3}], v[{QB+4*tt}:{QB+4*tt+3}], {c}")
        nn = n + T
        if nn < NT: ld_tile(slot, False, nn)
        else: ld_tile(slot, True, nn - NT)
        if n >= wo_start and won < 60:
            ld_wo(won); won += 1
        else:
            A("s_nop 0")
        if n == NT - T - 2:
            A(f"buffer_load_dword {vZ}, {vT[4]}, s[{sDBG}:{sDBG+3}], 0 offen sc1")
            vq.issue("z")
        A(f"v_mov_b32_dpp {s}, v{D} quad_perm:[0,0,0,0] row_mask:0xf bank_mask:0xf")
        for r in range(1, 4):
            A(f"v_add_f32_dpp {s}, v{D+r}, {s} quad_perm:[{r},{r},{r},{r}] row_mask:0xf bank_mask:0xf")
        A.rb(s, s)
        A(f"v_mul_f32 {s}, {F(192 ** -0.5)}, {s}")
        A.rb(s, s)
        A(f"v_max_f32 {vMAX}, {vMAX}, {s}")
        A(f"ds_write_b32 {vSC}, {s} offset:{n*32}")
    assert won == 60
    A.wave_red("max", vMAX, sM)
    A(f"s_lshl_b32 {sT0}, {sWAVE}, 11")
    A(f"s_add_u32 {sT0}, {sT0}, {L_SC}")
    A(f"v_lshl_add_u32 {vT[0]}, {vLANE}, 5, {sT0}")
    A("s_waitcnt lgkmcnt(0)")
    A(f"ds_read_b128 v[{B}:{B+3}], {vT[0]}")
    A(f"ds_read_b128 v[{B+4}:{B+7}], {vT[0]} offset:16")
    A("s_waitcnt lgkmcnt(0)")
    for r in range(8):
        A(f"v_subrev_f32 v{B+r}, {sM}, v{B+r}")
    for r in range(8):
        A(f"v_mul_f32 v{B+r}, {F(LOG2E)}, v{B+r}")
    for r in range(8):
        A(f"v_exp_f32 v{B+r}, v{B+r}")
    A("s_nop 0")
    A(f"v_add_f32 {vT[1]}, v{B}, v{B+1}")
    for r in range(2, 8):
        A(f"v_add_f32 {vT[1]}, {vT[1]}, v{B+r}")
    for r in range(8):
        A(f"v_cvt_pk_bf16_f32 v{B+r}, v{B+r}, v{B+r}")
    A(f"ds_write_b128 {vT[0]}, v[{B}:{B+3}]")
    A(f"ds_write_b128 {vT[0]}, v[{B+4}:{B+7}] offset:16")
    A.wave_red("add", vT[1], sL)
    vq.wait("z")
    A(f"s_mov_b32 {sSPIN}, 0x100000")
    A.label("K1_zchk")
    A(f"v_readfirstlane_b32 {sT0}, {vZ}")
    A(f"s_cmp_lg_u32 {sT0}, 0")
    A("s_cbranch_scc1 K1_zok")
    A(f"s_sub_u32 {sSPIN}, {sSPIN}, 1")
    A(f"s_cmp_eq_u32 {sSPIN}, 0")
    A("s_cbranch_scc1 K1_zok")
    A("s_sleep 8")
    A(f"buffer_load_dword {vZ}, {vT[4]}, s[{sDBG}:{sDBG+3}], 0 offen sc1")
    A("s_waitcnt vmcnt(0)")
    A("s_branch K1_zchk")
    A.label("K1_zok")
    A(f"v_mov_b32 v{ML}, {sM}")
    A(f"v_mov_b32 v{ML+1}, {sL}")
    A(f"v_mov_b32 v{ML+2}, 1")
    A(f"v_mov_b32 v{ML+3}, 1")
    A(f"s_lshl_b32 {sT0}, {sBH}, 7")
    A(f"s_add_u32 {sT0}, {sT0}, {WS_ML}")
    A(f"v_lshl_add_u32 {vZ}, {vLANE}, 4, {sT0}")
    A(f"s_lshl_b32 {sT1}, {sHALF}, 2")
    A(f"s_add_u32 {sT1}, {sT1}, {sWAVE}")
    A(f"s_lshl_b32 {sT1}, {sT1}, 4")
    A.setexec(1)
    A(f"buffer_store_dwordx4 v[{ML}:{ML+3}], {vZ}, s[{sWS}:{sWS+3}], {sT1} offen sc1")
    vq.issue("mlst")
    A.setexec(ALL)
    PP = [QB + n for n in range(8)]
    A("s_waitcnt lgkmcnt(0)")
    for n in range(4):
        A(f"ds_read_b32 v{PP[n]}, {vSC} offset:{n*32}")
    def fcalc():
        vq.wait("ml")
        A(f"s_mov_b32 {sSPIN}, 0x100000")
        A.label("K1_mlchk")
        A(f"v_cmp_ne_u32 vcc, 0, v{ML+2}")
        A("s_nop 1")
        A("s_and_b32 vcc_lo, vcc_lo, 0xff")
        A("s_cmp_eq_u32 vcc_lo, 0xff")
        A("s_cbranch_scc1 K1_mlok")
        A(f"s_sub_u32 {sSPIN}, {sSPIN}, 1")
        A(f"s_cmp_eq_u32 {sSPIN}, 0")
        A("s_cbranch_scc1 K1_mlok")
        A("s_sleep 8")
        A.setexec(0xff)
        A(f"buffer_load_dwordx4 v[{ML}:{ML+3}], {vZ}, s[{sWS}:{sWS+3}], 0 offen sc1")
        A.setexec(ALL)
        A("s_waitcnt vmcnt(0)")
        A("s_branch K1_mlchk")
        A.label("K1_mlok")
        mm, e = vT[0], vT[1]
        A(f"v_mov_b32 {mm}, v{ML}")
        for st in Asm.DPP_STEPS[:3]:
            A("s_nop 1")
            A(f"v_max_f32_dpp {mm}, {mm}, {mm} {st}")
        A(f"v_sub_f32 {e}, v{ML}, {mm}")
        A(f"v_sub_f32 {mm}, {sM}, {mm}")
        A(f"v_mul_f32 {e}, {F(LOG2E)}, {e}")
        A(f"v_mul_f32 {mm}, {F(LOG2E)}, {mm}")
        A(f"v_exp_f32 {e}, {e}")
        A(f"v_exp_f32 {mm}, {mm}")
        A(f"v_mul_f32 {e}, {e}, v{ML+1}")
        for st in Asm.DPP_STEPS[:3]:
            A("s_nop 1")
            A(f"v_add_f32_dpp {e}, {e}, {e} {st}")
        A(f"v_rcp_f32 {e}, {e}")
        A("s_nop 0")
        A(f"v_mul_f32 {e}, {e}, {mm}")
        A("s_nop 0")
        A(f"v_readfirstlane_b32 {sF}, {e}")
    for n in range(NT):
        slot = (NT + n) % T
        bb = B + 4 * (n & 1)
        if n + 4 < NT:
            A(f"ds_read_b32 v{PP[(n+4)%8]}, {vSC} offset:{(n+4)*32}")
            A("s_waitcnt lgkmcnt(4)")
        else:
            A(f"s_waitcnt lgkmcnt({NT-1-n})")
        for r in range(4):
            A(f"v_and_b32 v{bb+r}, v{PP[n%8]}, {vM[r]}")
        vq.wait(("v", n))
        A("s_nop 1")
        for tt in range(3):
            r = R0 + slot * 12 + tt * 4
            A(f"v_mfma_f32_16x16x32_bf16 v[{O+4*tt}:{O+4*tt+3}], v[{r}:{r+3}], v[{bb}:{bb+3}], v[{O+4*tt}:{O+4*tt+3}]")
        if n + T < NT:
            ld_tile(slot, True, n + T)
        if n == NT - T - 4:
            A.setexec(0xff)
            A(f"buffer_load_dwordx4 v[{ML}:{ML+3}], {vZ}, s[{sWS}:{sWS+3}], 0 offen sc1")
            vq.issue("ml")
            A.setexec(ALL)
        if n == NT - 4:
            fcalc()
    A("s_nop 7")
    for r in range(12):
        A(f"v_mul_f32 v{O+r}, {sF}, v{O+r}")
    lds_add3(L_OS)
    A(f"v_lshrrev_b32 {vT[0]}, 4, {vLANE}")
    A(f"v_mul_u32_u24 {vT[0]}, 48, {vT[0]}")
    A(f"s_mul_i32 {sT0}, {sWAVE}, 192")
    A(f"v_add_u32 {vT[0]}, {sT0}, {vT[0]}")
    A("s_waitcnt lgkmcnt(0)")
    A("s_barrier")
    for k in range(3):
        A(f"ds_read_b128 v[{O+4*k}:{O+4*k+3}], {vT[0]} offset:{L_OS + 16*k}")
    A("s_waitcnt lgkmcnt(0)")
    BO = R0
    YD = R0 + 48
    A.setexec(M_HI)
    for rg in range(12):
        A.rb(f"v{QB+rg}", f"v{O+rg}")
    for rg in range(12):
        A(f"v_sub_f32 v{O+rg}, v{O+rg}, v{QB+rg}")
    A.setexec(ALL)
    for rg in range(12):
        A(f"v_cvt_pk_bf16_f32 v{O+rg}, v{O+rg}, v{O+rg}")
    for rg in range(12):
        for r in range(4):
            A(f"v_and_b32 v{BO+4*rg+r}, v{O+rg}, {vM[r]}")
    vq.wait("wo")
    A("s_nop 1")
    def yout(c):
        for r in range(4):
            A(f"v_add_f32_dpp v{YD+4*c+r}, v{YD+4*c+r}, v{YD+4*c+r} row_ror:8 row_mask:0xf bank_mask:0xf")
        A.setexec(M_LO)
        for r in range(4):
            A(f"ds_add_f32 {vAY}, v{YD+4*c+r} offset:{L_YS + c*640 + r*32}")
        A.setexec(ALL)
    for c in range(5):
        for rg in range(12):
            n = rg * 5 + c
            cc = "0" if rg == 0 else f"v[{YD+4*c}:{YD+4*c+3}]"
            A(f"v_mfma_f32_16x16x32_bf16 v[{YD+4*c}:{YD+4*c+3}], a[{4*n}:{4*n+3}], v[{BO+4*rg}:{BO+4*rg+3}], {cc}")
            if rg == 8 and c > 0:
                yout(c - 1)
    A("s_nop 7")
    yout(4)
    A(f"v_lshrrev_b32 {vT[0]}, 5, v0")
    A(f"v_lshl_add_u32 {vT[0]}, {vT[0]}, 3, v0")
    A(f"v_lshlrev_b32 {vT[0]}, 2, {vT[0]}")
    A(f"v_lshlrev_b32 {vT[1]}, 2, v0")
    A(f"s_mul_i32 {sT0}, {sB}, 2560")
    A("s_waitcnt lgkmcnt(0)")
    A("s_barrier")
    A(f"ds_read_b32 {vT[2]}, {vT[0]} offset:{L_YS}")
    A(f"ds_read_b32 {vT[3]}, {vT[0]} offset:{L_YS + 1280}")
    A(f"s_cmp_ge_u32 {sWAVE}, 2")
    A("s_cbranch_scc1 K1_two")
    A(f"ds_read_b32 {vT[4]}, {vT[0]} offset:{L_YS + 2560}")
    A("s_waitcnt lgkmcnt(0)")
    A(f"buffer_atomic_add_f32 {vT[4]}, {vT[1]}, s[{sWS}:{sWS+3}], {sT0} offen offset:{WS_ACC + 2048}")
    A.label("K1_two")
    A("s_waitcnt lgkmcnt(0)")
    A(f"buffer_atomic_add_f32 {vT[2]}, {vT[1]}, s[{sWS}:{sWS+3}], {sT0} offen offset:{WS_ACC}")
    A(f"buffer_atomic_add_f32 {vT[3]}, {vT[1]}, s[{sWS}:{sWS+3}], {sT0} offen offset:{WS_ACC + 1024}")
    A.label("K1_end")
    A("s_endpgm")
    acc = (NV + 3) // 4 * 4
    return kd(name, acc + 240, 72, acc)

def gelu_acc(A, u, w2, acc, t0, t1):
    K0 = -2.0 * 0.7978845608028654 * LOG2E
    K1 = K0 * 0.044715
    A(f"v_mul_f32 {t0}, {u}, {u}")
    A(f"v_fmaak_f32 {t0}, {t0}, {t1}, {F(K0)}")
    A(f"v_mul_f32 {t0}, {t0}, {u}")
    A(f"v_exp_f32 {t0}, {t0}")
    A("s_nop 0")
    A(f"v_add_f32 {t0}, 1.0, {t0}")
    A(f"v_rcp_f32 {t0}, {t0}")
    A("s_nop 0")
    A(f"v_mul_f32 {u}, {u}, {t0}")
    A.rb(u, u)
    A(f"v_fmac_f32 {acc}, {u}, {w2}")

def gen_k2(A, name):
    sX, sW1, sB1, sW2, sB2, sOUT, sWS = 24, 28, 32, 36, 40, 44, 48
    A.raw(".p2align 8")
    A.raw(f".type {name},@function")
    A.label(name)
    A("s_cmp_ge_u32 s2, 256")
    A("s_cbranch_scc1 K2_end")
    A("s_load_dwordx2 s[4:5], s[0:1], 0")
    A("s_load_dwordx8 s[8:15], s[0:1], 48")
    A("s_load_dwordx2 s[16:17], s[0:1], 80")
    A("s_load_dwordx2 s[18:19], s[0:1], 96")
    A("v_and_b32 v1, 63, v0")
    A("s_lshr_b32 s52, s2, 6")
    A("s_and_b32 s53, s2, 63")
    A("s_mul_i32 s53, s53, 10")
    A("s_waitcnt lgkmcnt(0)")
    A("s_mul_i32 s54, s52, 1280")
    A.srd_off(sX, 4, "s54", 1280)
    A.srd_off(sOUT, 16, "s54", 1280)
    A("s_mul_i32 s54, s52, 2560")
    A.srd_off(sWS, 18, "s54", 2560)
    A.srd(sW1, "s8", "s9", 3072)
    A.srd(sB1, "s10", "s11", 3072)
    A.srd(sW2, "s12", "s13", 3072)
    A.srd(sB2, "s14", "s15", 4)
    A("v_lshlrev_b32 v2, 2, v1")
    A("v_lshlrev_b32 v3, 3, v1")
    for n in range(5):
        A(f"buffer_load_dwordx2 v[{10+2*n}:{11+2*n}], v3, s[{sWS}:{sWS+3}], 0 offen offset:{n*512}")
    for n in range(5):
        A(f"buffer_load_dword v{20+n}, v2, s[{sX}:{sX+3}], 0 offen offset:{n*256}")
    A("v_mul_u32_u24 v4, 12, v0")
    A(f"buffer_load_dwordx3 v[40:42], v4, s[{sW1}:{sW1+3}], 0 offen")
    A(f"buffer_load_dwordx3 v[44:46], v4, s[{sB1}:{sB1+3}], 0 offen")
    A(f"buffer_load_dwordx3 v[48:50], v4, s[{sW2}:{sW2+3}], 0 offen")
    A("v_mov_b32 v5, 0")
    A(f"buffer_load_ushort v51, v5, s[{sB2}:{sB2+3}], 0 offen")
    A("s_waitcnt vmcnt(4)")
    h = [f"v{10+n}" for n in range(10)]
    hn = [f"v{26+n}" for n in range(10)]
    for n in range(10):
        A.rb(h[n], h[n])
    for n in range(5):
        A(f"v_lshlrev_b32 v6, 16, v{20+n}")
        A(f"v_and_b32 v7, 0xffff0000, v{20+n}")
        A(f"v_add_f32 {h[2*n]}, {h[2*n]}, v6")
        A(f"v_add_f32 {h[2*n+1]}, {h[2*n+1]}, v7")
    for n in range(10):
        A.rb(h[n], h[n])
    A.layernorm(h, hn, "v6", "v7", "v8", "s55")
    A.layernorm(hn, hn, "v6", "v7", "v8", "s55")
    for n in range(5):
        A(f"ds_write_b64 v3, v[{26+2*n}:{27+2*n}] offset:{n*512}")
        A(f"ds_write_b64 v3, v[{10+2*n}:{11+2*n}] offset:{2560 + n*512}")
    A("s_lshl_b32 s55, s53, 2")
    A("v_mov_b32 v6, s55")
    A("s_waitcnt lgkmcnt(0)")
    for n in range(5):
        A(f"ds_read_b64 v[{26+2*n}:{27+2*n}], v6 offset:{n*8}")
    A("s_waitcnt vmcnt(0)")
    W1 = [f"v{60+n}" for n in range(6)]; B1 = [f"v{66+n}" for n in range(6)]; W2 = [f"v{72+n}" for n in range(6)]
    for dst, src in ((W1, 40), (B1, 44), (W2, 48)):
        for n in range(3):
            A(f"v_lshlrev_b32 {dst[2*n]}, 16, v{src+n}")
            A(f"v_and_b32 {dst[2*n+1]}, 0xffff0000, v{src+n}")
    acc = [f"v{80+n}" for n in range(10)]
    for n in range(10):
        A(f"v_mov_b32 {acc[n]}, 0")
    A(f"v_mov_b32 v9, {F(-2.0 * 0.7978845608028654 * LOG2E * 0.044715)}")
    A("s_waitcnt lgkmcnt(0)")
    for e in range(10):
        for f in range(6):
            A(f"v_mul_f32 v7, {hn[e]}, {W1[f]}")
            A.rb("v7", "v7")
            A(f"v_add_f32 v7, v7, {B1[f]}")
            A.rb("v7", "v7")
            gelu_acc(A, "v7", W2[f], acc[e], "v8", "v9")
    ss = [f"s{60+n}" for n in range(10)]
    A.wave_red("add", acc, ss)
    for e in range(10):
        A(f"v_writelane_b32 v7, {ss[e]}, {e}")
    A("v_lshrrev_b32 v8, 6, v0")
    A("v_lshlrev_b32 v8, 6, v8")
    A("v_lshl_add_u32 v8, v1, 2, v8")
    A.setexec(0x3ff)
    A("ds_write_b32 v8, v7 offset:5120")
    A.setexec(ALL)
    A("s_waitcnt lgkmcnt(0)")
    A("s_barrier")
    A("v_cmp_gt_u32 vcc, 10, v0")
    A("s_and_saveexec_b64 s[56:57], vcc")
    A("s_cbranch_execz K2_end")
    for w in range(4):
        A(f"ds_read_b32 v{10+w}, v2 offset:{5120 + 64*w}")
    A("v_add_u32 v6, v6, v2")
    A("ds_read_b32 v14, v6 offset:2560")
    A("s_waitcnt lgkmcnt(0)")
    A("v_add_f32 v10, v10, v11")
    A("v_add_f32 v12, v12, v13")
    A("v_add_f32 v10, v10, v12")
    A.rb("v10", "v10")
    A("v_lshlrev_b32 v51, 16, v51")
    A("v_add_f32 v10, v10, v51")
    A.rb("v10", "v10")
    A("v_add_f32 v10, v10, v14")
    A("v_cvt_pk_bf16_f32 v10, v10, v10")
    A("v_lshrrev_b32 v6, 1, v6")
    A(f"buffer_store_short v10, v6, s[{sOUT}:{sOUT+3}], 0 offen")
    A.label("K2_end")
    A("s_endpgm")
    return kd(name, 96, 80, 96)

def gen(**kw):
    A = Asm()
    A.raw(HDR.rstrip())
    A.raw(f"; @launch kernel=attn_kernel grid=(256,1,1) block=(256,1,1) lds={L_END}")
    A.raw(f"; @launch kernel=mlp_kernel grid=(256,1,1) block=(256,1,1) lds=5632")
    A.raw('.amdgcn_target "amdgcn-amd-amdhsa--gfx950"')
    A.raw(".text")
    d1 = gen_k1(A, "attn_kernel", **kw)
    d2 = gen_k2(A, "mlp_kernel")
    return A.text() + d1 + d2

if __name__ == "__main__":
    kw = eval("dict(%s)" % (sys.argv[2] if len(sys.argv) > 2 else ""))
    open(sys.argv[1], "w").write(gen(**kw))
```

```python
import sys
from asmlib import *

KN = "sequential_preLN__mha_block_cached__mixer_token_mlp__decode_kernel"
HDR = open("sequential_preLN__mha_block_cached__mixer_token_mlp__decode.s.ref").read().split("; Override launch")[0]
LOG2E = 1.4426950408889634
WS_ACC, WS_CNT, WS_ML, WS_ZEND = 0, 10240, 12288, 28672
WS_SIZE = 1 << 20
L_XN = 0
L_P = 2560
L_QB = L_P + 6144
L_PH = L_QB + 512
L_YP = L_PH + 1536
L_SC = L_YP + 10240
L_END = L_SC + 8192
M_LO, M_HI, M_T1 = 0x00FF00FF00FF00FF, 0xFF00FF00FF00FF00, 0xFF00FF0000FF00FF
ALL = (1 << 64) - 1

class Stamps:
    def __init__(self, A, on, s0): self.A = A; self.on = on; self.s0 = s0; self.n = 0
    def __call__(self):
        if self.on:
            s = self.s0 + 2 * self.n
            self.A(f"s_memrealtime s[{s}:{s+1}]")
            self.n += 1
    def flush(self, srd, base, swave, v0, v1):
        if not self.on: return
        A = self.A
        A("s_waitcnt lgkmcnt(0)")
        A("s_lshl_b32 s70, s2, 2")
        A(f"s_add_u32 s70, s70, {swave}")
        A("s_lshl_b32 s70, s70, 6")
        A(f"s_add_u32 s70, s70, {base}")
        A(f"v_mov_b32 {v1}, 0")
        A.setexec(1)
        for n in range(self.n):
            A(f"v_mov_b32 {v0}, s{self.s0 + 2*n}")
            A(f"buffer_store_dword {v0}, {v1}, s[{srd}:{srd+3}], s70 offen offset:{4*n}")
        A("s_getreg_b32 s71, hwreg(HW_REG_XCC_ID)")
        A(f"v_mov_b32 {v0}, s71")
        A(f"buffer_store_dword {v0}, {v1}, s[{srd}:{srd+3}], s70 offen offset:60")

class VQ:
    def __init__(self, A): self.A = A; self.q = []
    CAP = 54
    def pre(self):
        if len(self.q) >= self.CAP:
            self.A(f"s_waitcnt vmcnt({self.CAP - 1})")
            self.q = self.q[-(self.CAP - 1):]
    def issue(self, tag): self.q.append(tag)
    def wait(self, tag):
        if tag not in self.q: return
        pos = len(self.q) - 1 - self.q[::-1].index(tag)
        n = len(self.q) - 1 - pos
        self.A(f"s_waitcnt vmcnt({min(n, 63)})")
        self.q = self.q[pos + 1:] if n <= 63 else self.q[-63:]

def gen_k1(A, name, T=12, kpre=12, rot=1, wo_start=0, stamps=False, kf='nt', vf='nt', wf='nt'):
    st = Stamps(A, stamps, 72)
    NT = 64
    STEP = 12288
    REGION = 786432
    sX, sK, sV, sWQ, sWO, sWS, sDBG = 24, 28, 32, 36, 40, 44, 48
    sWAVE, sB, sH, sHALF, sBH, sT0, sT1 = "s52", "s53", "s54", "s55", "s56", "s57", "s58"
    sKREL, sVREL, sWB, sOFF, sWQOFF, sWOOFF, sM, sL, sF, sSPIN = "s59", "s60", "s61", "s62", "s63", "s64", "s65", "s66", "s67", "s68"
    vLANE, vKO, vVO, vQ0, vQ1, vQ2, vWO = "v1", "v2", "v3", "v4", "v5", "v6", "v7"
    vM = ["v8", "v9", "v10", "v11"]
    vA0, vA1, vAY, vSC, vXN, vMAX, vZ = "v12", "v13", "v14", "v15", "v16", "v17", "v18"
    vT = [f"v{i}" for i in range(19, 24)]
    QB = 24
    D = 36
    O = 40
    B = 52
    ML = 60
    R0 = 64
    NV = R0 + 12 * T
    assert NV <= 256
    vq = VQ(A)

    A.raw(".p2align 8")
    A.raw(f".type {name},@function")
    A.label(name)
    A("s_cmp_ge_u32 s2, 256")
    A("s_cbranch_scc1 K1_end")
    st()
    A("s_load_dwordx8 s[8:15], s[0:1], 0")
    A("s_load_dwordx2 s[16:17], s[0:1], 32")
    A("s_load_dwordx4 s[20:23], s[0:1], 88")
    A(f"v_lshrrev_b32 {vT[0]}, 6, v0")
    A(f"v_and_b32 {vLANE}, 63, v0")
    A(f"v_readfirstlane_b32 {sWAVE}, {vT[0]}")
    A(f"s_and_b32 {sH}, s2, 7")
    A(f"s_lshr_b32 {sT0}, s2, 3")
    A(f"s_lshl_b32 {sH}, {sH}, 2")
    A(f"s_and_b32 {sT1}, {sT0}, 3")
    A(f"s_add_u32 {sH}, {sH}, {sT1}")
    A(f"s_lshr_b32 {sB}, {sT0}, 3")
    A(f"s_bfe_u32 {sHALF}, {sT0}, 0x10002")
    A(f"s_lshl_b32 {sBH}, {sB}, 5")
    A(f"s_add_u32 {sBH}, {sBH}, {sH}")
    q, i, t0, t1 = vT[0], vT[1], vT[2], vT[3]
    A(f"v_lshrrev_b32 {q}, 4, {vLANE}")
    A(f"v_and_b32 {i}, 15, {vLANE}")
    A(f"v_lshrrev_b32 {t0}, 2, {i}")
    A(f"v_mul_u32_u24 {vKO}, 768, {t0}")
    A(f"v_lshl_add_u32 {vKO}, {q}, 6, {vKO}")
    A(f"v_and_b32 {t0}, 3, {i}")
    A(f"v_lshl_add_u32 {vKO}, {t0}, 4, {vKO}")
    A(f"v_mul_u32_u24 {vVO}, 768, {q}")
    A(f"v_lshl_add_u32 {vVO}, {i}, 4, {vVO}")
    A(f"v_mul_u32_u24 {vQ0}, 24576, {q}")
    A(f"v_lshl_add_u32 {vQ0}, {i}, 4, {vQ0}")
    A(f"v_add_u32 {vQ1}, 256, {vQ0}")
    A(f"v_add_u32 {vQ2}, {12288-128}, {vQ0}")
    A(f"v_cmp_gt_u32 vcc, 8, {i}")
    A(f"v_mul_u32_u24 {vWO}, 1280, {q}")
    A(f"v_lshl_add_u32 {vWO}, {i}, 4, {vWO}")
    A(f"v_cndmask_b32 {vQ1}, {vQ2}, {vQ1}, vcc")
    A(f"v_add_u32 {vQ2}, {12288+128}, {vQ0}")
    A("s_waitcnt lgkmcnt(0)")
    A(f"s_mul_i32 {sT0}, {sB}, 1280")
    A.srd_off(sX, 8, sT0, 1280)
    A(f"s_lshl_b32 {sT0}, {sBH}, 1")
    A(f"s_add_u32 {sT0}, {sT0}, {sHALF}")
    A(f"s_mul_i32 {sKREL}, {sT0}, {rot}")
    A(f"s_and_b32 {sKREL}, {sKREL}, 63")
    A(f"s_mul_i32 {sKREL}, {sKREL}, {STEP}")
    A(f"s_mov_b32 {sVREL}, {sKREL}")
    A(f"s_mul_i32 {sT0}, {sT0}, {REGION}")
    A.srd_off(sK, 10, sT0, REGION)
    A.srd_off(sV, 12, sT0, REGION)
    A.srd(sWQ, "s14", "s15", 640 * 12288)
    A(f"s_mul_i32 {sT0}, {sH}, 245760")
    A.srd_off(sWO, 16, sT0, 245760)
    A.srd(sWS, "s22", "s23", WS_SIZE)
    A.srd(sDBG, "s20", "s21", 256)
    A(f"s_mul_i32 {sWB}, {sWAVE}, 3072")
    A(f"s_mul_i32 {sWQOFF}, {sH}, 384")
    A(f"s_mul_i32 {sT0}, {sWAVE}, {160*12288}")
    A(f"s_add_u32 {sWQOFF}, {sWQOFF}, {sT0}")
    A(f"s_lshr_b32 {sT0}, {sWAVE}, 1")
    A(f"s_mul_i32 {sWOOFF}, {sT0}, {96*1280}")
    A(f"s_and_b32 {sT0}, {sWAVE}, 1")
    A(f"s_mul_i32 {sT0}, {sT0}, {4*1280}")
    A(f"s_add_u32 {sWOOFF}, {sWOOFF}, {sT0}")
    for r in range(O, O + 12):
        A(f"v_mov_b32 v{r}, 0")
    A(f"v_lshlrev_b32 {t0}, 4, v0")
    A("s_cmp_lg_u32 s2, 0")
    A("s_cbranch_scc1 K1_nozero")
    for n in range(WS_ZEND // 4096):
        A(f"s_movk_i32 {sT0}, {n*4096}")
        A(f"buffer_store_dwordx4 v[{O}:{O+3}], {t0}, s[{sWS}:{sWS+3}], {sT0} offen sc1")
    A.label("K1_nozero")
    A(f"v_lshlrev_b32 {t1}, 2, {vLANE}")
    for n in range(5):
        A(f"buffer_load_dword v{B+n}, {t1}, s[{sX}:{sX+3}], 0 offen offset:{n*256}")
        vq.issue("x")

    def ld_tile(slot, isv, n):
        rel, srd, off = (sVREL, sV, vVO) if isv else (sKREL, sK, vKO)
        A(f"s_add_u32 {sOFF}, {sWB}, {rel}")
        for t in range(3):
            r = R0 + slot * 12 + t * 4
            vq.pre()
            A(f"buffer_load_dwordx4 v[{r}:{r+3}], {off}, s[{srd}:{srd+3}], {sOFF} offen offset:{t*256} {vf if isv else kf}")
            vq.issue(("v" if isv else "k", n))
        A(f"s_add_u32 {rel}, {rel}, {STEP}")
        A(f"s_cmp_ge_u32 {rel}, {REGION}")
        A(f"s_cselect_b32 {rel}, 0, {rel}")
    def ld_wq(n):
        for t, o in enumerate((vQ0, vQ1, vQ2)):
            r = n * 12 + t * 4
            vq.pre()
            A(f"buffer_load_dwordx4 a[{r}:{r+3}], {o}, s[{sWQ}:{sWQ+3}], {sWQOFF} offen {wf}")
            vq.issue(("wq", n))
        A(f"s_add_u32 {sWQOFF}, {sWQOFF}, {8*12288}")
    def ld_wo(n):
        rg, c = divmod(n, 5)
        vq.pre()
        A(f"buffer_load_dwordx4 a[{4*n}:{4*n+3}], {vWO}, s[{sWO}:{sWO+3}], {sWOOFF} offen offset:{c*256} {wf}")
        vq.issue("wo")
        if c == 4:
            A(f"s_add_u32 {sWOOFF}, {sWOOFF}, {8*1280}")

    head = []
    ki = 0
    for n in range(20):
        head.append(("wq", n))
        if ki < kpre and (n + 1) * kpre >= (ki + 1) * 20:
            head.append(("k", ki)); ki += 1
    while ki < T:
        head.append(("k", ki)); ki += 1
    def do_head(items):
        for kind, n in items:
            if kind == "wq": ld_wq(n)
            else: ld_tile(n, False, n)
    nfirst = 12
    do_head(head[:nfirst])
    jl = vT[2]
    A(f"v_and_b32 {jl}, 7, {vLANE}")
    A(f"v_and_b32 {t1}, 1, {vLANE}")
    A(f"v_cmp_eq_u32 vcc, 1, {t1}")
    A(f"v_mov_b32 {vT[4]}, 0xffff")
    A(f"v_mov_b32 {vM[3]}, 0xffff0000")
    A(f"v_cndmask_b32 {vT[4]}, {vT[4]}, {vM[3]}, vcc")
    A(f"v_lshrrev_b32 {t1}, 1, {jl}")
    for r in range(4):
        A(f"v_cmp_eq_u32 vcc, {r}, {t1}")
        A("s_nop 1")
        A(f"v_cndmask_b32 {vM[r]}, 0, {vT[4]}, vcc")
    A(f"v_lshl_add_u32 {vAY}, {q}, 3, {jl}")
    A(f"v_lshlrev_b32 {vAY}, 4, {vAY}")
    A(f"s_mul_i32 {sT0}, {sWAVE}, 1536")
    A(f"v_add_u32 {vA0}, {sT0}, {vAY}")
    A(f"s_mul_i32 {sT0}, {sWAVE}, 2560")
    A(f"v_add_u32 {vAY}, {sT0}, {vAY}")
    A(f"v_lshrrev_b32 {t1}, 3, {vLANE}")
    A(f"s_lshl_b32 {sT0}, {sWAVE}, 11")
    A(f"s_add_u32 {sT0}, {sT0}, {L_SC}")
    A(f"v_lshl_add_u32 {vSC}, {t1}, 2, {sT0}")
    A(f"s_mul_i32 {sT0}, {sWAVE}, 640")
    A(f"v_lshl_add_u32 {vXN}, {t1}, 2, {sT0}")
    A(f"v_mov_b32 {vMAX}, 0xff800000")
    vq.wait("x")
    st()
    xs = [f"v{QB+n}" for n in range(10)]
    for n in range(5):
        A(f"v_lshlrev_b32 {xs[2*n]}, 16, v{B+n}")
        A(f"v_and_b32 {xs[2*n+1]}, 0xffff0000, v{B+n}")
    A.layernorm(xs, xs, vT[2], vT[3], vT[4], sT0)
    A(f"v_lshlrev_b32 {vT[2]}, 3, {vLANE}")
    for n in range(10):
        A(f"v_cvt_pk_bf16_f32 {xs[n]}, {xs[n]}, {xs[n]}")
    for n in range(5):
        A(f"ds_write_b64 {vT[2]}, v[{QB+2*n}:{QB+2*n+1}] offset:{L_XN + n*512}")
    do_head(head[nfirst:])
    A("s_waitcnt lgkmcnt(0)")
    XP = [QB + n for n in range(12)] + [ML + n for n in range(4)] + [D + n for n in range(4)]
    for n in range(20):
        if n == 12: A("s_waitcnt lgkmcnt(4)")
        A(f"ds_read_b32 v{XP[n]}, {vXN} offset:{L_XN + n*32}")
    A("s_waitcnt lgkmcnt(0)")
    for n in range(20):
        bb = B + 4 * (n & 1)
        for r in range(4):
            A(f"v_and_b32 v{bb+r}, v{XP[n]}, {vM[r]}")
        vq.wait(("wq", n))
        A("s_nop 1")
        for t in range(3):
            r = n * 12 + t * 4
            A(f"v_mfma_f32_16x16x32_bf16 v[{O+4*t}:{O+4*t+3}], a[{r}:{r+3}], v[{bb}:{bb+3}], v[{O+4*t}:{O+4*t+3}]")
    def lds_put3():
        A.setexec(M_LO)
        A(f"ds_write_b128 {vA0}, v[{O}:{O+3}] offset:{L_P}")
        A.setexec(M_T1)
        A(f"ds_write_b128 {vA0}, v[{O+4}:{O+7}] offset:{L_P + 512}")
        A.setexec(M_HI)
        A(f"ds_write_b128 {vA0}, v[{O+8}:{O+11}] offset:{L_P + 768 + 256}")
        A.setexec(ALL)
    def lds_sum8(dst, addr):
        for k in range(8):
            A(f"ds_read_b32 v{B+k}, {addr} offset:{L_P + 768*k}")
        A("s_waitcnt lgkmcnt(4)")
        A(f"v_add_f32 v{B}, v{B}, v{B+1}")
        A(f"v_add_f32 v{B+2}, v{B+2}, v{B+3}")
        A("s_waitcnt lgkmcnt(0)")
        A(f"v_add_f32 v{B+4}, v{B+4}, v{B+5}")
        A(f"v_add_f32 v{B+6}, v{B+6}, v{B+7}")
        A(f"v_add_f32 v{B}, v{B}, v{B+2}")
        A(f"v_add_f32 v{B+4}, v{B+4}, v{B+6}")
        A(f"v_add_f32 {dst}, v{B}, v{B+4}")
    A("s_nop 7")
    lds_put3()
    q, i, t0, t1 = vT[0], vT[1], vT[2], vT[3]
    A(f"v_lshlrev_b32 {vA1}, 2, v0")
    A(f"v_and_b32 {t0}, 0xe0, v0")
    A(f"v_and_b32 {t1}, 3, v0")
    A(f"v_lshl_add_u32 {t0}, {t1}, 3, {t0}")
    A(f"v_bfe_u32 {t1}, v0, 2, 3")
    A(f"v_add_lshl_u32 {vZ}, {t0}, {t1}, 1")
    A("s_waitcnt lgkmcnt(0)")
    A("s_barrier")
    A(f"s_cmp_eq_u32 {sWAVE}, 3")
    A("s_cbranch_scc1 K1_q3")
    lds_sum8(t1, vA1)
    A(f"v_cvt_pk_bf16_f32 {t1}, {t1}, {t1}")
    A(f"ds_write_b16 {vZ}, {t1} offset:{L_QB}")
    A.label("K1_q3")
    A(f"v_and_b32 {t0}, 3, {vLANE}")
    A(f"v_lshl_add_u32 {t0}, {q}, 2, {t0}")
    A(f"v_and_b32 {t1}, 8, {vLANE}")
    A(f"v_add_lshl_u32 {vT[4]}, {t0}, {t1}, 4")
    A(f"v_cmp_gt_u32 vcc, 8, {i}")
    A(f"v_add_u32 {t1}, 16, {t0}")
    A(f"v_subrev_u32 {t0}, 8, {t0}")
    A(f"v_cndmask_b32 {t0}, {t0}, {t1}, vcc")
    A(f"v_lshlrev_b32 {t0}, 4, {t0}")
    for r in range(12):
        A(f"v_mov_b32 v{QB+r}, 0")
    A("s_waitcnt lgkmcnt(0)")
    A("s_barrier")
    A("s_cmp_lg_u32 s2, 0")
    A("s_cbranch_scc1 K1_noflag")
    A(f"s_cmp_lg_u32 {sWAVE}, 0")
    A("s_cbranch_scc1 K1_noflag")
    A(f"v_mov_b32 {vZ}, 1")
    A(f"v_mov_b32 {t1}, 0")
    A.setexec(1)
    A(f"buffer_store_dword {vZ}, {t1}, s[{sDBG}:{sDBG+3}], 0 offen sc1")
    A.setexec(ALL)
    A.label("K1_noflag")
    A.setexec(M_LO)
    A(f"ds_read_b128 v[{QB}:{QB+3}], {vT[4]} offset:{L_QB}")
    A.setexec(M_HI)
    A(f"ds_read_b128 v[{QB+8}:{QB+11}], {vT[4]} offset:{L_QB}")
    A.setexec(M_T1)
    A(f"ds_read_b128 v[{QB+4}:{QB+7}], {t0} offset:{L_QB}")
    A.setexec(ALL)
    for r in range(O, O + 12):
        A(f"v_mov_b32 v{r}, 0")
    A(f"v_mov_b32 {vT[4]}, 0")
    A("s_waitcnt lgkmcnt(0)")

    st()
    won = 0
    s, t = vT[0], vT[1]
    for n in range(NT):
        slot = n % T
        vq.wait(("k", n))
        for tt in range(3):
            r = R0 + slot * 12 + tt * 4
            c = "0" if tt == 0 else f"v[{D}:{D+3}]"
            A(f"v_mfma_f32_16x16x32_bf16 v[{D}:{D+3}], v[{r}:{r+3}], v[{QB+4*tt}:{QB+4*tt+3}], {c}")
        nn = n + T
        if nn < NT: ld_tile(slot, False, nn)
        else: ld_tile(slot, True, nn - NT)
        if n >= wo_start and won < 60:
            ld_wo(won); won += 1
        else:
            A("s_nop 0")
        if n == NT - T - 2:
            A(f"buffer_load_dword {vZ}, {vT[4]}, s[{sDBG}:{sDBG+3}], 0 offen sc1")
            vq.issue("z")
        A(f"v_mov_b32_dpp {s}, v{D} quad_perm:[0,0,0,0] row_mask:0xf bank_mask:0xf")
        for r in range(1, 4):
            A(f"v_add_f32_dpp {s}, v{D+r}, {s} quad_perm:[{r},{r},{r},{r}] row_mask:0xf bank_mask:0xf")
        A.rb(s, s)
        A(f"v_mul_f32 {s}, {F(192 ** -0.5)}, {s}")
        A.rb(s, s)
        A(f"v_max_f32 {vMAX}, {vMAX}, {s}")
        A(f"ds_write_b32 {vSC}, {s} offset:{n*32}")
    assert won == 60
    st()
    A.wave_red("max", vMAX, sM)
    A(f"s_lshl_b32 {sT0}, {sWAVE}, 11")
    A(f"s_add_u32 {sT0}, {sT0}, {L_SC}")
    A(f"v_lshl_add_u32 {vT[0]}, {vLANE}, 5, {sT0}")
    A("s_waitcnt lgkmcnt(0)")
    A(f"ds_read_b128 v[{B}:{B+3}], {vT[0]}")
    A(f"ds_read_b128 v[{B+4}:{B+7}], {vT[0]} offset:16")
    A("s_waitcnt lgkmcnt(0)")
    for r in range(8):
        A(f"v_subrev_f32 v{B+r}, {sM}, v{B+r}")
    for r in range(8):
        A(f"v_mul_f32 v{B+r}, {F(LOG2E)}, v{B+r}")
    for r in range(8):
        A(f"v_exp_f32 v{B+r}, v{B+r}")
    A("s_nop 0")
    A(f"v_add_f32 {vT[1]}, v{B}, v{B+1}")
    for r in range(2, 8):
        A(f"v_add_f32 {vT[1]}, {vT[1]}, v{B+r}")
    for r in range(8):
        A(f"v_cvt_pk_bf16_f32 v{B+r}, v{B+r}, v{B+r}")
    A(f"ds_write_b128 {vT[0]}, v[{B}:{B+3}]")
    A(f"ds_write_b128 {vT[0]}, v[{B+4}:{B+7}] offset:16")
    A.wave_red("add", vT[1], sL)
    vq.wait("z")
    A(f"s_mov_b32 {sSPIN}, 0x100000")
    A.label("K1_zchk")
    A(f"v_readfirstlane_b32 {sT0}, {vZ}")
    A(f"s_cmp_lg_u32 {sT0}, 0")
    A("s_cbranch_scc1 K1_zok")
    A(f"s_sub_u32 {sSPIN}, {sSPIN}, 1")
    A(f"s_cmp_eq_u32 {sSPIN}, 0")
    A("s_cbranch_scc1 K1_zok")
    A("s_sleep 8")
    A(f"buffer_load_dword {vZ}, {vT[4]}, s[{sDBG}:{sDBG+3}], 0 offen sc1")
    A("s_waitcnt vmcnt(0)")
    A("s_branch K1_zchk")
    A.label("K1_zok")
    A(f"v_mov_b32 v{ML}, {sM}")
    A(f"v_mov_b32 v{ML+1}, {sL}")
    A(f"v_mov_b32 v{ML+2}, 1")
    A(f"v_mov_b32 v{ML+3}, 1")
    A(f"s_lshl_b32 {sT0}, {sBH}, 7")
    A(f"s_add_u32 {sT0}, {sT0}, {WS_ML}")
    A(f"v_lshl_add_u32 {vZ}, {vLANE}, 4, {sT0}")
    A(f"s_lshl_b32 {sT1}, {sHALF}, 2")
    A(f"s_add_u32 {sT1}, {sT1}, {sWAVE}")
    A(f"s_lshl_b32 {sT1}, {sT1}, 4")
    A.setexec(1)
    A(f"buffer_store_dwordx4 v[{ML}:{ML+3}], {vZ}, s[{sWS}:{sWS+3}], {sT1} offen sc1")
    vq.issue("mlst")
    A.setexec(ALL)
    st()
    PP = [QB + n for n in range(8)]
    A("s_waitcnt lgkmcnt(0)")
    for n in range(4):
        A(f"ds_read_b32 v{PP[n]}, {vSC} offset:{n*32}")
    def fcalc():
        vq.wait("ml")
        A(f"s_mov_b32 {sSPIN}, 0x100000")
        A.label("K1_mlchk")
        A(f"v_cmp_ne_u32 vcc, 0, v{ML+2}")
        A("s_nop 1")
        A("s_and_b32 vcc_lo, vcc_lo, 0xff")
        A("s_cmp_eq_u32 vcc_lo, 0xff")
        A("s_cbranch_scc1 K1_mlok")
        A(f"s_sub_u32 {sSPIN}, {sSPIN}, 1")
        A(f"s_cmp_eq_u32 {sSPIN}, 0")
        A("s_cbranch_scc1 K1_mlok")
        A("s_sleep 8")
        A.setexec(0xff)
        A(f"buffer_load_dwordx4 v[{ML}:{ML+3}], {vZ}, s[{sWS}:{sWS+3}], 0 offen sc1")
        A.setexec(ALL)
        A("s_waitcnt vmcnt(0)")
        A("s_branch K1_mlchk")
        A.label("K1_mlok")
        mm, e = vT[0], vT[1]
        A(f"v_mov_b32 {mm}, v{ML}")
        for st in Asm.DPP_STEPS[:3]:
            A("s_nop 1")
            A(f"v_max_f32_dpp {mm}, {mm}, {mm} {st}")
        A(f"v_sub_f32 {e}, v{ML}, {mm}")
        A(f"v_sub_f32 {mm}, {sM}, {mm}")
        A(f"v_mul_f32 {e}, {F(LOG2E)}, {e}")
        A(f"v_mul_f32 {mm}, {F(LOG2E)}, {mm}")
        A(f"v_exp_f32 {e}, {e}")
        A(f"v_exp_f32 {mm}, {mm}")
        A(f"v_mul_f32 {e}, {e}, v{ML+1}")
        for st in Asm.DPP_STEPS[:3]:
            A("s_nop 1")
            A(f"v_add_f32_dpp {e}, {e}, {e} {st}")
        A(f"v_rcp_f32 {e}, {e}")
        A("s_nop 0")
        A(f"v_mul_f32 {e}, {e}, {mm}")
        A("s_nop 0")
        A(f"v_readfirstlane_b32 {sF}, {e}")
    for n in range(NT):
        slot = (NT + n) % T
        bb = B + 4 * (n & 1)
        if n + 4 < NT:
            A(f"ds_read_b32 v{PP[(n+4)%8]}, {vSC} offset:{(n+4)*32}")
            A("s_waitcnt lgkmcnt(4)")
        else:
            A(f"s_waitcnt lgkmcnt({NT-1-n})")
        for r in range(4):
            A(f"v_and_b32 v{bb+r}, v{PP[n%8]}, {vM[r]}")
        vq.wait(("v", n))
        A("s_nop 1")
        for tt in range(3):
            r = R0 + slot * 12 + tt * 4
            A(f"v_mfma_f32_16x16x32_bf16 v[{O+4*tt}:{O+4*tt+3}], v[{r}:{r+3}], v[{bb}:{bb+3}], v[{O+4*tt}:{O+4*tt+3}]")
        if n + T < NT:
            ld_tile(slot, True, n + T)
        if n == NT - T - 4:
            A.setexec(0xff)
            A(f"buffer_load_dwordx4 v[{ML}:{ML+3}], {vZ}, s[{sWS}:{sWS+3}], 0 offen sc1")
            vq.issue("ml")
            A.setexec(ALL)
        if n == NT - 4:
            fcalc()
    st()
    A("s_nop 7")
    for r in range(12):
        A(f"v_mul_f32 v{O+r}, {sF}, v{O+r}")
    lds_put3()
    A(f"v_lshrrev_b32 {vT[0]}, 4, {vLANE}")
    A(f"s_lshr_b32 {sT0}, {sWAVE}, 1")
    A(f"s_mul_i32 {sT0}, {sT0}, 24")
    A(f"s_and_b32 {sT1}, {sWAVE}, 1")
    A(f"s_lshl_b32 {sT1}, {sT1}, 2")
    A(f"s_add_u32 {sT0}, {sT0}, {sT1}")
    A(f"v_add_lshl_u32 {vT[0]}, {vT[0]}, {sT0}, 4")
    A(f"v_and_b32 {vT[1]}, 8, {vLANE}")
    A(f"v_mul_u32_u24 {vT[1]}, 96, {vT[1]}")
    A(f"v_add_u32 {vT[0]}, {vT[0]}, {vT[1]}")
    A("s_waitcnt lgkmcnt(0)")
    A("s_barrier")
    st()
    A(f"s_cmp_eq_u32 {sWAVE}, 3")
    A("s_cbranch_scc1 K1_o3")
    lds_sum8(vT[1], vA1)
    A.rb(vT[2], vT[1])
    A(f"v_cvt_pk_bf16_f32 {vT[3]}, {vT[1]}, {vT[1]}")
    A(f"v_sub_f32 {vT[2]}, {vT[1]}, {vT[2]}")
    A(f"ds_write_b32 {vA1}, {vT[3]} offset:{L_PH}")
    A(f"v_cvt_pk_bf16_f32 {vT[2]}, {vT[2]}, {vT[2]}")
    A(f"ds_write_b32 {vA1}, {vT[2]} offset:{L_PH + 768}")
    A("s_waitcnt lgkmcnt(0)")
    A.label("K1_o3")
    A("s_barrier")
    for k in range(3):
        A(f"ds_read_b128 v[{O+4*k}:{O+4*k+3}], {vT[0]} offset:{L_PH + 128*k}")
    BO = R0
    YD = R0 + 48
    for rg in range(12):
        if rg % 4 == 0:
            A(f"s_waitcnt lgkmcnt({2 - rg//4})")
        for r in range(4):
            A(f"v_and_b32 v{BO+4*rg+r}, v{O+rg}, {vM[r]}")
    vq.wait("wo")
    A("s_nop 1")
    def yout(c):
        for r in range(4):
            A(f"v_add_f32_dpp v{YD+4*c+r}, v{YD+4*c+r}, v{YD+4*c+r} row_ror:8 row_mask:0xf bank_mask:0xf")
        A.setexec(M_LO)
        A(f"ds_write_b128 {vAY}, v[{YD+4*c}:{YD+4*c+3}] offset:{L_YP + c*512}")
        A.setexec(ALL)
    for c in range(5):
        for rg in range(12):
            n = rg * 5 + c
            cc = "0" if rg == 0 else f"v[{YD+4*c}:{YD+4*c+3}]"
            A(f"v_mfma_f32_16x16x32_bf16 v[{YD+4*c}:{YD+4*c+3}], a[{4*n}:{4*n+3}], v[{BO+4*rg}:{BO+4*rg+3}], {cc}")
            if rg == 8 and c > 0:
                yout(c - 1)
    A("s_nop 7")
    yout(4)
    A(f"v_and_b32 {vT[0]}, 0xe0, v0")
    A(f"v_and_b32 {vT[1]}, 7, v0")
    A(f"v_lshl_add_u32 {vT[0]}, {vT[1]}, 2, {vT[0]}")
    A(f"v_bfe_u32 {vT[1]}, v0, 3, 2")
    A(f"v_add_lshl_u32 {vT[0]}, {vT[0]}, {vT[1]}, 2")
    A(f"s_mul_i32 {sT0}, {sB}, 2560")
    A("s_waitcnt lgkmcnt(0)")
    A("s_barrier")
    st()
    for k in range(2):
        for w in range(4):
            A(f"ds_read_b32 v{O+4*k+w}, {vT[0]} offset:{L_YP + 2560*w + 1024*k}")
    A(f"s_cmp_ge_u32 {sWAVE}, 2")
    A("s_cbranch_scc1 K1_two")
    for w in range(4):
        A(f"ds_read_b32 v{O+8+w}, {vT[0]} offset:{L_YP + 2560*w + 2048}")
    A("s_waitcnt lgkmcnt(0)")
    A(f"v_add_f32 v{O+8}, v{O+8}, v{O+9}")
    A(f"v_add_f32 v{O+10}, v{O+10}, v{O+11}")
    A(f"v_add_f32 v{O+8}, v{O+8}, v{O+10}")
    A(f"buffer_atomic_add_f32 v{O+8}, {vA1}, s[{sWS}:{sWS+3}], {sT0} offen offset:{WS_ACC + 2048}")
    A.label("K1_two")
    A("s_waitcnt lgkmcnt(0)")
    for k in range(2):
        A(f"v_add_f32 v{O+4*k}, v{O+4*k}, v{O+4*k+1}")
        A(f"v_add_f32 v{O+4*k+2}, v{O+4*k+2}, v{O+4*k+3}")
    for k in range(2):
        A(f"v_add_f32 v{O+4*k}, v{O+4*k}, v{O+4*k+2}")
        A(f"buffer_atomic_add_f32 v{O+4*k}, {vA1}, s[{sWS}:{sWS+3}], {sT0} offen offset:{WS_ACC + 1024*k}")
    if stamps:
        A("s_waitcnt vmcnt(0)")
        st()
        st.flush(sWS, 524288, sWAVE, vT[0], vT[1])
    A.label("K1_end")
    A("s_endpgm")
    acc = (NV + 3) // 4 * 4
    return kd(name, acc + 240, 100, acc)

def gelu_acc(A, u, w2, acc, t0, t1):
    K0 = -2.0 * 0.7978845608028654 * LOG2E
    K1 = K0 * 0.044715
    A(f"v_mul_f32 {t0}, {u}, {u}")
    A(f"v_fmaak_f32 {t0}, {t0}, {t1}, {F(K0)}")
    A(f"v_mul_f32 {t0}, {t0}, {u}")
    A(f"v_exp_f32 {t0}, {t0}")
    A("s_nop 0")
    A(f"v_add_f32 {t0}, 1.0, {t0}")
    A(f"v_rcp_f32 {t0}, {t0}")
    A("s_nop 0")
    A(f"v_mul_f32 {u}, {u}, {t0}")
    A.rb(u, u)
    A(f"v_fmac_f32 {acc}, {u}, {w2}")

def gen_k2(A, name, stamps=False):
    st = Stamps(A, stamps, 72)
    sX, sW1, sB1, sW2, sB2, sOUT, sWS = 24, 28, 32, 36, 40, 44, 48
    A.raw(".p2align 8")
    A.raw(f".type {name},@function")
    A.label(name)
    A("s_cmp_ge_u32 s2, 256")
    A("s_cbranch_scc1 K2_end")
    st()
    A("s_load_dwordx2 s[4:5], s[0:1], 0")
    A("s_load_dwordx8 s[8:15], s[0:1], 48")
    A("s_load_dwordx2 s[16:17], s[0:1], 80")
    A("s_load_dwordx2 s[18:19], s[0:1], 96")
    A("v_and_b32 v1, 63, v0")
    A("s_lshr_b32 s52, s2, 6")
    A("s_and_b32 s53, s2, 63")
    A("s_mul_i32 s53, s53, 10")
    A("s_waitcnt lgkmcnt(0)")
    A("s_mul_i32 s54, s52, 1280")
    A.srd_off(sX, 4, "s54", 1280)
    A.srd_off(sOUT, 16, "s54", 1280)
    A("s_mul_i32 s54, s52, 2560")
    A.srd_off(sWS, 18, "s54", 2560)
    A.srd(sW1, "s8", "s9", 3072)
    A.srd(sB1, "s10", "s11", 3072)
    A.srd(sW2, "s12", "s13", 3072)
    A.srd(sB2, "s14", "s15", 4)
    A("v_lshlrev_b32 v2, 2, v1")
    A("v_lshlrev_b32 v3, 3, v1")
    for n in range(5):
        A(f"buffer_load_dwordx2 v[{10+2*n}:{11+2*n}], v3, s[{sWS}:{sWS+3}], 0 offen offset:{n*512}")
    for n in range(5):
        A(f"buffer_load_dword v{20+n}, v2, s[{sX}:{sX+3}], 0 offen offset:{n*256}")
    A("v_mul_u32_u24 v4, 12, v0")
    A(f"buffer_load_dwordx3 v[40:42], v4, s[{sW1}:{sW1+3}], 0 offen")
    A(f"buffer_load_dwordx3 v[44:46], v4, s[{sB1}:{sB1+3}], 0 offen")
    A(f"buffer_load_dwordx3 v[48:50], v4, s[{sW2}:{sW2+3}], 0 offen")
    A("v_mov_b32 v5, 0")
    A(f"buffer_load_ushort v51, v5, s[{sB2}:{sB2+3}], 0 offen")
    A("s_waitcnt vmcnt(4)")
    st()
    h = [f"v{10+n}" for n in range(10)]
    hn = [f"v{26+n}" for n in range(10)]
    for n in range(10):
        A.rb(h[n], h[n])
    for n in range(5):
        A(f"v_lshlrev_b32 v6, 16, v{20+n}")
        A(f"v_and_b32 v7, 0xffff0000, v{20+n}")
        A(f"v_add_f32 {h[2*n]}, {h[2*n]}, v6")
        A(f"v_add_f32 {h[2*n+1]}, {h[2*n+1]}, v7")
    for n in range(10):
        A.rb(h[n], h[n])
    A.layernorm(h, hn, "v6", "v7", "v8", "s55")
    A.layernorm(hn, hn, "v6", "v7", "v8", "s55")
    for n in range(5):
        A(f"ds_write_b64 v3, v[{26+2*n}:{27+2*n}] offset:{n*512}")
        A(f"ds_write_b64 v3, v[{10+2*n}:{11+2*n}] offset:{2560 + n*512}")
    A("s_lshl_b32 s55, s53, 2")
    A("v_mov_b32 v6, s55")
    A("s_waitcnt lgkmcnt(0)")
    for n in range(5):
        A(f"ds_read_b64 v[{26+2*n}:{27+2*n}], v6 offset:{n*8}")
    A("s_waitcnt vmcnt(0)")
    W1 = [f"v{60+n}" for n in range(6)]; B1 = [f"v{66+n}" for n in range(6)]; W2 = [f"v{72+n}" for n in range(6)]
    for dst, src in ((W1, 40), (B1, 44), (W2, 48)):
        for n in range(3):
            A(f"v_lshlrev_b32 {dst[2*n]}, 16, v{src+n}")
            A(f"v_and_b32 {dst[2*n+1]}, 0xffff0000, v{src+n}")
    acc = [f"v{80+n}" for n in range(10)]
    for n in range(10):
        A(f"v_mov_b32 {acc[n]}, 0")
    A(f"v_mov_b32 v9, {F(-2.0 * 0.7978845608028654 * LOG2E * 0.044715)}")
    A("s_waitcnt lgkmcnt(0)")
    st()
    for e in range(10):
        for f in range(6):
            A(f"v_mul_f32 v7, {hn[e]}, {W1[f]}")
            A.rb("v7", "v7")
            A(f"v_add_f32 v7, v7, {B1[f]}")
            A.rb("v7", "v7")
            gelu_acc(A, "v7", W2[f], acc[e], "v8", "v9")
    st()
    ss = [f"s{60+n}" for n in range(10)]
    A.wave_red("add", acc, ss)
    for e in range(10):
        A(f"v_writelane_b32 v7, {ss[e]}, {e}")
    A("v_lshrrev_b32 v8, 6, v0")
    A("v_lshlrev_b32 v8, 6, v8")
    A("v_lshl_add_u32 v8, v1, 2, v8")
    A.setexec(0x3ff)
    A("ds_write_b32 v8, v7 offset:5120")
    A.setexec(ALL)
    A("s_waitcnt lgkmcnt(0)")
    A("s_barrier")
    if stamps:
        st()
        A.srd(20, "s18", "s19", WS_SIZE)
        A("v_lshrrev_b32 v8, 6, v0")
        A("s_nop 0")
        A("v_readfirstlane_b32 s55, v8")
        st.flush(20, 524288 + 65536, "s55", "v7", "v8")
        A.setexec(ALL)
    A("v_cmp_gt_u32 vcc, 10, v0")
    A("s_and_saveexec_b64 s[56:57], vcc")
    A("s_cbranch_execz K2_end")
    for w in range(4):
        A(f"ds_read_b32 v{10+w}, v2 offset:{5120 + 64*w}")
    A("v_add_u32 v6, v6, v2")
    A("ds_read_b32 v14, v6 offset:2560")
    A("s_waitcnt lgkmcnt(0)")
    A("v_add_f32 v10, v10, v11")
    A("v_add_f32 v12, v12, v13")
    A("v_add_f32 v10, v10, v12")
    A.rb("v10", "v10")
    A("v_lshlrev_b32 v51, 16, v51")
    A("v_add_f32 v10, v10, v51")
    A.rb("v10", "v10")
    A("v_add_f32 v10, v10, v14")
    A("v_cvt_pk_bf16_f32 v10, v10, v10")
    A("v_lshrrev_b32 v6, 1, v6")
    A(f"buffer_store_short v10, v6, s[{sOUT}:{sOUT+3}], 0 offen")
    A.label("K2_end")
    A("s_endpgm")
    return kd(name, 96, 100, 96)

def gen(**kw):
    A = Asm()
    A.raw(HDR.rstrip())
    A.raw(f"; @launch kernel=attn_kernel grid=(256,1,1) block=(256,1,1) lds={L_END}")
    A.raw(f"; @launch kernel=mlp_kernel grid=(256,1,1) block=(256,1,1) lds=5632")
    A.raw('.amdgcn_target "amdgcn-amd-amdhsa--gfx950"')
    A.raw(".text")
    d1 = gen_k1(A, "attn_kernel", **kw)
    d2 = gen_k2(A, "mlp_kernel", kw.get("stamps", False))
    return A.text() + d1 + d2

if __name__ == "__main__":
    kw = eval("dict(%s)" % (sys.argv[2] if len(sys.argv) > 2 else ""))
    open(sys.argv[1], "w").write(gen(**kw))
```

```python
import sys
from asmlib import *

KN = "sequential_preLN__mha_block_cached__mixer_token_mlp__decode_kernel"
HDR = open("sequential_preLN__mha_block_cached__mixer_token_mlp__decode.s.ref").read().split("; Override launch")[0]
LOG2E = 1.4426950408889634
WS_ACC, WS_CNT, WS_ML, WS_ZEND = 0, 10240, 12288, 28672
WS_TD = WS_CNT + 512
WS_TAB = 65536
WS_STAMP = 524288
WS_SIZE = 1 << 20
L_XN = 0
L_P = 2560
L_QB = L_P + 6144
L_PH = L_QB + 512
L_W = L_PH + 1536
L_YP = L_W + 18432
L_SC = L_YP + 10240
L_END = L_SC + 8192
M_LO, M_HI, M_T1 = 0x00FF00FF00FF00FF, 0xFF00FF00FF00FF00, 0xFF00FF0000FF00FF
ALL = (1 << 64) - 1

class Stamps:
    def __init__(self, A, on, s0): self.A = A; self.on = on; self.s0 = s0; self.n = 0
    def __call__(self):
        if self.on:
            s = self.s0 + 2 * self.n
            self.A(f"s_memrealtime s[{s}:{s+1}]")
            self.n += 1
    def flush(self, srd, base, swave, v0, v1, first=0):
        if not self.on: return
        A = self.A
        A("s_waitcnt lgkmcnt(0)")
        A("s_lshl_b32 s6, s2, 2")
        A(f"s_add_u32 s6, s6, {swave}")
        A("s_lshl_b32 s6, s6, 6")
        A(f"s_add_u32 s6, s6, {base}")
        A(f"v_mov_b32 {v1}, 0")
        A.setexec(1)
        for n in range(self.n):
            A(f"v_mov_b32 {v0}, s{self.s0 + 2*n}")
            A(f"buffer_store_dword {v0}, {v1}, s[{srd}:{srd+3}], s6 offen offset:{4*n}")
        A("s_getreg_b32 s7, hwreg(HW_REG_XCC_ID)")
        A(f"v_mov_b32 {v0}, s7")
        A(f"buffer_store_dword {v0}, {v1}, s[{srd}:{srd+3}], s6 offen offset:60")
        A.setexec(ALL)

class VQ:
    CAP = 54
    def __init__(self, A): self.A = A; self.q = []
    def op(self, text, tag):
        if len(self.q) >= self.CAP:
            self.A(f"s_waitcnt vmcnt({self.CAP - 1})")
            self.q = self.q[-(self.CAP - 1):]
        self.A(text)
        self.q.append(tag)
    def wait(self, tag):
        if tag not in self.q: return
        pos = len(self.q) - 1 - self.q[::-1].index(tag)
        self.A(f"s_waitcnt vmcnt({len(self.q) - 1 - pos})")
        self.q = self.q[pos + 1:]

def gen(T=12, kpre=12, rot=1, wo_start=0, stamps=False, kf='nt', vf='nt', wf='nt', nfirst=12, tab_start=16, table=True):
    A = Asm()
    A.raw(HDR.rstrip())
    A.raw(f"; @launch grid=(256,1,1) block=(256,1,1) lds={L_END}")
    A.raw('.amdgcn_target "amdgcn-amd-amdhsa--gfx950"')
    A.raw(".text")
    A.raw(f".globl {KN}")
    st = Stamps(A, stamps, 76)
    NT = 64
    STEP = 12288
    REGION = 786432
    sX, sK, sV, sWQ, sWO, sWS, sDBG = 24, 28, 32, 36, 40, 44, 48
    sOUT = 36
    sWAVE, sB, sH, sHALF, sBH, sT0, sT1 = "s52", "s53", "s54", "s55", "s56", "s57", "s58"
    sKREL, sVREL, sWB, sOFF, sWQOFF, sWOOFF, sM, sL, sF, sSPIN = "s59", "s60", "s61", "s62", "s63", "s64", "s65", "s66", "s67", "s68"
    sB2 = "s69"
    sK0, sONE, sRET = 70, 72, 74
    vLANE, vKO, vVO, vQ0, vQ1, vQ2, vWO = "v1", "v2", "v3", "v4", "v5", "v6", "v7"
    vM = ["v8", "v9", "v10", "v11"]
    vA0, vA1, vAY, vSC, vXN, vMAX, vZ = "v12", "v13", "v14", "v15", "v16", "v17", "v18"
    vT = [f"v{i}" for i in range(19, 24)]
    QB = 24
    D = 36
    O = 40
    B = 52
    ML = 60
    TW = 64
    TX, TACC, TK1 = 88, 90, 92
    vTA = "v94"
    XS = 95
    R0 = 100
    NV = R0 + 12 * T
    assert NV <= 256
    vq = VQ(A)

    A.raw(".p2align 8")
    A.raw(f".type {KN},@function")
    A.label(KN)
    A("s_cmp_ge_u32 s2, 256")
    A("s_cbranch_scc1 L_end")
    st()
    A("s_load_dwordx8 s[8:15], s[0:1], 0")
    A("s_load_dwordx2 s[16:17], s[0:1], 32")
    A("s_load_dwordx4 s[20:23], s[0:1], 88")
    A(f"v_lshrrev_b32 {vT[0]}, 6, v0")
    A(f"v_and_b32 {vLANE}, 63, v0")
    A(f"v_readfirstlane_b32 {sWAVE}, {vT[0]}")
    A(f"s_and_b32 {sH}, s2, 7")
    A(f"s_lshr_b32 {sT0}, s2, 3")
    A(f"s_lshl_b32 {sH}, {sH}, 2")
    A(f"s_and_b32 {sT1}, {sT0}, 3")
    A(f"s_add_u32 {sH}, {sH}, {sT1}")
    A(f"s_lshr_b32 {sB}, {sT0}, 3")
    A(f"s_bfe_u32 {sHALF}, {sT0}, 0x10002")
    A(f"s_lshl_b32 {sBH}, {sB}, 5")
    A(f"s_add_u32 {sBH}, {sBH}, {sH}")
    q, i, t0, t1 = vT[0], vT[1], vT[2], vT[3]
    A(f"v_lshrrev_b32 {q}, 4, {vLANE}")
    A(f"v_and_b32 {i}, 15, {vLANE}")
    A(f"v_lshrrev_b32 {t0}, 2, {i}")
    A(f"v_mul_u32_u24 {vKO}, 768, {t0}")
    A(f"v_lshl_add_u32 {vKO}, {q}, 6, {vKO}")
    A(f"v_and_b32 {t0}, 3, {i}")
    A(f"v_lshl_add_u32 {vKO}, {t0}, 4, {vKO}")
    A(f"v_mul_u32_u24 {vVO}, 768, {q}")
    A(f"v_lshl_add_u32 {vVO}, {i}, 4, {vVO}")
    A(f"v_mul_u32_u24 {vQ0}, 24576, {q}")
    A(f"v_lshl_add_u32 {vQ0}, {i}, 4, {vQ0}")
    A(f"v_add_u32 {vQ1}, 256, {vQ0}")
    A(f"v_add_u32 {vQ2}, {12288-128}, {vQ0}")
    A(f"v_cmp_gt_u32 vcc, 8, {i}")
    A(f"v_mul_u32_u24 {vWO}, 1280, {q}")
    A(f"v_lshl_add_u32 {vWO}, {i}, 4, {vWO}")
    A(f"v_cndmask_b32 {vQ1}, {vQ2}, {vQ1}, vcc")
    A(f"v_add_u32 {vQ2}, {12288+128}, {vQ0}")
    for r in range(O, O + 12):
        A(f"v_mov_b32 v{r}, 0")
    A(f"v_lshlrev_b32 {t0}, 4, v0")
    A(f"v_lshlrev_b32 {t1}, 2, {vLANE}")
    A(f"s_lshl_b32 {sT1}, {sBH}, 1")
    A(f"s_add_u32 {sT1}, {sT1}, {sHALF}")
    A(f"s_mul_i32 {sKREL}, {sT1}, {rot}")
    A(f"s_and_b32 {sKREL}, {sKREL}, 63")
    A(f"s_mul_i32 {sKREL}, {sKREL}, {STEP}")
    A(f"s_mov_b32 {sVREL}, {sKREL}")
    A(f"s_mul_i32 {sT1}, {sT1}, {REGION}")
    A(f"s_mul_i32 {sWB}, {sWAVE}, 3072")
    A(f"s_mul_i32 {sWQOFF}, {sH}, 384")
    A(f"s_mul_i32 {sT0}, {sWAVE}, {160*12288}")
    A(f"s_add_u32 {sWQOFF}, {sWQOFF}, {sT0}")
    A(f"s_lshr_b32 {sT0}, {sWAVE}, 1")
    A(f"s_mul_i32 {sWOOFF}, {sT0}, {96*1280}")
    A(f"s_and_b32 {sT0}, {sWAVE}, 1")
    A(f"s_mul_i32 {sT0}, {sT0}, {4*1280}")
    A(f"s_add_u32 {sWOOFF}, {sWOOFF}, {sT0}")
    A(f"s_mul_i32 {sT0}, {sB}, 1280")
    A("s_waitcnt lgkmcnt(0)")
    A.srd_off(sX, 8, sT0, 1280)
    for n in range(5):
        vq.op(f"buffer_load_dword v{XS+n}, {t1}, s[{sX}:{sX+3}], 0 offen offset:{n*256}", "x")
    A.srd(sWQ, "s14", "s15", 640 * 12288)
    A.srd_off(sK, 10, sT1, REGION)
    A.srd_off(sV, 12, sT1, REGION)
    A(f"s_mul_i32 {sT0}, {sH}, 245760")
    A.srd_off(sWO, 16, sT0, 245760)
    A.srd(sWS, "s22", "s23", WS_SIZE)
    A.srd(sDBG, "s20", "s21", 256)
    A("s_load_dwordx8 s[8:15], s[0:1], 48")
    A("s_cmp_lg_u32 s2, 0")
    A("s_cbranch_scc1 L_nozero")
    for n in range(WS_ZEND // 4096):
        A(f"s_movk_i32 {sT0}, {n*4096}")
        A(f"buffer_store_dwordx4 v[{O}:{O+3}], {t0}, s[{sWS}:{sWS+3}], {sT0} offen sc1")
    A.label("L_nozero")

    def ld_tile(slot, isv, n):
        rel, srd, off = (sVREL, sV, vVO) if isv else (sKREL, sK, vKO)
        A(f"s_add_u32 {sOFF}, {sWB}, {rel}")
        for t in range(3):
            r = R0 + slot * 12 + t * 4
            vq.op(f"buffer_load_dwordx4 v[{r}:{r+3}], {off}, s[{srd}:{srd+3}], {sOFF} offen offset:{t*256} {vf if isv else kf}", ("v" if isv else "k", n))
        A(f"s_add_u32 {rel}, {rel}, {STEP}")
        A(f"s_cmp_ge_u32 {rel}, {REGION}")
        A(f"s_cselect_b32 {rel}, 0, {rel}")
    def ld_wq(n):
        for t, o in enumerate((vQ0, vQ1, vQ2)):
            r = n * 12 + t * 4
            vq.op(f"buffer_load_dwordx4 a[{r}:{r+3}], {o}, s[{sWQ}:{sWQ+3}], {sWQOFF} offen {wf}", ("wq", n))
        A(f"s_add_u32 {sWQOFF}, {sWQOFF}, {8*12288}")
    def ld_wo(n):
        rg, c = divmod(n, 5)
        vq.op(f"buffer_load_dwordx4 a[{4*n}:{4*n+3}], {vWO}, s[{sWO}:{sWO+3}], {sWOOFF} offen offset:{c*256} {wf}", "wo")
        if c == 4:
            A(f"s_add_u32 {sWOOFF}, {sWOOFF}, {8*1280}")

    head = []
    ki = 0
    for n in range(20):
        head.append(("wq", n))
        if ki < kpre and (n + 1) * kpre >= (ki + 1) * 20:
            head.append(("k", ki)); ki += 1
    while ki < T:
        head.append(("k", ki)); ki += 1
    def do_head(items):
        for kind, n in items:
            if kind == "wq": ld_wq(n)
            else: ld_tile(n, False, n)
    do_head(head[:2])
    A("s_waitcnt lgkmcnt(0)")
    sW = 16
    for ptr, dst in ((8, B), (10, B + 4), (12, D)):
        A.srd(sW, f"s{ptr}", f"s{ptr+1}", 3072)
        vq.op(f"buffer_load_dwordx4 v[{dst}:{dst+3}], {t0}, s[{sW}:{sW+3}], 0 offen", "mw")
    A(f"s_load_dword {sB2}, s[14:15], 0")
    A("s_load_dwordx2 s[20:21], s[0:1], 80")
    do_head(head[2:nfirst])
    jl = vT[2]
    A(f"v_and_b32 {jl}, 7, {vLANE}")
    A(f"v_and_b32 {t1}, 1, {vLANE}")
    A(f"v_cmp_eq_u32 vcc, 1, {t1}")
    A(f"v_mov_b32 {vT[4]}, 0xffff")
    A(f"v_mov_b32 {vM[3]}, 0xffff0000")
    A(f"v_cndmask_b32 {vT[4]}, {vT[4]}, {vM[3]}, vcc")
    A(f"v_lshrrev_b32 {t1}, 1, {jl}")
    for r in range(4):
        A(f"v_cmp_eq_u32 vcc, {r}, {t1}")
        A("s_nop 1")
        A(f"v_cndmask_b32 {vM[r]}, 0, {vT[4]}, vcc")
    A(f"v_lshl_add_u32 {vAY}, {q}, 3, {jl}")
    A(f"v_lshlrev_b32 {vAY}, 4, {vAY}")
    A(f"s_mul_i32 {sT0}, {sWAVE}, 1536")
    A(f"v_add_u32 {vA0}, {sT0}, {vAY}")
    A(f"s_mul_i32 {sT0}, {sWAVE}, 2560")
    A(f"v_add_u32 {vAY}, {sT0}, {vAY}")
    A(f"v_lshrrev_b32 {t1}, 3, {vLANE}")
    A(f"s_lshl_b32 {sT0}, {sWAVE}, 11")
    A(f"s_add_u32 {sT0}, {sT0}, {L_SC}")
    A(f"v_lshl_add_u32 {vSC}, {t1}, 2, {sT0}")
    A(f"s_mul_i32 {sT0}, {sWAVE}, 640")
    A(f"v_lshl_add_u32 {vXN}, {t1}, 2, {sT0}")
    A(f"v_mov_b32 {vMAX}, 0xff800000")
    A(f"v_lshlrev_b32 {vA1}, 2, v0")
    A(f"s_lshl_b32 {sT0}, s2, 1")
    A(f"s_lshr_b32 {sT1}, {sWAVE}, 1")
    A(f"s_add_u32 {sT0}, {sT0}, {sT1}")
    A(f"s_lshl_b32 {sT0}, {sT0}, 6")
    A(f"s_lshr_b32 {sT1}, {sT0}, 14")
    A(f"s_lshl_b32 {sT1}, {sT1}, 15")
    A(f"s_and_b32 {sT0}, {sT0}, 0x3fff")
    A(f"s_add_u32 {sT0}, {sT0}, 512")
    A(f"s_or_b32 {sT0}, {sT0}, {sT1}")
    A(f"v_add_lshl_u32 v{TX}, {vLANE}, {sT0}, 16")
    A(f"v_mov_b32 v{TX+1}, v{TX}")
    A(f"v_mov_b32 v{TACC}, 0")
    A(f"v_mov_b32 v{TACC+1}, 0")
    K0 = -2.0 * 0.7978845608028654 * LOG2E
    A(f"v_mov_b32 v{TK1}, {F(K0 * 0.044715)}")
    A(f"v_mov_b32 v{TK1+1}, {F(K0 * 0.044715)}")
    A(f"s_mov_b32 s{sK0}, {F(K0)}")
    A(f"s_mov_b32 s{sK0+1}, {F(K0)}")
    A(f"s_mov_b32 s{sONE}, 1.0")
    A(f"s_mov_b32 s{sONE+1}, 1.0")
    A(f"s_and_b32 {sT0}, {sWAVE}, 1")
    A(f"s_mul_i32 {sT0}, {sT0}, {96*96}")
    A(f"s_add_u32 {sT0}, {sT0}, {L_W}")
    A(f"v_mov_b32 {vTA}, {sT0}")
    vq.wait("x")
    st()
    xs = [f"v{QB+n}" for n in range(10)]
    for n in range(5):
        A(f"v_lshlrev_b32 {xs[2*n]}, 16, v{XS+n}")
        A(f"v_and_b32 {xs[2*n+1]}, 0xffff0000, v{XS+n}")
    A.layernorm(xs, xs, vT[2], vT[3], vT[4], sT0)
    A(f"v_lshlrev_b32 {vT[2]}, 3, {vLANE}")
    for n in range(10):
        A(f"v_cvt_pk_bf16_f32 {xs[n]}, {xs[n]}, {xs[n]}")
    for n in range(5):
        A(f"ds_write_b64 {vT[2]}, v[{QB+2*n}:{QB+2*n+1}] offset:{L_XN + n*512}")
    vq.wait("mw")
    A(f"s_cmp_eq_u32 {sWAVE}, 3")
    A("s_cbranch_scc1 L_now")
    for k, src in enumerate((B, B + 4, D)):
        for n in range(4):
            A(f"v_lshlrev_b32 v{TW+8*k+2*n}, 16, v{src+n}")
            A(f"v_and_b32 v{TW+8*k+2*n+1}, 0xffff0000, v{src+n}")
    A(f"v_mul_u32_u24 {vT[2]}, 96, v0")
    for k in range(6):
        A(f"ds_write_b128 {vT[2]}, v[{TW+4*k}:{TW+4*k+3}] offset:{L_W + 16*k}")
    A.label("L_now")
    do_head(head[nfirst:])
    A("s_waitcnt lgkmcnt(0)")
    XP = [QB + n for n in range(12)] + [ML + n for n in range(4)] + [D + n for n in range(4)]
    for n in range(20):
        if n == 12: A("s_waitcnt lgkmcnt(4)")
        A(f"ds_read_b32 v{XP[n]}, {vXN} offset:{L_XN + n*32}")
    A("s_waitcnt lgkmcnt(0)")
    for n in range(20):
        bb = B + 4 * (n & 1)
        for r in range(4):
            A(f"v_and_b32 v{bb+r}, v{XP[n]}, {vM[r]}")
        vq.wait(("wq", n))
        A("s_nop 1")
        for t in range(3):
            r = n * 12 + t * 4
            A(f"v_mfma_f32_16x16x32_bf16 v[{O+4*t}:{O+4*t+3}], a[{r}:{r+3}], v[{bb}:{bb+3}], v[{O+4*t}:{O+4*t+3}]")
    def lds_put3():
        A.setexec(M_LO)
        A(f"ds_write_b128 {vA0}, v[{O}:{O+3}] offset:{L_P}")
        A.setexec(M_T1)
        A(f"ds_write_b128 {vA0}, v[{O+4}:{O+7}] offset:{L_P + 512}")
        A.setexec(M_HI)
        A(f"ds_write_b128 {vA0}, v[{O+8}:{O+11}] offset:{L_P + 768 + 256}")
        A.setexec(ALL)
    def lds_sum8(dst, addr):
        for k in range(8):
            A(f"ds_read_b32 v{B+k}, {addr} offset:{L_P + 768*k}")
        A("s_waitcnt lgkmcnt(4)")
        A(f"v_add_f32 v{B}, v{B}, v{B+1}")
        A(f"v_add_f32 v{B+2}, v{B+2}, v{B+3}")
        A("s_waitcnt lgkmcnt(0)")
        A(f"v_add_f32 v{B+4}, v{B+4}, v{B+5}")
        A(f"v_add_f32 v{B+6}, v{B+6}, v{B+7}")
        A(f"v_add_f32 v{B}, v{B}, v{B+2}")
        A(f"v_add_f32 v{B+4}, v{B+4}, v{B+6}")
        A(f"v_add_f32 {dst}, v{B}, v{B+4}")
    q, i, t0, t1 = vT[0], vT[1], vT[2], vT[3]
    A(f"v_and_b32 {t0}, 0xe0, v0")
    A(f"v_and_b32 {t1}, 3, v0")
    A(f"v_lshl_add_u32 {t0}, {t1}, 3, {t0}")
    A(f"v_bfe_u32 {t1}, v0, 2, 3")
    A(f"v_add_lshl_u32 {vZ}, {t0}, {t1}, 1")
    A("s_nop 2")
    lds_put3()
    A("s_waitcnt lgkmcnt(0)")
    A("s_barrier")
    A(f"s_cmp_eq_u32 {sWAVE}, 3")
    A("s_cbranch_scc1 L_q3")
    lds_sum8(t1, vA1)
    A(f"v_cvt_pk_bf16_f32 {t1}, {t1}, {t1}")
    A(f"ds_write_b16 {vZ}, {t1} offset:{L_QB}")
    A.label("L_q3")
    A(f"v_and_b32 {t0}, 3, {vLANE}")
    A(f"v_lshl_add_u32 {t0}, {q}, 2, {t0}")
    A(f"v_and_b32 {t1}, 8, {vLANE}")
    A(f"v_add_lshl_u32 {vT[4]}, {t0}, {t1}, 4")
    A(f"v_cmp_gt_u32 vcc, 8, {i}")
    A(f"v_add_u32 {t1}, 16, {t0}")
    A(f"v_subrev_u32 {t0}, 8, {t0}")
    A(f"v_cndmask_b32 {t0}, {t0}, {t1}, vcc")
    A(f"v_lshlrev_b32 {t0}, 4, {t0}")
    for r in range(12):
        A(f"v_mov_b32 v{QB+r}, 0")
    A("s_waitcnt lgkmcnt(0)")
    A("s_barrier")
    A.setexec(M_LO)
    A(f"ds_read_b128 v[{QB}:{QB+3}], {vT[4]} offset:{L_QB}")
    A.setexec(M_HI)
    A(f"ds_read_b128 v[{QB+8}:{QB+11}], {vT[4]} offset:{L_QB}")
    A.setexec(M_T1)
    A(f"ds_read_b128 v[{QB+4}:{QB+7}], {t0} offset:{L_QB}")
    A.setexec(ALL)
    A(f"v_mov_b32 {vT[4]}, 0")
    A(f"s_or_b32 {sT0}, s2, {sWAVE}")
    A(f"s_cmp_lg_u32 {sT0}, 0")
    A("s_cbranch_scc1 L_noflag")
    A(f"v_mov_b32 {vZ}, 1")
    A.setexec(1)
    A(f"buffer_store_dword {vZ}, {vT[4]}, s[{sDBG}:{sDBG+3}], 0 offen sc1")
    A.setexec(ALL)
    A.label("L_noflag")
    for r in range(O, O + 12):
        A(f"v_mov_b32 v{r}, 0")
    def tab_reads():
        for k in range(6):
            A(f"ds_read_b128 v[{TW+4*k}:{TW+4*k+3}], {vTA} offset:{16*k}")
        A(f"v_add_u32 {vTA}, 96, {vTA}")
    A("s_waitcnt lgkmcnt(0)")
    tab_reads()
    ncalls = [0]
    def tab_call():
        if table and ncalls[0] < 96:
            A(f"s_call_b64 s[{sRET}:{sRET+1}], L_tab")
            ncalls[0] += 1
    st()
    won = 0
    s = vT[0]
    for n in range(NT):
        slot = n % T
        vq.wait(("k", n))
        for tt in range(3):
            r = R0 + slot * 12 + tt * 4
            c = "0" if tt == 0 else f"v[{D}:{D+3}]"
            A(f"v_mfma_f32_16x16x32_bf16 v[{D}:{D+3}], v[{r}:{r+3}], v[{QB+4*tt}:{QB+4*tt+3}], {c}")
        nn = n + T
        if nn < NT: ld_tile(slot, False, nn)
        else: ld_tile(slot, True, nn - NT)
        if n >= wo_start and won < 60:
            ld_wo(won); won += 1
        else:
            A("s_nop 0")
        if n == NT - T - 2:
            vq.op(f"buffer_load_dword {vZ}, {vT[4]}, s[{sDBG}:{sDBG+3}], 0 offen sc1", "z")
        A(f"v_mov_b32_dpp {s}, v{D} quad_perm:[0,0,0,0] row_mask:0xf bank_mask:0xf")
        for r in range(1, 4):
            A(f"v_add_f32_dpp {s}, v{D+r}, {s} quad_perm:[{r},{r},{r},{r}] row_mask:0xf bank_mask:0xf")
        A.rb(s, s)
        A(f"v_mul_f32 {s}, {F(192 ** -0.5)}, {s}")
        A.rb(s, s)
        A(f"v_max_f32 {vMAX}, {vMAX}, {s}")
        A(f"ds_write_b32 {vSC}, {s} offset:{n*32}")
        if n >= tab_start:
            tab_call()
    assert won == 60
    st()
    A.wave_red("max", vMAX, sM)
    A(f"s_lshl_b32 {sT0}, {sWAVE}, 11")
    A(f"s_add_u32 {sT0}, {sT0}, {L_SC}")
    A(f"v_lshl_add_u32 {vT[0]}, {vLANE}, 5, {sT0}")
    A("s_waitcnt lgkmcnt(0)")
    A(f"ds_read_b128 v[{B}:{B+3}], {vT[0]}")
    A(f"ds_read_b128 v[{B+4}:{B+7}], {vT[0]} offset:16")
    A("s_waitcnt lgkmcnt(0)")
    for r in range(8):
        A(f"v_subrev_f32 v{B+r}, {sM}, v{B+r}")
    for r in range(8):
        A(f"v_mul_f32 v{B+r}, {F(LOG2E)}, v{B+r}")
    for r in range(8):
        A(f"v_exp_f32 v{B+r}, v{B+r}")
    A("s_nop 0")
    A(f"v_add_f32 {vT[1]}, v{B}, v{B+1}")
    for r in range(2, 8):
        A(f"v_add_f32 {vT[1]}, {vT[1]}, v{B+r}")
    for r in range(8):
        A(f"v_cvt_pk_bf16_f32 v{B+r}, v{B+r}, v{B+r}")
    A(f"ds_write_b128 {vT[0]}, v[{B}:{B+3}]")
    A(f"ds_write_b128 {vT[0]}, v[{B+4}:{B+7}] offset:16")
    A.wave_red("add", vT[1], sL)
    vq.wait("z")
    A(f"s_mov_b32 {sSPIN}, 0x100000")
    A.label("L_zchk")
    A(f"v_readfirstlane_b32 {sT0}, {vZ}")
    A(f"s_cmp_lg_u32 {sT0}, 0")
    A("s_cbranch_scc1 L_zok")
    A(f"s_sub_u32 {sSPIN}, {sSPIN}, 1")
    A(f"s_cmp_eq_u32 {sSPIN}, 0")
    A("s_cbranch_scc1 L_zok")
    A("s_sleep 8")
    A(f"buffer_load_dword {vZ}, {vT[4]}, s[{sDBG}:{sDBG+3}], 0 offen sc1")
    A("s_waitcnt vmcnt(0)")
    A("s_branch L_zchk")
    A.label("L_zok")
    A(f"v_mov_b32 v{ML}, {sM}")
    A(f"v_mov_b32 v{ML+1}, {sL}")
    A(f"v_mov_b32 v{ML+2}, 1")
    A(f"v_mov_b32 v{ML+3}, 1")
    A(f"s_lshl_b32 {sT0}, {sBH}, 7")
    A(f"s_add_u32 {sT0}, {sT0}, {WS_ML}")
    A(f"v_lshl_add_u32 {vZ}, {vLANE}, 4, {sT0}")
    A(f"s_lshl_b32 {sT1}, {sHALF}, 2")
    A(f"s_add_u32 {sT1}, {sT1}, {sWAVE}")
    A(f"s_lshl_b32 {sT1}, {sT1}, 4")
    A.setexec(1)
    vq.op(f"buffer_store_dwordx4 v[{ML}:{ML+3}], {vZ}, s[{sWS}:{sWS+3}], {sT1} offen sc1", "mlst")
    A.setexec(ALL)
    st()
    PP = [QB + n for n in range(8)]
    A("s_waitcnt lgkmcnt(0)")
    for n in range(4):
        A(f"ds_read_b32 v{PP[n]}, {vSC} offset:{n*32}")
    def fcalc():
        vq.wait("ml")
        A(f"s_mov_b32 {sSPIN}, 0x100000")
        A.label("L_mlchk")
        A(f"v_cmp_ne_u32 vcc, 0, v{ML+2}")
        A("s_nop 1")
        A("s_and_b32 vcc_lo, vcc_lo, 0xff")
        A("s_cmp_eq_u32 vcc_lo, 0xff")
        A("s_cbranch_scc1 L_mlok")
        A(f"s_sub_u32 {sSPIN}, {sSPIN}, 1")
        A(f"s_cmp_eq_u32 {sSPIN}, 0")
        A("s_cbranch_scc1 L_mlok")
        A("s_sleep 8")
        A.setexec(0xff)
        A(f"buffer_load_dwordx4 v[{ML}:{ML+3}], {vZ}, s[{sWS}:{sWS+3}], 0 offen sc1")
        A.setexec(ALL)
        A("s_waitcnt vmcnt(0)")
        A("s_branch L_mlchk")
        A.label("L_mlok")
        mm, e = vT[0], vT[1]
        A(f"v_mov_b32 {mm}, v{ML}")
        for stp in Asm.DPP_STEPS[:3]:
            A("s_nop 1")
            A(f"v_max_f32_dpp {mm}, {mm}, {mm} {stp}")
        A(f"v_sub_f32 {e}, v{ML}, {mm}")
        A(f"v_sub_f32 {mm}, {sM}, {mm}")
        A(f"v_mul_f32 {e}, {F(LOG2E)}, {e}")
        A(f"v_mul_f32 {mm}, {F(LOG2E)}, {mm}")
        A(f"v_exp_f32 {e}, {e}")
        A(f"v_exp_f32 {mm}, {mm}")
        A(f"v_mul_f32 {e}, {e}, v{ML+1}")
        for stp in Asm.DPP_STEPS[:3]:
            A("s_nop 1")
            A(f"v_add_f32_dpp {e}, {e}, {e} {stp}")
        A(f"v_rcp_f32 {e}, {e}")
        A("s_nop 0")
        A(f"v_mul_f32 {e}, {e}, {mm}")
        A("s_nop 0")
        A(f"v_readfirstlane_b32 {sF}, {e}")
        A(f"v_lshrrev_b32 {vT[0]}, 4, {vLANE}")
        A(f"s_lshr_b32 {sT0}, {sWAVE}, 1")
        A(f"s_mul_i32 {sT0}, {sT0}, 24")
        A(f"s_and_b32 {sT1}, {sWAVE}, 1")
        A(f"s_lshl_b32 {sT1}, {sT1}, 2")
        A(f"s_add_u32 {sT0}, {sT0}, {sT1}")
        A(f"v_add_lshl_u32 {vT[0]}, {vT[0]}, {sT0}, 4")
        A(f"v_and_b32 {vT[1]}, 8, {vLANE}")
        A(f"v_mul_u32_u24 {vT[1]}, 96, {vT[1]}")
        A(f"v_add_u32 {vQ0}, {vT[0]}, {vT[1]}")
        A(f"v_and_b32 {vT[0]}, 0xe0, v0")
        A(f"v_and_b32 {vT[1]}, 7, v0")
        A(f"v_lshl_add_u32 {vT[0]}, {vT[1]}, 2, {vT[0]}")
        A(f"v_bfe_u32 {vT[1]}, v0, 3, 2")
        A(f"v_add_lshl_u32 {vQ1}, {vT[0]}, {vT[1]}, 2")
        A(f"s_mul_i32 {sWQOFF}, {sB}, 2560")
    tab_pub = None
    for n in range(NT):
        slot = (NT + n) % T
        bb = B + 4 * (n & 1)
        if n + 4 < NT:
            A(f"ds_read_b32 v{PP[(n+4)%8]}, {vSC} offset:{(n+4)*32}")
            A("s_waitcnt lgkmcnt(4)")
        else:
            A(f"s_waitcnt lgkmcnt({NT-1-n})")
        for r in range(4):
            A(f"v_and_b32 v{bb+r}, v{PP[n%8]}, {vM[r]}")
        vq.wait(("v", n))
        A("s_nop 1")
        for tt in range(3):
            r = R0 + slot * 12 + tt * 4
            A(f"v_mfma_f32_16x16x32_bf16 v[{O+4*tt}:{O+4*tt+3}], v[{r}:{r+3}], v[{bb}:{bb+3}], v[{O+4*tt}:{O+4*tt+3}]")
        if n + T < NT:
            ld_tile(slot, True, n + T)
        if n == NT - T - 4:
            A.setexec(0xff)
            vq.op(f"buffer_load_dwordx4 v[{ML}:{ML+3}], {vZ}, s[{sWS}:{sWS+3}], 0 offen sc1", "ml")
            A.setexec(ALL)
        if n == NT - 4:
            fcalc()
        if ncalls[0] < 96 and table:
            tab_call()
        elif tab_pub is None:
            tab_pub = n
            A(f"v_add_f32 v{TACC}, v{TACC}, v{TACC+1}")
            A(f"s_lshl_b32 {sT0}, s2, 1")
            A(f"s_lshr_b32 {sT1}, {sWAVE}, 1")
            A(f"s_add_u32 {sT0}, {sT0}, {sT1}")
            A(f"s_lshl_b32 {sT0}, {sT0}, 9")
            A(f"s_and_b32 {sT1}, {sWAVE}, 1")
            A(f"s_lshl_b32 {sT1}, {sT1}, 2")
            A(f"s_add_u32 {sT0}, {sT0}, {sT1}")
            A(f"s_add_u32 {sT0}, {sT0}, {WS_TAB}")
            A(f"v_lshlrev_b32 {vTA}, 3, {vLANE}")
            vq.op(f"buffer_store_dword v{TACC}, {vTA}, s[{sWS}:{sWS+3}], {sT0} offen sc1", "tab")
        if tab_pub is not None and n == min(tab_pub + T + 1, NT - 2):
            vq.wait("tab")
            A(f"s_and_b32 {sT0}, s2, 7")
            A(f"s_lshl_b32 {sT0}, {sT0}, 7")
            A(f"v_mov_b32 v{TACC+1}, 1")
            A(f"s_add_u32 {sT0}, {sT0}, {WS_TD}")
            A.setexec(1)
            vq.op(f"buffer_atomic_add v{TACC+1}, {vT[4]}, s[{sWS}:{sWS+3}], {sT0} offen", "td")
            A.setexec(ALL)
    st()
    A("s_nop 7")
    for r in range(12):
        A(f"v_mul_f32 v{O+r}, {sF}, v{O+r}")
    lds_put3()
    A("s_waitcnt lgkmcnt(0)")
    A("s_barrier")
    st()
    A(f"s_cmp_eq_u32 {sWAVE}, 3")
    A("s_cbranch_scc1 L_o3")
    lds_sum8(vT[1], vA1)
    A.rb(vT[2], vT[1])
    A(f"v_cvt_pk_bf16_f32 {vT[3]}, {vT[1]}, {vT[1]}")
    A(f"v_sub_f32 {vT[2]}, {vT[1]}, {vT[2]}")
    A(f"ds_write_b32 {vA1}, {vT[3]} offset:{L_PH}")
    A(f"v_cvt_pk_bf16_f32 {vT[2]}, {vT[2]}, {vT[2]}")
    A(f"ds_write_b32 {vA1}, {vT[2]} offset:{L_PH + 768}")
    A("s_waitcnt lgkmcnt(0)")
    A.label("L_o3")
    A("s_barrier")
    for k in range(3):
        A(f"ds_read_b128 v[{O+4*k}:{O+4*k+3}], {vQ0} offset:{L_PH + 128*k}")
    BO = R0
    YD = R0 + 48
    for rg in range(12):
        if rg % 4 == 0:
            A(f"s_waitcnt lgkmcnt({2 - rg//4})")
        for r in range(4):
            A(f"v_and_b32 v{BO+4*rg+r}, v{O+rg}, {vM[r]}")
    vq.wait("wo")
    A("s_nop 1")
    def yout(c):
        for r in range(4):
            A(f"v_add_f32_dpp v{YD+4*c+r}, v{YD+4*c+r}, v{YD+4*c+r} row_ror:8 row_mask:0xf bank_mask:0xf")
        A.setexec(M_LO)
        A(f"ds_write_b128 {vAY}, v[{YD+4*c}:{YD+4*c+3}] offset:{L_YP + c*512}")
        A.setexec(ALL)
    for c in range(5):
        for rg in range(12):
            n = rg * 5 + c
            cc = "0" if rg == 0 else f"v[{YD+4*c}:{YD+4*c+3}]"
            A(f"v_mfma_f32_16x16x32_bf16 v[{YD+4*c}:{YD+4*c+3}], a[{4*n}:{4*n+3}], v[{BO+4*rg}:{BO+4*rg+3}], {cc}")
            if rg == 8 and c > 0:
                yout(c - 1)
    A("s_nop 7")
    yout(4)
    A("s_waitcnt lgkmcnt(0)")
    A("s_barrier")
    st()
    for k in range(2):
        for w in range(4):
            A(f"ds_read_b32 v{O+4*k+w}, {vQ1} offset:{L_YP + 2560*w + 1024*k}")
    A(f"s_cmp_ge_u32 {sWAVE}, 2")
    A("s_cbranch_scc1 L_two")
    for w in range(4):
        A(f"ds_read_b32 v{O+8+w}, {vQ1} offset:{L_YP + 2560*w + 2048}")
    A("s_waitcnt lgkmcnt(0)")
    A(f"v_add_f32 v{O+8}, v{O+8}, v{O+9}")
    A(f"v_add_f32 v{O+10}, v{O+10}, v{O+11}")
    A(f"v_add_f32 v{O+8}, v{O+8}, v{O+10}")
    A(f"buffer_atomic_add_f32 v{O+8}, {vA1}, s[{sWS}:{sWS+3}], {sWQOFF} offen offset:{WS_ACC + 2048}")
    A.label("L_two")
    A("s_waitcnt lgkmcnt(0)")
    for k in range(2):
        A(f"v_add_f32 v{O+4*k}, v{O+4*k}, v{O+4*k+1}")
        A(f"v_add_f32 v{O+4*k+2}, v{O+4*k+2}, v{O+4*k+3}")
    for k in range(2):
        A(f"v_add_f32 v{O+4*k}, v{O+4*k}, v{O+4*k+2}")
        A(f"buffer_atomic_add_f32 v{O+4*k}, {vA1}, s[{sWS}:{sWS+3}], {sWQOFF} offen offset:{WS_ACC + 1024*k}")
    A(f"s_lshl_b32 {sT0}, {sB}, 7")
    A(f"s_add_u32 {sT0}, {sT0}, {WS_CNT}")
    A(f"v_mov_b32 {vZ}, 1")
    A("s_waitcnt vmcnt(0)")
    A("s_barrier")
    st()
    A(f"s_cmp_lg_u32 {sWAVE}, 0")
    A("s_cbranch_scc1 L_done")
    A.setexec(1)
    A(f"buffer_atomic_add {vZ}, {vT[4]}, s[{sWS}:{sWS+3}], {sT0} offen sc0")
    A.setexec(ALL)
    A(f"s_mul_i32 {sT0}, {sB}, 1280")
    A.srd_off(sOUT, 20, sT0, 1280)
    A(f"v_lshlrev_b32 {vT[0]}, 3, {vLANE}")
    A(f"v_lshlrev_b32 {vT[1]}, 7, {vLANE}")
    A(f"s_lshl_b32 {sB2}, {sB2}, 16")
    H = R0
    HN = R0 + 10
    G = R0 + 20
    X = R0 + 40
    for n in range(5):
        A(f"v_lshlrev_b32 v{X+2*n}, 16, v{XS+n}")
        A(f"v_and_b32 v{X+2*n+1}, 0xffff0000, v{XS+n}")
    A("s_waitcnt vmcnt(0)")
    A(f"v_readfirstlane_b32 {sT0}, {vZ}")
    A(f"s_cmp_lg_u32 {sT0}, 63")
    A("s_cbranch_scc1 L_done")
    st()
    for n in range(5):
        A(f"buffer_load_dwordx2 v[{H+2*n}:{H+2*n+1}], {vT[0]}, s[{sWS}:{sWS+3}], {sWQOFF} offen offset:{WS_ACC + n*512} sc1")
    A(f"s_movk_i32 {sT1}, {WS_TD}")
    A.setexec(0xff)
    A(f"buffer_load_dword {vZ}, {vT[1]}, s[{sWS}:{sWS+3}], {sT1} offen sc1")
    A.setexec(ALL)
    A("s_waitcnt vmcnt(1)")
    h = [f"v{H+n}" for n in range(10)]
    hn = [f"v{HN+n}" for n in range(10)]
    for n in range(10):
        A.rb(h[n], h[n])
    for n in range(10):
        A(f"v_add_f32 {h[n]}, {h[n]}, v{X+n}")
    for n in range(10):
        A.rb(h[n], h[n])
    A.layernorm(h, hn, vT[2], vT[3], vT[4], sT0)
    A.layernorm(hn, hn, vT[2], vT[3], vT[4], sT0)
    A(f"v_mov_b32 {vT[3]}, 16383")
    for n in range(10):
        A(f"v_bfe_u32 v{X+n}, {hn[n]}, 16, 15")
    for n in range(10):
        A(f"v_subrev_u32 v{X+n}, 512, v{X+n}")
    for n in range(10):
        A(f"v_med3_i32 v{X+n}, v{X+n}, 0, {vT[3]}")
    for n in range(10):
        A(f"v_lshrrev_b32 {hn[n]}, 31, {hn[n]}")
    for n in range(10):
        A(f"v_lshl_add_u32 v{X+n}, {hn[n]}, 14, v{X+n}")
    for n in range(10):
        A(f"v_lshlrev_b32 v{X+n}, 3, v{X+n}")
    A("s_waitcnt vmcnt(0)")
    A(f"s_mov_b32 {sSPIN}, 0x100000")
    A.label("L_tdchk")
    A(f"v_cmp_eq_u32 vcc, 128, {vZ}")
    A("s_nop 1")
    A("s_and_b32 vcc_lo, vcc_lo, 0xff")
    A("s_cmp_eq_u32 vcc_lo, 0xff")
    A("s_cbranch_scc1 L_tdok")
    A(f"s_sub_u32 {sSPIN}, {sSPIN}, 1")
    A(f"s_cmp_eq_u32 {sSPIN}, 0")
    A("s_cbranch_scc1 L_tdok")
    A("s_sleep 8")
    A.setexec(0xff)
    A(f"buffer_load_dword {vZ}, {vT[1]}, s[{sWS}:{sWS+3}], {sT1} offen sc1")
    A.setexec(ALL)
    A("s_waitcnt vmcnt(0)")
    A("s_branch L_tdchk")
    A.label("L_tdok")
    st()
    A(f"s_mov_b32 {sT0}, {WS_TAB}")
    for n in range(10):
        A(f"buffer_load_dwordx2 v[{G+2*n}:{G+2*n+1}], v{X+n}, s[{sWS}:{sWS+3}], {sT0} offen sc1")
    A(f"v_lshlrev_b32 {vT[0]}, 2, {vLANE}")
    for n in range(5):
        A(f"s_waitcnt vmcnt({8 - 2*n + n})")
        for k in (2*n, 2*n + 1):
            A(f"v_add_f32 v{G+2*k}, v{G+2*k}, v{G+2*k+1}")
        for k in (2*n, 2*n + 1):
            A.rb(f"v{G+2*k}", f"v{G+2*k}")
        for k in (2*n, 2*n + 1):
            A(f"v_add_f32 v{G+2*k}, {sB2}, v{G+2*k}")
        for k in (2*n, 2*n + 1):
            A.rb(f"v{G+2*k}", f"v{G+2*k}")
        for k in (2*n, 2*n + 1):
            A(f"v_add_f32 v{G+2*k}, v{G+2*k}, {h[k]}")
        A(f"v_cvt_pk_bf16_f32 v{G+4*n}, v{G+4*n}, v{G+4*n+2}")
        A(f"buffer_store_dword v{G+4*n}, {vT[0]}, s[{sOUT}:{sOUT+3}], 0 offen offset:{n*256}")
    if stamps:
        A("s_waitcnt vmcnt(0)")
        st()
        st.flush(sWS, WS_STAMP + 65536, sWAVE, vT[0], vT[1])
    A.label("L_done")
    if stamps:
        st.flush(sWS, WS_STAMP, sWAVE, vT[0], vT[1])
    A.label("L_end")
    A("s_endpgm")
    A.label("L_tab")
    A("s_waitcnt lgkmcnt(0)")
    def P(r): return f"v[{r}:{r+1}]"
    W1, B1, W2 = TW, TW + 8, TW + 16
    for p in range(4): A(f"v_pk_mul_f32 {P(W1+2*p)}, {P(TX)}, {P(W1+2*p)}")
    for k in range(8): A.rb(f"v{W1+k}", f"v{W1+k}")
    for p in range(4): A(f"v_pk_add_f32 {P(W1+2*p)}, {P(W1+2*p)}, {P(B1+2*p)}")
    for k in range(8): A.rb(f"v{W1+k}", f"v{W1+k}")
    for p in range(4): A(f"v_pk_mul_f32 {P(B1+2*p)}, {P(W1+2*p)}, {P(W1+2*p)}")
    for p in range(4): A(f"v_pk_fma_f32 {P(B1+2*p)}, {P(B1+2*p)}, {P(TK1)}, s[{sK0}:{sK0+1}]")
    for p in range(4): A(f"v_pk_mul_f32 {P(B1+2*p)}, {P(B1+2*p)}, {P(W1+2*p)}")
    for k in range(8): A(f"v_exp_f32 v{B1+k}, v{B1+k}")
    for p in range(4): A(f"v_pk_add_f32 {P(B1+2*p)}, {P(B1+2*p)}, s[{sONE}:{sONE+1}]")
    for k in range(8): A(f"v_rcp_f32 v{B1+k}, v{B1+k}")
    for p in range(4): A(f"v_pk_mul_f32 {P(W1+2*p)}, {P(W1+2*p)}, {P(B1+2*p)}")
    for k in range(8): A.rb(f"v{W1+k}", f"v{W1+k}")
    for p in range(4): A(f"v_pk_fma_f32 {P(TACC)}, {P(W1+2*p)}, {P(W2+2*p)}, {P(TACC)}")
    tab_reads()
    A(f"s_setpc_b64 s[{sRET}:{sRET+1}]")
    acc = (NV + 3) // 4 * 4
    return A.text() + kd(KN, acc + 240, 102, acc)

if __name__ == "__main__":
    kw = eval("dict(%s)" % (sys.argv[2] if len(sys.argv) > 2 else ""))
    open(sys.argv[1], "w").write(gen(**kw))
```

```python
import struct
def f2u(x):
    return struct.unpack("<I", struct.pack("<f", x))[0]
def F(x):
    return "0x%08x" % f2u(x)

class Asm:
    def __init__(self):
        self.L = []
        self.nlabel = 0
    def __call__(self, s):
        self.L.append("  " + s)
    def raw(self, s):
        self.L.append(s)
    def label(self, name):
        self.L.append(name + ":")
    def c(self, s):
        self.L.append("  ; " + s)
    def newlabel(self, p="L"):
        self.nlabel += 1
        return f"{p}_{self.nlabel}"
    def text(self):
        return "\n".join(self.L) + "\n"

    def srd(self, s, lo, hi, size):
        if lo != f"s{s}": self(f"s_mov_b32 s{s}, {lo}")
        if hi != f"s{s+1}": self(f"s_mov_b32 s{s+1}, {hi}")
        self(f"s_mov_b32 s{s+2}, {size}")
        self(f"s_mov_b32 s{s+3}, 0x20000")
    def srd_off(self, s, plo, off, size):
        self(f"s_add_u32 s{s}, s{plo}, {off}")
        self(f"s_addc_u32 s{s+1}, s{plo+1}, 0")
        self(f"s_mov_b32 s{s+2}, {size}")
        self(f"s_mov_b32 s{s+3}, 0x20000")
    def setexec(self, mask):
        lo, hi = mask & 0xffffffff, mask >> 32
        if mask == (1 << 64) - 1:
            self("s_mov_b64 exec, -1")
        elif hi == 0 and lo <= 64:
            self(f"s_mov_b64 exec, {lo}")
        else:
            self(f"s_mov_b32 exec_lo, 0x{lo:08x}")
            self(f"s_mov_b32 exec_hi, 0x{hi:08x}")
    def rb(self, d, s):
        self(f"v_cvt_pk_bf16_f32 {d}, 0, {s}")
    DPP_STEPS = ["quad_perm:[1,0,3,2] row_mask:0xf bank_mask:0xf",
                 "quad_perm:[2,3,0,1] row_mask:0xf bank_mask:0xf",
                 "row_half_mirror row_mask:0xf bank_mask:0xf",
                 "row_mirror row_mask:0xf bank_mask:0xf",
                 "row_bcast:15 row_mask:0xa bank_mask:0xf",
                 "row_bcast:31 row_mask:0xc bank_mask:0xf"]
    def wave_red(self, op, regs, sdst, steps=None):
        if isinstance(regs, str):
            regs = [regs]; sdst = [sdst]
        n = len(regs)
        for st in (steps or self.DPP_STEPS):
            if n < 3:
                self(f"s_nop {2-n}")
            for r in regs:
                self(f"v_{op}_f32_dpp {r}, {r}, {r} {st}")
        if n < 2:
            self("s_nop 0")
        for r, s in zip(regs, sdst):
            self(f"v_readlane_b32 {s}, {r}, 63")
        self("s_nop 1")
    def layernorm(self, src, dst, t0, t1, t2, s0):
        A = self
        A(f"v_add_f32 {t0}, {src[0]}, {src[1]}")
        A(f"v_add_f32 {t1}, {src[2]}, {src[3]}")
        for i in range(4, 10, 2):
            A(f"v_add_f32 {t0}, {t0}, {src[i]}")
            A(f"v_add_f32 {t1}, {t1}, {src[i+1]}")
        A(f"v_add_f32 {t0}, {t0}, {t1}")
        A.wave_red("add", t0, s0)
        A(f"v_mov_b32 {t2}, {F(1.0/640)}")
        A(f"v_mul_f32 {t2}, {s0}, {t2}")
        A(f"v_sub_f32 {t1}, {src[0]}, {t2}")
        A(f"v_mul_f32 {t0}, {t1}, {t1}")
        for i in range(1, 10):
            A(f"v_sub_f32 {t1}, {src[i]}, {t2}")
            A(f"v_fmac_f32 {t0}, {t1}, {t1}")
        A.rb(t2, t2)
        A.wave_red("add", t0, s0)
        A(f"v_mov_b32 {t0}, {F(1.0/640)}")
        A(f"v_mul_f32 {t0}, {s0}, {t0}")
        A.rb(t0, t0)
        A(f"v_add_f32 {t0}, {F(1e-5)}, {t0}")
        A.rb(t0, t0)
        A(f"v_sqrt_f32 {t0}, {t0}")
        A("s_nop 0")
        A.rb(t0, t0)
        A(f"v_rcp_f32 {t0}, {t0}")
        for i in range(10):
            A(f"v_sub_f32 {dst[i]}, {src[i]}, {t2}")
        for i in range(10):
            A.rb(dst[i], dst[i])
        for i in range(10):
            A(f"v_mul_f32 {dst[i]}, {dst[i]}, {t0}")
        for i in range(10):
            A.rb(dst[i], dst[i])

def kd(name, nvgpr, nsgpr, accum):
    return f""".section .rodata,"a"
.p2align 6
.amdhsa_kernel {name}
  .amdhsa_next_free_vgpr {nvgpr}
  .amdhsa_next_free_sgpr {nsgpr}
  .amdhsa_accum_offset {accum}
  .amdhsa_group_segment_fixed_size 0
  .amdhsa_kernarg_size 104
  .amdhsa_user_sgpr_count 2
  .amdhsa_user_sgpr_kernarg_segment_ptr 1
  .amdhsa_system_sgpr_workgroup_id_x 1
  .amdhsa_float_denorm_mode_32 3
.end_amdhsa_kernel
"""

def layernorm_fast(A, src, dst, tp, sp, pivot):
    P = lambda r: f"v[{r}:{r+1}]"
    d = src
    if pivot:
        assert dst != src
        A("s_nop 0")
        A(f"v_readfirstlane_b32 s{sp+2}, v{src}")
        A(f"v_readfirstlane_b32 s{sp+3}, v{src}")
        A("s_nop 1")
        for i in range(5):
            A(f"v_pk_add_f32 {P(dst+2*i)}, {P(src+2*i)}, s[{sp+2}:{sp+3}] neg_lo:[0,1] neg_hi:[0,1]")
        d = dst
    A(f"v_pk_add_f32 {P(tp)}, {P(d)}, {P(d+2)}")
    A(f"v_pk_mul_f32 {P(tp+2)}, {P(d)}, {P(d)}")
    A(f"v_pk_add_f32 {P(tp+4)}, {P(d+4)}, {P(d+6)}")
    A(f"v_pk_fma_f32 {P(tp+2)}, {P(d+2)}, {P(d+2)}, {P(tp+2)}")
    A(f"v_pk_add_f32 {P(tp)}, {P(tp)}, {P(d+8)}")
    A(f"v_pk_fma_f32 {P(tp+2)}, {P(d+4)}, {P(d+4)}, {P(tp+2)}")
    A(f"v_pk_add_f32 {P(tp)}, {P(tp)}, {P(tp+4)}")
    A(f"v_pk_fma_f32 {P(tp+2)}, {P(d+6)}, {P(d+6)}, {P(tp+2)}")
    A(f"v_add_f32 v{tp}, v{tp}, v{tp+1}")
    A(f"v_pk_fma_f32 {P(tp+2)}, {P(d+8)}, {P(d+8)}, {P(tp+2)}")
    A(f"v_mov_b32 v{tp+4}, {F(1.0/640)}")
    A(f"v_add_f32 v{tp+2}, v{tp+2}, v{tp+3}")
    A.wave_red("add", [f"v{tp}", f"v{tp+2}"], [f"s{sp}", f"s{sp+1}"])
    A(f"v_mul_f32 v{tp}, s{sp}, v{tp+4}")
    A(f"v_mul_f32 v{tp+2}, s{sp+1}, v{tp+4}")
    A(f"v_fma_f32 v{tp+2}, -v{tp}, v{tp}, v{tp+2}")
    if pivot:
        A(f"v_add_f32 v{tp}, s{sp+2}, v{tp}")
    A(f"v_max_f32 v{tp+2}, 0, v{tp+2}")
    A.rb(f"v{tp}", f"v{tp}")
    A.rb(f"v{tp+2}", f"v{tp+2}")
    A(f"v_mov_b32 v{tp+1}, v{tp}")
    A(f"v_add_f32 v{tp+2}, {F(1e-5)}, v{tp+2}")
    A(f"v_pk_add_f32 {P(dst)}, {P(src)}, {P(tp)} neg_lo:[0,1] neg_hi:[0,1]")
    A.rb(f"v{tp+2}", f"v{tp+2}")
    A(f"v_pk_add_f32 {P(dst+2)}, {P(src+2)}, {P(tp)} neg_lo:[0,1] neg_hi:[0,1]")
    A(f"v_sqrt_f32 v{tp+2}, v{tp+2}")
    for i in range(2, 5):
        A(f"v_pk_add_f32 {P(dst+2*i)}, {P(src+2*i)}, {P(tp)} neg_lo:[0,1] neg_hi:[0,1]")
    A.rb(f"v{tp+2}", f"v{tp+2}")
    A.rb(f"v{dst}", f"v{dst}")
    A(f"v_rcp_f32 v{tp+2}, v{tp+2}")
    for i in range(1, 10):
        A.rb(f"v{dst+i}", f"v{dst+i}")
    A(f"v_mov_b32 v{tp+3}, v{tp+2}")
    for i in range(5):
        A(f"v_pk_mul_f32 {P(dst+2*i)}, {P(dst+2*i)}, {P(tp+2)}")
    for i in range(10):
        A.rb(f"v{dst+i}", f"v{dst+i}")
```

```python
import sys
from asmlib import *

KN = "sequential_preLN__mha_block_cached__mixer_token_mlp__decode_kernel"
HDR = open("sequential_preLN__mha_block_cached__mixer_token_mlp__decode.s.ref").read().split("; Override launch")[0]
LOG2E = 1.4426950408889634
WS_ACC, WS_CNT, WS_ZEND = 0, 10240, 12288
WS_ML = 12288
WS_TD = 28672
WS_EP = 45056
WS_ZF = 45312
WS_TAB = 65536
WS_STAMP = 524288
WS_QP = 1 << 20
WS_SIZE = 2 << 20
L_XN = 0
L_P = 10240
L_QB = L_P + 6144
L_PH = L_QB + 512
L_W = L_PH + 1536
L_TP = L_W + 8 * 2320
L_YP = L_TP + 128
L_SC = L_YP + 10240
L_QS = L_SC + 8192
L_WQ = L_QS + 3072
L_END = L_WQ + 36864
M_LO, M_HI, M_T1 = 0x00FF00FF00FF00FF, 0xFF00FF00FF00FF00, 0xFF00FF0000FF00FF
ALL = (1 << 64) - 1
SPIN = 0x100000

class Stamps:
    def __init__(self, A, on, s0): self.A = A; self.on = on; self.s0 = s0; self.n = 0
    def __call__(self):
        if self.on:
            s = self.s0 + 2 * self.n
            self.A(f"s_memrealtime s[{s}:{s+1}]")
            self.n += 1
    def flush(self, srd, base, swave, v0, v1):
        if not self.on: return
        A = self.A
        A("s_waitcnt lgkmcnt(0)")
        A("s_lshl_b32 s6, s2, 2")
        A(f"s_add_u32 s6, s6, {swave}")
        A("s_lshl_b32 s6, s6, 6")
        A(f"s_add_u32 s6, s6, {base}")
        A(f"v_mov_b32 {v1}, 0")
        A.setexec(1)
        for n in range(self.n):
            A(f"v_mov_b32 {v0}, s{self.s0 + 2*n}")
            A(f"buffer_store_dword {v0}, {v1}, s[{srd}:{srd+3}], s6 offen offset:{4*n}")
        A("s_getreg_b32 s7, hwreg(HW_REG_XCC_ID)")
        A(f"v_mov_b32 {v0}, s7")
        A(f"buffer_store_dword {v0}, {v1}, s[{srd}:{srd+3}], s6 offen offset:60")
        A(f"v_mov_b32 {v0}, s51")
        A(f"buffer_store_dword {v0}, {v1}, s[{srd}:{srd+3}], s6 offen offset:56")
        A.setexec(ALL)

class VQ:
    CAP = 54
    def __init__(self, A): self.A = A; self.q = []
    def op(self, text, tag):
        if len(self.q) >= self.CAP:
            self.A(f"s_waitcnt vmcnt({self.CAP - 1})")
            self.q = self.q[-(self.CAP - 1):]
        self.A(text)
        self.q.append(tag)
    def wait(self, tag):
        if tag not in self.q: return
        pos = len(self.q) - 1 - self.q[::-1].index(tag)
        self.A(f"s_waitcnt vmcnt({len(self.q) - 1 - pos})")
        self.q = self.q[pos + 1:]

def gen(T=12, ext=17, rot=1, wo_start=0, stamps=False, kf='nt', vf='nt', wf='nt', tab_start=32,
        n1=5, n1b=1, n1c=1, n2=6, capk=54, capv=54, caph=54, wo_rate=1.0):
    A = Asm()
    A.raw(HDR.rstrip())
    A.raw(f"; @launch grid=(256,1,1) block=(256,1,1) lds={L_END}")
    A.raw('.amdgcn_target "amdgcn-amd-amdhsa--gfx950"')
    A.raw(".text")
    A.raw(f".globl {KN}")
    st = Stamps(A, stamps, 76)
    NT = 64
    STEP = 12288
    REGION = 786432
    sX, sK, sV, sWQ, sWO, sWS = 24, 28, 32, 36, 40, 44
    sOUT = 36
    sTAG, sBS, sQG, sRETRY = "s48", "s49", "s50", "s51"
    sWAVE, sB, sH, sHALF, sBH, sT0, sT1 = "s52", "s53", "s54", "s55", "s56", "s57", "s58"
    sKREL, sVREL, sWB, sOFF, sWQOFF, sWOOFF, sM, sL, sF, sSPIN = "s59", "s60", "s61", "s62", "s63", "s64", "s65", "s66", "s67", "s68"
    sB2, sTB = "s69", "s3"
    sK0, sONE, sRET = 70, 72, 74
    vLANE, vKO, vVO, vQ0, vQ1, vQ2, vWO = "v1", "v2", "v3", "v4", "v5", "v6", "v7"
    vM = ["v8", "v9", "v10", "v11"]
    vA0, vA1, vAY, vSC, vXN, vMAX, vZ = "v12", "v13", "v14", "v15", "v16", "v17", "v18"
    vT = [f"v{i}" for i in range(19, 24)]
    QB = 24
    D = 36
    O = 40
    B = 52
    ML = 60
    TW = 64
    TX, TACC, TK1 = 88, 90, 92
    vTA = "v94"
    XS = 95
    R0 = 100
    NV = R0 + 12 * T
    AW = 204
    assert NV <= 256 and ext * 12 <= AW
    vq = VQ(A)

    A.raw(".p2align 8")
    A.raw(f".type {KN},@function")
    A.label(KN)
    A("s_cmp_ge_u32 s2, 256")
    A("s_cbranch_scc1 L_end")
    st()
    A("s_load_dwordx8 s[8:15], s[0:1], 0")
    A("s_load_dwordx2 s[16:17], s[0:1], 32")
    A("s_load_dwordx2 s[22:23], s[0:1], 96")
    A(f"v_lshrrev_b32 {vT[0]}, 6, v0")
    A(f"v_and_b32 {vLANE}, 63, v0")
    A(f"v_readfirstlane_b32 {sWAVE}, {vT[0]}")
    A(f"s_and_b32 {sH}, s2, 7")
    A(f"s_lshr_b32 {sT0}, s2, 3")
    A(f"s_lshl_b32 {sH}, {sH}, 2")
    A(f"s_and_b32 {sT1}, {sT0}, 3")
    A(f"s_add_u32 {sH}, {sH}, {sT1}")
    A(f"s_lshr_b32 {sBS}, {sT0}, 2")
    A(f"s_lshr_b32 {sB}, {sT0}, 3")
    A(f"s_and_b32 {sHALF}, {sBS}, 1")
    A(f"s_lshl_b32 {sBH}, {sB}, 5")
    A(f"s_add_u32 {sBH}, {sBH}, {sH}")
    q, i, t0, t1 = vT[0], vT[1], vT[2], vT[3]
    A(f"v_lshrrev_b32 {q}, 4, {vLANE}")
    A(f"v_and_b32 {i}, 15, {vLANE}")
    A(f"v_lshrrev_b32 {t0}, 2, {i}")
    A(f"v_mul_u32_u24 {vKO}, 768, {t0}")
    A(f"v_lshl_add_u32 {vKO}, {q}, 6, {vKO}")
    A(f"v_and_b32 {t0}, 3, {i}")
    A(f"v_lshl_add_u32 {vKO}, {t0}, 4, {vKO}")
    A(f"v_mul_u32_u24 {vVO}, 768, {q}")
    A(f"v_lshl_add_u32 {vVO}, {i}, 4, {vVO}")
    A(f"v_mul_u32_u24 {vQ0}, 24576, {q}")
    A(f"v_lshl_add_u32 {vQ0}, {i}, 4, {vQ0}")
    A(f"v_add_u32 {vQ1}, 256, {vQ0}")
    A(f"v_add_u32 {vQ2}, {12288-128}, {vQ0}")
    A(f"v_cmp_gt_u32 vcc, 8, {i}")
    A(f"v_mul_u32_u24 {vWO}, 1280, {q}")
    A(f"v_lshl_add_u32 {vWO}, {i}, 4, {vWO}")
    A(f"v_cndmask_b32 {vQ1}, {vQ2}, {vQ1}, vcc")
    A(f"v_add_u32 {vQ2}, {12288+128}, {vQ0}")
    for r in range(O, O + 12):
        A(f"v_mov_b32 v{r}, 0")
    A(f"v_lshlrev_b32 {t0}, 4, v0")
    A(f"v_lshlrev_b32 {t1}, 2, {vLANE}")
    A(f"s_lshl_b32 {sT1}, {sBH}, 1")
    A(f"s_add_u32 {sT1}, {sT1}, {sHALF}")
    A(f"s_mul_i32 {sKREL}, {sT1}, {rot}")
    A(f"s_and_b32 {sKREL}, {sKREL}, 63")
    A(f"s_mul_i32 {sKREL}, {sKREL}, {STEP}")
    A(f"s_mov_b32 {sVREL}, {sKREL}")
    A(f"s_mul_i32 {sT1}, {sT1}, {REGION}")
    A(f"s_mul_i32 {sWB}, {sWAVE}, 3072")
    A(f"s_mul_i32 {sOFF}, {sBS}, {80*12288}")
    A(f"s_mul_i32 {sT0}, {sH}, 384")
    A(f"s_add_u32 {sOFF}, {sOFF}, {sT0}")
    A(f"s_mul_i32 {sWQOFF}, {sWAVE}, {8*12288}")
    A(f"s_lshr_b32 {sT0}, {sWAVE}, 1")
    A(f"s_mul_i32 {sWOOFF}, {sT0}, {96*1280}")
    A(f"s_and_b32 {sT0}, {sWAVE}, 1")
    A(f"s_mul_i32 {sT0}, {sT0}, {4*1280}")
    A(f"s_add_u32 {sWOOFF}, {sWOOFF}, {sT0}")
    A(f"s_mul_i32 {sT0}, {sWAVE}, 1280")
    A(f"s_mov_b32 {sRETRY}, 0")
    A("s_waitcnt lgkmcnt(0)")
    A.srd_off(sX, 8, sT0, 1280)
    for n in range(5):
        vq.op(f"buffer_load_dword v{XS+n}, {t1}, s[{sX}:{sX+3}], 0 offen offset:{n*256}", "x")
    A.srd_off(sWQ, 14, sOFF, 79 * 12288 + 384)
    for k in range(3):
        for t, o in enumerate((vQ0, vQ1, vQ2)):
            r = AW + k * 12 + t * 4
            vq.op(f"buffer_load_dwordx4 a[{r}:{r+3}], {o}, s[{sWQ}:{sWQ+3}], {sWQOFF} offen {wf}", "wq")
        if k < 2: A(f"s_add_u32 {sWQOFF}, {sWQOFF}, {32*12288}")
    A.srd_off(sK, 10, sT1, REGION)
    A.srd_off(sV, 12, sT1, REGION)
    A(f"s_mul_i32 {sT0}, {sH}, 245760")
    A.srd_off(sWO, 16, sT0, 245760)
    A.srd(sWS, "s22", "s23", WS_SIZE)
    A("s_load_dwordx8 s[8:15], s[0:1], 48")
    A("s_load_dwordx2 s[20:21], s[0:1], 80")
    A(f"s_load_dword {sTAG}, s[22:23], {WS_EP}")

    def treg(slot, t):
        if slot < T:
            r = R0 + slot * 12 + t * 4
            return f"v[{r}:{r+3}]"
        r = (slot - T) * 12 + t * 4
        return f"a[{r}:{r+3}]"
    def ld_tile(slot, isv, n):
        rel, srd, off = (sVREL, sV, vVO) if isv else (sKREL, sK, vKO)
        A(f"s_add_u32 {sOFF}, {sWB}, {rel}")
        for t in range(3):
            vq.op(f"buffer_load_dwordx4 {treg(slot, t)}, {off}, s[{srd}:{srd+3}], {sOFF} offen offset:{t*256} {vf if isv else kf}", ("v" if isv else "k", n))
        A(f"s_add_u32 {rel}, {rel}, {STEP}")
        A(f"s_cmp_ge_u32 {rel}, {REGION}")
        A(f"s_cselect_b32 {rel}, 0, {rel}")
    def ld_wo(n):
        rg, c = divmod(n, 5)
        A(f"s_add_u32 {sOFF}, {sWOOFF}, {rg*8*1280}")
        vq.op(f"buffer_load_dwordx4 a[{4*n}:{4*n+3}], {vWO}, s[{sWO}:{sWO+3}], {sOFF} offen offset:{c*256} {wf}", "wo")
    kis = [0]
    def head_k(n):
        for _ in range(n):
            if kis[0] < T + ext:
                ld_tile(kis[0], False, kis[0]); kis[0] += 1
    head_k(1)
    A("s_cmp_lg_u32 s2, 0")
    A("s_cbranch_scc1 L_nozero")
    for n in range(WS_ZEND // 4096):
        A(f"s_movk_i32 {sT0}, {n*4096}")
        A(f"buffer_store_dwordx4 v[{O}:{O+3}], {t0}, s[{sWS}:{sWS+3}], {sT0} offen sc1")
    A.label("L_nozero")
    A("s_waitcnt lgkmcnt(0)")
    sW = 16
    for ptr, dst in ((8, B), (10, B + 4), (12, D)):
        A.srd(sW, f"s{ptr}", f"s{ptr+1}", 3072)
        vq.op(f"buffer_load_dwordx4 v[{dst}:{dst+3}], {t0}, s[{sW}:{sW+3}], 0 offen", "mw")
    A(f"s_load_dword {sB2}, s[14:15], 0")
    A(f"s_mul_i32 {sTAG}, {sTAG}, 0x2c9277b5")
    A(f"s_add_u32 {sTAG}, {sTAG}, 0x7f4a7c15")
    jl = vT[2]
    A(f"v_and_b32 {jl}, 7, {vLANE}")
    A(f"v_and_b32 {t1}, 1, {vLANE}")
    A(f"v_cmp_eq_u32 vcc, 1, {t1}")
    A(f"v_mov_b32 {vT[4]}, 0xffff")
    A(f"v_mov_b32 {vM[3]}, 0xffff0000")
    A(f"v_cndmask_b32 {vT[4]}, {vT[4]}, {vM[3]}, vcc")
    A(f"v_lshrrev_b32 {t1}, 1, {jl}")
    for r in range(4):
        A(f"v_cmp_eq_u32 vcc, {r}, {t1}")
        A("s_nop 1")
        A(f"v_cndmask_b32 {vM[r]}, 0, {vT[4]}, vcc")
    A(f"v_lshl_add_u32 {vAY}, {q}, 3, {jl}")
    A(f"v_lshlrev_b32 {vAY}, 4, {vAY}")
    A(f"s_mul_i32 {sT0}, {sWAVE}, 1536")
    A(f"v_add_u32 {vA0}, {sT0}, {vAY}")
    A(f"s_mul_i32 {sT0}, {sWAVE}, 2560")
    A(f"v_add_u32 {vAY}, {sT0}, {vAY}")
    A(f"v_lshrrev_b32 {t1}, 3, {vLANE}")
    A(f"s_mul_i32 {sT1}, {sBS}, 320")
    A(f"s_add_u32 {sT0}, {sT0}, {sT1}")
    A(f"v_lshl_add_u32 {vXN}, {t1}, 2, {sT0}")
    A(f"s_lshl_b32 {sT0}, {sWAVE}, 11")
    A(f"s_add_u32 {sT0}, {sT0}, {L_SC}")
    A(f"v_lshl_add_u32 {vSC}, {t1}, 2, {sT0}")
    A(f"v_mov_b32 {vMAX}, 0xff800000")
    A(f"v_lshlrev_b32 {vA1}, 2, v0")
    A(f"s_lshl_b32 {sT0}, s2, 2")
    A(f"s_add_u32 {sT0}, {sT0}, {sWAVE}")
    A(f"s_lshr_b32 {sT1}, {sT0}, 9")
    A(f"s_lshl_b32 {sT1}, {sT1}, 15")
    A(f"s_and_b32 {sT0}, {sT0}, 511")
    A(f"s_lshl_b32 {sT0}, {sT0}, 3")
    A(f"s_add_u32 {sT0}, {sT0}, 12800")
    A(f"s_or_b32 {sTB}, {sT0}, {sT1}")
    A(f"v_add_lshl_u32 v{TX}, {jl}, {sTB}, 16")
    A(f"v_mov_b32 v{TX+1}, v{TX}")
    A(f"v_mov_b32 v{TACC}, 0")
    A(f"v_mov_b32 v{TACC+1}, 0")
    K0 = -2.0 * 0.7978845608028654 * LOG2E
    A(f"v_mov_b32 v{TK1}, {F(K0 * 0.044715)}")
    A(f"v_mov_b32 v{TK1+1}, {F(K0 * 0.044715)}")
    A(f"s_mov_b32 s{sK0}, {F(K0)}")
    A(f"s_mov_b32 s{sK0+1}, {F(K0)}")
    A(f"s_mov_b32 s{sONE}, 1.0")
    A(f"s_mov_b32 s{sONE+1}, 1.0")
    A(f"v_mul_u32_u24 {vTA}, 2320, {t1}")
    A(f"v_add_u32 {vTA}, {L_W}, {vTA}")
    head_k(n1 - 1)
    vq.wait("x")
    st()
    for n in range(5):
        A(f"v_lshlrev_b32 v{TW+2*n}, 16, v{XS+n}")
        A(f"v_and_b32 v{TW+2*n+1}, 0xffff0000, v{XS+n}")
    layernorm_fast(A, TW, QB, TW + 10, 4, True)
    A(f"s_mul_i32 {sT0}, {sWAVE}, 2560")
    A(f"v_lshl_add_u32 {vT[2]}, {vLANE}, 3, {sT0}")
    for n in range(10):
        A(f"v_cvt_pk_bf16_f32 v{QB+n}, v{QB+n}, v{QB+n}")
    for n in range(5):
        A(f"ds_write_b64 {vT[2]}, v[{QB+2*n}:{QB+2*n+1}] offset:{L_XN + n*512}")
    A(f"v_lshlrev_b32 {vZ}, 4, {vLANE}")
    A(f"v_add_u32 {vT[2]}, {sWB}, {vZ}")
    vq.wait("wq")
    A("s_waitcnt lgkmcnt(0)")
    A(f"v_add_u32 {vT[2]}, {L_WQ}, {vT[2]}")
    for k in range(3):
        for t in range(3):
            r = AW + k * 12 + t * 4
            A(f"ds_write_b128 {vT[2]}, a[{r}:{r+3}] offset:{k*12288 + t*1024}")
    head_k(n1b)
    vq.wait("mw")
    A("s_waitcnt lgkmcnt(0)")
    A(f"s_cmp_eq_u32 {sWAVE}, 3")
    A("s_cbranch_scc1 L_now")
    for k, src in enumerate((B, B + 4, D)):
        for n in range(4):
            A(f"v_lshlrev_b32 v{TW+8*k+2*n}, 16, v{src+n}")
            A(f"v_and_b32 v{TW+8*k+2*n+1}, 0xffff0000, v{src+n}")
    A(f"v_mul_u32_u24 {vT[3]}, 2731, v0")
    A(f"v_mul_u32_u24 {vT[2]}, 96, v0")
    A(f"v_lshrrev_b32 {vT[3]}, 16, {vT[3]}")
    A(f"v_lshl_add_u32 {vT[2]}, {vT[3]}, 4, {vT[2]}")
    A(f"v_mov_b32 {vT[3]}, 0")
    A(f"ds_write_b32 {vT[3]}, {vT[3]} offset:{L_TP + 64}")
    for k in range(6):
        A(f"ds_write_b128 {vT[2]}, v[{TW+4*k}:{TW+4*k+3}] offset:{L_W + 16*k}")
    A("s_waitcnt lgkmcnt(0)")
    A.label("L_now")
    for n in range(10):
        A(f"ds_read_b32 v{QB+n}, {vXN} offset:{L_XN + n*32}")
    A(f"v_add_u32 {vT[2]}, {L_WQ}, {vZ}")
    A(f"v_mov_b32 {vT[4]}, 0")
    A("s_waitcnt lgkmcnt(0)")
    A("s_barrier")
    A(f"s_or_b32 {sT0}, s2, {sWAVE}")
    A(f"s_cmp_lg_u32 {sT0}, 0")
    A("s_cbranch_scc1 L_noflag")
    for r in range(4):
        A(f"v_mov_b32 v{ML+r}, {sTAG}")
    A(f"s_mov_b32 {sT0}, {WS_ZF}")
    A.setexec(1)
    A(f"buffer_store_dwordx4 v[{ML}:{ML+3}], {vT[4]}, s[{sWS}:{sWS+3}], {sT0} offen sc1")
    A.setexec(ALL)
    A.label("L_noflag")
    def wq_read(n):
        for t in range(3):
            r = AW + (n % 3) * 12 + t * 4
            A(f"ds_read_b128 a[{r}:{r+3}], {vT[2]} offset:{n*3072 + t*1024}")
    for n in range(3): wq_read(n)
    head_k(n1c)
    for n in range(10):
        bb = B + 4 * (n & 1)
        for r in range(4):
            A(f"v_and_b32 v{bb+r}, v{QB+n}, {vM[r]}")
        A(f"s_waitcnt lgkmcnt({3 * min(2, 9 - n)})")
        A("s_nop 0")
        for t in range(3):
            r = AW + (n % 3) * 12 + t * 4
            A(f"v_mfma_f32_16x16x32_bf16 v[{O+4*t}:{O+4*t+3}], a[{r}:{r+3}], v[{bb}:{bb+3}], v[{O+4*t}:{O+4*t+3}]")
        if n + 3 < 10:
            A("s_nop 3")
            wq_read(n + 3)
    def lds_put3():
        A.setexec(M_LO)
        A(f"ds_write_b128 {vA0}, v[{O}:{O+3}] offset:{L_P}")
        A.setexec(M_T1)
        A(f"ds_write_b128 {vA0}, v[{O+4}:{O+7}] offset:{L_P + 512}")
        A.setexec(M_HI)
        A(f"ds_write_b128 {vA0}, v[{O+8}:{O+11}] offset:{L_P + 768 + 256}")
        A.setexec(ALL)
    A(f"s_mul_i32 {sT0}, {sWAVE}, 1536")
    A(f"v_lshl_add_u32 {vT[2]}, {vLANE}, 2, {sT0}")
    A(f"s_lshl_b32 {sT0}, {sH}, 2")
    A(f"s_add_u32 {sT1}, {sT0}, {sWAVE}")
    A(f"s_lshl_b32 {sT1}, {sT1}, 3")
    A(f"s_add_u32 {sT1}, {sT1}, {sBS}")
    A(f"s_lshl_b32 {sT1}, {sT1}, 10")
    A(f"s_add_u32 {sT1}, {sT1}, {WS_QP}")
    A(f"s_add_u32 {sQG}, {sT0}, {sB}")
    A(f"s_lshl_b32 {sQG}, {sQG}, 2")
    A(f"s_add_u32 {sQG}, {sQG}, {sWAVE}")
    A(f"s_lshl_b32 {sQG}, {sQG}, 11")
    A(f"s_add_u32 {sQG}, {sQG}, {WS_QP}")
    lds_put3()
    A("s_waitcnt lgkmcnt(0)")
    for k in range(6):
        A(f"ds_read_b32 v{B+k}, {vT[2]} offset:{L_P + 256*k}")
    A(f"v_mov_b32 v{D+3}, {sTAG}")
    A("s_waitcnt lgkmcnt(0)")
    for k in range(3):
        A(f"v_add_f32 v{D+k}, v{B+k}, v{B+3+k}")
    vq.op(f"buffer_store_dwordx4 v[{D}:{D+3}], {vZ}, s[{sWS}:{sWS+3}], {sT1} offen sc1", "qst")
    st()
    vq.CAP = caph
    head_k(n2)
    def q_gather(track):
        for k in range(2):
            txt = f"buffer_load_dwordx4 v[{B+4*k}:{B+4*k+3}], {vZ}, s[{sWS}:{sWS+3}], {sQG} offen offset:{1024*k} sc1"
            if track: vq.op(txt, "qg")
            else: A(txt)
    q_gather(True)
    head_k(99)
    q, i, t0, t1 = vT[0], vT[1], vT[2], vT[3]
    A(f"v_and_b32 {t0}, 32, {vLANE}")
    A(f"v_and_b32 {t1}, 3, {vLANE}")
    A(f"v_lshl_add_u32 {t0}, {t1}, 3, {t0}")
    A(f"v_bfe_u32 {t1}, {vLANE}, 2, 3")
    A(f"v_add_lshl_u32 {vXN}, {t0}, {t1}, 1")
    A(f"s_mul_i32 {sT0}, {sWAVE}, 768")
    A(f"v_lshlrev_b32 {vQ0}, 2, {vLANE}")
    A(f"v_add_u32 {vQ1}, {sT0}, {vQ0}")
    A(f"v_and_b32 {t0}, 3, {vLANE}")
    A(f"v_lshl_add_u32 {t0}, {q}, 2, {t0}")
    A(f"v_and_b32 {t1}, 8, {vLANE}")
    A(f"v_add_lshl_u32 {vQ2}, {t0}, {t1}, 4")
    A(f"v_cmp_gt_u32 vcc, 8, {i}")
    A(f"v_add_u32 {t1}, 16, {t0}")
    A(f"v_subrev_u32 {t0}, 8, {t0}")
    A(f"v_cndmask_b32 {t0}, {t0}, {t1}, vcc")
    A(f"v_lshlrev_b32 {t0}, 4, {t0}")
    for r in range(12):
        A(f"v_mov_b32 v{QB+r}, 0")
    vq.wait("qg")
    A(f"s_mov_b32 {sSPIN}, {SPIN}")
    A.label("L_qchk")
    A(f"v_cmp_ne_u32 vcc, {sTAG}, v{B+3}")
    A(f"v_cmp_ne_u32 s[4:5], {sTAG}, v{B+7}")
    A("s_nop 1")
    A("s_or_b64 vcc, vcc, s[4:5]")
    A("s_cbranch_scc0 L_qok")
    A(f"s_sub_u32 {sSPIN}, {sSPIN}, 1")
    A(f"s_cmp_eq_u32 {sSPIN}, 0")
    A("s_cbranch_scc1 L_qok")
    A(f"s_add_u32 {sRETRY}, {sRETRY}, 1")
    A("s_sleep 2")
    q_gather(False)
    A("s_waitcnt vmcnt(0)")
    A("s_branch L_qchk")
    A.label("L_qok")
    for k in range(3):
        A(f"v_add_f32 v{B+k}, v{B+k}, v{B+4+k}")
    for k in range(3):
        A(f"ds_write_b32 {vQ1}, v{B+k} offset:{L_QS + 256*k}")
    A("s_waitcnt lgkmcnt(0)")
    A("s_barrier")
    for k in range(12):
        A(f"ds_read_b32 v{O+k}, {vQ0} offset:{L_QS + 256*k}")
    A("s_waitcnt lgkmcnt(0)")
    for k in range(3):
        A(f"v_add_f32 v{O+k}, v{O+k}, v{O+3+k}")
        A(f"v_add_f32 v{O+6+k}, v{O+6+k}, v{O+9+k}")
    for k in range(3):
        A(f"v_add_f32 v{O+k}, v{O+k}, v{O+6+k}")
    for k in range(3):
        A(f"v_cvt_pk_bf16_f32 v{O+k}, v{O+k}, v{O+k}")
    for k in range(3):
        A(f"ds_write_b16 {vXN}, v{O+k} offset:{L_QB + 128*k}")
    A("s_waitcnt lgkmcnt(0)")
    A.setexec(M_LO)
    A(f"ds_read_b128 v[{QB}:{QB+3}], {vQ2} offset:{L_QB}")
    A.setexec(M_HI)
    A(f"ds_read_b128 v[{QB+8}:{QB+11}], {vQ2} offset:{L_QB}")
    A.setexec(M_T1)
    A(f"ds_read_b128 v[{QB+4}:{QB+7}], {t0} offset:{L_QB}")
    A.setexec(ALL)
    for r in range(O, O + 12):
        A(f"v_mov_b32 v{r}, 0")
    def tab_reads():
        for k in range(6):
            A(f"ds_read_b128 v[{TW+4*k}:{TW+4*k+3}], {vTA} offset:{16*k}")
        A(f"v_add_u32 {vTA}, 96, {vTA}")
    A("s_waitcnt lgkmcnt(0)")
    tab_reads()
    ncalls = [0]
    published = [False]
    def tab_finish(dst):
        A.rb(dst, dst)
        A(f"v_add_f32 {dst}, {sB2}, {dst}")
        A(f"v_cvt_pk_bf16_f32 {dst}, {dst}, {dst}")
    def tab_publish():
        ta, tb = f"v{TACC}", f"v{TACC+1}"
        A(f"v_add_f32 {ta}, {ta}, {tb}")
        A("s_nop 1")
        A(f"v_add_f32_dpp {ta}, {ta}, {ta} row_ror:8 row_mask:0xf bank_mask:0xf")
        A(f"v_mov_b32 {tb}, {ta}")
        A("s_nop 1")
        A(f"v_permlane16_swap_b32 {ta}, {tb}")
        A(f"v_add_f32 {ta}, {ta}, {tb}")
        A(f"v_mov_b32 {tb}, {ta}")
        A("s_nop 1")
        A(f"v_permlane32_swap_b32 {ta}, {tb}")
        A(f"v_add_f32 {ta}, {ta}, {tb}")
        tab_finish(ta)
        A(f"s_lshl_b32 {sT0}, {sWAVE}, 4")
        A(f"v_lshl_add_u32 {tb}, {vLANE}, 1, {sT0}")
        A(f"s_lshl_b32 {sT1}, {sTB}, 1")
        A(f"s_add_u32 {sT1}, {sT1}, {WS_TAB}")
        A.setexec(0xff)
        A(f"ds_write_b16 {tb}, {ta} offset:{L_TP}")
        A.setexec(1)
        A("s_waitcnt lgkmcnt(0)")
        A(f"ds_read_b128 v[{TW}:{TW+3}], {tb} offset:{L_TP}")
        A("s_waitcnt lgkmcnt(0)")
        vq.op(f"buffer_store_dwordx4 v[{TW}:{TW+3}], {vT[4]}, s[{sWS}:{sWS+3}], {sT1} offen sc1", "tab")
        A.setexec(ALL)
    A(f"s_lshl_b32 {sB2}, {sB2}, 16")
    st()
    s = vT[0]
    slot_of = list(range(T + ext))
    nxt = [T + ext]
    def refill(slot):
        if slot >= T or nxt[0] >= 2 * NT: return False
        m = nxt[0]; nxt[0] += 1
        slot_of.append(slot)
        ld_tile(slot, m >= NT, m % NT)
        return True
    wo_order = list(range(3 * ext, 60)) + list(range(3 * ext))
    wo_left = [60]
    def wo_step(n):
        if n < wo_start or wo_left[0] == 0: return False
        if (n - wo_start + 1) * wo_rate < 60 - wo_left[0] + 1 - 1e-9: return False
        k = wo_order[60 - wo_left[0]]
        if k < 3 * ext and n < T + k // 3: return False
        ld_wo(k); wo_left[0] -= 1
        return True
    vq.CAP = capk
    for n in range(NT):
        if n == NT - T: vq.CAP = capv
        slot = slot_of[n]
        vq.wait(("k", n))
        for tt in range(3):
            c = "0" if tt == 0 else f"v[{D}:{D+3}]"
            A(f"v_mfma_f32_16x16x32_bf16 v[{D}:{D+3}], {treg(slot, tt)}, v[{QB+4*tt}:{QB+4*tt+3}], {c}")
        if not refill(slot): A("s_nop 6")
        if not wo_step(n): A("s_nop 0")
        A(f"v_mov_b32_dpp {s}, v{D} quad_perm:[0,0,0,0] row_mask:0xf bank_mask:0xf")
        for r in range(1, 4):
            A(f"v_add_f32_dpp {s}, v{D+r}, {s} quad_perm:[{r},{r},{r},{r}] row_mask:0xf bank_mask:0xf")
        A.rb(s, s)
        A(f"v_mul_f32 {s}, {F(192 ** -0.5)}, {s}")
        A.rb(s, s)
        A(f"v_max_f32 {vMAX}, {vMAX}, {s}")
        A(f"ds_write_b32 {vSC}, {s} offset:{n*32}")
        if n >= tab_start:
            if ncalls[0] < 24:
                A(f"s_call_b64 s[{sRET}:{sRET+1}], L_tab")
                ncalls[0] += 1
            elif not published[0]:
                published[0] = True
                tab_publish()
    assert published[0]
    st()
    A.wave_red("max", vMAX, sM)
    A(f"s_lshl_b32 {sT0}, {sWAVE}, 11")
    A(f"s_add_u32 {sT0}, {sT0}, {L_SC}")
    A(f"v_lshl_add_u32 {vT[0]}, {vLANE}, 5, {sT0}")
    A("s_waitcnt lgkmcnt(0)")
    A(f"ds_read_b128 v[{B}:{B+3}], {vT[0]}")
    A(f"ds_read_b128 v[{B+4}:{B+7}], {vT[0]} offset:16")
    A("s_waitcnt lgkmcnt(0)")
    for r in range(8):
        A(f"v_subrev_f32 v{B+r}, {sM}, v{B+r}")
    for r in range(8):
        A(f"v_mul_f32 v{B+r}, {F(LOG2E)}, v{B+r}")
    for r in range(8):
        A(f"v_exp_f32 v{B+r}, v{B+r}")
    A("s_nop 0")
    A(f"v_add_f32 {vT[1]}, v{B}, v{B+1}")
    for r in range(2, 8):
        A(f"v_add_f32 {vT[1]}, {vT[1]}, v{B+r}")
    for r in range(8):
        A(f"v_cvt_pk_bf16_f32 v{B+r}, v{B+r}, v{B+r}")
    A(f"ds_write_b128 {vT[0]}, v[{B}:{B+3}]")
    A(f"ds_write_b128 {vT[0]}, v[{B+4}:{B+7}] offset:16")
    A.wave_red("add", vT[1], sL)
    A(f"v_mov_b32 v{ML}, {sM}")
    A(f"v_mov_b32 v{ML+1}, {sL}")
    A(f"v_mov_b32 v{ML+2}, {sTAG}")
    A(f"v_mov_b32 v{ML+3}, {sTAG}")
    A(f"s_lshl_b32 {sT0}, {sBH}, 7")
    A(f"s_add_u32 {sT0}, {sT0}, {WS_ML}")
    A(f"v_lshl_add_u32 {vZ}, {vLANE}, 4, {sT0}")
    A(f"s_mov_b32 {sT0}, {WS_ZF}")
    A(f"v_writelane_b32 {vZ}, {sT0}, 8")
    A(f"s_lshl_b32 {sT1}, {sHALF}, 2")
    A(f"s_add_u32 {sT1}, {sT1}, {sWAVE}")
    A(f"s_lshl_b32 {sT1}, {sT1}, 4")
    A.setexec(1)
    vq.op(f"buffer_store_dwordx4 v[{ML}:{ML+3}], {vZ}, s[{sWS}:{sWS+3}], {sT1} offen sc1", "mlst")
    A.setexec(ALL)
    PP = [QB + n for n in range(8)]
    A("s_waitcnt lgkmcnt(0)")
    for n in range(4):
        A(f"ds_read_b32 v{PP[n]}, {vSC} offset:{n*32}")
    def fcalc():
        vq.wait("ml")
        A(f"s_mov_b32 {sSPIN}, {SPIN}")
        A.label("L_mlchk")
        A(f"v_cmp_ne_u32 vcc, {sTAG}, v{ML+2}")
        A("s_nop 1")
        A("s_and_b32 vcc_lo, vcc_lo, 0x1ff")
        A("s_cbranch_scc0 L_mlok")
        A(f"s_sub_u32 {sSPIN}, {sSPIN}, 1")
        A(f"s_cmp_eq_u32 {sSPIN}, 0")
        A("s_cbranch_scc1 L_mlok")
        A("s_sleep 8")
        A.setexec(0x1ff)
        A(f"buffer_load_dwordx4 v[{ML}:{ML+3}], {vZ}, s[{sWS}:{sWS+3}], 0 offen sc1")
        A.setexec(ALL)
        A("s_waitcnt vmcnt(0)")
        A("s_branch L_mlchk")
        A.label("L_mlok")
        mm, e = vT[0], vT[1]
        A(f"v_mov_b32 {mm}, v{ML}")
        for stp in Asm.DPP_STEPS[:3]:
            A("s_nop 1")
            A(f"v_max_f32_dpp {mm}, {mm}, {mm} {stp}")
        A(f"v_sub_f32 {e}, v{ML}, {mm}")
        A(f"v_sub_f32 {mm}, {sM}, {mm}")
        A(f"v_mul_f32 {e}, {F(LOG2E)}, {e}")
        A(f"v_mul_f32 {mm}, {F(LOG2E)}, {mm}")
        A(f"v_exp_f32 {e}, {e}")
        A(f"v_exp_f32 {mm}, {mm}")
        A(f"v_mul_f32 {e}, {e}, v{ML+1}")
        for stp in Asm.DPP_STEPS[:3]:
            A("s_nop 1")
            A(f"v_add_f32_dpp {e}, {e}, {e} {stp}")
        A(f"v_rcp_f32 {e}, {e}")
        A("s_nop 0")
        A(f"v_mul_f32 {e}, {e}, {mm}")
        A("s_nop 0")
        A(f"v_readfirstlane_b32 {sF}, {e}")
        A(f"v_lshrrev_b32 {vT[0]}, 4, {vLANE}")
        A(f"s_lshr_b32 {sT0}, {sWAVE}, 1")
        A(f"s_mul_i32 {sT0}, {sT0}, 24")
        A(f"s_and_b32 {sT1}, {sWAVE}, 1")
        A(f"s_lshl_b32 {sT1}, {sT1}, 2")
        A(f"s_add_u32 {sT0}, {sT0}, {sT1}")
        A(f"v_add_lshl_u32 {vT[0]}, {vT[0]}, {sT0}, 4")
        A(f"v_and_b32 {vT[1]}, 8, {vLANE}")
        A(f"v_mul_u32_u24 {vT[1]}, 96, {vT[1]}")
        A(f"v_add_u32 {vQ0}, {vT[0]}, {vT[1]}")
        A(f"v_and_b32 {vT[0]}, 0xe0, v0")
        A(f"v_and_b32 {vT[1]}, 7, v0")
        A(f"v_lshl_add_u32 {vT[0]}, {vT[1]}, 2, {vT[0]}")
        A(f"v_bfe_u32 {vT[1]}, v0, 3, 2")
        A(f"v_add_lshl_u32 {vQ1}, {vT[0]}, {vT[1]}, 2")
        A(f"s_mul_i32 {sWQOFF}, {sB}, 2560")
    for n in range(NT):
        slot = slot_of[NT + n]
        bb = B + 4 * (n & 1)
        if n + 4 < NT:
            A(f"ds_read_b32 v{PP[(n+4)%8]}, {vSC} offset:{(n+4)*32}")
            A("s_waitcnt lgkmcnt(4)")
        else:
            A(f"s_waitcnt lgkmcnt({NT-1-n})")
        for r in range(4):
            A(f"v_and_b32 v{bb+r}, v{PP[n%8]}, {vM[r]}")
        vq.wait(("v", n))
        A("s_nop 1")
        for tt in range(3):
            A(f"v_mfma_f32_16x16x32_bf16 v[{O+4*tt}:{O+4*tt+3}], {treg(slot, tt)}, v[{bb}:{bb+3}], v[{O+4*tt}:{O+4*tt+3}]")
        refill(slot)
        wo_step(NT + n)
        if n == NT - T - 4:
            A.setexec(0x1ff)
            vq.op(f"buffer_load_dwordx4 v[{ML}:{ML+3}], {vZ}, s[{sWS}:{sWS+3}], 0 offen sc1", "ml")
            A.setexec(ALL)
        if n == NT - 4:
            fcalc()
        if n == 8:
            vq.wait("tab")
            A(f"v_mov_b32 v{TACC+1}, 1")
            A.setexec(1)
            A(f"ds_add_rtn_u32 v{TACC}, {vT[4]}, v{TACC+1} offset:{L_TP + 64}")
            A("s_waitcnt lgkmcnt(0)")
            A(f"v_readfirstlane_b32 {sT0}, v{TACC}")
            A(f"s_cmp_lg_u32 {sT0}, 3")
            A("s_cbranch_scc1 L_notd")
            A(f"s_lshl_b32 {sT0}, s2, 6")
            A(f"s_add_u32 {sT0}, {sT0}, {WS_TD}")
            A(f"v_mov_b32 v{TACC+1}, {sTAG}")
            A(f"buffer_store_dword v{TACC+1}, {vT[4]}, s[{sWS}:{sWS+3}], {sT0} offen sc1")
            A.label("L_notd")
            A.setexec(ALL)
    assert wo_left[0] == 0
    st()
    A("s_nop 7")
    for r in range(12):
        A(f"v_mul_f32 v{O+r}, {sF}, v{O+r}")
    lds_put3()
    A("s_waitcnt lgkmcnt(0)")
    A("s_barrier")
    st()
    A(f"s_cmp_eq_u32 {sWAVE}, 3")
    A("s_cbranch_scc1 L_o3")
    for k in range(8):
        A(f"ds_read_b32 v{B+k}, {vA1} offset:{L_P + 768*k}")
    A("s_waitcnt lgkmcnt(4)")
    A(f"v_add_f32 v{B}, v{B}, v{B+1}")
    A(f"v_add_f32 v{B+2}, v{B+2}, v{B+3}")
    A("s_waitcnt lgkmcnt(0)")
    A(f"v_add_f32 v{B+4}, v{B+4}, v{B+5}")
    A(f"v_add_f32 v{B+6}, v{B+6}, v{B+7}")
    A(f"v_add_f32 v{B}, v{B}, v{B+2}")
    A(f"v_add_f32 v{B+4}, v{B+4}, v{B+6}")
    A(f"v_add_f32 {vT[1]}, v{B}, v{B+4}")
    A.rb(vT[2], vT[1])
    A(f"v_cvt_pk_bf16_f32 {vT[3]}, {vT[1]}, {vT[1]}")
    A(f"v_sub_f32 {vT[2]}, {vT[1]}, {vT[2]}")
    A(f"ds_write_b32 {vA1}, {vT[3]} offset:{L_PH}")
    A(f"v_cvt_pk_bf16_f32 {vT[2]}, {vT[2]}, {vT[2]}")
    A(f"ds_write_b32 {vA1}, {vT[2]} offset:{L_PH + 768}")
    A("s_waitcnt lgkmcnt(0)")
    A.label("L_o3")
    A("s_barrier")
    for k in range(3):
        A(f"ds_read_b128 v[{O+4*k}:{O+4*k+3}], {vQ0} offset:{L_PH + 128*k}")
    BO = R0
    YD = R0 + 48
    vq.wait("wo")
    def yout(c):
        for r in range(4):
            A(f"v_add_f32_dpp v{YD+4*c+r}, v{YD+4*c+r}, v{YD+4*c+r} row_ror:8 row_mask:0xf bank_mask:0xf")
        A.setexec(M_LO)
        A(f"ds_write_b128 {vAY}, v[{YD+4*c}:{YD+4*c+3}] offset:{L_YP + c*512}")
        A.setexec(ALL)
    def omfma(rg, c):
        n = rg * 5 + c
        cc = "0" if rg == 0 else f"v[{YD+4*c}:{YD+4*c+3}]"
        A(f"v_mfma_f32_16x16x32_bf16 v[{YD+4*c}:{YD+4*c+3}], a[{4*n}:{4*n+3}], v[{BO+4*rg}:{BO+4*rg+3}], {cc}")
    ands = [(rg, r) for rg in range(12) for r in range(4)]
    def oand():
        if ands:
            rg, r = ands.pop(0)
            if r == 0 and rg % 4 == 0:
                A(f"s_waitcnt lgkmcnt({2 - rg//4})")
            A(f"v_and_b32 v{BO+4*rg+r}, v{O+rg}, {vM[r]}")
    for _ in range(6): oand()
    NR = 4
    for rg in range(NR):
        for c in range(5):
            omfma(rg, c)
            oand(); oand()
    while ands: oand()
    A("s_nop 1")
    for c in range(5):
        for rg in range(NR, 12):
            omfma(rg, c)
        if c > 0:
            yout(c - 1)
    A("s_nop 1")
    yout(4)
    A("s_waitcnt lgkmcnt(0)")
    A("s_barrier")
    st()
    for k in range(2):
        for w in range(4):
            A(f"ds_read_b32 v{O+4*k+w}, {vQ1} offset:{L_YP + 2560*w + 1024*k}")
    A(f"s_cmp_ge_u32 {sWAVE}, 2")
    A("s_cbranch_scc1 L_two")
    for w in range(4):
        A(f"ds_read_b32 v{O+8+w}, {vQ1} offset:{L_YP + 2560*w + 2048}")
    A("s_waitcnt lgkmcnt(0)")
    A(f"v_add_f32 v{O+8}, v{O+8}, v{O+9}")
    A(f"v_add_f32 v{O+10}, v{O+10}, v{O+11}")
    A(f"v_add_f32 v{O+8}, v{O+8}, v{O+10}")
    A(f"buffer_atomic_add_f32 v{O+8}, {vA1}, s[{sWS}:{sWS+3}], {sWQOFF} offen offset:{WS_ACC + 2048}")
    A.label("L_two")
    A("s_waitcnt lgkmcnt(0)")
    for k in range(2):
        A(f"v_add_f32 v{O+4*k}, v{O+4*k}, v{O+4*k+1}")
        A(f"v_add_f32 v{O+4*k+2}, v{O+4*k+2}, v{O+4*k+3}")
    for k in range(2):
        A(f"v_add_f32 v{O+4*k}, v{O+4*k}, v{O+4*k+2}")
        A(f"buffer_atomic_add_f32 v{O+4*k}, {vA1}, s[{sWS}:{sWS+3}], {sWQOFF} offen offset:{WS_ACC + 1024*k}")
    A(f"s_lshl_b32 {sT0}, {sB}, 7")
    A(f"s_add_u32 {sT0}, {sT0}, {WS_CNT}")
    A(f"v_mov_b32 {vZ}, 1")
    A("s_waitcnt vmcnt(0)")
    A("s_barrier")
    st()
    A(f"s_cmp_lg_u32 {sWAVE}, {sB}")
    A("s_cbranch_scc1 L_done")
    A.setexec(1)
    A(f"buffer_atomic_add {vZ}, {vT[4]}, s[{sWS}:{sWS+3}], {sT0} offen sc0")
    A.setexec(ALL)
    A(f"s_mul_i32 {sT0}, {sB}, 1280")
    A.srd_off(sOUT, 20, sT0, 1280)
    A(f"v_lshlrev_b32 {vT[0]}, 3, {vLANE}")
    A(f"v_lshlrev_b32 {vT[1]}, 8, {vLANE}")
    H = R0
    HN = R0 + 10
    G = R0 + 20
    X = R0 + 40
    for n in range(5):
        A(f"v_lshlrev_b32 v{X+2*n}, 16, v{XS+n}")
        A(f"v_and_b32 v{X+2*n+1}, 0xffff0000, v{XS+n}")
    A(f"s_movk_i32 {sT1}, {WS_TD}")
    A("s_waitcnt vmcnt(0)")
    A(f"v_readfirstlane_b32 {sT0}, {vZ}")
    A(f"s_cmp_lg_u32 {sT0}, 63")
    A("s_cbranch_scc1 L_done")
    st()
    for n in range(5):
        A(f"buffer_load_dwordx2 v[{H+2*n}:{H+2*n+1}], {vT[0]}, s[{sWS}:{sWS+3}], {sWQOFF} offen offset:{WS_ACC + n*512} sc1")
    def tdload():
        for k in range(4):
            A(f"buffer_load_dword v{ML+k}, {vT[1]}, s[{sWS}:{sWS+3}], {sT1} offen offset:{k*64} sc1")
    tdload()
    A("s_waitcnt vmcnt(4)")
    h = [f"v{H+n}" for n in range(10)]
    hn = [f"v{HN+n}" for n in range(10)]
    for n in range(10):
        A.rb(h[n], h[n])
    for n in range(5):
        A(f"v_pk_add_f32 v[{H+2*n}:{H+2*n+1}], v[{H+2*n}:{H+2*n+1}], v[{X+2*n}:{X+2*n+1}]")
    for n in range(10):
        A.rb(h[n], h[n])
    layernorm_fast(A, H, HN, G, 4, True)
    A("s_waitcnt vmcnt(0)")
    A(f"s_mov_b32 {sSPIN}, {SPIN}")
    A.label("L_tdchk")
    for k in range(4):
        A(f"v_xor_b32 v{ML+k}, {sTAG}, v{ML+k}")
    A(f"v_or3_b32 v{ML}, v{ML}, v{ML+1}, v{ML+2}")
    A(f"v_or_b32 v{ML}, v{ML}, v{ML+3}")
    A(f"v_cmp_ne_u32 vcc, 0, v{ML}")
    A("s_nop 1")
    A("s_cmp_eq_u64 vcc, 0")
    A("s_cbranch_scc1 L_tdok")
    A(f"s_sub_u32 {sSPIN}, {sSPIN}, 1")
    A(f"s_cmp_eq_u32 {sSPIN}, 0")
    A("s_cbranch_scc1 L_tdok")
    A("s_sleep 8")
    tdload()
    A("s_waitcnt vmcnt(0)")
    A("s_branch L_tdchk")
    A.label("L_tdok")
    layernorm_fast(A, HN, HN, G, 4, False)
    A(f"s_mov_b32 {sT0}, {WS_TAB}")
    st()
    for n in range(10):
        A(f"v_lshrrev_b32 v{X+n}, 15, {hn[n]}")
        A(f"buffer_load_ushort v{G+n}, v{X+n}, s[{sWS}:{sWS+3}], {sT0} offen sc1")
    A(f"v_mov_b32 {vZ}, {sTAG}")
    A(f"s_mov_b32 {sT1}, {WS_EP}")
    A.setexec(1)
    A(f"buffer_store_dword {vZ}, {vT[4]}, s[{sWS}:{sWS+3}], {sT1} offen sc1")
    A.setexec(ALL)
    A(f"v_lshlrev_b32 {vT[0]}, 2, {vLANE}")
    A(f"v_min3_f32 {vT[2]}, abs({hn[0]}), abs({hn[1]}), abs({hn[2]})")
    A(f"v_max3_f32 {vT[3]}, abs({hn[0]}), abs({hn[1]}), abs({hn[2]})")
    for n in range(3, 9, 2):
        A(f"v_min3_f32 {vT[2]}, abs({hn[n]}), abs({hn[n+1]}), {vT[2]}")
        A(f"v_max3_f32 {vT[3]}, abs({hn[n]}), abs({hn[n+1]}), {vT[3]}")
    A(f"v_min_f32 {vT[2]}, abs({hn[9]}), {vT[2]}")
    A(f"v_max_f32 {vT[3]}, abs({hn[9]}), {vT[3]}")
    A(f"v_cmp_gt_f32 vcc, {F(2.0 ** -27)}, {vT[2]}")
    A(f"v_mov_b32 {vT[2]}, {F(32.0)}")
    A(f"v_cmp_le_f32 s[4:5], {vT[2]}, {vT[3]}")
    A("s_nop 1")
    A("s_or_b64 vcc, vcc, s[4:5]")
    A("s_cbranch_scc1 L_direct")
    A.label("L_lookup")
    for n in range(5):
        A(f"s_waitcnt vmcnt({8 - 2*n + n + 1})")
        for k in (2*n, 2*n + 1):
            A(f"v_lshlrev_b32 v{G+k}, 16, v{G+k}")
        A(f"v_pk_add_f32 v[{G+2*n}:{G+2*n+1}], v[{G+2*n}:{G+2*n+1}], v[{H+2*n}:{H+2*n+1}]")
        A(f"v_cvt_pk_bf16_f32 v{G+2*n}, v{G+2*n}, v{G+2*n+1}")
        A(f"buffer_store_dword v{G+2*n}, {vT[0]}, s[{sOUT}:{sOUT+3}], 0 offen offset:{n*256}")
    if stamps:
        A("s_waitcnt vmcnt(0)")
        st()
        st.flush(sWS, WS_STAMP + 65536, sWAVE, vT[0], vT[1])
    A.label("L_done")
    if stamps:
        st.flush(sWS, WS_STAMP, sWAVE, vT[0], vT[1])
    A.label("L_end")
    A("s_endpgm")
    A.label("L_direct")
    A("s_waitcnt vmcnt(0)")
    A(f"v_lshrrev_b32 {vT[1]}, 3, {vLANE}")
    A(f"v_mul_u32_u24 {vT[1]}, 2320, {vT[1]}")
    A(f"v_and_b32 {vT[2]}, 7, {vLANE}")
    A(f"v_mul_u32_u24 {vT[2]}, 288, {vT[2]}")
    A(f"v_add_u32 {vT[1]}, {vT[1]}, {vT[2]}")
    A(f"v_add_u32 {vT[1]}, {L_W}, {vT[1]}")
    for n in range(10):
        A(f"v_bfe_u32 {vT[2]}, {hn[n]}, 23, 8")
        A(f"v_subrev_u32 {vT[2]}, 100, {vT[2]}")
        A(f"v_cmp_le_u32 s[4:5], 32, {vT[2]}")
        A.label(f"L_dir{n}")
        A("s_nop 1")
        A("s_cmp_eq_u64 s[4:5], 0")
        A(f"s_cbranch_scc1 L_dirx{n}")
        A(f"s_ff1_i32_b64 {sT0}, s[4:5]")
        A(f"v_readlane_b32 {sT1}, {hn[n]}, {sT0}")
        A(f"s_call_b64 s[6:7], L_eval")
        A(f"v_cmp_eq_u32 vcc, {sT1}, {hn[n]}")
        A("s_nop 1")
        A(f"v_cndmask_b32 v{G+n}, v{G+n}, v{TACC}, vcc")
        A("s_andn2_b64 s[4:5], s[4:5], vcc")
        A(f"s_branch L_dir{n}")
        A.label(f"L_dirx{n}")
    A("s_branch L_lookup")
    A.label("L_eval")
    A("s_nop 1")
    A(f"v_mov_b32 v{TX}, {sT1}")
    A(f"v_mov_b32 v{TX+1}, {sT1}")
    A(f"v_mov_b32 v{TACC}, 0")
    A(f"v_mov_b32 v{TACC+1}, 0")
    A(f"v_mov_b32 {vTA}, {vT[1]}")
    A("s_waitcnt lgkmcnt(0)")
    tab_reads()
    for _ in range(3):
        A(f"s_call_b64 s[{sRET}:{sRET+1}], L_tab")
    A(f"v_add_f32 v{TACC}, v{TACC}, v{TACC+1}")
    A.wave_red("add", f"v{TACC}", sT0)
    A(f"v_mov_b32 v{TACC}, {sT0}")
    tab_finish(f"v{TACC}")
    A("s_setpc_b64 s[6:7]")
    A.label("L_tab")
    A("s_waitcnt lgkmcnt(0)")
    def P(r): return f"v[{r}:{r+1}]"
    W1, B1, W2 = TW, TW + 8, TW + 16
    for p in range(4): A(f"v_pk_mul_f32 {P(W1+2*p)}, {P(TX)}, {P(W1+2*p)}")
    for k in range(8): A.rb(f"v{W1+k}", f"v{W1+k}")
    for p in range(4): A(f"v_pk_add_f32 {P(W1+2*p)}, {P(W1+2*p)}, {P(B1+2*p)}")
    for k in range(8): A.rb(f"v{W1+k}", f"v{W1+k}")
    for p in range(4): A(f"v_pk_mul_f32 {P(B1+2*p)}, {P(W1+2*p)}, {P(W1+2*p)}")
    for p in range(4): A(f"v_pk_fma_f32 {P(B1+2*p)}, {P(B1+2*p)}, {P(TK1)}, s[{sK0}:{sK0+1}]")
    for p in range(4): A(f"v_pk_mul_f32 {P(B1+2*p)}, {P(B1+2*p)}, {P(W1+2*p)}")
    for k in range(8): A(f"v_exp_f32 v{B1+k}, v{B1+k}")
    for p in range(4): A(f"v_pk_add_f32 {P(B1+2*p)}, {P(B1+2*p)}, s[{sONE}:{sONE+1}]")
    for k in range(8): A(f"v_rcp_f32 v{B1+k}, v{B1+k}")
    for p in range(4): A(f"v_pk_mul_f32 {P(W1+2*p)}, {P(W1+2*p)}, {P(B1+2*p)}")
    for k in range(8): A.rb(f"v{W1+k}", f"v{W1+k}")
    for p in range(4): A(f"v_pk_fma_f32 {P(TACC)}, {P(W1+2*p)}, {P(W2+2*p)}, {P(TACC)}")
    tab_reads()
    A(f"s_setpc_b64 s[{sRET}:{sRET+1}]")
    acc = (NV + 3) // 4 * 4
    return A.text() + kd(KN, acc + 240, 102, acc)

if __name__ == "__main__":
    kw = eval("dict(%s)" % (sys.argv[2] if len(sys.argv) > 2 else ""))
    open(sys.argv[1], "w").write(gen(**kw))
```

```python
import sys
from asmlib import *

KN = "sequential_preLN__mha_block_cached__mixer_token_mlp__decode_kernel"
HDR = open("sequential_preLN__mha_block_cached__mixer_token_mlp__decode.s.ref").read().split("; Override launch")[0]
LOG2E = 1.4426950408889634
WS_ACC, WS_CNT, WS_ZEND = 0, 10240, 12288
WS_ML = 12288
WS_TD = 28672
WS_EP = 45056
WS_ZF = 45312
WS_TAB = 65536
WS_STAMP = 524288
WS_QP = 1 << 20
WS_SIZE = 2 << 20
L_XN = 0
L_P = 10240
L_QB = L_P + 6144
L_PH = L_QB + 512
L_W = L_PH + 1536
L_TP = L_W + 8 * 2320
L_YP = L_TP + 128
L_SC = L_YP + 10240
L_QS = L_SC + 8192
L_WQ = L_QS + 3072
L_END = L_WQ + 36864
M_LO, M_HI, M_T1 = 0x00FF00FF00FF00FF, 0xFF00FF00FF00FF00, 0xFF00FF0000FF00FF
ALL = (1 << 64) - 1
SPIN = 0x100000

class Stamps:
    def __init__(self, A, on, s0): self.A = A; self.on = on; self.s0 = s0; self.n = 0
    def __call__(self):
        if self.on:
            s = self.s0 + 2 * self.n
            self.A(f"s_memrealtime s[{s}:{s+1}]")
            self.n += 1
    def flush(self, srd, base, swave, v0, v1):
        if not self.on: return
        A = self.A
        A("s_waitcnt lgkmcnt(0)")
        A("s_lshl_b32 s6, s2, 2")
        A(f"s_add_u32 s6, s6, {swave}")
        A("s_lshl_b32 s6, s6, 6")
        A(f"s_add_u32 s6, s6, {base}")
        A(f"v_mov_b32 {v1}, 0")
        A.setexec(1)
        for n in range(self.n):
            A(f"v_mov_b32 {v0}, s{self.s0 + 2*n}")
            A(f"buffer_store_dword {v0}, {v1}, s[{srd}:{srd+3}], s6 offen offset:{4*n}")
        A("s_getreg_b32 s7, hwreg(HW_REG_XCC_ID)")
        A(f"v_mov_b32 {v0}, s7")
        A(f"buffer_store_dword {v0}, {v1}, s[{srd}:{srd+3}], s6 offen offset:60")
        A(f"v_mov_b32 {v0}, s51")
        A(f"buffer_store_dword {v0}, {v1}, s[{srd}:{srd+3}], s6 offen offset:56")
        A.setexec(ALL)

class VQ:
    CAP = 54
    def __init__(self, A): self.A = A; self.q = []
    def op(self, text, tag):
        if len(self.q) >= self.CAP:
            self.A(f"s_waitcnt vmcnt({self.CAP - 1})")
            self.q = self.q[-(self.CAP - 1):]
        self.A(text)
        self.q.append(tag)
    def wait(self, tag):
        if tag not in self.q: return
        pos = len(self.q) - 1 - self.q[::-1].index(tag)
        self.A(f"s_waitcnt vmcnt({len(self.q) - 1 - pos})")
        self.q = self.q[pos + 1:]

def gen(T=12, ext=17, rot=1, wo_start=0, stamps=False, kf='nt', vf='nt', wf='nt', tab_start=32,
        n1=5, n1b=1, n1c=1, n2=6, capk=54, capv=54, caph=54, wo_rate=1.0, dbg=False):
    if dbg: stamps = True
    A = Asm()
    A.raw(HDR.rstrip())
    A.raw(f"; @launch grid=(256,1,1) block=(256,1,1) lds={L_END}")
    A.raw('.amdgcn_target "amdgcn-amd-amdhsa--gfx950"')
    A.raw(".text")
    A.raw(f".globl {KN}")
    st = Stamps(A, stamps, 76)
    NT = 64
    STEP = 12288
    REGION = 786432
    sX, sK, sV, sWQ, sWO, sWS = 24, 28, 32, 36, 40, 44
    sOUT = 36
    sTAG, sBS, sQG, sRETRY = "s48", "s49", "s50", "s51"
    sWAVE, sB, sH, sHALF, sBH, sT0, sT1 = "s52", "s53", "s54", "s55", "s56", "s57", "s58"
    sKREL, sVREL, sWB, sOFF, sWQOFF, sWOOFF, sM, sL, sF, sSPIN = "s59", "s60", "s61", "s62", "s63", "s64", "s65", "s66", "s67", "s68"
    sB2, sTB = "s69", "s3"
    sK0, sONE, sRET = 70, 72, 74
    vLANE, vKO, vVO, vQ0, vQ1, vQ2, vWO = "v1", "v2", "v3", "v4", "v5", "v6", "v7"
    vM = ["v8", "v9", "v10", "v11"]
    vA0, vA1, vAY, vSC, vXN, vMAX, vZ = "v12", "v13", "v14", "v15", "v16", "v17", "v18"
    vT = [f"v{i}" for i in range(19, 24)]
    QB = 24
    D = 36
    O = 40
    B = 52
    ML = 60
    TW = 64
    TX, TACC, TK1 = 88, 90, 92
    vTA = "v94"
    XS = 95
    R0 = 100
    NV = R0 + 12 * T
    AW = 204
    assert NV <= 256 and ext * 12 <= AW
    vq = VQ(A)

    A.raw(".p2align 8")
    A.raw(f".type {KN},@function")
    A.label(KN)
    A("s_cmp_ge_u32 s2, 256")
    A("s_cbranch_scc1 L_end")
    st()
    A("s_load_dwordx8 s[8:15], s[0:1], 0")
    A("s_load_dwordx2 s[16:17], s[0:1], 32")
    A("s_load_dwordx2 s[22:23], s[0:1], 96")
    A(f"v_lshrrev_b32 {vT[0]}, 6, v0")
    A(f"v_and_b32 {vLANE}, 63, v0")
    A(f"v_readfirstlane_b32 {sWAVE}, {vT[0]}")
    A(f"s_and_b32 {sH}, s2, 7")
    A(f"s_lshr_b32 {sT0}, s2, 3")
    A(f"s_lshl_b32 {sH}, {sH}, 2")
    A(f"s_and_b32 {sT1}, {sT0}, 3")
    A(f"s_add_u32 {sH}, {sH}, {sT1}")
    A(f"s_lshr_b32 {sBS}, {sT0}, 2")
    A(f"s_lshr_b32 {sB}, {sT0}, 3")
    A(f"s_and_b32 {sHALF}, {sBS}, 1")
    A(f"s_lshl_b32 {sBH}, {sB}, 5")
    A(f"s_add_u32 {sBH}, {sBH}, {sH}")
    q, i, t0, t1 = vT[0], vT[1], vT[2], vT[3]
    A(f"v_lshrrev_b32 {q}, 4, {vLANE}")
    A(f"v_and_b32 {i}, 15, {vLANE}")
    A(f"v_lshrrev_b32 {t0}, 2, {i}")
    A(f"v_mul_u32_u24 {vKO}, 768, {t0}")
    A(f"v_lshl_add_u32 {vKO}, {q}, 6, {vKO}")
    A(f"v_and_b32 {t0}, 3, {i}")
    A(f"v_lshl_add_u32 {vKO}, {t0}, 4, {vKO}")
    A(f"v_mul_u32_u24 {vVO}, 768, {q}")
    A(f"v_lshl_add_u32 {vVO}, {i}, 4, {vVO}")
    A(f"v_mul_u32_u24 {vQ0}, 24576, {q}")
    A(f"v_lshl_add_u32 {vQ0}, {i}, 4, {vQ0}")
    A(f"v_add_u32 {vQ1}, 256, {vQ0}")
    A(f"v_add_u32 {vQ2}, {12288-128}, {vQ0}")
    A(f"v_cmp_gt_u32 vcc, 8, {i}")
    A(f"v_mul_u32_u24 {vWO}, 1280, {q}")
    A(f"v_lshl_add_u32 {vWO}, {i}, 4, {vWO}")
    A(f"v_cndmask_b32 {vQ1}, {vQ2}, {vQ1}, vcc")
    A(f"v_add_u32 {vQ2}, {12288+128}, {vQ0}")
    for r in range(O, O + 12):
        A(f"v_mov_b32 v{r}, 0")
    A(f"v_lshlrev_b32 {t0}, 4, v0")
    A(f"v_lshlrev_b32 {t1}, 2, {vLANE}")
    A(f"s_lshl_b32 {sT1}, {sBH}, 1")
    A(f"s_add_u32 {sT1}, {sT1}, {sHALF}")
    A(f"s_mul_i32 {sKREL}, {sT1}, {rot}")
    A(f"s_and_b32 {sKREL}, {sKREL}, 63")
    A(f"s_mul_i32 {sKREL}, {sKREL}, {STEP}")
    A(f"s_mov_b32 {sVREL}, {sKREL}")
    A(f"s_mul_i32 {sT1}, {sT1}, {REGION}")
    A(f"s_mul_i32 {sWB}, {sWAVE}, 3072")
    A(f"s_mul_i32 {sOFF}, {sBS}, {80*12288}")
    A(f"s_mul_i32 {sT0}, {sH}, 384")
    A(f"s_add_u32 {sOFF}, {sOFF}, {sT0}")
    A(f"s_mul_i32 {sWQOFF}, {sWAVE}, {8*12288}")
    A(f"s_lshr_b32 {sT0}, {sWAVE}, 1")
    A(f"s_mul_i32 {sWOOFF}, {sT0}, {96*1280}")
    A(f"s_and_b32 {sT0}, {sWAVE}, 1")
    A(f"s_mul_i32 {sT0}, {sT0}, {4*1280}")
    A(f"s_add_u32 {sWOOFF}, {sWOOFF}, {sT0}")
    A(f"s_mul_i32 {sT0}, {sWAVE}, 1280")
    A(f"s_mov_b32 {sRETRY}, 0")
    A("s_waitcnt lgkmcnt(0)")
    A.srd_off(sX, 8, sT0, 1280)
    for n in range(5):
        vq.op(f"buffer_load_dword v{XS+n}, {t1}, s[{sX}:{sX+3}], 0 offen offset:{n*256}", "x")
    A.srd_off(sWQ, 14, sOFF, 79 * 12288 + 384)
    for k in range(3):
        for t, o in enumerate((vQ0, vQ1, vQ2)):
            r = AW + k * 12 + t * 4
            vq.op(f"buffer_load_dwordx4 a[{r}:{r+3}], {o}, s[{sWQ}:{sWQ+3}], {sWQOFF} offen {wf}", "wq")
        if k < 2: A(f"s_add_u32 {sWQOFF}, {sWQOFF}, {32*12288}")
    A.srd_off(sK, 10, sT1, REGION)
    A.srd_off(sV, 12, sT1, REGION)
    A(f"s_mul_i32 {sT0}, {sH}, 245760")
    A.srd_off(sWO, 16, sT0, 245760)
    A.srd(sWS, "s22", "s23", WS_SIZE)
    A("s_load_dwordx8 s[8:15], s[0:1], 48")
    A("s_load_dwordx2 s[20:21], s[0:1], 80")
    A(f"s_load_dword {sTAG}, s[22:23], {WS_EP}")

    def treg(slot, t):
        if slot < T:
            r = R0 + slot * 12 + t * 4
            return f"v[{r}:{r+3}]"
        r = (slot - T) * 12 + t * 4
        return f"a[{r}:{r+3}]"
    def ld_tile(slot, isv, n):
        rel, srd, off = (sVREL, sV, vVO) if isv else (sKREL, sK, vKO)
        A(f"s_add_u32 {sOFF}, {sWB}, {rel}")
        for t in range(3):
            vq.op(f"buffer_load_dwordx4 {treg(slot, t)}, {off}, s[{srd}:{srd+3}], {sOFF} offen offset:{t*256} {vf if isv else kf}", ("v" if isv else "k", n))
        A(f"s_add_u32 {rel}, {rel}, {STEP}")
        A(f"s_cmp_ge_u32 {rel}, {REGION}")
        A(f"s_cselect_b32 {rel}, 0, {rel}")
    def ld_wo(n):
        rg, c = divmod(n, 5)
        A(f"s_add_u32 {sOFF}, {sWOOFF}, {rg*8*1280}")
        vq.op(f"buffer_load_dwordx4 a[{4*n}:{4*n+3}], {vWO}, s[{sWO}:{sWO+3}], {sOFF} offen offset:{c*256} {wf}", "wo")
    kis = [0]
    def head_k(n):
        for _ in range(n):
            if kis[0] < T + ext:
                ld_tile(kis[0], False, kis[0]); kis[0] += 1
    head_k(1)
    A("s_cmp_lg_u32 s2, 0")
    A("s_cbranch_scc1 L_nozero")
    for n in range(WS_ZEND // 4096):
        A(f"s_movk_i32 {sT0}, {n*4096}")
        A(f"buffer_store_dwordx4 v[{O}:{O+3}], {t0}, s[{sWS}:{sWS+3}], {sT0} offen sc1")
    A.label("L_nozero")
    A("s_waitcnt lgkmcnt(0)")
    sW = 16
    for ptr, dst in ((8, B), (10, B + 4), (12, D)):
        A.srd(sW, f"s{ptr}", f"s{ptr+1}", 3072)
        vq.op(f"buffer_load_dwordx4 v[{dst}:{dst+3}], {t0}, s[{sW}:{sW+3}], 0 offen", "mw")
    A(f"s_load_dword {sB2}, s[14:15], 0")
    A(f"s_mul_i32 {sTAG}, {sTAG}, 0x2c9277b5")
    A(f"s_add_u32 {sTAG}, {sTAG}, 0x7f4a7c15")
    jl = vT[2]
    A(f"v_and_b32 {jl}, 7, {vLANE}")
    A(f"v_and_b32 {t1}, 1, {vLANE}")
    A(f"v_cmp_eq_u32 vcc, 1, {t1}")
    A(f"v_mov_b32 {vT[4]}, 0xffff")
    A(f"v_mov_b32 {vM[3]}, 0xffff0000")
    A(f"v_cndmask_b32 {vT[4]}, {vT[4]}, {vM[3]}, vcc")
    A(f"v_lshrrev_b32 {t1}, 1, {jl}")
    for r in range(4):
        A(f"v_cmp_eq_u32 vcc, {r}, {t1}")
        A("s_nop 1")
        A(f"v_cndmask_b32 {vM[r]}, 0, {vT[4]}, vcc")
    A(f"v_lshl_add_u32 {vAY}, {q}, 3, {jl}")
    A(f"v_lshlrev_b32 {vAY}, 4, {vAY}")
    A(f"s_mul_i32 {sT0}, {sWAVE}, 1536")
    A(f"v_add_u32 {vA0}, {sT0}, {vAY}")
    A(f"s_mul_i32 {sT0}, {sWAVE}, 2560")
    A(f"v_add_u32 {vAY}, {sT0}, {vAY}")
    A(f"v_lshrrev_b32 {t1}, 3, {vLANE}")
    A(f"s_mul_i32 {sT1}, {sBS}, 320")
    A(f"s_add_u32 {sT0}, {sT0}, {sT1}")
    A(f"v_lshl_add_u32 {vXN}, {t1}, 2, {sT0}")
    A(f"s_lshl_b32 {sT0}, {sWAVE}, 11")
    A(f"s_add_u32 {sT0}, {sT0}, {L_SC}")
    A(f"v_lshl_add_u32 {vSC}, {t1}, 2, {sT0}")
    A(f"v_mov_b32 {vMAX}, 0xff800000")
    A(f"v_lshlrev_b32 {vA1}, 2, v0")
    A(f"s_lshl_b32 {sT0}, s2, 2")
    A(f"s_add_u32 {sT0}, {sT0}, {sWAVE}")
    A(f"s_lshr_b32 {sT1}, {sT0}, 9")
    A(f"s_lshl_b32 {sT1}, {sT1}, 15")
    A(f"s_and_b32 {sT0}, {sT0}, 511")
    A(f"s_lshl_b32 {sT0}, {sT0}, 3")
    A(f"s_add_u32 {sT0}, {sT0}, 12800")
    A(f"s_or_b32 {sTB}, {sT0}, {sT1}")
    A(f"v_add_lshl_u32 v{TX}, {jl}, {sTB}, 16")
    A(f"v_mov_b32 v{TX+1}, v{TX}")
    A(f"v_mov_b32 v{TACC}, 0")
    A(f"v_mov_b32 v{TACC+1}, 0")
    K0 = -2.0 * 0.7978845608028654 * LOG2E
    A(f"v_mov_b32 v{TK1}, {F(K0 * 0.044715)}")
    A(f"v_mov_b32 v{TK1+1}, {F(K0 * 0.044715)}")
    A(f"s_mov_b32 s{sK0}, {F(K0)}")
    A(f"s_mov_b32 s{sK0+1}, {F(K0)}")
    A(f"s_mov_b32 s{sONE}, 1.0")
    A(f"s_mov_b32 s{sONE+1}, 1.0")
    A(f"v_mul_u32_u24 {vTA}, 2320, {t1}")
    A(f"v_add_u32 {vTA}, {L_W}, {vTA}")
    head_k(n1 - 1)
    vq.wait("x")
    st()
    for n in range(5):
        A(f"v_lshlrev_b32 v{TW+2*n}, 16, v{XS+n}")
        A(f"v_and_b32 v{TW+2*n+1}, 0xffff0000, v{XS+n}")
    layernorm_fast(A, TW, QB, TW + 10, 4, True)
    A(f"s_mul_i32 {sT0}, {sWAVE}, 2560")
    A(f"v_lshl_add_u32 {vT[2]}, {vLANE}, 3, {sT0}")
    for n in range(10):
        A(f"v_cvt_pk_bf16_f32 v{QB+n}, v{QB+n}, v{QB+n}")
    for n in range(5):
        A(f"ds_write_b64 {vT[2]}, v[{QB+2*n}:{QB+2*n+1}] offset:{L_XN + n*512}")
    A(f"v_lshlrev_b32 {vZ}, 4, {vLANE}")
    A(f"v_add_u32 {vT[2]}, {sWB}, {vZ}")
    vq.wait("wq")
    A("s_waitcnt lgkmcnt(0)")
    A(f"v_add_u32 {vT[2]}, {L_WQ}, {vT[2]}")
    for k in range(3):
        for t in range(3):
            r = AW + k * 12 + t * 4
            A(f"ds_write_b128 {vT[2]}, a[{r}:{r+3}] offset:{k*12288 + t*1024}")
    head_k(n1b)
    vq.wait("mw")
    A("s_waitcnt lgkmcnt(0)")
    A(f"s_cmp_eq_u32 {sWAVE}, 3")
    A("s_cbranch_scc1 L_now")
    for k, src in enumerate((B, B + 4, D)):
        for n in range(4):
            A(f"v_lshlrev_b32 v{TW+8*k+2*n}, 16, v{src+n}")
            A(f"v_and_b32 v{TW+8*k+2*n+1}, 0xffff0000, v{src+n}")
    A(f"v_mul_u32_u24 {vT[3]}, 2731, v0")
    A(f"v_mul_u32_u24 {vT[2]}, 96, v0")
    A(f"v_lshrrev_b32 {vT[3]}, 16, {vT[3]}")
    A(f"v_lshl_add_u32 {vT[2]}, {vT[3]}, 4, {vT[2]}")
    A(f"v_mov_b32 {vT[3]}, 0")
    A(f"ds_write_b32 {vT[3]}, {vT[3]} offset:{L_TP + 64}")
    for k in range(6):
        A(f"ds_write_b128 {vT[2]}, v[{TW+4*k}:{TW+4*k+3}] offset:{L_W + 16*k}")
    A("s_waitcnt lgkmcnt(0)")
    A.label("L_now")
    for n in range(10):
        A(f"ds_read_b32 v{QB+n}, {vXN} offset:{L_XN + n*32}")
    A(f"v_add_u32 {vT[2]}, {L_WQ}, {vZ}")
    A(f"v_mov_b32 {vT[4]}, 0")
    A("s_waitcnt lgkmcnt(0)")
    A("s_barrier")
    A(f"s_or_b32 {sT0}, s2, {sWAVE}")
    A(f"s_cmp_lg_u32 {sT0}, 0")
    A("s_cbranch_scc1 L_noflag")
    for r in range(4):
        A(f"v_mov_b32 v{ML+r}, {sTAG}")
    A(f"s_mov_b32 {sT0}, {WS_ZF}")
    A.setexec(1)
    A(f"buffer_store_dwordx4 v[{ML}:{ML+3}], {vT[4]}, s[{sWS}:{sWS+3}], {sT0} offen sc1")
    A.setexec(ALL)
    A.label("L_noflag")
    def wq_read(n):
        for t in range(3):
            r = AW + (n % 3) * 12 + t * 4
            A(f"ds_read_b128 a[{r}:{r+3}], {vT[2]} offset:{n*3072 + t*1024}")
    for n in range(3): wq_read(n)
    head_k(n1c)
    for n in range(10):
        bb = B + 4 * (n & 1)
        for r in range(4):
            A(f"v_and_b32 v{bb+r}, v{QB+n}, {vM[r]}")
        A(f"s_waitcnt lgkmcnt({3 * min(2, 9 - n)})")
        A("s_nop 0")
        for t in range(3):
            r = AW + (n % 3) * 12 + t * 4
            A(f"v_mfma_f32_16x16x32_bf16 v[{O+4*t}:{O+4*t+3}], a[{r}:{r+3}], v[{bb}:{bb+3}], v[{O+4*t}:{O+4*t+3}]")
        if n + 3 < 10:
            A("s_nop 3")
            wq_read(n + 3)
    def lds_put3():
        A.setexec(M_LO)
        A(f"ds_write_b128 {vA0}, v[{O}:{O+3}] offset:{L_P}")
        A.setexec(M_T1)
        A(f"ds_write_b128 {vA0}, v[{O+4}:{O+7}] offset:{L_P + 512}")
        A.setexec(M_HI)
        A(f"ds_write_b128 {vA0}, v[{O+8}:{O+11}] offset:{L_P + 768 + 256}")
        A.setexec(ALL)
    A(f"s_mul_i32 {sT0}, {sWAVE}, 1536")
    A(f"v_lshl_add_u32 {vT[2]}, {vLANE}, 2, {sT0}")
    A(f"s_lshl_b32 {sT0}, {sH}, 2")
    A(f"s_add_u32 {sT1}, {sT0}, {sWAVE}")
    A(f"s_lshl_b32 {sT1}, {sT1}, 3")
    A(f"s_add_u32 {sT1}, {sT1}, {sBS}")
    A(f"s_lshl_b32 {sT1}, {sT1}, 10")
    A(f"s_add_u32 {sT1}, {sT1}, {WS_QP}")
    A(f"s_add_u32 {sQG}, {sT0}, {sB}")
    A(f"s_lshl_b32 {sQG}, {sQG}, 2")
    A(f"s_add_u32 {sQG}, {sQG}, {sWAVE}")
    A(f"s_lshl_b32 {sQG}, {sQG}, 11")
    A(f"s_add_u32 {sQG}, {sQG}, {WS_QP}")
    lds_put3()
    A("s_waitcnt lgkmcnt(0)")
    for k in range(6):
        A(f"ds_read_b32 v{B+k}, {vT[2]} offset:{L_P + 256*k}")
    A(f"v_mov_b32 v{D+3}, {sTAG}")
    A("s_waitcnt lgkmcnt(0)")
    for k in range(3):
        A(f"v_add_f32 v{D+k}, v{B+k}, v{B+3+k}")
    vq.op(f"buffer_store_dwordx4 v[{D}:{D+3}], {vZ}, s[{sWS}:{sWS+3}], {sT1} offen sc1", "qst")
    st()
    vq.CAP = caph
    head_k(n2)
    def q_gather(track):
        for k in range(2):
            txt = f"buffer_load_dwordx4 v[{B+4*k}:{B+4*k+3}], {vZ}, s[{sWS}:{sWS+3}], {sQG} offen offset:{1024*k} sc1"
            if track: vq.op(txt, "qg")
            else: A(txt)
    q_gather(True)
    head_k(99)
    q, i, t0, t1 = vT[0], vT[1], vT[2], vT[3]
    A(f"v_and_b32 {t0}, 32, {vLANE}")
    A(f"v_and_b32 {t1}, 3, {vLANE}")
    A(f"v_lshl_add_u32 {t0}, {t1}, 3, {t0}")
    A(f"v_bfe_u32 {t1}, {vLANE}, 2, 3")
    A(f"v_add_lshl_u32 {vXN}, {t0}, {t1}, 1")
    A(f"s_mul_i32 {sT0}, {sWAVE}, 768")
    A(f"v_lshlrev_b32 {vQ0}, 2, {vLANE}")
    A(f"v_add_u32 {vQ1}, {sT0}, {vQ0}")
    A(f"v_and_b32 {t0}, 3, {vLANE}")
    A(f"v_lshl_add_u32 {t0}, {q}, 2, {t0}")
    A(f"v_and_b32 {t1}, 8, {vLANE}")
    A(f"v_add_lshl_u32 {vQ2}, {t0}, {t1}, 4")
    A(f"v_cmp_gt_u32 vcc, 8, {i}")
    A(f"v_add_u32 {t1}, 16, {t0}")
    A(f"v_subrev_u32 {t0}, 8, {t0}")
    A(f"v_cndmask_b32 {t0}, {t0}, {t1}, vcc")
    A(f"v_lshlrev_b32 {t0}, 4, {t0}")
    for r in range(12):
        A(f"v_mov_b32 v{QB+r}, 0")
    vq.wait("qg")
    A(f"s_mov_b32 {sSPIN}, {SPIN}")
    A.label("L_qchk")
    A(f"v_cmp_ne_u32 vcc, {sTAG}, v{B+3}")
    A(f"v_cmp_ne_u32 s[4:5], {sTAG}, v{B+7}")
    A("s_nop 1")
    A("s_or_b64 vcc, vcc, s[4:5]")
    A("s_cbranch_scc0 L_qok")
    A(f"s_sub_u32 {sSPIN}, {sSPIN}, 1")
    A(f"s_cmp_eq_u32 {sSPIN}, 0")
    A("s_cbranch_scc1 L_qok")
    A(f"s_add_u32 {sRETRY}, {sRETRY}, 1")
    A("s_sleep 2")
    q_gather(False)
    A("s_waitcnt vmcnt(0)")
    A("s_branch L_qchk")
    A.label("L_qok")
    for k in range(3):
        A(f"v_add_f32 v{B+k}, v{B+k}, v{B+4+k}")
    for k in range(3):
        A(f"ds_write_b32 {vQ1}, v{B+k} offset:{L_QS + 256*k}")
    A("s_waitcnt lgkmcnt(0)")
    A("s_barrier")
    for k in range(12):
        A(f"ds_read_b32 v{O+k}, {vQ0} offset:{L_QS + 256*k}")
    A("s_waitcnt lgkmcnt(0)")
    for k in range(3):
        A(f"v_add_f32 v{O+k}, v{O+k}, v{O+3+k}")
        A(f"v_add_f32 v{O+6+k}, v{O+6+k}, v{O+9+k}")
    for k in range(3):
        A(f"v_add_f32 v{O+k}, v{O+k}, v{O+6+k}")
    for k in range(3):
        A(f"v_cvt_pk_bf16_f32 v{O+k}, v{O+k}, v{O+k}")
    for k in range(3):
        A(f"ds_write_b16 {vXN}, v{O+k} offset:{L_QB + 128*k}")
    A("s_waitcnt lgkmcnt(0)")
    A.setexec(M_LO)
    A(f"ds_read_b128 v[{QB}:{QB+3}], {vQ2} offset:{L_QB}")
    A.setexec(M_HI)
    A(f"ds_read_b128 v[{QB+8}:{QB+11}], {vQ2} offset:{L_QB}")
    A.setexec(M_T1)
    A(f"ds_read_b128 v[{QB+4}:{QB+7}], {t0} offset:{L_QB}")
    A.setexec(ALL)
    for r in range(O, O + 12):
        A(f"v_mov_b32 v{r}, 0")
    def tab_reads():
        for k in range(6):
            A(f"ds_read_b128 v[{TW+4*k}:{TW+4*k+3}], {vTA} offset:{16*k}")
        A(f"v_add_u32 {vTA}, 96, {vTA}")
    A("s_waitcnt lgkmcnt(0)")
    tab_reads()
    ncalls = [0]
    published = [False]
    def tab_finish(dst):
        A.rb(dst, dst)
        A(f"v_add_f32 {dst}, {sB2}, {dst}")
        A(f"v_cvt_pk_bf16_f32 {dst}, {dst}, {dst}")
    def tab_publish():
        ta, tb = f"v{TACC}", f"v{TACC+1}"
        A(f"v_add_f32 {ta}, {ta}, {tb}")
        A("s_nop 1")
        A(f"v_add_f32_dpp {ta}, {ta}, {ta} row_ror:8 row_mask:0xf bank_mask:0xf")
        A(f"v_mov_b32 {tb}, {ta}")
        A("s_nop 1")
        A(f"v_permlane16_swap_b32 {ta}, {tb}")
        A(f"v_add_f32 {ta}, {ta}, {tb}")
        A(f"v_mov_b32 {tb}, {ta}")
        A("s_nop 1")
        A(f"v_permlane32_swap_b32 {ta}, {tb}")
        A(f"v_add_f32 {ta}, {ta}, {tb}")
        tab_finish(ta)
        A(f"s_lshl_b32 {sT0}, {sWAVE}, 4")
        A(f"v_lshl_add_u32 {tb}, {vLANE}, 1, {sT0}")
        A(f"s_lshl_b32 {sT1}, {sTB}, 1")
        A(f"s_add_u32 {sT1}, {sT1}, {WS_TAB}")
        A.setexec(0xff)
        A(f"ds_write_b16 {tb}, {ta} offset:{L_TP}")
        A.setexec(1)
        A("s_waitcnt lgkmcnt(0)")
        A(f"ds_read_b128 v[{TW}:{TW+3}], {tb} offset:{L_TP}")
        A("s_waitcnt lgkmcnt(0)")
        vq.op(f"buffer_store_dwordx4 v[{TW}:{TW+3}], {vT[4]}, s[{sWS}:{sWS+3}], {sT1} offen sc1", "tab")
        A.setexec(ALL)
    A(f"s_lshl_b32 {sB2}, {sB2}, 16")
    st()
    s = vT[0]
    slot_of = list(range(T + ext))
    nxt = [T + ext]
    def refill(slot):
        if slot >= T or nxt[0] >= 2 * NT: return False
        m = nxt[0]; nxt[0] += 1
        slot_of.append(slot)
        ld_tile(slot, m >= NT, m % NT)
        return True
    wo_order = list(range(3 * ext, 60)) + list(range(3 * ext))
    wo_left = [60]
    def wo_step(n):
        if n < wo_start or wo_left[0] == 0: return False
        if (n - wo_start + 1) * wo_rate < 60 - wo_left[0] + 1 - 1e-9: return False
        k = wo_order[60 - wo_left[0]]
        if k < 3 * ext and n < T + k // 3: return False
        ld_wo(k); wo_left[0] -= 1
        return True
    vq.CAP = capk
    for n in range(NT):
        if n == NT - T: vq.CAP = capv
        slot = slot_of[n]
        vq.wait(("k", n))
        for tt in range(3):
            c = "0" if tt == 0 else f"v[{D}:{D+3}]"
            A(f"v_mfma_f32_16x16x32_bf16 v[{D}:{D+3}], {treg(slot, tt)}, v[{QB+4*tt}:{QB+4*tt+3}], {c}")
        if not refill(slot): A("s_nop 6")
        if not wo_step(n): A("s_nop 0")
        A(f"v_mov_b32_dpp {s}, v{D} quad_perm:[0,0,0,0] row_mask:0xf bank_mask:0xf")
        for r in range(1, 4):
            A(f"v_add_f32_dpp {s}, v{D+r}, {s} quad_perm:[{r},{r},{r},{r}] row_mask:0xf bank_mask:0xf")
        A.rb(s, s)
        A(f"v_mul_f32 {s}, {F(192 ** -0.5)}, {s}")
        A.rb(s, s)
        A(f"v_max_f32 {vMAX}, {vMAX}, {s}")
        A(f"ds_write_b32 {vSC}, {s} offset:{n*32}")
        if n >= tab_start:
            if ncalls[0] < 24:
                A(f"s_call_b64 s[{sRET}:{sRET+1}], L_tab")
                ncalls[0] += 1
            elif not published[0]:
                published[0] = True
                tab_publish()
    assert published[0]
    st()
    A.wave_red("max", vMAX, sM)
    A(f"s_lshl_b32 {sT0}, {sWAVE}, 11")
    A(f"s_add_u32 {sT0}, {sT0}, {L_SC}")
    A(f"v_lshl_add_u32 {vT[0]}, {vLANE}, 5, {sT0}")
    A("s_waitcnt lgkmcnt(0)")
    A(f"ds_read_b128 v[{B}:{B+3}], {vT[0]}")
    A(f"ds_read_b128 v[{B+4}:{B+7}], {vT[0]} offset:16")
    A("s_waitcnt lgkmcnt(0)")
    for r in range(8):
        A(f"v_subrev_f32 v{B+r}, {sM}, v{B+r}")
    for r in range(8):
        A(f"v_mul_f32 v{B+r}, {F(LOG2E)}, v{B+r}")
    for r in range(8):
        A(f"v_exp_f32 v{B+r}, v{B+r}")
    A("s_nop 0")
    A(f"v_add_f32 {vT[1]}, v{B}, v{B+1}")
    for r in range(2, 8):
        A(f"v_add_f32 {vT[1]}, {vT[1]}, v{B+r}")
    for r in range(8):
        A(f"v_cvt_pk_bf16_f32 v{B+r}, v{B+r}, v{B+r}")
    A(f"ds_write_b128 {vT[0]}, v[{B}:{B+3}]")
    A(f"ds_write_b128 {vT[0]}, v[{B+4}:{B+7}] offset:16")
    A.wave_red("add", vT[1], sL)
    A(f"v_mov_b32 v{ML}, {sM}")
    A(f"v_mov_b32 v{ML+1}, {sL}")
    A(f"v_mov_b32 v{ML+2}, {sTAG}")
    A(f"v_mov_b32 v{ML+3}, {sTAG}")
    A(f"s_lshl_b32 {sT0}, {sBH}, 7")
    A(f"s_add_u32 {sT0}, {sT0}, {WS_ML}")
    A(f"v_lshl_add_u32 {vZ}, {vLANE}, 4, {sT0}")
    A(f"s_mov_b32 {sT0}, {WS_ZF}")
    A(f"v_writelane_b32 {vZ}, {sT0}, 8")
    A(f"s_lshl_b32 {sT1}, {sHALF}, 2")
    A(f"s_add_u32 {sT1}, {sT1}, {sWAVE}")
    A(f"s_lshl_b32 {sT1}, {sT1}, 4")
    A.setexec(1)
    vq.op(f"buffer_store_dwordx4 v[{ML}:{ML+3}], {vZ}, s[{sWS}:{sWS+3}], {sT1} offen sc1", "mlst")
    A.setexec(ALL)
    PP = [QB + n for n in range(8)]
    A("s_waitcnt lgkmcnt(0)")
    for n in range(4):
        A(f"ds_read_b32 v{PP[n]}, {vSC} offset:{n*32}")
    def fcalc():
        vq.wait("ml")
        A(f"s_mov_b32 {sSPIN}, {SPIN}")
        A.label("L_mlchk")
        A(f"v_cmp_ne_u32 vcc, {sTAG}, v{ML+2}")
        A("s_nop 1")
        A("s_and_b32 vcc_lo, vcc_lo, 0x1ff")
        A("s_cbranch_scc0 L_mlok")
        A(f"s_sub_u32 {sSPIN}, {sSPIN}, 1")
        A(f"s_cmp_eq_u32 {sSPIN}, 0")
        A("s_cbranch_scc1 L_mlok")
        A("s_sleep 8")
        A.setexec(0x1ff)
        A(f"buffer_load_dwordx4 v[{ML}:{ML+3}], {vZ}, s[{sWS}:{sWS+3}], 0 offen sc1")
        A.setexec(ALL)
        A("s_waitcnt vmcnt(0)")
        A("s_branch L_mlchk")
        A.label("L_mlok")
        mm, e = vT[0], vT[1]
        A(f"v_mov_b32 {mm}, v{ML}")
        for stp in Asm.DPP_STEPS[:3]:
            A("s_nop 1")
            A(f"v_max_f32_dpp {mm}, {mm}, {mm} {stp}")
        A(f"v_sub_f32 {e}, v{ML}, {mm}")
        A(f"v_sub_f32 {mm}, {sM}, {mm}")
        A(f"v_mul_f32 {e}, {F(LOG2E)}, {e}")
        A(f"v_mul_f32 {mm}, {F(LOG2E)}, {mm}")
        A(f"v_exp_f32 {e}, {e}")
        A(f"v_exp_f32 {mm}, {mm}")
        A(f"v_mul_f32 {e}, {e}, v{ML+1}")
        for stp in Asm.DPP_STEPS[:3]:
            A("s_nop 1")
            A(f"v_add_f32_dpp {e}, {e}, {e} {stp}")
        A(f"v_rcp_f32 {e}, {e}")
        A("s_nop 0")
        A(f"v_mul_f32 {e}, {e}, {mm}")
        A("s_nop 0")
        A(f"v_readfirstlane_b32 {sF}, {e}")
        A(f"v_lshrrev_b32 {vT[0]}, 4, {vLANE}")
        A(f"s_lshr_b32 {sT0}, {sWAVE}, 1")
        A(f"s_mul_i32 {sT0}, {sT0}, 24")
        A(f"s_and_b32 {sT1}, {sWAVE}, 1")
        A(f"s_lshl_b32 {sT1}, {sT1}, 2")
        A(f"s_add_u32 {sT0}, {sT0}, {sT1}")
        A(f"v_add_lshl_u32 {vT[0]}, {vT[0]}, {sT0}, 4")
        A(f"v_and_b32 {vT[1]}, 8, {vLANE}")
        A(f"v_mul_u32_u24 {vT[1]}, 96, {vT[1]}")
        A(f"v_add_u32 {vQ0}, {vT[0]}, {vT[1]}")
        A(f"v_and_b32 {vT[0]}, 0xe0, v0")
        A(f"v_and_b32 {vT[1]}, 7, v0")
        A(f"v_lshl_add_u32 {vT[0]}, {vT[1]}, 2, {vT[0]}")
        A(f"v_bfe_u32 {vT[1]}, v0, 3, 2")
        A(f"v_add_lshl_u32 {vQ1}, {vT[0]}, {vT[1]}, 2")
        A(f"s_mul_i32 {sWQOFF}, {sB}, 2560")
    for n in range(NT):
        slot = slot_of[NT + n]
        bb = B + 4 * (n & 1)
        if n + 4 < NT:
            A(f"ds_read_b32 v{PP[(n+4)%8]}, {vSC} offset:{(n+4)*32}")
            A("s_waitcnt lgkmcnt(4)")
        else:
            A(f"s_waitcnt lgkmcnt({NT-1-n})")
        for r in range(4):
            A(f"v_and_b32 v{bb+r}, v{PP[n%8]}, {vM[r]}")
        vq.wait(("v", n))
        A("s_nop 1")
        for tt in range(3):
            A(f"v_mfma_f32_16x16x32_bf16 v[{O+4*tt}:{O+4*tt+3}], {treg(slot, tt)}, v[{bb}:{bb+3}], v[{O+4*tt}:{O+4*tt+3}]")
        refill(slot)
        wo_step(NT + n)
        if n == NT - T - 4:
            A.setexec(0x1ff)
            vq.op(f"buffer_load_dwordx4 v[{ML}:{ML+3}], {vZ}, s[{sWS}:{sWS+3}], 0 offen sc1", "ml")
            A.setexec(ALL)
        if n == NT - 4:
            fcalc()
        if n == 8:
            vq.wait("tab")
            A(f"v_mov_b32 v{TACC+1}, 1")
            A.setexec(1)
            A(f"ds_add_rtn_u32 v{TACC}, {vT[4]}, v{TACC+1} offset:{L_TP + 64}")
            A("s_waitcnt lgkmcnt(0)")
            A(f"v_readfirstlane_b32 {sT0}, v{TACC}")
            A(f"s_cmp_lg_u32 {sT0}, 3")
            A("s_cbranch_scc1 L_notd")
            A(f"s_lshl_b32 {sT0}, s2, 6")
            A(f"s_add_u32 {sT0}, {sT0}, {WS_TD}")
            A(f"v_mov_b32 v{TACC+1}, {sTAG}")
            A(f"buffer_store_dword v{TACC+1}, {vT[4]}, s[{sWS}:{sWS+3}], {sT0} offen sc1")
            A.label("L_notd")
            A.setexec(ALL)
    assert wo_left[0] == 0
    st()
    A("s_nop 7")
    for r in range(12):
        A(f"v_mul_f32 v{O+r}, {sF}, v{O+r}")
    lds_put3()
    A("s_waitcnt lgkmcnt(0)")
    A("s_barrier")
    st()
    A(f"s_cmp_eq_u32 {sWAVE}, 3")
    A("s_cbranch_scc1 L_o3")
    for k in range(8):
        A(f"ds_read_b32 v{B+k}, {vA1} offset:{L_P + 768*k}")
    A("s_waitcnt lgkmcnt(4)")
    A(f"v_add_f32 v{B}, v{B}, v{B+1}")
    A(f"v_add_f32 v{B+2}, v{B+2}, v{B+3}")
    A("s_waitcnt lgkmcnt(0)")
    A(f"v_add_f32 v{B+4}, v{B+4}, v{B+5}")
    A(f"v_add_f32 v{B+6}, v{B+6}, v{B+7}")
    A(f"v_add_f32 v{B}, v{B}, v{B+2}")
    A(f"v_add_f32 v{B+4}, v{B+4}, v{B+6}")
    A(f"v_add_f32 {vT[1]}, v{B}, v{B+4}")
    A.rb(vT[2], vT[1])
    A(f"v_cvt_pk_bf16_f32 {vT[3]}, {vT[1]}, {vT[1]}")
    A(f"v_sub_f32 {vT[2]}, {vT[1]}, {vT[2]}")
    A(f"ds_write_b32 {vA1}, {vT[3]} offset:{L_PH}")
    A(f"v_cvt_pk_bf16_f32 {vT[2]}, {vT[2]}, {vT[2]}")
    A(f"ds_write_b32 {vA1}, {vT[2]} offset:{L_PH + 768}")
    A("s_waitcnt lgkmcnt(0)")
    A.label("L_o3")
    A("s_barrier")
    for k in range(3):
        A(f"ds_read_b128 v[{O+4*k}:{O+4*k+3}], {vQ0} offset:{L_PH + 128*k}")
    BO = R0
    YD = R0 + 48
    vq.wait("wo")
    def yout(c):
        for r in range(4):
            A(f"v_add_f32_dpp v{YD+4*c+r}, v{YD+4*c+r}, v{YD+4*c+r} row_ror:8 row_mask:0xf bank_mask:0xf")
        A.setexec(M_LO)
        A(f"ds_write_b128 {vAY}, v[{YD+4*c}:{YD+4*c+3}] offset:{L_YP + c*512}")
        A.setexec(ALL)
    def omfma(rg, c):
        n = rg * 5 + c
        cc = "0" if rg == 0 else f"v[{YD+4*c}:{YD+4*c+3}]"
        A(f"v_mfma_f32_16x16x32_bf16 v[{YD+4*c}:{YD+4*c+3}], a[{4*n}:{4*n+3}], v[{BO+4*rg}:{BO+4*rg+3}], {cc}")
    ands = [(rg, r) for rg in range(12) for r in range(4)]
    def oand():
        if ands:
            rg, r = ands.pop(0)
            if r == 0 and rg % 4 == 0:
                A(f"s_waitcnt lgkmcnt({2 - rg//4})")
            A(f"v_and_b32 v{BO+4*rg+r}, v{O+rg}, {vM[r]}")
    for _ in range(6): oand()
    NR = 4
    for rg in range(NR):
        for c in range(5):
            omfma(rg, c)
            oand(); oand()
    while ands: oand()
    A("s_nop 1")
    for c in range(5):
        for rg in range(NR, 12):
            omfma(rg, c)
        if c > 0:
            yout(c - 1)
    A("s_nop 1")
    yout(4)
    A("s_waitcnt lgkmcnt(0)")
    A("s_barrier")
    st()
    for k in range(2):
        for w in range(4):
            A(f"ds_read_b32 v{O+4*k+w}, {vQ1} offset:{L_YP + 2560*w + 1024*k}")
    A(f"s_cmp_ge_u32 {sWAVE}, 2")
    A("s_cbranch_scc1 L_two")
    for w in range(4):
        A(f"ds_read_b32 v{O+8+w}, {vQ1} offset:{L_YP + 2560*w + 2048}")
    A("s_waitcnt lgkmcnt(0)")
    A(f"v_add_f32 v{O+8}, v{O+8}, v{O+9}")
    A(f"v_add_f32 v{O+10}, v{O+10}, v{O+11}")
    A(f"v_add_f32 v{O+8}, v{O+8}, v{O+10}")
    A(f"buffer_atomic_add_f32 v{O+8}, {vA1}, s[{sWS}:{sWS+3}], {sWQOFF} offen offset:{WS_ACC + 2048}")
    A.label("L_two")
    A("s_waitcnt lgkmcnt(0)")
    for k in range(2):
        A(f"v_add_f32 v{O+4*k}, v{O+4*k}, v{O+4*k+1}")
        A(f"v_add_f32 v{O+4*k+2}, v{O+4*k+2}, v{O+4*k+3}")
    for k in range(2):
        A(f"v_add_f32 v{O+4*k}, v{O+4*k}, v{O+4*k+2}")
        A(f"buffer_atomic_add_f32 v{O+4*k}, {vA1}, s[{sWS}:{sWS+3}], {sWQOFF} offen offset:{WS_ACC + 1024*k}")
    A(f"s_lshl_b32 {sT0}, {sB}, 7")
    A(f"s_add_u32 {sT0}, {sT0}, {WS_CNT}")
    A(f"v_mov_b32 {vZ}, 1")
    A("s_waitcnt vmcnt(0)")
    A("s_barrier")
    st()
    A(f"s_cmp_lg_u32 {sWAVE}, {sB}")
    A("s_cbranch_scc1 L_done")
    A.setexec(1)
    A(f"buffer_atomic_add {vZ}, {vT[4]}, s[{sWS}:{sWS+3}], {sT0} offen sc0")
    A.setexec(ALL)
    A(f"s_mul_i32 {sT0}, {sB}, 1280")
    A.srd_off(sOUT, 20, sT0, 1280)
    A(f"v_lshlrev_b32 {vT[0]}, 3, {vLANE}")
    A(f"v_lshlrev_b32 {vT[1]}, 8, {vLANE}")
    H = R0
    HN = R0 + 10
    G = R0 + 20
    X = R0 + 40
    for n in range(5):
        A(f"v_lshlrev_b32 v{X+2*n}, 16, v{XS+n}")
        A(f"v_and_b32 v{X+2*n+1}, 0xffff0000, v{XS+n}")
    A(f"s_movk_i32 {sT1}, {WS_TD}")
    A("s_waitcnt vmcnt(0)")
    A(f"v_readfirstlane_b32 {sT0}, {vZ}")
    A(f"s_cmp_lg_u32 {sT0}, 63")
    A("s_cbranch_scc1 L_done")
    st()
    for n in range(5):
        A(f"buffer_load_dwordx2 v[{H+2*n}:{H+2*n+1}], {vT[0]}, s[{sWS}:{sWS+3}], {sWQOFF} offen offset:{WS_ACC + n*512} sc1")
    def tdload():
        for k in range(4):
            A(f"buffer_load_dword v{ML+k}, {vT[1]}, s[{sWS}:{sWS+3}], {sT1} offen offset:{k*64} sc1")
    tdload()
    A("s_waitcnt vmcnt(4)")
    h = [f"v{H+n}" for n in range(10)]
    hn = [f"v{HN+n}" for n in range(10)]
    for n in range(10):
        A.rb(h[n], h[n])
    for n in range(5):
        A(f"v_pk_add_f32 v[{H+2*n}:{H+2*n+1}], v[{H+2*n}:{H+2*n+1}], v[{X+2*n}:{X+2*n+1}]")
    for n in range(10):
        A.rb(h[n], h[n])
    layernorm_fast(A, H, HN, G, 4, True)
    A("s_waitcnt vmcnt(0)")
    A(f"s_mov_b32 {sSPIN}, {SPIN}")
    A.label("L_tdchk")
    for k in range(4):
        A(f"v_xor_b32 v{ML+k}, {sTAG}, v{ML+k}")
    A(f"v_or3_b32 v{ML}, v{ML}, v{ML+1}, v{ML+2}")
    A(f"v_or_b32 v{ML}, v{ML}, v{ML+3}")
    A(f"v_cmp_ne_u32 vcc, 0, v{ML}")
    A("s_nop 1")
    A("s_cmp_eq_u64 vcc, 0")
    A("s_cbranch_scc1 L_tdok")
    A(f"s_sub_u32 {sSPIN}, {sSPIN}, 1")
    A(f"s_cmp_eq_u32 {sSPIN}, 0")
    A("s_cbranch_scc1 L_tdok")
    A("s_sleep 8")
    tdload()
    A("s_waitcnt vmcnt(0)")
    A("s_branch L_tdchk")
    A.label("L_tdok")
    layernorm_fast(A, HN, HN, G, 4, False)
    A(f"s_mov_b32 {sT0}, {WS_TAB}")
    st()
    for n in range(10):
        A(f"v_lshrrev_b32 v{X+n}, 15, {hn[n]}")
        A(f"buffer_load_ushort v{G+n}, v{X+n}, s[{sWS}:{sWS+3}], {sT0} offen sc1")
    A(f"v_mov_b32 {vZ}, {sTAG}")
    A(f"s_mov_b32 {sT1}, {WS_EP}")
    A.setexec(1)
    A(f"buffer_store_dword {vZ}, {vT[4]}, s[{sWS}:{sWS+3}], {sT1} offen sc1")
    A.setexec(ALL)
    A(f"v_lshlrev_b32 {vT[0]}, 2, {vLANE}")
    A(f"v_min3_f32 {vT[2]}, abs({hn[0]}), abs({hn[1]}), abs({hn[2]})")
    A(f"v_max3_f32 {vT[3]}, abs({hn[0]}), abs({hn[1]}), abs({hn[2]})")
    for n in range(3, 9, 2):
        A(f"v_min3_f32 {vT[2]}, abs({hn[n]}), abs({hn[n+1]}), {vT[2]}")
        A(f"v_max3_f32 {vT[3]}, abs({hn[n]}), abs({hn[n+1]}), {vT[3]}")
    A(f"v_min_f32 {vT[2]}, abs({hn[9]}), {vT[2]}")
    A(f"v_max_f32 {vT[3]}, abs({hn[9]}), {vT[3]}")
    A(f"v_cmp_gt_f32 vcc, {F(2.0 ** -27)}, {vT[2]}")
    A(f"v_mov_b32 {vT[2]}, {F(32.0)}")
    A(f"v_cmp_le_f32 s[4:5], {vT[2]}, {vT[3]}")
    A("s_nop 1")
    A("s_or_b64 vcc, vcc, s[4:5]")
    A("s_cbranch_scc1 L_direct")
    A.label("L_lookup")
    for n in range(5):
        A(f"s_waitcnt vmcnt({8 - 2*n + n + 1})")
        for k in (2*n, 2*n + 1):
            A(f"v_lshlrev_b32 v{G+k}, 16, v{G+k}")
        A(f"v_pk_add_f32 v[{G+2*n}:{G+2*n+1}], v[{G+2*n}:{G+2*n+1}], v[{H+2*n}:{H+2*n+1}]")
        A(f"v_cvt_pk_bf16_f32 v{G+2*n}, v{G+2*n}, v{G+2*n+1}")
        A(f"buffer_store_dword v{G+2*n}, {vT[0]}, s[{sOUT}:{sOUT+3}], 0 offen offset:{n*256}")
    if stamps:
        A("s_waitcnt vmcnt(0)")
        st()
        st.flush(sWS, WS_STAMP + 65536, sWAVE, vT[0], vT[1])
        if dbg:
            A("s_load_dwordx2 s[4:5], s[0:1], 88")
            A("s_waitcnt lgkmcnt(0)")
            A.srd(16, "s4", "s5", 256)
            A(f"s_lshl_b32 s6, {sB}, 4")
            A(f"v_mov_b32 {vT[1]}, 0")
            A.setexec(1)
            for k, n in enumerate((3, 4, 5, 11)):
                A(f"s_sub_u32 s7, s{76+2*n}, s76")
                A(f"v_mov_b32 {vT[0]}, s7")
                A(f"buffer_store_dword {vT[0]}, {vT[1]}, s[16:19], s6 offen offset:{4*k}")
            A.setexec(ALL)
    A.label("L_done")
    if stamps:
        st.flush(sWS, WS_STAMP, sWAVE, vT[0], vT[1])
    A.label("L_end")
    A("s_endpgm")
    A.label("L_direct")
    A("s_waitcnt vmcnt(0)")
    A(f"v_lshrrev_b32 {vT[1]}, 3, {vLANE}")
    A(f"v_mul_u32_u24 {vT[1]}, 2320, {vT[1]}")
    A(f"v_and_b32 {vT[2]}, 7, {vLANE}")
    A(f"v_mul_u32_u24 {vT[2]}, 288, {vT[2]}")
    A(f"v_add_u32 {vT[1]}, {vT[1]}, {vT[2]}")
    A(f"v_add_u32 {vT[1]}, {L_W}, {vT[1]}")
    for n in range(10):
        A(f"v_bfe_u32 {vT[2]}, {hn[n]}, 23, 8")
        A(f"v_subrev_u32 {vT[2]}, 100, {vT[2]}")
        A(f"v_cmp_le_u32 s[4:5], 32, {vT[2]}")
        A.label(f"L_dir{n}")
        A("s_nop 1")
        A("s_cmp_eq_u64 s[4:5], 0")
        A(f"s_cbranch_scc1 L_dirx{n}")
        A(f"s_ff1_i32_b64 {sT0}, s[4:5]")
        A(f"v_readlane_b32 {sT1}, {hn[n]}, {sT0}")
        A(f"s_call_b64 s[6:7], L_eval")
        A(f"v_cmp_eq_u32 vcc, {sT1}, {hn[n]}")
        A("s_nop 1")
        A(f"v_cndmask_b32 v{G+n}, v{G+n}, v{TACC}, vcc")
        A("s_andn2_b64 s[4:5], s[4:5], vcc")
        A(f"s_branch L_dir{n}")
        A.label(f"L_dirx{n}")
    A("s_branch L_lookup")
    A.label("L_eval")
    A("s_nop 1")
    A(f"v_mov_b32 v{TX}, {sT1}")
    A(f"v_mov_b32 v{TX+1}, {sT1}")
    A(f"v_mov_b32 v{TACC}, 0")
    A(f"v_mov_b32 v{TACC+1}, 0")
    A(f"v_mov_b32 {vTA}, {vT[1]}")
    A("s_waitcnt lgkmcnt(0)")
    tab_reads()
    for _ in range(3):
        A(f"s_call_b64 s[{sRET}:{sRET+1}], L_tab")
    A(f"v_add_f32 v{TACC}, v{TACC}, v{TACC+1}")
    A.wave_red("add", f"v{TACC}", sT0)
    A(f"v_mov_b32 v{TACC}, {sT0}")
    tab_finish(f"v{TACC}")
    A("s_setpc_b64 s[6:7]")
    A.label("L_tab")
    A("s_waitcnt lgkmcnt(0)")
    def P(r): return f"v[{r}:{r+1}]"
    W1, B1, W2 = TW, TW + 8, TW + 16
    for p in range(4): A(f"v_pk_mul_f32 {P(W1+2*p)}, {P(TX)}, {P(W1+2*p)}")
    for k in range(8): A.rb(f"v{W1+k}", f"v{W1+k}")
    for p in range(4): A(f"v_pk_add_f32 {P(W1+2*p)}, {P(W1+2*p)}, {P(B1+2*p)}")
    for k in range(8): A.rb(f"v{W1+k}", f"v{W1+k}")
    for p in range(4): A(f"v_pk_mul_f32 {P(B1+2*p)}, {P(W1+2*p)}, {P(W1+2*p)}")
    for p in range(4): A(f"v_pk_fma_f32 {P(B1+2*p)}, {P(B1+2*p)}, {P(TK1)}, s[{sK0}:{sK0+1}]")
    for p in range(4): A(f"v_pk_mul_f32 {P(B1+2*p)}, {P(B1+2*p)}, {P(W1+2*p)}")
    for k in range(8): A(f"v_exp_f32 v{B1+k}, v{B1+k}")
    for p in range(4): A(f"v_pk_add_f32 {P(B1+2*p)}, {P(B1+2*p)}, s[{sONE}:{sONE+1}]")
    for k in range(8): A(f"v_rcp_f32 v{B1+k}, v{B1+k}")
    for p in range(4): A(f"v_pk_mul_f32 {P(W1+2*p)}, {P(W1+2*p)}, {P(B1+2*p)}")
    for k in range(8): A.rb(f"v{W1+k}", f"v{W1+k}")
    for p in range(4): A(f"v_pk_fma_f32 {P(TACC)}, {P(W1+2*p)}, {P(W2+2*p)}, {P(TACC)}")
    tab_reads()
    A(f"s_setpc_b64 s[{sRET}:{sRET+1}]")
    acc = (NV + 3) // 4 * 4
    return A.text() + kd(KN, acc + 240, 102, acc)

if __name__ == "__main__":
    kw = eval("dict(%s)" % (sys.argv[2] if len(sys.argv) > 2 else ""))
    open(sys.argv[1], "w").write(gen(**kw))
```

```python
import struct
def f2u(x):
    return struct.unpack("<I", struct.pack("<f", x))[0]
def F(x):
    return "0x%08x" % f2u(x)

class Asm:
    def __init__(self):
        self.L = []
        self.nlabel = 0
    def __call__(self, s):
        self.L.append("  " + s)
    def raw(self, s):
        self.L.append(s)
    def label(self, name):
        self.L.append(name + ":")
    def c(self, s):
        self.L.append("  ; " + s)
    def newlabel(self, p="L"):
        self.nlabel += 1
        return f"{p}_{self.nlabel}"
    def text(self):
        return "\n".join(self.L) + "\n"

    def srd(self, s, lo, hi, size):
        if lo != f"s{s}": self(f"s_mov_b32 s{s}, {lo}")
        if hi != f"s{s+1}": self(f"s_mov_b32 s{s+1}, {hi}")
        self(f"s_mov_b32 s{s+2}, {size}")
        self(f"s_mov_b32 s{s+3}, 0x20000")
    def srd_off(self, s, plo, off, size):
        self(f"s_add_u32 s{s}, s{plo}, {off}")
        self(f"s_addc_u32 s{s+1}, s{plo+1}, 0")
        self(f"s_mov_b32 s{s+2}, {size}")
        self(f"s_mov_b32 s{s+3}, 0x20000")
    def setexec(self, mask):
        lo, hi = mask & 0xffffffff, mask >> 32
        if mask == (1 << 64) - 1:
            self("s_mov_b64 exec, -1")
        elif hi == 0 and lo <= 64:
            self(f"s_mov_b64 exec, {lo}")
        else:
            self(f"s_mov_b32 exec_lo, 0x{lo:08x}")
            self(f"s_mov_b32 exec_hi, 0x{hi:08x}")
    def rb(self, d, s):
        self(f"v_cvt_pk_bf16_f32 {d}, 0, {s}")
    DPP_STEPS = ["quad_perm:[1,0,3,2] row_mask:0xf bank_mask:0xf",
                 "quad_perm:[2,3,0,1] row_mask:0xf bank_mask:0xf",
                 "row_half_mirror row_mask:0xf bank_mask:0xf",
                 "row_mirror row_mask:0xf bank_mask:0xf",
                 "row_bcast:15 row_mask:0xa bank_mask:0xf",
                 "row_bcast:31 row_mask:0xc bank_mask:0xf"]
    def wave_red(self, op, regs, sdst, steps=None):
        if isinstance(regs, str):
            regs = [regs]; sdst = [sdst]
        n = len(regs)
        for st in (steps or self.DPP_STEPS):
            if n < 3:
                self(f"s_nop {2-n}")
            for r in regs:
                self(f"v_{op}_f32_dpp {r}, {r}, {r} {st}")
        if n < 2:
            self("s_nop 0")
        for r, s in zip(regs, sdst):
            self(f"v_readlane_b32 {s}, {r}, 63")
        self("s_nop 1")
    def layernorm(self, src, dst, t0, t1, t2, s0):
        A = self
        A(f"v_add_f32 {t0}, {src[0]}, {src[1]}")
        A(f"v_add_f32 {t1}, {src[2]}, {src[3]}")
        for i in range(4, 10, 2):
            A(f"v_add_f32 {t0}, {t0}, {src[i]}")
            A(f"v_add_f32 {t1}, {t1}, {src[i+1]}")
        A(f"v_add_f32 {t0}, {t0}, {t1}")
        A.wave_red("add", t0, s0)
        A(f"v_mov_b32 {t2}, {F(1.0/640)}")
        A(f"v_mul_f32 {t2}, {s0}, {t2}")
        A(f"v_sub_f32 {t1}, {src[0]}, {t2}")
        A(f"v_mul_f32 {t0}, {t1}, {t1}")
        for i in range(1, 10):
            A(f"v_sub_f32 {t1}, {src[i]}, {t2}")
            A(f"v_fmac_f32 {t0}, {t1}, {t1}")
        A.rb(t2, t2)
        A.wave_red("add", t0, s0)
        A(f"v_mov_b32 {t0}, {F(1.0/640)}")
        A(f"v_mul_f32 {t0}, {s0}, {t0}")
        A.rb(t0, t0)
        A(f"v_add_f32 {t0}, {F(1e-5)}, {t0}")
        A.rb(t0, t0)
        A(f"v_sqrt_f32 {t0}, {t0}")
        A("s_nop 0")
        A.rb(t0, t0)
        A(f"v_rcp_f32 {t0}, {t0}")
        for i in range(10):
            A(f"v_sub_f32 {dst[i]}, {src[i]}, {t2}")
        for i in range(10):
            A.rb(dst[i], dst[i])
        for i in range(10):
            A(f"v_mul_f32 {dst[i]}, {dst[i]}, {t0}")
        for i in range(10):
            A.rb(dst[i], dst[i])

def kd(name, nvgpr, nsgpr, accum):
    return f""".section .rodata,"a"
.p2align 6
.amdhsa_kernel {name}
  .amdhsa_next_free_vgpr {nvgpr}
  .amdhsa_next_free_sgpr {nsgpr}
  .amdhsa_accum_offset {accum}
  .amdhsa_group_segment_fixed_size 0
  .amdhsa_kernarg_size 104
  .amdhsa_user_sgpr_count 2
  .amdhsa_user_sgpr_kernarg_segment_ptr 1
  .amdhsa_system_sgpr_workgroup_id_x 1
  .amdhsa_float_denorm_mode_32 3
.end_amdhsa_kernel
"""

def layernorm_fast(A, src, dst, tp, sp, pivot):
    P = lambda r: f"v[{r}:{r+1}]"
    d = src
    if pivot:
        assert dst != src
        A("s_nop 0")
        A(f"v_readfirstlane_b32 s{sp+2}, v{src}")
        A(f"v_readfirstlane_b32 s{sp+3}, v{src}")
        A("s_nop 1")
        for i in range(5):
            A(f"v_pk_add_f32 {P(dst+2*i)}, {P(src+2*i)}, s[{sp+2}:{sp+3}] neg_lo:[0,1] neg_hi:[0,1]")
        d = dst
    A(f"v_pk_add_f32 {P(tp)}, {P(d)}, {P(d+2)}")
    A(f"v_pk_mul_f32 {P(tp+2)}, {P(d)}, {P(d)}")
    A(f"v_pk_add_f32 {P(tp+4)}, {P(d+4)}, {P(d+6)}")
    A(f"v_pk_fma_f32 {P(tp+2)}, {P(d+2)}, {P(d+2)}, {P(tp+2)}")
    A(f"v_pk_add_f32 {P(tp)}, {P(tp)}, {P(d+8)}")
    A(f"v_pk_fma_f32 {P(tp+2)}, {P(d+4)}, {P(d+4)}, {P(tp+2)}")
    A(f"v_pk_add_f32 {P(tp)}, {P(tp)}, {P(tp+4)}")
    A(f"v_pk_fma_f32 {P(tp+2)}, {P(d+6)}, {P(d+6)}, {P(tp+2)}")
    A(f"v_add_f32 v{tp}, v{tp}, v{tp+1}")
    A(f"v_pk_fma_f32 {P(tp+2)}, {P(d+8)}, {P(d+8)}, {P(tp+2)}")
    A(f"v_mov_b32 v{tp+4}, {F(1.0/640)}")
    A(f"v_add_f32 v{tp+2}, v{tp+2}, v{tp+3}")
    A.wave_red("add", [f"v{tp}", f"v{tp+2}"], [f"s{sp}", f"s{sp+1}"])
    A(f"v_mul_f32 v{tp}, s{sp}, v{tp+4}")
    A(f"v_mul_f32 v{tp+2}, s{sp+1}, v{tp+4}")
    A(f"v_fma_f32 v{tp+2}, -v{tp}, v{tp}, v{tp+2}")
    if pivot:
        A(f"v_add_f32 v{tp}, s{sp+2}, v{tp}")
    A(f"v_max_f32 v{tp+2}, 0, v{tp+2}")
    A.rb(f"v{tp}", f"v{tp}")
    A.rb(f"v{tp+2}", f"v{tp+2}")
    A(f"v_mov_b32 v{tp+1}, v{tp}")
    A(f"v_add_f32 v{tp+2}, {F(1e-5)}, v{tp+2}")
    A(f"v_pk_add_f32 {P(dst)}, {P(src)}, {P(tp)} neg_lo:[0,1] neg_hi:[0,1]")
    A.rb(f"v{tp+2}", f"v{tp+2}")
    A(f"v_pk_add_f32 {P(dst+2)}, {P(src+2)}, {P(tp)} neg_lo:[0,1] neg_hi:[0,1]")
    A(f"v_sqrt_f32 v{tp+2}, v{tp+2}")
    for i in range(2, 5):
        A(f"v_pk_add_f32 {P(dst+2*i)}, {P(src+2*i)}, {P(tp)} neg_lo:[0,1] neg_hi:[0,1]")
    A.rb(f"v{tp+2}", f"v{tp+2}")
    A.rb(f"v{dst}", f"v{dst}")
    A(f"v_rcp_f32 v{tp+2}, v{tp+2}")
    for i in range(1, 10):
        A.rb(f"v{dst+i}", f"v{dst+i}")
    A(f"v_mov_b32 v{tp+3}, v{tp+2}")
    for i in range(5):
        A(f"v_pk_mul_f32 {P(dst+2*i)}, {P(dst+2*i)}, {P(tp+2)}")
    for i in range(10):
        A.rb(f"v{dst+i}", f"v{dst+i}")

def layernorm_seg(A, src, dst, tp, sp, pivot, vmask10, dmask):
    P = lambda r: f"v[{r}:{r+1}]"
    d = src
    if pivot:
        assert dst != src
        A(f"v_readfirstlane_b32 s{sp+2}, v{src}")
        A(f"v_readfirstlane_b32 s{sp+3}, v{src}")
        A("s_nop 1")
        for i in range(6):
            A(f"v_pk_add_f32 {P(dst+2*i)}, {P(src+2*i)}, s[{sp+2}:{sp+3}] neg_lo:[0,1] neg_hi:[0,1]")
        d = dst
    A(f"v_pk_add_f32 {P(tp)}, {P(d)}, {P(d+2)}")
    A(f"v_pk_mul_f32 {P(tp+2)}, {P(d)}, {P(d)}")
    A(f"v_pk_add_f32 {P(tp+4)}, {P(d+4)}, {P(d+6)}")
    A(f"v_pk_fma_f32 {P(tp+2)}, {P(d+2)}, {P(d+2)}, {P(tp+2)}")
    A(f"v_pk_add_f32 {P(tp)}, {P(tp)}, {P(d+8)}")
    A(f"v_pk_fma_f32 {P(tp+2)}, {P(d+4)}, {P(d+4)}, {P(tp+2)}")
    A(f"v_pk_add_f32 {P(tp)}, {P(tp)}, {P(tp+4)}")
    A(f"v_pk_fma_f32 {P(tp+2)}, {P(d+6)}, {P(d+6)}, {P(tp+2)}")
    A(f"v_and_b32 v{tp+4}, v{d+10}, {vmask10}")
    A(f"v_pk_fma_f32 {P(tp+2)}, {P(d+8)}, {P(d+8)}, {P(tp+2)}")
    A(f"v_add_f32 v{tp}, v{tp}, v{tp+1}")
    A(f"v_fmac_f32 v{tp+2}, v{tp+4}, v{tp+4}")
    A(f"v_add_f32 v{tp}, v{tp}, v{tp+4}")
    A(f"v_add_f32 v{tp+2}, v{tp+2}, v{tp+3}")
    A(f"v_mov_b32 v{tp+4}, {F(1.0/640)}")
    A.setexec((1 << 64) - 1)
    A.wave_red("add", [f"v{tp}", f"v{tp+2}"], [f"s{sp}", f"s{sp+1}"])
    A(f"v_mul_f32 v{tp}, s{sp}, v{tp+4}")
    A(f"v_mul_f32 v{tp+2}, s{sp+1}, v{tp+4}")
    A.setexec(dmask)
    A(f"v_fma_f32 v{tp+2}, -v{tp}, v{tp}, v{tp+2}")
    if pivot:
        A(f"v_add_f32 v{tp}, s{sp+2}, v{tp}")
    A(f"v_max_f32 v{tp+2}, 0, v{tp+2}")
    A.rb(f"v{tp}", f"v{tp}")
    A.rb(f"v{tp+2}", f"v{tp+2}")
    A(f"v_mov_b32 v{tp+1}, v{tp}")
    A(f"v_add_f32 v{tp+2}, {F(1e-5)}, v{tp+2}")
    A(f"v_pk_add_f32 {P(dst)}, {P(src)}, {P(tp)} neg_lo:[0,1] neg_hi:[0,1]")
    A.rb(f"v{tp+2}", f"v{tp+2}")
    A(f"v_pk_add_f32 {P(dst+2)}, {P(src+2)}, {P(tp)} neg_lo:[0,1] neg_hi:[0,1]")
    A(f"v_sqrt_f32 v{tp+2}, v{tp+2}")
    for i in range(2, 6):
        A(f"v_pk_add_f32 {P(dst+2*i)}, {P(src+2*i)}, {P(tp)} neg_lo:[0,1] neg_hi:[0,1]")
    A.rb(f"v{tp+2}", f"v{tp+2}")
    A.rb(f"v{dst}", f"v{dst}")
    A(f"v_rcp_f32 v{tp+2}, v{tp+2}")
    for i in range(1, 11):
        A.rb(f"v{dst+i}", f"v{dst+i}")
    A(f"v_mov_b32 v{tp+3}, v{tp+2}")
    for i in range(6):
        A(f"v_pk_mul_f32 {P(dst+2*i)}, {P(dst+2*i)}, {P(tp+2)}")
    for i in range(11):
        A.rb(f"v{dst+i}", f"v{dst+i}")
```

```python
import sys
from asmlib import *

KN = "sequential_preLN__mha_block_cached__mixer_token_mlp__decode_kernel"
HDR = open("sequential_preLN__mha_block_cached__mixer_token_mlp__decode.s.ref").read().split("; Override launch")[0]
LOG2E = 1.4426950408889634
WS_ACC, WS_CNT, WS_ZEND = 0, 12288, 16384
WS_ML = 49152
WS_TD = 28672
WS_EP = 45056
WS_ZF = 45312
WS_TAB = 65536
WS_STAMP = 524288
WS_QP = 1 << 20
WS_SIZE = 2 << 20
L_XN = 0
L_P = 10240
L_QB = L_P + 6144
L_PH = L_QB + 512
L_W = L_PH + 1536
L_TP = L_W + 8 * 2320
L_YP = L_TP + 128
L_SC = L_YP + 10240
L_QS = L_SC + 8192
L_WQ = L_QS + 3072
L_END = L_SC + 65536 + 8192
M_D, M_D10 = 0x7FFF7FFF7FFF7FFF, 0x000003FF7FFF7FFF
M_LO, M_HI, M_T1 = 0x00FF00FF00FF00FF, 0xFF00FF00FF00FF00, 0xFF00FF0000FF00FF
ALL = (1 << 64) - 1
SPIN = 0x100000

class Stamps:
    def __init__(self, A, on, s0): self.A = A; self.on = on; self.s0 = s0; self.n = 0
    def __call__(self):
        if self.on:
            s = self.s0 + 2 * self.n
            self.A(f"s_memrealtime s[{s}:{s+1}]")
            self.n += 1
    def flush(self, srd, base, swave, v0, v1):
        if not self.on: return
        A = self.A
        A("s_waitcnt lgkmcnt(0)")
        A("s_lshl_b32 s6, s2, 2")
        A(f"s_add_u32 s6, s6, {swave}")
        A("s_lshl_b32 s6, s6, 6")
        A(f"s_add_u32 s6, s6, {base}")
        A(f"v_mov_b32 {v1}, 0")
        A.setexec(1)
        for n in range(self.n):
            A(f"v_mov_b32 {v0}, s{self.s0 + 2*n}")
            A(f"buffer_store_dword {v0}, {v1}, s[{srd}:{srd+3}], s6 offen offset:{4*n}")
        A("s_getreg_b32 s7, hwreg(HW_REG_XCC_ID)")
        A(f"v_mov_b32 {v0}, s7")
        A(f"buffer_store_dword {v0}, {v1}, s[{srd}:{srd+3}], s6 offen offset:60")
        A(f"v_mov_b32 {v0}, s51")
        A(f"buffer_store_dword {v0}, {v1}, s[{srd}:{srd+3}], s6 offen offset:56")
        A.setexec(ALL)

class VQ:
    CAP = 54
    def __init__(self, A): self.A = A; self.q = []; self.frac = 0.0
    def op(self, text, tag):
        cap = int(self.CAP)
        self.frac += self.CAP - cap
        if self.frac >= 1.0 - 1e-9:
            self.frac -= 1.0; cap += 1
        if len(self.q) >= cap:
            self.A(f"s_waitcnt vmcnt({cap - 1})")
            self.q = self.q[-(cap - 1):]
        self.A(text)
        self.q.append(tag)
    def wait(self, tag):
        if tag not in self.q: return
        pos = len(self.q) - 1 - self.q[::-1].index(tag)
        self.A(f"s_waitcnt vmcnt({len(self.q) - 1 - pos})")
        self.q = self.q[pos + 1:]

def gen(T=12, ext=4, rot=13, wo_start=0, stamps=False, kf='nt', vf='nt', wf='nt', tab_start=32,
        n1=5, n1b=1, n1c=1, n2=4, capk=8, capv=6, caph=7, wo_rate=1.0, dbg=False, BL=0, pmul=1, tlb=0, st0=False, wo_late=0, cape=54, lift=4, liftcap=54, poll2=False):
    if dbg: stamps = True
    A = Asm()
    A.raw(HDR.rstrip())
    A.raw(f"; @launch grid=(256,1,1) block=(256,1,1) lds={L_END}")
    A.raw('.amdgcn_target "amdgcn-amd-amdhsa--gfx950"')
    A.raw(".text")
    A.raw(f".globl {KN}")
    st = Stamps(A, stamps, 76)
    NT = 64
    STEP = 12288
    REGION = 786432
    sX, sK, sV, sWQ, sWO, sWS = 24, 28, 32, 36, 40, 44
    sOUT = 36
    sTAG, sBS, sQG, sRETRY = "s48", "s49", "s50", "s51"
    sWAVE, sB, sH, sHALF, sBH, sT0, sT1 = "s52", "s53", "s54", "s55", "s56", "s57", "s58"
    sKREL, sVREL, sWB, sOFF, sWQOFF, sWOOFF, sM, sL, sF, sSPIN = "s59", "s60", "s61", "s62", "s63", "s64", "s65", "s66", "s67", "s68"
    sB2, sTB, sJMP = "s69", "s3", "s101"
    sK0, sONE, sRET = 70, 72, 74
    vLANE, vKO, vVO, vQ0, vQ1, vQ2, vWO = "v1", "v2", "v3", "v4", "v5", "v6", "v7"
    vM = ["v8", "v9", "v10", "v11"]
    vA0, vA1, vAY, vSC, vXN, vMAX, vZ = "v12", "v13", "v14", "v15", "v16", "v17", "v18"
    vT = [f"v{i}" for i in range(19, 24)]
    QB = 24
    D = 36
    O = 40
    B = 52
    ML = 60
    TW = 64
    TX, TACC, TK1 = 88, 90, 92
    vTA = "v94"
    XS = 95
    vYA = [vQ1, vQ2, vXN]; vCNT = vMAX; vMK = [f"v{TX}", f"v{TX+1}"]
    R0 = 100
    NV = R0 + 12 * T
    AW = 204
    assert NV <= 256 and ext * 12 <= AW
    vq = VQ(A)

    A.raw(".p2align 8")
    A.raw(f".type {KN},@function")
    A.label(KN)
    A("s_cmp_ge_u32 s2, 256")
    A("s_cbranch_scc1 L_end")
    st()
    A("s_load_dwordx8 s[8:15], s[0:1], 0")
    A("s_load_dwordx2 s[16:17], s[0:1], 32")
    A("s_load_dwordx2 s[22:23], s[0:1], 96")
    A(f"v_lshrrev_b32 {vT[0]}, 6, v0")
    A(f"v_and_b32 {vLANE}, 63, v0")
    A(f"v_readfirstlane_b32 {sWAVE}, {vT[0]}")
    A(f"s_and_b32 {sH}, s2, 7")
    A(f"s_lshr_b32 {sT0}, s2, 3")
    A(f"s_lshl_b32 {sH}, {sH}, 2")
    A(f"s_and_b32 {sT1}, {sT0}, 3")
    A(f"s_add_u32 {sH}, {sH}, {sT1}")
    A(f"s_lshr_b32 {sBS}, {sT0}, 2")
    A(f"s_lshr_b32 {sB}, {sT0}, 3")
    A(f"s_and_b32 {sHALF}, {sBS}, 1")
    A(f"s_lshl_b32 {sBH}, {sB}, 5")
    A(f"s_add_u32 {sBH}, {sBH}, {sH}")
    q, i, t0, t1 = vT[0], vT[1], vT[2], vT[3]
    A(f"v_lshrrev_b32 {q}, 4, {vLANE}")
    A(f"v_and_b32 {i}, 15, {vLANE}")
    A(f"v_lshrrev_b32 {t0}, 2, {i}")
    A(f"v_mul_u32_u24 {vKO}, 768, {t0}")
    A(f"v_lshl_add_u32 {vKO}, {q}, 6, {vKO}")
    A(f"v_and_b32 {t0}, 3, {i}")
    A(f"v_lshl_add_u32 {vKO}, {t0}, 4, {vKO}")
    A(f"v_mul_u32_u24 {vVO}, 768, {q}")
    A(f"v_lshl_add_u32 {vVO}, {i}, 4, {vVO}")
    A(f"v_mul_u32_u24 {vQ0}, 24576, {q}")
    A(f"v_lshl_add_u32 {vQ0}, {i}, 4, {vQ0}")
    A(f"v_add_u32 {vQ1}, 256, {vQ0}")
    A(f"v_add_u32 {vQ2}, {12288-128}, {vQ0}")
    A(f"v_cmp_gt_u32 vcc, 8, {i}")
    A(f"v_mul_u32_u24 {vWO}, 1280, {q}")
    A(f"v_lshl_add_u32 {vWO}, {i}, 4, {vWO}")
    A(f"v_cndmask_b32 {vQ1}, {vQ2}, {vQ1}, vcc")
    A(f"v_add_u32 {vQ2}, {12288+128}, {vQ0}")
    for r in range(O, O + 12):
        A(f"v_mov_b32 v{r}, 0")
    A(f"v_lshlrev_b32 {t0}, 4, v0")
    A(f"v_lshlrev_b32 {t1}, 2, {vLANE}")
    A(f"s_lshl_b32 {sT1}, {sBH}, 1")
    A(f"s_add_u32 {sT1}, {sT1}, {sHALF}")
    A(f"s_mul_i32 {sKREL}, {sT1}, {rot}")
    A(f"s_and_b32 {sKREL}, {sKREL}, 63")
    A(f"s_mov_b32 {sVREL}, {sKREL}")
    if BL:
        A(f"s_mul_i32 {sJMP}, {sT1}, {pmul}")
        A(f"s_lshr_b32 {sJMP}, {sJMP}, 2")
        A(f"s_lshl_b32 {sJMP}, {sJMP}, 1")
        A(f"s_mul_i32 {sJMP}, {sJMP}, {BL}")
        A(f"s_add_u32 {sJMP}, {sJMP}, 1")
    A(f"s_mul_i32 {sT1}, {sT1}, {REGION}")
    A(f"s_mul_i32 {sWB}, {sWAVE}, 3072")
    A(f"s_mul_i32 {sOFF}, {sBS}, {80*12288}")
    A(f"s_mul_i32 {sT0}, {sH}, 384")
    A(f"s_add_u32 {sOFF}, {sOFF}, {sT0}")
    A(f"s_mul_i32 {sWQOFF}, {sWAVE}, {8*12288}")
    A(f"s_lshr_b32 {sT0}, {sWAVE}, 1")
    A(f"s_mul_i32 {sWOOFF}, {sT0}, {96*1280}")
    A(f"s_and_b32 {sT0}, {sWAVE}, 1")
    A(f"s_mul_i32 {sT0}, {sT0}, {4*1280}")
    A(f"s_add_u32 {sWOOFF}, {sWOOFF}, {sT0}")
    A(f"s_mul_i32 {sT0}, {sWAVE}, 1280")
    A(f"s_mov_b32 {sRETRY}, 0")
    A("s_waitcnt lgkmcnt(0)")
    if st0: st()
    A.srd_off(sX, 8, sT0, 1280)
    for n in range(5):
        vq.op(f"buffer_load_dword v{XS+n}, {t1}, s[{sX}:{sX+3}], 0 offen offset:{n*256}", "x")
    A.srd_off(sWQ, 14, sOFF, 79 * 12288 + 384)
    for k in range(3):
        for t, o in enumerate((vQ0, vQ1, vQ2)):
            r = AW + k * 12 + t * 4
            vq.op(f"buffer_load_dwordx4 a[{r}:{r+3}], {o}, s[{sWQ}:{sWQ+3}], {sWQOFF} offen {wf}", "wq")
        if k < 2: A(f"s_add_u32 {sWQOFF}, {sWQOFF}, {32*12288}")
    A.srd_off(sK, 10, sT1, REGION)
    A.srd_off(sV, 12, sT1, REGION)
    A(f"s_mul_i32 {sT0}, {sH}, 245760")
    A.srd_off(sWO, 16, sT0, 245760)
    A.srd(sWS, "s22", "s23", WS_SIZE)
    A("s_load_dwordx8 s[8:15], s[0:1], 48")
    A("s_load_dwordx2 s[20:21], s[0:1], 80")
    A(f"s_load_dword {sTAG}, s[22:23], {WS_EP}")

    def treg(slot, t):
        if slot < T:
            r = R0 + slot * 12 + t * 4
            return f"v[{r}:{r+3}]"
        r = (slot - T) * 12 + t * 4
        return f"a[{r}:{r+3}]"
    def ld_tile(slot, isv, n):
        rel, srd, off = (sVREL, sV, vVO) if isv else (sKREL, sK, vKO)
        A(f"s_mul_i32 {sOFF}, {rel}, {STEP}")
        A(f"s_add_u32 {sOFF}, {sOFF}, {sWB}")
        for t in range(3):
            vq.op(f"buffer_load_dwordx4 {treg(slot, t)}, {off}, s[{srd}:{srd+3}], {sOFF} offen offset:{t*256} {vf if isv else kf}", ("v" if isv else "k", n))
        A(f"s_add_u32 {rel}, {rel}, {sJMP if (BL and (n + 1) % BL == 0) else 1}")
        A(f"s_and_b32 {rel}, {rel}, 63")
    def ld_wo(n):
        rg, c = divmod(n, 5)
        A(f"s_add_u32 {sOFF}, {sWOOFF}, {rg*8*1280}")
        vq.op(f"buffer_load_dwordx4 a[{4*n}:{4*n+3}], {vWO}, s[{sWO}:{sWO+3}], {sOFF} offen offset:{c*256} {wf}", ("wo", n))
    kis = [0]
    def head_k(n):
        for _ in range(n):
            if kis[0] < T + ext:
                ld_tile(kis[0], False, kis[0]); kis[0] += 1
    head_k(1)
    A("s_cmp_lg_u32 s2, 0")
    A("s_cbranch_scc1 L_nozero")
    for n in range(WS_ZEND // 4096):
        A(f"s_movk_i32 {sT0}, {n*4096}")
        A(f"buffer_store_dwordx4 v[{O}:{O+3}], {t0}, s[{sWS}:{sWS+3}], {sT0} offen sc1")
    A.label("L_nozero")
    A("s_waitcnt lgkmcnt(0)")
    sW = 16
    for ptr, dst in ((8, B), (10, B + 4), (12, D)):
        A.srd(sW, f"s{ptr}", f"s{ptr+1}", 3072)
        vq.op(f"buffer_load_dwordx4 v[{dst}:{dst+3}], {t0}, s[{sW}:{sW+3}], 0 offen", "mw")
    A(f"s_load_dword {sB2}, s[14:15], 0")
    A(f"s_mul_i32 {sTAG}, {sTAG}, 0x2c9277b5")
    A(f"s_add_u32 {sTAG}, {sTAG}, 0x7f4a7c15")
    jl = vT[2]
    A(f"v_and_b32 {jl}, 7, {vLANE}")
    A(f"v_and_b32 {t1}, 1, {vLANE}")
    A(f"v_cmp_eq_u32 vcc, 1, {t1}")
    A(f"v_mov_b32 {vT[4]}, 0xffff")
    A(f"v_mov_b32 {vM[3]}, 0xffff0000")
    A(f"v_cndmask_b32 {vT[4]}, {vT[4]}, {vM[3]}, vcc")
    A(f"v_lshrrev_b32 {t1}, 1, {jl}")
    for r in range(4):
        A(f"v_cmp_eq_u32 vcc, {r}, {t1}")
        A("s_nop 1")
        A(f"v_cndmask_b32 {vM[r]}, 0, {vT[4]}, vcc")
    A(f"v_lshl_add_u32 {vAY}, {q}, 3, {jl}")
    A(f"v_lshlrev_b32 {vAY}, 4, {vAY}")
    A(f"s_mul_i32 {sT0}, {sWAVE}, 1536")
    A(f"v_add_u32 {vA0}, {sT0}, {vAY}")
    A(f"s_mul_i32 {sT0}, {sWAVE}, 2560")
    A(f"v_add_u32 {vAY}, {sT0}, {vAY}")
    A(f"v_lshrrev_b32 {t1}, 3, {vLANE}")
    A(f"s_mul_i32 {sT1}, {sBS}, 320")
    A(f"s_add_u32 {sT0}, {sT0}, {sT1}")
    A(f"v_lshl_add_u32 {vXN}, {t1}, 2, {sT0}")
    A(f"s_lshl_b32 {sT0}, {sWAVE}, 11")
    A(f"s_add_u32 {sT0}, {sT0}, {L_SC}")
    A(f"v_lshl_add_u32 {vSC}, {t1}, 2, {sT0}")
    A(f"v_mov_b32 {vMAX}, 0xff800000")
    A(f"v_lshlrev_b32 {vA1}, 2, v0")
    A(f"s_lshl_b32 {sT0}, s2, 2")
    A(f"s_add_u32 {sT0}, {sT0}, {sWAVE}")
    A(f"s_lshr_b32 {sT1}, {sT0}, 9")
    A(f"s_lshl_b32 {sT1}, {sT1}, 15")
    A(f"s_and_b32 {sT0}, {sT0}, 511")
    A(f"s_lshl_b32 {sT0}, {sT0}, 3")
    A(f"s_add_u32 {sT0}, {sT0}, 12800")
    A(f"s_or_b32 {sTB}, {sT0}, {sT1}")
    A(f"v_add_lshl_u32 v{TX}, {jl}, {sTB}, 16")
    A(f"v_mov_b32 v{TX+1}, v{TX}")
    A(f"v_mov_b32 v{TACC}, 0")
    A(f"v_mov_b32 v{TACC+1}, 0")
    K0 = -2.0 * 0.7978845608028654 * LOG2E
    A(f"v_mov_b32 v{TK1}, {F(K0 * 0.044715)}")
    A(f"v_mov_b32 v{TK1+1}, {F(K0 * 0.044715)}")
    A(f"s_mov_b32 s{sK0}, {F(K0)}")
    A(f"s_mov_b32 s{sK0+1}, {F(K0)}")
    A(f"s_mov_b32 s{sONE}, 1.0")
    A(f"s_mov_b32 s{sONE+1}, 1.0")
    A(f"v_mul_u32_u24 {vTA}, 2320, {t1}")
    A(f"v_add_u32 {vTA}, {L_W}, {vTA}")
    head_k(n1 - 1)
    vq.wait("x")
    if not st0: st()
    for n in range(5):
        A(f"v_lshlrev_b32 v{TW+2*n}, 16, v{XS+n}")
        A(f"v_and_b32 v{TW+2*n+1}, 0xffff0000, v{XS+n}")
    layernorm_fast(A, TW, QB, TW + 10, 4, True)
    A(f"s_mul_i32 {sT0}, {sWAVE}, 2560")
    A(f"v_lshl_add_u32 {vT[2]}, {vLANE}, 3, {sT0}")
    for n in range(10):
        A(f"v_cvt_pk_bf16_f32 v{QB+n}, v{QB+n}, v{QB+n}")
    for n in range(5):
        A(f"ds_write_b64 {vT[2]}, v[{QB+2*n}:{QB+2*n+1}] offset:{L_XN + n*512}")
    A(f"v_lshlrev_b32 {vZ}, 4, {vLANE}")
    A(f"v_add_u32 {vT[2]}, {sWB}, {vZ}")
    vq.wait("wq")
    A("s_waitcnt lgkmcnt(0)")
    A(f"v_add_u32 {vT[2]}, {L_WQ}, {vT[2]}")
    for k in range(3):
        for t in range(3):
            r = AW + k * 12 + t * 4
            A(f"ds_write_b128 {vT[2]}, a[{r}:{r+3}] offset:{k*12288 + t*1024}")
    head_k(n1b)
    vq.wait("mw")
    A("s_waitcnt lgkmcnt(0)")
    A(f"s_cmp_eq_u32 {sWAVE}, 3")
    A("s_cbranch_scc1 L_now")
    for k, src in enumerate((B, B + 4, D)):
        for n in range(4):
            A(f"v_lshlrev_b32 v{TW+8*k+2*n}, 16, v{src+n}")
            A(f"v_and_b32 v{TW+8*k+2*n+1}, 0xffff0000, v{src+n}")
    A(f"v_mul_u32_u24 {vT[3]}, 2731, v0")
    A(f"v_mul_u32_u24 {vT[2]}, 96, v0")
    A(f"v_lshrrev_b32 {vT[3]}, 16, {vT[3]}")
    A(f"v_lshl_add_u32 {vT[2]}, {vT[3]}, 4, {vT[2]}")
    A(f"v_mov_b32 {vT[3]}, 0")
    A(f"ds_write_b32 {vT[3]}, {vT[3]} offset:{L_TP + 64}")
    for k in range(6):
        A(f"ds_write_b128 {vT[2]}, v[{TW+4*k}:{TW+4*k+3}] offset:{L_W + 16*k}")
    A("s_waitcnt lgkmcnt(0)")
    A.label("L_now")
    for n in range(10):
        A(f"ds_read_b32 v{QB+n}, {vXN} offset:{L_XN + n*32}")
    A(f"v_add_u32 {vT[2]}, {L_WQ}, {vZ}")
    A(f"v_mov_b32 {vT[4]}, 0")
    A("s_waitcnt lgkmcnt(0)")
    A("s_barrier")
    A(f"s_or_b32 {sT0}, s2, {sWAVE}")
    A(f"s_cmp_lg_u32 {sT0}, 0")
    A("s_cbranch_scc1 L_noflag")
    for r in range(4):
        A(f"v_mov_b32 v{ML+r}, {sTAG}")
    A(f"s_mov_b32 {sT0}, {WS_ZF}")
    A.setexec(1)
    A(f"buffer_store_dwordx4 v[{ML}:{ML+3}], {vT[4]}, s[{sWS}:{sWS+3}], {sT0} offen sc1")
    A.setexec(ALL)
    A.label("L_noflag")
    def wq_read(n):
        for t in range(3):
            r = AW + (n % 3) * 12 + t * 4
            A(f"ds_read_b128 a[{r}:{r+3}], {vT[2]} offset:{n*3072 + t*1024}")
    for n in range(3): wq_read(n)
    head_k(n1c)
    for n in range(10):
        bb = B + 4 * (n & 1)
        for r in range(4):
            A(f"v_and_b32 v{bb+r}, v{QB+n}, {vM[r]}")
        A(f"s_waitcnt lgkmcnt({3 * min(2, 9 - n)})")
        A("s_nop 0")
        for t in range(3):
            r = AW + (n % 3) * 12 + t * 4
            A(f"v_mfma_f32_16x16x32_bf16 v[{O+4*t}:{O+4*t+3}], a[{r}:{r+3}], v[{bb}:{bb+3}], v[{O+4*t}:{O+4*t+3}]")
        if n + 3 < 10:
            A("s_nop 3")
            wq_read(n + 3)
    def lds_put3():
        A.setexec(M_LO)
        A(f"ds_write_b128 {vA0}, v[{O}:{O+3}] offset:{L_P}")
        A.setexec(M_T1)
        A(f"ds_write_b128 {vA0}, v[{O+4}:{O+7}] offset:{L_P + 512}")
        A.setexec(M_HI)
        A(f"ds_write_b128 {vA0}, v[{O+8}:{O+11}] offset:{L_P + 768 + 256}")
        A.setexec(ALL)
    A(f"s_mul_i32 {sT0}, {sWAVE}, 1536")
    A(f"v_lshl_add_u32 {vT[2]}, {vLANE}, 2, {sT0}")
    A(f"s_lshl_b32 {sT0}, {sH}, 2")
    A(f"s_add_u32 {sT1}, {sT0}, {sWAVE}")
    A(f"s_lshl_b32 {sT1}, {sT1}, 3")
    A(f"s_add_u32 {sT1}, {sT1}, {sBS}")
    A(f"s_lshl_b32 {sT1}, {sT1}, 10")
    A(f"s_add_u32 {sT1}, {sT1}, {WS_QP}")
    A(f"s_add_u32 {sQG}, {sT0}, {sB}")
    A(f"s_lshl_b32 {sQG}, {sQG}, 2")
    A(f"s_add_u32 {sQG}, {sQG}, {sWAVE}")
    A(f"s_lshl_b32 {sQG}, {sQG}, 11")
    A(f"s_add_u32 {sQG}, {sQG}, {WS_QP}")
    lds_put3()
    A("s_waitcnt lgkmcnt(0)")
    for k in range(6):
        A(f"ds_read_b32 v{B+k}, {vT[2]} offset:{L_P + 256*k}")
    A(f"v_mov_b32 v{D+3}, {sTAG}")
    A("s_waitcnt lgkmcnt(0)")
    for k in range(3):
        A(f"v_add_f32 v{D+k}, v{B+k}, v{B+3+k}")
    vq.op(f"buffer_store_dwordx4 v[{D}:{D+3}], {vZ}, s[{sWS}:{sWS+3}], {sT1} offen sc1", "qst")
    st()
    vq.CAP = caph
    head_k(n2)
    def q_gather(track):
        for k in range(2):
            txt = f"buffer_load_dwordx4 v[{B+4*k}:{B+4*k+3}], {vZ}, s[{sWS}:{sWS+3}], {sQG} offen offset:{1024*k} sc1"
            if track: vq.op(txt, "qg")
            else: A(txt)
    q_gather(True)
    if tlb:
        A(f"v_lshlrev_b32 {vQ0}, 16, {vLANE}")
        A.setexec(0xfff)
        vq.op(f"buffer_load_dword v{ML}, {vQ0}, s[{sV}:{sV+3}], 0 offen nt", "tlb")
        if tlb > 1:
            vq.op(f"buffer_load_dword v{ML+1}, {vQ0}, s[{sK}:{sK+3}], 0 offen nt", "tlb")
            vq.op(f"buffer_load_dword v{ML+2}, {vQ0}, s[{sWO}:{sWO+3}], 0 offen nt", "tlb")
        A.setexec(ALL)
    head_k(99)
    q, i, t0, t1 = vT[0], vT[1], vT[2], vT[3]
    A(f"v_and_b32 {t0}, 32, {vLANE}")
    A(f"v_and_b32 {t1}, 3, {vLANE}")
    A(f"v_lshl_add_u32 {t0}, {t1}, 3, {t0}")
    A(f"v_bfe_u32 {t1}, {vLANE}, 2, 3")
    A(f"v_add_lshl_u32 {vXN}, {t0}, {t1}, 1")
    A(f"s_mul_i32 {sT0}, {sWAVE}, 768")
    A(f"v_lshlrev_b32 {vQ0}, 2, {vLANE}")
    A(f"v_add_u32 {vQ1}, {sT0}, {vQ0}")
    A(f"v_and_b32 {t0}, 3, {vLANE}")
    A(f"v_lshl_add_u32 {t0}, {q}, 2, {t0}")
    A(f"v_and_b32 {t1}, 8, {vLANE}")
    A(f"v_add_lshl_u32 {vQ2}, {t0}, {t1}, 4")
    A(f"v_cmp_gt_u32 vcc, 8, {i}")
    A(f"v_add_u32 {t1}, 16, {t0}")
    A(f"v_subrev_u32 {t0}, 8, {t0}")
    A(f"v_cndmask_b32 {t0}, {t0}, {t1}, vcc")
    A(f"v_lshlrev_b32 {t0}, 4, {t0}")
    for r in range(12):
        A(f"v_mov_b32 v{QB+r}, 0")
    vq.wait("qg")
    A(f"s_mov_b32 {sSPIN}, {SPIN}")
    A.label("L_qchk")
    A(f"v_cmp_ne_u32 vcc, {sTAG}, v{B+3}")
    A(f"v_cmp_ne_u32 s[4:5], {sTAG}, v{B+7}")
    A("s_nop 1")
    A("s_or_b64 vcc, vcc, s[4:5]")
    A("s_cbranch_scc0 L_qok")
    A(f"s_sub_u32 {sSPIN}, {sSPIN}, 1")
    A(f"s_cmp_eq_u32 {sSPIN}, 0")
    A("s_cbranch_scc1 L_qok")
    A(f"s_add_u32 {sRETRY}, {sRETRY}, 1")
    A("s_sleep 2")
    q_gather(False)
    A("s_waitcnt vmcnt(0)")
    A("s_branch L_qchk")
    A.label("L_qok")
    for k in range(3):
        A(f"v_add_f32 v{B+k}, v{B+k}, v{B+4+k}")
    for k in range(3):
        A(f"ds_write_b32 {vQ1}, v{B+k} offset:{L_QS + 256*k}")
    A("s_waitcnt lgkmcnt(0)")
    A("s_barrier")
    for k in range(12):
        A(f"ds_read_b32 v{O+k}, {vQ0} offset:{L_QS + 256*k}")
    A("s_waitcnt lgkmcnt(0)")
    for k in range(3):
        A(f"v_add_f32 v{O+k}, v{O+k}, v{O+3+k}")
        A(f"v_add_f32 v{O+6+k}, v{O+6+k}, v{O+9+k}")
    for k in range(3):
        A(f"v_add_f32 v{O+k}, v{O+k}, v{O+6+k}")
    for k in range(3):
        A(f"v_cvt_pk_bf16_f32 v{O+k}, v{O+k}, v{O+k}")
    for k in range(3):
        A(f"ds_write_b16 {vXN}, v{O+k} offset:{L_QB + 128*k}")
    A("s_waitcnt lgkmcnt(0)")
    A.setexec(M_LO)
    A(f"ds_read_b128 v[{QB}:{QB+3}], {vQ2} offset:{L_QB}")
    A.setexec(M_HI)
    A(f"ds_read_b128 v[{QB+8}:{QB+11}], {vQ2} offset:{L_QB}")
    A.setexec(M_T1)
    A(f"ds_read_b128 v[{QB+4}:{QB+7}], {t0} offset:{L_QB}")
    A.setexec(ALL)
    for r in range(O, O + 12):
        A(f"v_mov_b32 v{r}, 0")
    def tab_reads():
        for k in range(6):
            A(f"ds_read_b128 v[{TW+4*k}:{TW+4*k+3}], {vTA} offset:{16*k}")
        A(f"v_add_u32 {vTA}, 96, {vTA}")
    A("s_waitcnt lgkmcnt(0)")
    tab_reads()
    ncalls = [0]
    published = [False]
    def tab_finish(dst):
        A.rb(dst, dst)
        A(f"v_add_f32 {dst}, {sB2}, {dst}")
        A(f"v_cvt_pk_bf16_f32 {dst}, {dst}, {dst}")
    def tab_publish():
        ta, tb = f"v{TACC}", f"v{TACC+1}"
        A(f"v_add_f32 {ta}, {ta}, {tb}")
        A("s_nop 1")
        A(f"v_add_f32_dpp {ta}, {ta}, {ta} row_ror:8 row_mask:0xf bank_mask:0xf")
        A(f"v_mov_b32 {tb}, {ta}")
        A("s_nop 1")
        A(f"v_permlane16_swap_b32 {ta}, {tb}")
        A(f"v_add_f32 {ta}, {ta}, {tb}")
        A(f"v_mov_b32 {tb}, {ta}")
        A("s_nop 1")
        A(f"v_permlane32_swap_b32 {ta}, {tb}")
        A(f"v_add_f32 {ta}, {ta}, {tb}")
        tab_finish(ta)
        A(f"s_lshl_b32 {sT0}, {sWAVE}, 4")
        A(f"v_lshl_add_u32 {tb}, {vLANE}, 1, {sT0}")
        A(f"s_lshl_b32 {sT1}, s2, 6")
        A(f"s_add_u32 {sT1}, {sT1}, {sT0}")
        A(f"s_add_u32 {sT1}, {sT1}, {WS_TAB}")
        A.setexec(0xff)
        A(f"ds_write_b16 {tb}, {ta} offset:{L_TP}")
        A.setexec(1)
        A("s_waitcnt lgkmcnt(0)")
        A(f"ds_read_b128 v[{TW}:{TW+3}], {tb} offset:{L_TP}")
        A("s_waitcnt lgkmcnt(0)")
        vq.op(f"buffer_store_dwordx4 v[{TW}:{TW+3}], {vT[4]}, s[{sWS}:{sWS+3}], {sT1} offen sc1", "tab")
        A.setexec(ALL)
    A(f"s_lshl_b32 {sB2}, {sB2}, 16")
    st()
    s = vT[0]
    slot_of = list(range(T + ext))
    nxt = [T + ext]
    def refill(slot):
        if slot >= T or nxt[0] >= 2 * NT: return False
        m = nxt[0]; nxt[0] += 1
        slot_of.append(slot)
        ld_tile(slot, m >= NT, m % NT)
        return True
    NR = 4
    use_order = [rg * 5 + c for rg in range(NR) for c in range(5)] + [rg * 5 + c for c in range(5) for rg in range(NR, 12)]
    late = use_order[60 - wo_late:]
    wo_order = [k for k in list(range(3 * ext, 60)) + list(range(3 * ext)) if k not in late] + late
    wo_left = [60]
    def wo_step(n):
        if n < wo_start or wo_left[0] <= wo_late: return False
        if (n - wo_start + 1) * wo_rate < 60 - wo_left[0] + 1 - 1e-9: return False
        k = wo_order[60 - wo_left[0]]
        if k < 3 * ext and n < T + k // 3: return False
        ld_wo(k); wo_left[0] -= 1
        return True
    vq.CAP = capk
    for n in range(NT):
        if n == NT - T or wo_left[0] <= wo_late: vq.CAP = capv
        slot = slot_of[n]
        vq.wait(("k", n))
        for tt in range(3):
            c = "0" if tt == 0 else f"v[{D}:{D+3}]"
            A(f"v_mfma_f32_16x16x32_bf16 v[{D}:{D+3}], {treg(slot, tt)}, v[{QB+4*tt}:{QB+4*tt+3}], {c}")
        if not refill(slot): A("s_nop 6")
        if not wo_step(n): A("s_nop 0")
        A(f"v_mov_b32_dpp {s}, v{D} quad_perm:[0,0,0,0] row_mask:0xf bank_mask:0xf")
        for r in range(1, 4):
            A(f"v_add_f32_dpp {s}, v{D+r}, {s} quad_perm:[{r},{r},{r},{r}] row_mask:0xf bank_mask:0xf")
        A.rb(s, s)
        A(f"v_mul_f32 {s}, {F(192 ** -0.5)}, {s}")
        A.rb(s, s)
        A(f"v_max_f32 {vMAX}, {vMAX}, {s}")
        A(f"ds_write_b32 {vSC}, {s} offset:{n*32}")
        if n >= tab_start:
            if ncalls[0] < 24:
                A(f"s_call_b64 s[{sRET}:{sRET+1}], L_tab")
                ncalls[0] += 1
            elif not published[0]:
                published[0] = True
                tab_publish()
    assert published[0]
    st()
    A.wave_red("max", vMAX, sM)
    A(f"s_lshl_b32 {sT0}, {sWAVE}, 11")
    A(f"s_add_u32 {sT0}, {sT0}, {L_SC}")
    A(f"v_lshl_add_u32 {vT[0]}, {vLANE}, 5, {sT0}")
    A("s_waitcnt lgkmcnt(0)")
    A(f"ds_read_b128 v[{B}:{B+3}], {vT[0]}")
    A(f"ds_read_b128 v[{B+4}:{B+7}], {vT[0]} offset:16")
    A("s_waitcnt lgkmcnt(0)")
    for r in range(8):
        A(f"v_subrev_f32 v{B+r}, {sM}, v{B+r}")
    for r in range(8):
        A(f"v_mul_f32 v{B+r}, {F(LOG2E)}, v{B+r}")
    for r in range(8):
        A(f"v_exp_f32 v{B+r}, v{B+r}")
    A("s_nop 0")
    A(f"v_add_f32 {vT[1]}, v{B}, v{B+1}")
    for r in range(2, 8):
        A(f"v_add_f32 {vT[1]}, {vT[1]}, v{B+r}")
    for r in range(8):
        A(f"v_cvt_pk_bf16_f32 v{B+r}, v{B+r}, v{B+r}")
    A(f"ds_write_b128 {vT[0]}, v[{B}:{B+3}]")
    A(f"ds_write_b128 {vT[0]}, v[{B+4}:{B+7}] offset:16")
    A.wave_red("add", vT[1], sL)
    A(f"v_mov_b32 v{ML}, {sM}")
    A(f"v_mov_b32 v{ML+1}, {sL}")
    A(f"v_mov_b32 v{ML+2}, {sTAG}")
    A(f"v_mov_b32 v{ML+3}, {sTAG}")
    A(f"s_lshl_b32 {sT0}, {sBH}, 7")
    A(f"s_add_u32 {sT0}, {sT0}, {WS_ML}")
    A(f"v_lshl_add_u32 {vZ}, {vLANE}, 4, {sT0}")
    A(f"s_mov_b32 {sT0}, {WS_ZF}")
    A(f"v_writelane_b32 {vZ}, {sT0}, 8")
    A(f"s_lshl_b32 {sT1}, {sHALF}, 2")
    A(f"s_add_u32 {sT1}, {sT1}, {sWAVE}")
    A(f"s_lshl_b32 {sT1}, {sT1}, 4")
    A.setexec(1)
    vq.op(f"buffer_store_dwordx4 v[{ML}:{ML+3}], {vZ}, s[{sWS}:{sWS+3}], {sT1} offen sc1", "mlst")
    A.setexec(ALL)
    PP = [QB + n for n in range(8)]
    A("s_waitcnt lgkmcnt(0)")
    for n in range(4):
        A(f"ds_read_b32 v{PP[n]}, {vSC} offset:{n*32}")
    def fcalc():
        vq.wait("ml")
        A(f"s_mov_b32 {sSPIN}, {SPIN}")
        A.label("L_mlchk")
        A(f"v_cmp_ne_u32 vcc, {sTAG}, v{ML+2}")
        A("s_nop 1")
        A("s_and_b32 vcc_lo, vcc_lo, 0x1ff")
        A("s_cbranch_scc0 L_mlok")
        A(f"s_sub_u32 {sSPIN}, {sSPIN}, 1")
        A(f"s_cmp_eq_u32 {sSPIN}, 0")
        A("s_cbranch_scc1 L_mlok")
        A("s_sleep 8")
        A.setexec(0x1ff)
        A(f"buffer_load_dwordx4 v[{ML}:{ML+3}], {vZ}, s[{sWS}:{sWS+3}], 0 offen sc1")
        A.setexec(ALL)
        A("s_waitcnt vmcnt(0)")
        A("s_branch L_mlchk")
        A.label("L_mlok")
        mm, e = vT[0], vT[1]
        A(f"v_mov_b32 {mm}, v{ML}")
        for stp in Asm.DPP_STEPS[:3]:
            A("s_nop 1")
            A(f"v_max_f32_dpp {mm}, {mm}, {mm} {stp}")
        A(f"v_sub_f32 {e}, v{ML}, {mm}")
        A(f"v_sub_f32 {mm}, {sM}, {mm}")
        A(f"v_mul_f32 {e}, {F(LOG2E)}, {e}")
        A(f"v_mul_f32 {mm}, {F(LOG2E)}, {mm}")
        A(f"v_exp_f32 {e}, {e}")
        A(f"v_exp_f32 {mm}, {mm}")
        A(f"v_mul_f32 {e}, {e}, v{ML+1}")
        for stp in Asm.DPP_STEPS[:3]:
            A("s_nop 1")
            A(f"v_add_f32_dpp {e}, {e}, {e} {stp}")
        A(f"v_rcp_f32 {e}, {e}")
        A("s_nop 0")
        A(f"v_mul_f32 {e}, {e}, {mm}")
        A("s_nop 0")
        A(f"v_readfirstlane_b32 {sF}, {e}")
        A(f"v_lshrrev_b32 {vT[0]}, 4, {vLANE}")
        A(f"s_lshr_b32 {sT0}, {sWAVE}, 1")
        A(f"s_mul_i32 {sT0}, {sT0}, 24")
        A(f"s_and_b32 {sT1}, {sWAVE}, 1")
        A(f"s_lshl_b32 {sT1}, {sT1}, 2")
        A(f"s_add_u32 {sT0}, {sT0}, {sT1}")
        A(f"v_add_lshl_u32 {vT[0]}, {vT[0]}, {sT0}, 4")
        A(f"v_and_b32 {vT[1]}, 8, {vLANE}")
        A(f"v_mul_u32_u24 {vT[1]}, 96, {vT[1]}")
        A(f"v_add_u32 {vQ0}, {vT[0]}, {vT[1]}")
        A(f"v_lshrrev_b32 {vT[0]}, 4, v0")
        A(f"v_mul_u32_u24 {vT[0]}, 15, {vT[0]}")
        A(f"v_and_b32 {vT[1]}, 15, v0")
        A(f"v_add_u32 {vT[0]}, {vT[0]}, {vT[1]}")
        A(f"v_cmp_eq_u32 vcc, 15, {vT[1]}")
        A(f"v_mov_b32 {vCNT}, 1.0")
        A(f"v_mov_b32 {vMK[0]}, -1")
        A(f"v_cndmask_b32 {vCNT}, 0, {vCNT}, vcc")
        A(f"v_cndmask_b32 {vMK[0]}, {vMK[0]}, 0, vcc")
        A(f"v_cmp_gt_u32 vcc, 160, {vT[0]}")
        for k in range(3):
            col, t = vT[2], vT[3]
            A(f"v_add_u32 {col}, {240*k}, {vT[0]}")
            A(f"v_min_u32 {col}, 639, {col}")
            A(f"v_and_b32 {vYA[k]}, 0x3e0, {col}")
            A(f"v_and_b32 {t}, 7, {col}")
            A(f"v_lshl_add_u32 {vYA[k]}, {t}, 2, {vYA[k]}")
            A(f"v_bfe_u32 {t}, {col}, 3, 2")
            A(f"v_add_lshl_u32 {vYA[k]}, {vYA[k]}, {t}, 2")
        A(f"v_cndmask_b32 {vMK[1]}, 0, {vMK[0]}, vcc")
        A(f"s_mul_i32 {sWQOFF}, {sB}, 3072")
    for n in range(NT):
        slot = slot_of[NT + n]
        bb = B + 4 * (n & 1)
        if n + 4 < NT:
            A(f"ds_read_b32 v{PP[(n+4)%8]}, {vSC} offset:{(n+4)*32}")
            A("s_waitcnt lgkmcnt(4)")
        else:
            A(f"s_waitcnt lgkmcnt({NT-1-n})")
        for r in range(4):
            A(f"v_and_b32 v{bb+r}, v{PP[n%8]}, {vM[r]}")
        vq.wait(("v", n))
        A("s_nop 1")
        for tt in range(3):
            A(f"v_mfma_f32_16x16x32_bf16 v[{O+4*tt}:{O+4*tt+3}], {treg(slot, tt)}, v[{bb}:{bb+3}], v[{O+4*tt}:{O+4*tt+3}]")
        if lift and n == NT - T - lift: vq.CAP = liftcap
        refill(slot)
        wo_step(NT + n)
        if n == NT - T - 1:
            assert wo_left[0] == wo_late
            vq.CAP = cape
            for k in late: ld_wo(k)
            wo_left[0] = 0
        if n == NT - T - 4:
            A.setexec(0x1ff)
            vq.op(f"buffer_load_dwordx4 v[{ML}:{ML+3}], {vZ}, s[{sWS}:{sWS+3}], 0 offen sc1", "ml")
            A.setexec(ALL)
        if n == NT - 4:
            fcalc()
        if n == 8:
            vq.wait("tab")
            A(f"v_mov_b32 v{TACC+1}, 1")
            A.setexec(1)
            A(f"ds_add_rtn_u32 v{TACC}, {vT[4]}, v{TACC+1} offset:{L_TP + 64}")
            A("s_waitcnt lgkmcnt(0)")
            A(f"v_readfirstlane_b32 {sT0}, v{TACC}")
            A(f"s_cmp_lg_u32 {sT0}, 3")
            A("s_cbranch_scc1 L_notd")
            A(f"s_lshl_b32 {sT0}, s2, 6")
            A(f"s_add_u32 {sT0}, {sT0}, {WS_TD}")
            A(f"v_mov_b32 v{TACC+1}, {sTAG}")
            A(f"buffer_store_dword v{TACC+1}, {vT[4]}, s[{sWS}:{sWS+3}], {sT0} offen sc1")
            A.label("L_notd")
            A.setexec(ALL)
    assert wo_left[0] == 0
    st()
    A(f"s_lshl_b32 {sT0}, {sB}, 7")
    A(f"s_add_u32 {sT0}, {sT0}, {WS_CNT}")
    A(f"v_mov_b32 {vZ}, 1")
    A("s_nop 4")
    for r in range(12):
        A(f"v_mul_f32 v{O+r}, {sF}, v{O+r}")
    lds_put3()
    A(f"s_cmp_lg_u32 {sWAVE}, 3")
    A("s_cbranch_scc1 L_notick")
    A.setexec(1)
    A(f"buffer_atomic_add {vZ}, {vT[4]}, s[{sWS}:{sWS+3}], {sT0} offen sc0")
    A.setexec(ALL)
    A.label("L_notick")
    A("s_waitcnt lgkmcnt(0)")
    A("s_barrier")
    st()
    A(f"s_cmp_eq_u32 {sWAVE}, 3")
    A("s_cbranch_scc1 L_o3")
    for k in range(8):
        A(f"ds_read_b32 v{B+k}, {vA1} offset:{L_P + 768*k}")
    A("s_waitcnt lgkmcnt(4)")
    A(f"v_add_f32 v{B}, v{B}, v{B+1}")
    A(f"v_add_f32 v{B+2}, v{B+2}, v{B+3}")
    A("s_waitcnt lgkmcnt(0)")
    A(f"v_add_f32 v{B+4}, v{B+4}, v{B+5}")
    A(f"v_add_f32 v{B+6}, v{B+6}, v{B+7}")
    A(f"v_add_f32 v{B}, v{B}, v{B+2}")
    A(f"v_add_f32 v{B+4}, v{B+4}, v{B+6}")
    A(f"v_add_f32 {vT[1]}, v{B}, v{B+4}")
    A.rb(vT[2], vT[1])
    A(f"v_cvt_pk_bf16_f32 {vT[3]}, {vT[1]}, {vT[1]}")
    A(f"v_sub_f32 {vT[2]}, {vT[1]}, {vT[2]}")
    A(f"ds_write_b32 {vA1}, {vT[3]} offset:{L_PH}")
    A(f"v_cvt_pk_bf16_f32 {vT[2]}, {vT[2]}, {vT[2]}")
    A(f"ds_write_b32 {vA1}, {vT[2]} offset:{L_PH + 768}")
    A("s_waitcnt lgkmcnt(0)")
    A.label("L_o3")
    A("s_barrier")
    for k in range(3):
        A(f"ds_read_b128 v[{O+4*k}:{O+4*k+3}], {vQ0} offset:{L_PH + 128*k}")
    BO = R0
    YD = R0 + 48
    def yout(c):
        for r in range(4):
            A(f"v_add_f32_dpp v{YD+4*c+r}, v{YD+4*c+r}, v{YD+4*c+r} row_ror:8 row_mask:0xf bank_mask:0xf")
        A.setexec(M_LO)
        A(f"ds_write_b128 {vAY}, v[{YD+4*c}:{YD+4*c+3}] offset:{L_YP + c*512}")
        A.setexec(ALL)
    def omfma(rg, c):
        n = rg * 5 + c
        cc = "0" if rg == 0 else f"v[{YD+4*c}:{YD+4*c+3}]"
        vq.wait(("wo", n))
        A(f"v_mfma_f32_16x16x32_bf16 v[{YD+4*c}:{YD+4*c+3}], a[{4*n}:{4*n+3}], v[{BO+4*rg}:{BO+4*rg+3}], {cc}")
    ands = [(rg, r) for rg in range(12) for r in range(4)]
    def oand():
        if ands:
            rg, r = ands.pop(0)
            if r == 0 and rg % 4 == 0:
                A(f"s_waitcnt lgkmcnt({2 - rg//4})")
            A(f"v_and_b32 v{BO+4*rg+r}, v{O+rg}, {vM[r]}")
    for _ in range(6): oand()
    for rg in range(NR):
        for c in range(5):
            omfma(rg, c)
            oand(); oand()
    while ands: oand()
    A("s_nop 1")
    for c in range(5):
        for rg in range(NR, 12):
            omfma(rg, c)
        if c > 0:
            yout(c - 1)
    A("s_nop 1")
    yout(4)
    A("s_waitcnt lgkmcnt(0)")
    A("s_barrier")
    st()
    for k in range(2):
        for w in range(4):
            A(f"ds_read_b32 v{O+4*k+w}, {vYA[k]} offset:{L_YP + 2560*w}")
    A(f"s_cmp_eq_u32 {sWAVE}, 3")
    A("s_cbranch_scc1 L_two")
    for w in range(4):
        A(f"ds_read_b32 v{O+8+w}, {vYA[2]} offset:{L_YP + 2560*w}")
    A("s_waitcnt lgkmcnt(0)")
    A(f"v_add_f32 v{O+8}, v{O+8}, v{O+9}")
    A(f"v_add_f32 v{O+10}, v{O+10}, v{O+11}")
    A(f"v_add_f32 v{O+8}, v{O+8}, v{O+10}")
    A(f"v_and_or_b32 v{O+8}, v{O+8}, {vMK[1]}, {vCNT}")
    A(f"buffer_atomic_add_f32 v{O+8}, {vA1}, s[{sWS}:{sWS+3}], {sWQOFF} offen offset:{WS_ACC + 2048}")
    A.label("L_two")
    A("s_waitcnt lgkmcnt(0)")
    for k in range(2):
        A(f"v_add_f32 v{O+4*k}, v{O+4*k}, v{O+4*k+1}")
        A(f"v_add_f32 v{O+4*k+2}, v{O+4*k+2}, v{O+4*k+3}")
    for k in range(2):
        A(f"v_add_f32 v{O+4*k}, v{O+4*k}, v{O+4*k+2}")
    for k in range(2):
        A(f"v_and_or_b32 v{O+4*k}, v{O+4*k}, {vMK[0]}, {vCNT}")
        A(f"buffer_atomic_add_f32 v{O+4*k}, {vA1}, s[{sWS}:{sWS+3}], {sWQOFF} offen offset:{WS_ACC + 1024*k}")
    st()
    A(f"s_cmp_lg_u32 {sWAVE}, 3")
    A("s_cbranch_scc1 L_done")
    A("s_waitcnt vmcnt(2)")
    A(f"v_readfirstlane_b32 {sT0}, {vZ}")
    A(f"s_cmp_lg_u32 {sT0}, 0")
    A("s_cbranch_scc1 L_done")
    H = R0
    HN = R0 + 12
    G = R0 + 24
    X = R0 + 36
    XO = R0 + 48
    T1 = R0 + 60
    T2 = R0 + 66
    TB = R0 + 72
    h = [f"v{H+n}" for n in range(11)]
    hn = [f"v{HN+n}" for n in range(11)]
    A("s_load_dwordx2 s[8:9], s[0:1], 0")
    A(f"s_mul_i32 {sT0}, {sB}, 1280")
    A.srd_off(sOUT, 20, sT0, 1280)
    A(f"v_lshlrev_b32 {vT[1]}, 8, {vLANE}")
    A(f"s_movk_i32 {sT1}, {WS_TD}")
    def tdload():
        for k in range(4):
            A(f"buffer_load_dword v{ML+k}, {vT[1]}, s[{sWS}:{sWS+3}], {sT1} offen offset:{k*64} sc1")
    tdload()
    A(f"v_lshrrev_b32 {vT[0]}, 4, {vLANE}")
    A(f"v_mul_u32_u24 {vT[0]}, 15, {vT[0]}")
    A(f"v_and_b32 {vT[2]}, 15, {vLANE}")
    A(f"v_add_lshl_u32 {vT[0]}, {vT[0]}, {vT[2]}, 1")
    A(f"v_cmp_eq_u32 vcc, 15, {vT[2]}")
    A(f"v_mov_b32 {vT[2]}, 0x10000")
    A(f"v_mov_b32 {vMK[1]}, 0")
    A(f"v_cndmask_b32 {vT[0]}, {vT[0]}, {vT[2]}, vcc")
    A.setexec(M_D10)
    A(f"v_mov_b32 {vMK[1]}, -1")
    A.setexec(ALL)
    A(f"v_mov_b32 {vQ0}, {vMK[1]}")
    for r in list(range(G, G + 12)) + list(range(X, X + 12)) + list(range(T1, T1 + 12)) + [H + 11]:
        A(f"v_mov_b32 v{r}, 0")
    A("s_waitcnt lgkmcnt(0)")
    A.srd_off(sX, 8, sT0, 1280)
    for n in range(11):
        A(f"buffer_load_short_d16_hi v{X+n}, {vT[0]}, s[{sX}:{sX+3}], 0 offen offset:{n*120}")
    A("s_waitcnt vmcnt(11)")
    A(f"s_mov_b32 {sSPIN}, {SPIN}")
    A.label("L_tdchk")
    for k in range(4):
        A(f"v_xor_b32 v{ML+k}, {sTAG}, v{ML+k}")
    A(f"v_or3_b32 v{ML}, v{ML}, v{ML+1}, v{ML+2}")
    A(f"v_or_b32 v{ML}, v{ML}, v{ML+3}")
    A(f"v_cmp_ne_u32 vcc, 0, v{ML}")
    A("s_nop 1")
    A("s_cmp_eq_u64 vcc, 0")
    A("s_cbranch_scc1 L_tdok")
    A(f"s_sub_u32 {sSPIN}, {sSPIN}, 1")
    A(f"s_cmp_eq_u32 {sSPIN}, 0")
    A("s_cbranch_scc1 L_tdok")
    A("s_sleep 8")
    tdload()
    A("s_waitcnt vmcnt(0)")
    A("s_branch L_tdchk")
    A.label("L_tdok")
    A(f"v_lshlrev_b32 {vT[1]}, 4, {vLANE}")
    for k in range(16):
        if k % 4 == 0: A(f"s_mov_b32 {sT0}, {WS_TAB + k*1024}")
        A(f"buffer_load_dwordx4 v[{TB+4*k}:{TB+4*k+3}], {vT[1]}, s[{sWS}:{sWS+3}], {sT0} offen offset:{(k%4)*1024} sc1")
    A(f"v_mov_b32 {vZ}, {sTAG}")
    A(f"s_mov_b32 {sT1}, {WS_EP}")
    A.setexec(1)
    A(f"buffer_store_dword {vZ}, {vT[4]}, s[{sWS}:{sWS+3}], {sT1} offen sc1")
    A.setexec(ALL)
    A(f"v_add_u32 {vT[2]}, 0x10000, {vT[1]}")
    A("s_waitcnt vmcnt(1)")
    for k in range(16):
        if k == 8: A("s_waitcnt lgkmcnt(0)")
        A(f"ds_write_b128 {vT[1] if k < 8 else vT[2]}, v[{TB+4*k}:{TB+4*k+3}] offset:{L_SC + (k%8)*1024}")
    A(f"v_lshlrev_b32 {vT[1]}, 2, {vLANE}")
    A(f"s_mov_b32 {sSPIN}, {SPIN}")
    A(f"s_mov_b32 s4, 0x80008000")
    st()
    A.label("L_poll")
    for n in range(11):
        A(f"buffer_load_dword {h[n]}, {vT[1]}, s[{sWS}:{sWS+3}], {sWQOFF} offen offset:{WS_ACC + n*256} sc1")
    A(f"s_sub_u32 {sSPIN}, {sSPIN}, 1")
    A("s_waitcnt vmcnt(0) lgkmcnt(0)")
    A(f"v_min3_f32 {vT[2]}, {h[0]}, {h[1]}, {h[2]}")
    A(f"v_min3_f32 {vT[3]}, {h[3]}, {h[4]}, {h[5]}")
    A(f"v_min3_f32 {vT[2]}, {h[6]}, {h[7]}, {vT[2]}")
    A(f"v_min3_f32 {vT[3]}, {h[8]}, {h[9]}, {vT[3]}")
    A(f"v_min3_f32 {vT[2]}, {h[10]}, {vT[2]}, {vT[3]}")
    A(f"s_cmp_eq_u32 {sSPIN}, 0")
    A("s_cbranch_scc1 L_pollok")
    A(f"v_cmp_neq_f32 vcc, {F(64.0)}, {vT[2]}")
    for n in range(2):
        A.rb(h[n], h[n])
    A("s_or_b32 vcc_lo, vcc_lo, vcc_hi")
    A("s_and_b32 vcc_lo, vcc_lo, s4")
    A("s_cbranch_scc1 L_poll")
    A.label("L_pollok")
    st()
    A.setexec(M_D)
    for n in range(2, 11):
        A.rb(h[n], h[n])
    for n in range(6):
        A(f"v_pk_add_f32 v[{H+2*n}:{H+2*n+1}], v[{H+2*n}:{H+2*n+1}], v[{X+2*n}:{X+2*n+1}]")
    for n in range(11):
        A.rb(h[n], h[n])
    layernorm_seg(A, H, HN, T1, 4, True, vQ0, M_D)
    layernorm_seg(A, HN, HN, T2, 4, False, vQ0, M_D)
    for n in range(11):
        A(f"v_lshrrev_b32 v{X+n}, 15, {hn[n]}")
        A(f"ds_read_u16_d16_hi v{G+n}, v{X+n} offset:{L_SC - 25600}")
    A(f"v_bfi_b32 {hn[10]}, {vQ0}, {hn[10]}, 1.0")
    A(f"v_min3_f32 {vT[2]}, abs({hn[0]}), abs({hn[1]}), abs({hn[2]})")
    A(f"v_max3_f32 {vT[3]}, abs({hn[0]}), abs({hn[1]}), abs({hn[2]})")
    for n in range(3, 11, 2):
        A(f"v_min3_f32 {vT[2]}, abs({hn[n]}), abs({hn[n+1]}), {vT[2]}")
        A(f"v_max3_f32 {vT[3]}, abs({hn[n]}), abs({hn[n+1]}), {vT[3]}")
    A(f"v_cmp_gt_f32 vcc, {F(2.0 ** -27)}, {vT[2]}")
    A(f"v_mov_b32 {vT[2]}, {F(32.0)}")
    A(f"v_cmp_le_f32 s[4:5], {vT[2]}, {vT[3]}")
    A("s_waitcnt lgkmcnt(0)")
    A("s_or_b64 vcc, vcc, s[4:5]")
    A("s_cbranch_scc1 L_direct")
    A.label("L_lookup")
    for n in range(6):
        A(f"v_pk_add_f32 v[{G+2*n}:{G+2*n+1}], v[{G+2*n}:{G+2*n+1}], v[{H+2*n}:{H+2*n+1}]")
    for n in range(6):
        A(f"v_cvt_pk_bf16_f32 v{G+2*n}, v{G+2*n}, v{G+2*n+1}")
    for n in range(11):
        op = "buffer_store_short" if n % 2 == 0 else "buffer_store_short_d16_hi"
        A(f"{op} v{G + (n & ~1)}, {vT[0]}, s[{sOUT}:{sOUT+3}], 0 offen offset:{n*120}")
    A.setexec(ALL)
    if stamps:
        A("s_waitcnt vmcnt(0)")
        st()
        st.flush(sWS, WS_STAMP + 65536, sWAVE, vT[0], vT[1])
        if dbg:
            A("s_load_dwordx2 s[4:5], s[0:1], 88")
            A("s_waitcnt lgkmcnt(0)")
            A.srd(16, "s4", "s5", 256)
            A(f"s_lshl_b32 s6, {sB}, 4")
            A(f"v_mov_b32 {vT[1]}, 0")
            A.setexec(1)
            for k, n in enumerate((3, 4, 5, 11)):
                A(f"s_sub_u32 s7, s{76+2*n}, s76")
                A(f"v_mov_b32 {vT[0]}, s7")
                A(f"buffer_store_dword {vT[0]}, {vT[1]}, s[16:19], s6 offen offset:{4*k}")
            A.setexec(ALL)
    A.label("L_done")
    if stamps:
        st.flush(sWS, WS_STAMP, sWAVE, vT[0], vT[1])
    A.label("L_end")
    A("s_endpgm")
    A.label("L_direct")
    A.setexec(ALL)
    A(f"v_lshrrev_b32 {vT[1]}, 3, {vLANE}")
    A(f"v_mul_u32_u24 {vT[1]}, 2320, {vT[1]}")
    A(f"v_and_b32 {vT[2]}, 7, {vLANE}")
    A(f"v_mul_u32_u24 {vT[2]}, 288, {vT[2]}")
    A(f"v_add_u32 {vT[1]}, {vT[1]}, {vT[2]}")
    A(f"v_add_u32 {vT[1]}, {L_W}, {vT[1]}")
    for n in range(11):
        A(f"v_bfe_u32 {vT[2]}, {hn[n]}, 23, 8")
        A(f"v_subrev_u32 {vT[2]}, 100, {vT[2]}")
        A.setexec(M_D)
        A(f"v_cmp_le_u32 s[4:5], 32, {vT[2]}")
        A.setexec(ALL)
        A.label(f"L_dir{n}")
        A("s_nop 1")
        A("s_cmp_eq_u64 s[4:5], 0")
        A(f"s_cbranch_scc1 L_dirx{n}")
        A(f"s_ff1_i32_b64 {sT0}, s[4:5]")
        A(f"v_readlane_b32 {sT1}, {hn[n]}, {sT0}")
        A(f"s_call_b64 s[6:7], L_eval")
        A(f"v_cmp_eq_u32 vcc, {sT1}, {hn[n]}")
        A("s_nop 1")
        A(f"v_cndmask_b32 v{G+n}, v{G+n}, v{TACC}, vcc")
        A("s_andn2_b64 s[4:5], s[4:5], vcc")
        A(f"s_branch L_dir{n}")
        A.label(f"L_dirx{n}")
    A.setexec(M_D)
    A("s_branch L_lookup")
    A.label("L_eval")
    A("s_nop 1")
    A(f"v_mov_b32 v{TX}, {sT1}")
    A(f"v_mov_b32 v{TX+1}, {sT1}")
    A(f"v_mov_b32 v{TACC}, 0")
    A(f"v_mov_b32 v{TACC+1}, 0")
    A(f"v_mov_b32 {vTA}, {vT[1]}")
    A("s_waitcnt lgkmcnt(0)")
    tab_reads()
    for _ in range(3):
        A(f"s_call_b64 s[{sRET}:{sRET+1}], L_tab")
    A(f"v_add_f32 v{TACC}, v{TACC}, v{TACC+1}")
    A.wave_red("add", f"v{TACC}", sT0)
    A(f"v_mov_b32 v{TACC}, {sT0}")
    tab_finish(f"v{TACC}")
    A(f"v_and_b32 v{TACC}, 0xffff0000, v{TACC}")
    A("s_setpc_b64 s[6:7]")
    A.label("L_tab")
    A("s_waitcnt lgkmcnt(0)")
    def P(r): return f"v[{r}:{r+1}]"
    W1, B1, W2 = TW, TW + 8, TW + 16
    for p in range(4): A(f"v_pk_mul_f32 {P(W1+2*p)}, {P(TX)}, {P(W1+2*p)}")
    for k in range(8): A.rb(f"v{W1+k}", f"v{W1+k}")
    for p in range(4): A(f"v_pk_add_f32 {P(W1+2*p)}, {P(W1+2*p)}, {P(B1+2*p)}")
    for k in range(8): A.rb(f"v{W1+k}", f"v{W1+k}")
    for p in range(4): A(f"v_pk_mul_f32 {P(B1+2*p)}, {P(W1+2*p)}, {P(W1+2*p)}")
    for p in range(4): A(f"v_pk_fma_f32 {P(B1+2*p)}, {P(B1+2*p)}, {P(TK1)}, s[{sK0}:{sK0+1}]")
    for p in range(4): A(f"v_pk_mul_f32 {P(B1+2*p)}, {P(B1+2*p)}, {P(W1+2*p)}")
    for k in range(8): A(f"v_exp_f32 v{B1+k}, v{B1+k}")
    for p in range(4): A(f"v_pk_add_f32 {P(B1+2*p)}, {P(B1+2*p)}, s[{sONE}:{sONE+1}]")
    for k in range(8): A(f"v_rcp_f32 v{B1+k}, v{B1+k}")
    for p in range(4): A(f"v_pk_mul_f32 {P(W1+2*p)}, {P(W1+2*p)}, {P(B1+2*p)}")
    for k in range(8): A.rb(f"v{W1+k}", f"v{W1+k}")
    for p in range(4): A(f"v_pk_fma_f32 {P(TACC)}, {P(W1+2*p)}, {P(W2+2*p)}, {P(TACC)}")
    tab_reads()
    A(f"s_setpc_b64 s[{sRET}:{sRET+1}]")
    acc = (NV + 3) // 4 * 4
    return A.text() + kd(KN, acc + 240, 102, acc)

if __name__ == "__main__":
    kw = eval("dict(%s)" % (sys.argv[2] if len(sys.argv) > 2 else ""))
    open(sys.argv[1], "w").write(gen(**kw))
```

```python
import sys
from asmlib import *

KN = "sequential_preLN__mha_block_cached__mixer_token_mlp__decode_kernel"
HDR = open("sequential_preLN__mha_block_cached__mixer_token_mlp__decode.s.ref").read().split("; Override launch")[0]
LOG2E = 1.4426950408889634
WS_ACC, WS_CNT, WS_ZEND = 0, 12288, 16384
WS_ML = 49152
WS_TD = 28672
WS_EP = 45056
WS_ZF = 45312
WS_TAB = 65536
WS_STAMP = 524288
WS_QP = 1 << 20
WS_SIZE = 2 << 20
L_XN = 0
L_P = 10240
L_QB = L_P + 6144
L_PH = L_QB + 512
L_W = L_PH + 1536
L_TP = L_W + 8 * 2320
L_YP = L_TP + 128
L_SC = L_YP + 10240
L_QS = L_SC + 8192
L_WQ = L_QS + 3072
L_END = L_SC + 65536 + 8192
M_D, M_D10 = 0x7FFF7FFF7FFF7FFF, 0x000003FF7FFF7FFF
M_LO, M_HI, M_T1 = 0x00FF00FF00FF00FF, 0xFF00FF00FF00FF00, 0xFF00FF0000FF00FF
ALL = (1 << 64) - 1
SPIN = 0x100000

class Stamps:
    def __init__(self, A, on, s0): self.A = A; self.on = on; self.s0 = s0; self.n = 0
    def __call__(self):
        if self.on:
            s = self.s0 + 2 * self.n
            self.A(f"s_memrealtime s[{s}:{s+1}]")
            self.n += 1
    def flush(self, srd, base, swave, v0, v1):
        if not self.on: return
        A = self.A
        A("s_waitcnt lgkmcnt(0)")
        A("s_lshl_b32 s6, s2, 2")
        A(f"s_add_u32 s6, s6, {swave}")
        A("s_lshl_b32 s6, s6, 6")
        A(f"s_add_u32 s6, s6, {base}")
        A(f"v_mov_b32 {v1}, 0")
        A.setexec(1)
        for n in range(self.n):
            A(f"v_mov_b32 {v0}, s{self.s0 + 2*n}")
            A(f"buffer_store_dword {v0}, {v1}, s[{srd}:{srd+3}], s6 offen offset:{4*n}")
        A("s_getreg_b32 s7, hwreg(HW_REG_XCC_ID)")
        A(f"v_mov_b32 {v0}, s7")
        A(f"buffer_store_dword {v0}, {v1}, s[{srd}:{srd+3}], s6 offen offset:60")
        A(f"v_mov_b32 {v0}, s51")
        A(f"buffer_store_dword {v0}, {v1}, s[{srd}:{srd+3}], s6 offen offset:56")
        A.setexec(ALL)

class VQ:
    CAP = 54
    def __init__(self, A): self.A = A; self.q = []; self.frac = 0.0
    def room(self, n):
        cap = int(self.CAP)
        self.frac += self.CAP - cap
        if self.frac >= 1.0 - 1e-9:
            self.frac -= 1.0; cap += 1
        if len(self.q) > cap - n:
            self.A(f"s_waitcnt vmcnt({cap - n})")
            self.q = self.q[len(self.q) - (cap - n):]
    def op(self, text, tag, nocap=False):
        if nocap:
            self.A(text); self.q.append(tag); return
        cap = int(self.CAP)
        self.frac += self.CAP - cap
        if self.frac >= 1.0 - 1e-9:
            self.frac -= 1.0; cap += 1
        if len(self.q) >= cap:
            self.A(f"s_waitcnt vmcnt({cap - 1})")
            self.q = self.q[-(cap - 1):]
        self.A(text)
        self.q.append(tag)
    def wait(self, tag):
        if tag not in self.q: return
        pos = len(self.q) - 1 - self.q[::-1].index(tag)
        self.A(f"s_waitcnt vmcnt({len(self.q) - 1 - pos})")
        self.q = self.q[pos + 1:]

def gen(T=12, ext=4, rot=13, wo_start=0, stamps=False, kf='nt', vf='nt', wf='nt', tab_start=20,
        n1=5, n1b=1, n1c=1, n2=4, capk=8, capv=6, caph=6, wo_rate=1.0, dbg=False, BL=0, pmul=1, tlb=0, st0=False, wo_late=0, cape=54, lift=4, liftcap=54, poll2=False, tabrot=False, rh=(56,48,48), burst=False, order=(0,1,2), eplate=False, wo2=0, cap0=54):
    if dbg: stamps = True
    A = Asm()
    A.raw(HDR.rstrip())
    A.raw(f"; @launch grid=(256,1,1) block=(256,1,1) lds={L_END}")
    A.raw('.amdgcn_target "amdgcn-amd-amdhsa--gfx950"')
    A.raw(".text")
    A.raw(f".globl {KN}")
    st = Stamps(A, stamps, 76)
    NT = 64
    STEP = 12288
    REGION = 786432
    sX, sK, sV, sWQ, sWO, sWS = 24, 28, 32, 36, 40, 44
    sOUT = 36
    sTAG, sBS, sQG, sRETRY = "s48", "s49", "s50", "s51"
    sWAVE, sB, sH, sHALF, sBH, sT0, sT1 = "s52", "s53", "s54", "s55", "s56", "s57", "s58"
    sKREL, sVREL, sWB, sOFF, sWQOFF, sWOOFF, sM, sL, sF, sSPIN = "s59", "s60", "s61", "s62", "s63", "s64", "s65", "s66", "s67", "s68"
    sB2, sTB, sJMP = "s69", "s3", "s101"
    sK0, sONE, sRET = 70, 72, 74
    vLANE, vKO, vVO, vQ0, vQ1, vQ2, vWO = "v1", "v2", "v3", "v4", "v5", "v6", "v7"
    vM = ["v8", "v9", "v10", "v11"]
    vA0, vA1, vAY, vSC, vXN, vMAX, vZ = "v12", "v13", "v14", "v15", "v16", "v17", "v18"
    vT = [f"v{i}" for i in range(19, 24)]
    QB = 24
    D = 36
    O = 40
    B = 52
    ML = 60
    TW = 64
    TX, TACC, TK1 = 88, 90, 92
    vTA = "v94"
    XS = 95
    vYA = [vQ1, vQ2, vXN]; vCNT = vMAX; vMK = [f"v{TX}", f"v{TX+1}"]
    R0 = 100
    NV = R0 + 12 * T
    AW = 204
    assert NV <= 256 and ext * 12 <= AW
    vq = VQ(A)

    A.raw(".p2align 8")
    A.raw(f".type {KN},@function")
    A.label(KN)
    A("s_cmp_ge_u32 s2, 256")
    A("s_cbranch_scc1 L_end")
    st()
    A("s_load_dwordx8 s[8:15], s[0:1], 0")
    A("s_load_dwordx2 s[16:17], s[0:1], 32")
    A("s_load_dwordx2 s[22:23], s[0:1], 96")
    A(f"v_lshrrev_b32 {vT[0]}, 6, v0")
    A(f"v_and_b32 {vLANE}, 63, v0")
    A(f"v_readfirstlane_b32 {sWAVE}, {vT[0]}")
    A(f"s_and_b32 {sH}, s2, 7")
    A(f"s_lshr_b32 {sT0}, s2, 3")
    A(f"s_lshl_b32 {sH}, {sH}, 2")
    A(f"s_and_b32 {sT1}, {sT0}, 3")
    A(f"s_add_u32 {sH}, {sH}, {sT1}")
    A(f"s_lshr_b32 {sBS}, {sT0}, 2")
    A(f"s_lshr_b32 {sB}, {sT0}, 3")
    A(f"s_and_b32 {sHALF}, {sBS}, 1")
    A(f"s_lshl_b32 {sBH}, {sB}, 5")
    A(f"s_add_u32 {sBH}, {sBH}, {sH}")
    q, i, t0, t1 = vT[0], vT[1], vT[2], vT[3]
    A(f"v_lshrrev_b32 {q}, 4, {vLANE}")
    A(f"v_and_b32 {i}, 15, {vLANE}")
    A(f"v_lshrrev_b32 {t0}, 2, {i}")
    A(f"v_mul_u32_u24 {vKO}, 768, {t0}")
    A(f"v_lshl_add_u32 {vKO}, {q}, 6, {vKO}")
    A(f"v_and_b32 {t0}, 3, {i}")
    A(f"v_lshl_add_u32 {vKO}, {t0}, 4, {vKO}")
    A(f"v_mul_u32_u24 {vVO}, 768, {q}")
    A(f"v_lshl_add_u32 {vVO}, {i}, 4, {vVO}")
    A(f"v_mul_u32_u24 {vQ0}, 24576, {q}")
    A(f"v_lshl_add_u32 {vQ0}, {i}, 4, {vQ0}")
    A(f"v_add_u32 {vQ1}, 256, {vQ0}")
    A(f"v_add_u32 {vQ2}, {12288-128}, {vQ0}")
    A(f"v_cmp_gt_u32 vcc, 8, {i}")
    A(f"v_mul_u32_u24 {vWO}, 1280, {q}")
    A(f"v_lshl_add_u32 {vWO}, {i}, 4, {vWO}")
    A(f"v_cndmask_b32 {vQ1}, {vQ2}, {vQ1}, vcc")
    A(f"v_add_u32 {vQ2}, {12288+128}, {vQ0}")
    for r in range(O, O + 12):
        A(f"v_mov_b32 v{r}, 0")
    A(f"v_lshlrev_b32 {t0}, 4, v0")
    A(f"v_lshlrev_b32 {t1}, 2, {vLANE}")
    A(f"s_lshl_b32 {sT1}, {sBH}, 1")
    A(f"s_add_u32 {sT1}, {sT1}, {sHALF}")
    if rh is None:
        A(f"s_mul_i32 {sKREL}, {sT1}, {rot}")
    else:
        A(f"s_mul_i32 {sKREL}, {sHALF}, {rh[0]}")
        A(f"s_mul_i32 {sT0}, {sH}, {rh[1]}")
        A(f"s_add_u32 {sKREL}, {sKREL}, {sT0}")
        A(f"s_mul_i32 {sT0}, {sB}, {rh[2]}")
        A(f"s_add_u32 {sKREL}, {sKREL}, {sT0}")
    A(f"s_and_b32 {sKREL}, {sKREL}, 63")
    A(f"s_mov_b32 {sVREL}, {sKREL}")
    if BL:
        A(f"s_mul_i32 {sJMP}, {sT1}, {pmul}")
        A(f"s_lshr_b32 {sJMP}, {sJMP}, 2")
        A(f"s_lshl_b32 {sJMP}, {sJMP}, 1")
        A(f"s_mul_i32 {sJMP}, {sJMP}, {BL}")
        A(f"s_add_u32 {sJMP}, {sJMP}, 1")
    A(f"s_mul_i32 {sT1}, {sT1}, {REGION}")
    A(f"s_mul_i32 {sWB}, {sWAVE}, 3072")
    A(f"s_mul_i32 {sOFF}, {sBS}, {80*12288}")
    A(f"s_mul_i32 {sT0}, {sH}, 384")
    A(f"s_add_u32 {sOFF}, {sOFF}, {sT0}")
    A(f"s_mul_i32 {sWQOFF}, {sWAVE}, {8*12288}")
    A(f"s_lshr_b32 {sT0}, {sWAVE}, 1")
    A(f"s_mul_i32 {sWOOFF}, {sT0}, {96*1280}")
    A(f"s_and_b32 {sT0}, {sWAVE}, 1")
    A(f"s_mul_i32 {sT0}, {sT0}, {4*1280}")
    A(f"s_add_u32 {sWOOFF}, {sWOOFF}, {sT0}")
    A(f"s_mul_i32 {sT0}, {sWAVE}, 1280")
    A(f"s_mov_b32 {sRETRY}, 0")
    A("s_waitcnt lgkmcnt(0)")
    if st0: st()
    if tabrot:
        A("s_load_dwordx2 s[4:5], s[0:1], 40")
        A("s_lshl_b32 s6, s2, 2")
        A("s_waitcnt lgkmcnt(0)")
        A(f"s_load_dword {sKREL}, s[4:5], s6")
        A("s_waitcnt lgkmcnt(0)")
        A(f"s_and_b32 {sKREL}, {sKREL}, 63")
        A(f"s_mov_b32 {sVREL}, {sKREL}")
    A.srd_off(sX, 8, sT0, 1280)
    for n in range(5):
        vq.op(f"buffer_load_dword v{XS+n}, {t1}, s[{sX}:{sX+3}], 0 offen offset:{n*256}", "x")
    A.srd_off(sWQ, 14, sOFF, 79 * 12288 + 384)
    for k in range(3):
        for t, o in enumerate((vQ0, vQ1, vQ2)):
            r = AW + k * 12 + t * 4
            vq.op(f"buffer_load_dwordx4 a[{r}:{r+3}], {o}, s[{sWQ}:{sWQ+3}], {sWQOFF} offen {wf}", "wq")
        if k < 2: A(f"s_add_u32 {sWQOFF}, {sWQOFF}, {32*12288}")
    A.srd_off(sK, 10, sT1, REGION)
    A.srd_off(sV, 12, sT1, REGION)
    A(f"s_mul_i32 {sT0}, {sH}, 245760")
    A.srd_off(sWO, 16, sT0, 245760)
    A.srd(sWS, "s22", "s23", WS_SIZE)
    A("s_load_dwordx8 s[8:15], s[0:1], 48")
    A("s_load_dwordx2 s[20:21], s[0:1], 80")
    if not eplate: A(f"s_load_dword {sTAG}, s[22:23], {WS_EP}")

    def treg(slot, t):
        if slot < T:
            r = R0 + slot * 12 + t * 4
            return f"v[{r}:{r+3}]"
        r = (slot - T) * 12 + t * 4
        return f"a[{r}:{r+3}]"
    def ld_tile(slot, isv, n):
        rel, srd, off = (sVREL, sV, vVO) if isv else (sKREL, sK, vKO)
        A(f"s_mul_i32 {sOFF}, {rel}, {STEP}")
        A(f"s_add_u32 {sOFF}, {sOFF}, {sWB}")
        if burst: vq.room(3)
        for t in order:
            vq.op(f"buffer_load_dwordx4 {treg(slot, t)}, {off}, s[{srd}:{srd+3}], {sOFF} offen offset:{t*256} {vf if isv else kf}", ("v" if isv else "k", n), nocap=burst)
        A(f"s_add_u32 {rel}, {rel}, {sJMP if (BL and (n + 1) % BL == 0) else 1}")
        A(f"s_and_b32 {rel}, {rel}, 63")
    def ld_wo(n):
        rg, c = divmod(n, 5)
        A(f"s_add_u32 {sOFF}, {sWOOFF}, {rg*8*1280}")
        vq.op(f"buffer_load_dwordx4 a[{4*n}:{4*n+3}], {vWO}, s[{sWO}:{sWO+3}], {sOFF} offen offset:{c*256} {wf}", ("wo", n))
    kis = [0]
    def head_k(n):
        for _ in range(n):
            if kis[0] < T + ext:
                ld_tile(kis[0], False, kis[0]); kis[0] += 1
    head_k(1)
    A("s_cmp_lg_u32 s2, 0")
    A("s_cbranch_scc1 L_nozero")
    for n in range(WS_ZEND // 4096):
        A(f"s_movk_i32 {sT0}, {n*4096}")
        A(f"buffer_store_dwordx4 v[{O}:{O+3}], {t0}, s[{sWS}:{sWS+3}], {sT0} offen sc1")
    A.label("L_nozero")
    A("s_waitcnt lgkmcnt(0)")
    sW = 16
    for ptr, dst in ((8, B), (10, B + 4), (12, D)):
        A.srd(sW, f"s{ptr}", f"s{ptr+1}", 3072)
        vq.op(f"buffer_load_dwordx4 v[{dst}:{dst+3}], {t0}, s[{sW}:{sW+3}], 0 offen", "mw")
    A(f"s_load_dword {sB2}, s[14:15], 0")
    def mktag():
        A(f"s_mul_i32 {sTAG}, {sTAG}, 0x2c9277b5")
        A(f"s_add_u32 {sTAG}, {sTAG}, 0x7f4a7c15")
    if eplate: A(f"s_load_dword {sTAG}, s[22:23], {WS_EP}")
    else: mktag()
    jl = vT[2]
    A(f"v_and_b32 {jl}, 7, {vLANE}")
    A(f"v_and_b32 {t1}, 1, {vLANE}")
    A(f"v_cmp_eq_u32 vcc, 1, {t1}")
    A(f"v_mov_b32 {vT[4]}, 0xffff")
    A(f"v_mov_b32 {vM[3]}, 0xffff0000")
    A(f"v_cndmask_b32 {vT[4]}, {vT[4]}, {vM[3]}, vcc")
    A(f"v_lshrrev_b32 {t1}, 1, {jl}")
    for r in range(4):
        A(f"v_cmp_eq_u32 vcc, {r}, {t1}")
        A("s_nop 1")
        A(f"v_cndmask_b32 {vM[r]}, 0, {vT[4]}, vcc")
    A(f"v_lshl_add_u32 {vAY}, {q}, 3, {jl}")
    A(f"v_lshlrev_b32 {vAY}, 4, {vAY}")
    A(f"s_mul_i32 {sT0}, {sWAVE}, 1536")
    A(f"v_add_u32 {vA0}, {sT0}, {vAY}")
    A(f"s_mul_i32 {sT0}, {sWAVE}, 2560")
    A(f"v_add_u32 {vAY}, {sT0}, {vAY}")
    A(f"v_lshrrev_b32 {t1}, 3, {vLANE}")
    A(f"s_mul_i32 {sT1}, {sBS}, 320")
    A(f"s_add_u32 {sT0}, {sT0}, {sT1}")
    A(f"v_lshl_add_u32 {vXN}, {t1}, 2, {sT0}")
    A(f"s_lshl_b32 {sT0}, {sWAVE}, 11")
    A(f"s_add_u32 {sT0}, {sT0}, {L_SC}")
    A(f"v_lshl_add_u32 {vSC}, {t1}, 2, {sT0}")
    A(f"v_mov_b32 {vMAX}, 0xff800000")
    A(f"v_lshlrev_b32 {vA1}, 2, v0")
    A(f"s_lshl_b32 {sT0}, s2, 2")
    A(f"s_add_u32 {sT0}, {sT0}, {sWAVE}")
    A(f"s_lshr_b32 {sT1}, {sT0}, 9")
    A(f"s_lshl_b32 {sT1}, {sT1}, 15")
    A(f"s_and_b32 {sT0}, {sT0}, 511")
    A(f"s_lshl_b32 {sT0}, {sT0}, 3")
    A(f"s_add_u32 {sT0}, {sT0}, 12800")
    A(f"s_or_b32 {sTB}, {sT0}, {sT1}")
    A(f"v_add_lshl_u32 v{TX}, {jl}, {sTB}, 16")
    A(f"v_mov_b32 v{TX+1}, v{TX}")
    A(f"v_mov_b32 v{TACC}, 0")
    A(f"v_mov_b32 v{TACC+1}, 0")
    K0 = -2.0 * 0.7978845608028654 * LOG2E
    A(f"v_mov_b32 v{TK1}, {F(K0 * 0.044715)}")
    A(f"v_mov_b32 v{TK1+1}, {F(K0 * 0.044715)}")
    A(f"s_mov_b32 s{sK0}, {F(K0)}")
    A(f"s_mov_b32 s{sK0+1}, {F(K0)}")
    A(f"s_mov_b32 s{sONE}, 1.0")
    A(f"s_mov_b32 s{sONE+1}, 1.0")
    A(f"v_mul_u32_u24 {vTA}, 2320, {t1}")
    A(f"v_add_u32 {vTA}, {L_W}, {vTA}")
    vq.CAP = cap0
    head_k(n1 - 1)
    vq.wait("x")
    if not st0: st()
    for n in range(5):
        A(f"v_lshlrev_b32 v{TW+2*n}, 16, v{XS+n}")
        A(f"v_and_b32 v{TW+2*n+1}, 0xffff0000, v{XS+n}")
    layernorm_fast(A, TW, QB, TW + 10, 4, True)
    A(f"s_mul_i32 {sT0}, {sWAVE}, 2560")
    A(f"v_lshl_add_u32 {vT[2]}, {vLANE}, 3, {sT0}")
    for n in range(10):
        A(f"v_cvt_pk_bf16_f32 v{QB+n}, v{QB+n}, v{QB+n}")
    for n in range(5):
        A(f"ds_write_b64 {vT[2]}, v[{QB+2*n}:{QB+2*n+1}] offset:{L_XN + n*512}")
    A(f"v_lshlrev_b32 {vZ}, 4, {vLANE}")
    A(f"v_add_u32 {vT[2]}, {sWB}, {vZ}")
    vq.wait("wq")
    A("s_waitcnt lgkmcnt(0)")
    if eplate: mktag()
    A(f"v_add_u32 {vT[2]}, {L_WQ}, {vT[2]}")
    for k in range(3):
        for t in range(3):
            r = AW + k * 12 + t * 4
            A(f"ds_write_b128 {vT[2]}, a[{r}:{r+3}] offset:{k*12288 + t*1024}")
    head_k(n1b)
    vq.wait("mw")
    A("s_waitcnt lgkmcnt(0)")
    A(f"s_cmp_eq_u32 {sWAVE}, 3")
    A("s_cbranch_scc1 L_now")
    for k, src in enumerate((B, B + 4, D)):
        for n in range(4):
            A(f"v_lshlrev_b32 v{TW+8*k+2*n}, 16, v{src+n}")
            A(f"v_and_b32 v{TW+8*k+2*n+1}, 0xffff0000, v{src+n}")
    A(f"v_mul_u32_u24 {vT[3]}, 2731, v0")
    A(f"v_mul_u32_u24 {vT[2]}, 96, v0")
    A(f"v_lshrrev_b32 {vT[3]}, 16, {vT[3]}")
    A(f"v_lshl_add_u32 {vT[2]}, {vT[3]}, 4, {vT[2]}")
    A(f"v_mov_b32 {vT[3]}, 0")
    A(f"ds_write_b32 {vT[3]}, {vT[3]} offset:{L_TP + 64}")
    for k in range(6):
        A(f"ds_write_b128 {vT[2]}, v[{TW+4*k}:{TW+4*k+3}] offset:{L_W + 16*k}")
    A("s_waitcnt lgkmcnt(0)")
    A.label("L_now")
    for n in range(10):
        A(f"ds_read_b32 v{QB+n}, {vXN} offset:{L_XN + n*32}")
    A(f"v_add_u32 {vT[2]}, {L_WQ}, {vZ}")
    A(f"v_mov_b32 {vT[4]}, 0")
    A("s_waitcnt lgkmcnt(0)")
    A("s_barrier")
    A(f"s_or_b32 {sT0}, s2, {sWAVE}")
    A(f"s_cmp_lg_u32 {sT0}, 0")
    A("s_cbranch_scc1 L_noflag")
    for r in range(4):
        A(f"v_mov_b32 v{ML+r}, {sTAG}")
    A(f"s_mov_b32 {sT0}, {WS_ZF}")
    A.setexec(1)
    A(f"buffer_store_dwordx4 v[{ML}:{ML+3}], {vT[4]}, s[{sWS}:{sWS+3}], {sT0} offen sc1")
    A.setexec(ALL)
    A.label("L_noflag")
    def wq_read(n):
        for t in range(3):
            r = AW + (n % 3) * 12 + t * 4
            A(f"ds_read_b128 a[{r}:{r+3}], {vT[2]} offset:{n*3072 + t*1024}")
    for n in range(3): wq_read(n)
    head_k(n1c)
    for n in range(10):
        bb = B + 4 * (n & 1)
        for r in range(4):
            A(f"v_and_b32 v{bb+r}, v{QB+n}, {vM[r]}")
        A(f"s_waitcnt lgkmcnt({3 * min(2, 9 - n)})")
        A("s_nop 0")
        for t in range(3):
            r = AW + (n % 3) * 12 + t * 4
            A(f"v_mfma_f32_16x16x32_bf16 v[{O+4*t}:{O+4*t+3}], a[{r}:{r+3}], v[{bb}:{bb+3}], v[{O+4*t}:{O+4*t+3}]")
        if n + 3 < 10:
            A("s_nop 3")
            wq_read(n + 3)
    def lds_put3():
        A.setexec(M_LO)
        A(f"ds_write_b128 {vA0}, v[{O}:{O+3}] offset:{L_P}")
        A.setexec(M_T1)
        A(f"ds_write_b128 {vA0}, v[{O+4}:{O+7}] offset:{L_P + 512}")
        A.setexec(M_HI)
        A(f"ds_write_b128 {vA0}, v[{O+8}:{O+11}] offset:{L_P + 768 + 256}")
        A.setexec(ALL)
    A(f"s_mul_i32 {sT0}, {sWAVE}, 1536")
    A(f"v_lshl_add_u32 {vT[2]}, {vLANE}, 2, {sT0}")
    A(f"s_lshl_b32 {sT0}, {sH}, 2")
    A(f"s_add_u32 {sT1}, {sT0}, {sWAVE}")
    A(f"s_lshl_b32 {sT1}, {sT1}, 3")
    A(f"s_add_u32 {sT1}, {sT1}, {sBS}")
    A(f"s_lshl_b32 {sT1}, {sT1}, 10")
    A(f"s_add_u32 {sT1}, {sT1}, {WS_QP}")
    A(f"s_add_u32 {sQG}, {sT0}, {sB}")
    A(f"s_lshl_b32 {sQG}, {sQG}, 2")
    A(f"s_add_u32 {sQG}, {sQG}, {sWAVE}")
    A(f"s_lshl_b32 {sQG}, {sQG}, 11")
    A(f"s_add_u32 {sQG}, {sQG}, {WS_QP}")
    lds_put3()
    A("s_waitcnt lgkmcnt(0)")
    for k in range(6):
        A(f"ds_read_b32 v{B+k}, {vT[2]} offset:{L_P + 256*k}")
    A(f"v_mov_b32 v{D+3}, {sTAG}")
    A("s_waitcnt lgkmcnt(0)")
    for k in range(3):
        A(f"v_add_f32 v{D+k}, v{B+k}, v{B+3+k}")
    vq.op(f"buffer_store_dwordx4 v[{D}:{D+3}], {vZ}, s[{sWS}:{sWS+3}], {sT1} offen sc1", "qst")
    st()
    vq.CAP = caph
    head_k(n2)
    def q_gather(track):
        for k in range(2):
            txt = f"buffer_load_dwordx4 v[{B+4*k}:{B+4*k+3}], {vZ}, s[{sWS}:{sWS+3}], {sQG} offen offset:{1024*k} sc1"
            if track: vq.op(txt, "qg")
            else: A(txt)
    q_gather(True)
    if tlb:
        A(f"v_lshlrev_b32 {vQ0}, 16, {vLANE}")
        A.setexec(0xfff)
        vq.op(f"buffer_load_dword v{ML}, {vQ0}, s[{sV}:{sV+3}], 0 offen nt", "tlb")
        if tlb > 1:
            vq.op(f"buffer_load_dword v{ML+1}, {vQ0}, s[{sK}:{sK+3}], 0 offen nt", "tlb")
            vq.op(f"buffer_load_dword v{ML+2}, {vQ0}, s[{sWO}:{sWO+3}], 0 offen nt", "tlb")
        A.setexec(ALL)
    head_k(99)
    q, i, t0, t1 = vT[0], vT[1], vT[2], vT[3]
    A(f"v_and_b32 {t0}, 32, {vLANE}")
    A(f"v_and_b32 {t1}, 3, {vLANE}")
    A(f"v_lshl_add_u32 {t0}, {t1}, 3, {t0}")
    A(f"v_bfe_u32 {t1}, {vLANE}, 2, 3")
    A(f"v_add_lshl_u32 {vXN}, {t0}, {t1}, 1")
    A(f"s_mul_i32 {sT0}, {sWAVE}, 768")
    A(f"v_lshlrev_b32 {vQ0}, 2, {vLANE}")
    A(f"v_add_u32 {vQ1}, {sT0}, {vQ0}")
    A(f"v_and_b32 {t0}, 3, {vLANE}")
    A(f"v_lshl_add_u32 {t0}, {q}, 2, {t0}")
    A(f"v_and_b32 {t1}, 8, {vLANE}")
    A(f"v_add_lshl_u32 {vQ2}, {t0}, {t1}, 4")
    A(f"v_cmp_gt_u32 vcc, 8, {i}")
    A(f"v_add_u32 {t1}, 16, {t0}")
    A(f"v_subrev_u32 {t0}, 8, {t0}")
    A(f"v_cndmask_b32 {t0}, {t0}, {t1}, vcc")
    A(f"v_lshlrev_b32 {t0}, 4, {t0}")
    for r in range(12):
        A(f"v_mov_b32 v{QB+r}, 0")
    vq.wait("qg")
    A(f"s_mov_b32 {sSPIN}, {SPIN}")
    A.label("L_qchk")
    A(f"v_cmp_ne_u32 vcc, {sTAG}, v{B+3}")
    A(f"v_cmp_ne_u32 s[4:5], {sTAG}, v{B+7}")
    A("s_nop 1")
    A("s_or_b64 vcc, vcc, s[4:5]")
    A("s_cbranch_scc0 L_qok")
    A(f"s_sub_u32 {sSPIN}, {sSPIN}, 1")
    A(f"s_cmp_eq_u32 {sSPIN}, 0")
    A("s_cbranch_scc1 L_qok")
    A(f"s_add_u32 {sRETRY}, {sRETRY}, 1")
    A("s_sleep 2")
    q_gather(False)
    A("s_waitcnt vmcnt(0)")
    A("s_branch L_qchk")
    A.label("L_qok")
    for k in range(3):
        A(f"v_add_f32 v{B+k}, v{B+k}, v{B+4+k}")
    for k in range(3):
        A(f"ds_write_b32 {vQ1}, v{B+k} offset:{L_QS + 256*k}")
    A("s_waitcnt lgkmcnt(0)")
    A("s_barrier")
    for k in range(12):
        A(f"ds_read_b32 v{O+k}, {vQ0} offset:{L_QS + 256*k}")
    A("s_waitcnt lgkmcnt(0)")
    for k in range(3):
        A(f"v_add_f32 v{O+k}, v{O+k}, v{O+3+k}")
        A(f"v_add_f32 v{O+6+k}, v{O+6+k}, v{O+9+k}")
    for k in range(3):
        A(f"v_add_f32 v{O+k}, v{O+k}, v{O+6+k}")
    for k in range(3):
        A(f"v_cvt_pk_bf16_f32 v{O+k}, v{O+k}, v{O+k}")
    for k in range(3):
        A(f"ds_write_b16 {vXN}, v{O+k} offset:{L_QB + 128*k}")
    A("s_waitcnt lgkmcnt(0)")
    A.setexec(M_LO)
    A(f"ds_read_b128 v[{QB}:{QB+3}], {vQ2} offset:{L_QB}")
    A.setexec(M_HI)
    A(f"ds_read_b128 v[{QB+8}:{QB+11}], {vQ2} offset:{L_QB}")
    A.setexec(M_T1)
    A(f"ds_read_b128 v[{QB+4}:{QB+7}], {t0} offset:{L_QB}")
    A.setexec(ALL)
    for r in range(O, O + 12):
        A(f"v_mov_b32 v{r}, 0")
    def tab_reads():
        for k in range(6):
            A(f"ds_read_b128 v[{TW+4*k}:{TW+4*k+3}], {vTA} offset:{16*k}")
        A(f"v_add_u32 {vTA}, 96, {vTA}")
    A("s_waitcnt lgkmcnt(0)")
    tab_reads()
    ncalls = [0]
    published = [False]
    def tab_finish(dst):
        A.rb(dst, dst)
        A(f"v_add_f32 {dst}, {sB2}, {dst}")
        A(f"v_cvt_pk_bf16_f32 {dst}, {dst}, {dst}")
    def tab_publish():
        ta, tb = f"v{TACC}", f"v{TACC+1}"
        A(f"v_add_f32 {ta}, {ta}, {tb}")
        A("s_nop 1")
        A(f"v_add_f32_dpp {ta}, {ta}, {ta} row_ror:8 row_mask:0xf bank_mask:0xf")
        A(f"v_mov_b32 {tb}, {ta}")
        A("s_nop 1")
        A(f"v_permlane16_swap_b32 {ta}, {tb}")
        A(f"v_add_f32 {ta}, {ta}, {tb}")
        A(f"v_mov_b32 {tb}, {ta}")
        A("s_nop 1")
        A(f"v_permlane32_swap_b32 {ta}, {tb}")
        A(f"v_add_f32 {ta}, {ta}, {tb}")
        tab_finish(ta)
        A(f"s_lshl_b32 {sT0}, {sWAVE}, 4")
        A(f"v_lshl_add_u32 {tb}, {vLANE}, 1, {sT0}")
        A(f"s_lshl_b32 {sT1}, s2, 6")
        A(f"s_add_u32 {sT1}, {sT1}, {sT0}")
        A(f"s_add_u32 {sT1}, {sT1}, {WS_TAB}")
        A.setexec(0xff)
        A(f"ds_write_b16 {tb}, {ta} offset:{L_TP}")
        A.setexec(1)
        A("s_waitcnt lgkmcnt(0)")
        A(f"ds_read_b128 v[{TW}:{TW+3}], {tb} offset:{L_TP}")
        A("s_waitcnt lgkmcnt(0)")
        vq.op(f"buffer_store_dwordx4 v[{TW}:{TW+3}], {vT[4]}, s[{sWS}:{sWS+3}], {sT1} offen sc1", "tab")
        A.setexec(ALL)
    A(f"s_lshl_b32 {sB2}, {sB2}, 16")
    st()
    s = vT[0]
    slot_of = list(range(T + ext))
    nxt = [T + ext]
    def refill(slot):
        if slot >= T or nxt[0] >= 2 * NT: return False
        m = nxt[0]; nxt[0] += 1
        slot_of.append(slot)
        ld_tile(slot, m >= NT, m % NT)
        return True
    NR = 4
    use_order = [rg * 5 + c for rg in range(NR) for c in range(5)] + [rg * 5 + c for c in range(5) for rg in range(NR, 12)]
    late = use_order[60 - wo_late:]
    wo_order = [k for k in list(range(3 * ext, 60)) + list(range(3 * ext)) if k not in late] + late
    wo_left = [60]
    def wo_step(n):
        if n < wo_start or wo_left[0] <= wo_late: return False
        if not wo2 and (n - wo_start + 1) * wo_rate < 60 - wo_left[0] + 1 - 1e-9: return False
        k = wo_order[60 - wo_left[0]]
        if k < 3 * ext and n % 1000 < T + k // 3: return False
        ld_wo(k); wo_left[0] -= 1
        return True
    vq.CAP = capk
    for n in range(NT):
        if n == NT - T or wo_left[0] <= wo_late: vq.CAP = capv
        slot = slot_of[n]
        vq.wait(("k", n))
        for tt in range(3):
            c = "0" if tt == 0 else f"v[{D}:{D+3}]"
            A(f"v_mfma_f32_16x16x32_bf16 v[{D}:{D+3}], {treg(slot, tt)}, v[{QB+4*tt}:{QB+4*tt+3}], {c}")
        if not refill(slot): A("s_nop 6")
        if not wo_step(n): A("s_nop 0")
        if n < wo2: wo_step(n + 1000)
        A(f"v_mov_b32_dpp {s}, v{D} quad_perm:[0,0,0,0] row_mask:0xf bank_mask:0xf")
        for r in range(1, 4):
            A(f"v_add_f32_dpp {s}, v{D+r}, {s} quad_perm:[{r},{r},{r},{r}] row_mask:0xf bank_mask:0xf")
        A.rb(s, s)
        A(f"v_mul_f32 {s}, {F(192 ** -0.5)}, {s}")
        A.rb(s, s)
        A(f"v_max_f32 {vMAX}, {vMAX}, {s}")
        A(f"ds_write_b32 {vSC}, {s} offset:{n*32}")
        if n >= tab_start:
            if ncalls[0] < 24:
                A(f"s_call_b64 s[{sRET}:{sRET+1}], L_tab")
                ncalls[0] += 1
            elif not published[0]:
                published[0] = True
                tab_publish()
    assert published[0]
    st()
    A.wave_red("max", vMAX, sM)
    A(f"s_lshl_b32 {sT0}, {sWAVE}, 11")
    A(f"s_add_u32 {sT0}, {sT0}, {L_SC}")
    A(f"v_lshl_add_u32 {vT[0]}, {vLANE}, 5, {sT0}")
    A("s_waitcnt lgkmcnt(0)")
    A(f"ds_read_b128 v[{B}:{B+3}], {vT[0]}")
    A(f"ds_read_b128 v[{B+4}:{B+7}], {vT[0]} offset:16")
    A("s_waitcnt lgkmcnt(0)")
    for r in range(8):
        A(f"v_subrev_f32 v{B+r}, {sM}, v{B+r}")
    for r in range(8):
        A(f"v_mul_f32 v{B+r}, {F(LOG2E)}, v{B+r}")
    for r in range(8):
        A(f"v_exp_f32 v{B+r}, v{B+r}")
    A("s_nop 0")
    A(f"v_add_f32 {vT[1]}, v{B}, v{B+1}")
    for r in range(2, 8):
        A(f"v_add_f32 {vT[1]}, {vT[1]}, v{B+r}")
    for r in range(8):
        A(f"v_cvt_pk_bf16_f32 v{B+r}, v{B+r}, v{B+r}")
    A(f"ds_write_b128 {vT[0]}, v[{B}:{B+3}]")
    A(f"ds_write_b128 {vT[0]}, v[{B+4}:{B+7}] offset:16")
    A.wave_red("add", vT[1], sL)
    A(f"v_mov_b32 v{ML}, {sM}")
    A(f"v_mov_b32 v{ML+1}, {sL}")
    A(f"v_mov_b32 v{ML+2}, {sTAG}")
    A(f"v_mov_b32 v{ML+3}, {sTAG}")
    A(f"s_lshl_b32 {sT0}, {sBH}, 7")
    A(f"s_add_u32 {sT0}, {sT0}, {WS_ML}")
    A(f"v_lshl_add_u32 {vZ}, {vLANE}, 4, {sT0}")
    A(f"s_mov_b32 {sT0}, {WS_ZF}")
    A(f"v_writelane_b32 {vZ}, {sT0}, 8")
    A(f"s_lshl_b32 {sT1}, {sHALF}, 2")
    A(f"s_add_u32 {sT1}, {sT1}, {sWAVE}")
    A(f"s_lshl_b32 {sT1}, {sT1}, 4")
    A.setexec(1)
    vq.op(f"buffer_store_dwordx4 v[{ML}:{ML+3}], {vZ}, s[{sWS}:{sWS+3}], {sT1} offen sc1", "mlst")
    A.setexec(ALL)
    PP = [QB + n for n in range(8)]
    A("s_waitcnt lgkmcnt(0)")
    for n in range(4):
        A(f"ds_read_b32 v{PP[n]}, {vSC} offset:{n*32}")
    def fcalc():
        vq.wait("ml")
        A(f"s_mov_b32 {sSPIN}, {SPIN}")
        A.label("L_mlchk")
        A(f"v_cmp_ne_u32 vcc, {sTAG}, v{ML+2}")
        A("s_nop 1")
        A("s_and_b32 vcc_lo, vcc_lo, 0x1ff")
        A("s_cbranch_scc0 L_mlok")
        A(f"s_sub_u32 {sSPIN}, {sSPIN}, 1")
        A(f"s_cmp_eq_u32 {sSPIN}, 0")
        A("s_cbranch_scc1 L_mlok")
        A("s_sleep 8")
        A.setexec(0x1ff)
        A(f"buffer_load_dwordx4 v[{ML}:{ML+3}], {vZ}, s[{sWS}:{sWS+3}], 0 offen sc1")
        A.setexec(ALL)
        A("s_waitcnt vmcnt(0)")
        A("s_branch L_mlchk")
        A.label("L_mlok")
        mm, e = vT[0], vT[1]
        A(f"v_mov_b32 {mm}, v{ML}")
        for stp in Asm.DPP_STEPS[:3]:
            A("s_nop 1")
            A(f"v_max_f32_dpp {mm}, {mm}, {mm} {stp}")
        A(f"v_sub_f32 {e}, v{ML}, {mm}")
        A(f"v_sub_f32 {mm}, {sM}, {mm}")
        A(f"v_mul_f32 {e}, {F(LOG2E)}, {e}")
        A(f"v_mul_f32 {mm}, {F(LOG2E)}, {mm}")
        A(f"v_exp_f32 {e}, {e}")
        A(f"v_exp_f32 {mm}, {mm}")
        A(f"v_mul_f32 {e}, {e}, v{ML+1}")
        for stp in Asm.DPP_STEPS[:3]:
            A("s_nop 1")
            A(f"v_add_f32_dpp {e}, {e}, {e} {stp}")
        A(f"v_rcp_f32 {e}, {e}")
        A("s_nop 0")
        A(f"v_mul_f32 {e}, {e}, {mm}")
        A("s_nop 0")
        A(f"v_readfirstlane_b32 {sF}, {e}")
        A(f"v_lshrrev_b32 {vT[0]}, 4, {vLANE}")
        A(f"s_lshr_b32 {sT0}, {sWAVE}, 1")
        A(f"s_mul_i32 {sT0}, {sT0}, 24")
        A(f"s_and_b32 {sT1}, {sWAVE}, 1")
        A(f"s_lshl_b32 {sT1}, {sT1}, 2")
        A(f"s_add_u32 {sT0}, {sT0}, {sT1}")
        A(f"v_add_lshl_u32 {vT[0]}, {vT[0]}, {sT0}, 4")
        A(f"v_and_b32 {vT[1]}, 8, {vLANE}")
        A(f"v_mul_u32_u24 {vT[1]}, 96, {vT[1]}")
        A(f"v_add_u32 {vQ0}, {vT[0]}, {vT[1]}")
        A(f"v_lshrrev_b32 {vT[0]}, 4, v0")
        A(f"v_mul_u32_u24 {vT[0]}, 15, {vT[0]}")
        A(f"v_and_b32 {vT[1]}, 15, v0")
        A(f"v_add_u32 {vT[0]}, {vT[0]}, {vT[1]}")
        A(f"v_cmp_eq_u32 vcc, 15, {vT[1]}")
        A(f"v_mov_b32 {vCNT}, 1.0")
        A(f"v_mov_b32 {vMK[0]}, -1")
        A(f"v_cndmask_b32 {vCNT}, 0, {vCNT}, vcc")
        A(f"v_cndmask_b32 {vMK[0]}, {vMK[0]}, 0, vcc")
        A(f"v_cmp_gt_u32 vcc, 160, {vT[0]}")
        for k in range(3):
            col, t = vT[2], vT[3]
            A(f"v_add_u32 {col}, {240*k}, {vT[0]}")
            A(f"v_min_u32 {col}, 639, {col}")
            A(f"v_and_b32 {vYA[k]}, 0x3e0, {col}")
            A(f"v_and_b32 {t}, 7, {col}")
            A(f"v_lshl_add_u32 {vYA[k]}, {t}, 2, {vYA[k]}")
            A(f"v_bfe_u32 {t}, {col}, 3, 2")
            A(f"v_add_lshl_u32 {vYA[k]}, {vYA[k]}, {t}, 2")
        A(f"v_cndmask_b32 {vMK[1]}, 0, {vMK[0]}, vcc")
        A(f"s_mul_i32 {sWQOFF}, {sB}, 3072")
    for n in range(NT):
        slot = slot_of[NT + n]
        bb = B + 4 * (n & 1)
        if n + 4 < NT:
            A(f"ds_read_b32 v{PP[(n+4)%8]}, {vSC} offset:{(n+4)*32}")
            A("s_waitcnt lgkmcnt(4)")
        else:
            A(f"s_waitcnt lgkmcnt({NT-1-n})")
        for r in range(4):
            A(f"v_and_b32 v{bb+r}, v{PP[n%8]}, {vM[r]}")
        vq.wait(("v", n))
        A("s_nop 1")
        for tt in range(3):
            A(f"v_mfma_f32_16x16x32_bf16 v[{O+4*tt}:{O+4*tt+3}], {treg(slot, tt)}, v[{bb}:{bb+3}], v[{O+4*tt}:{O+4*tt+3}]")
        if lift and n == NT - T - lift: vq.CAP = liftcap
        refill(slot)
        wo_step(NT + n)
        if n == NT - T - 1:
            assert wo_left[0] == wo_late
            vq.CAP = cape
            for k in late: ld_wo(k)
            wo_left[0] = 0
        if n == NT - T - 4:
            A.setexec(0x1ff)
            vq.op(f"buffer_load_dwordx4 v[{ML}:{ML+3}], {vZ}, s[{sWS}:{sWS+3}], 0 offen sc1", "ml")
            A.setexec(ALL)
        if n == NT - 4:
            fcalc()
        if n == 8:
            vq.wait("tab")
            A(f"v_mov_b32 v{TACC+1}, 1")
            A.setexec(1)
            A(f"ds_add_rtn_u32 v{TACC}, {vT[4]}, v{TACC+1} offset:{L_TP + 64}")
            A("s_waitcnt lgkmcnt(0)")
            A(f"v_readfirstlane_b32 {sT0}, v{TACC}")
            A(f"s_cmp_lg_u32 {sT0}, 3")
            A("s_cbranch_scc1 L_notd")
            A(f"s_lshl_b32 {sT0}, s2, 6")
            A(f"s_add_u32 {sT0}, {sT0}, {WS_TD}")
            A(f"v_mov_b32 v{TACC+1}, {sTAG}")
            A(f"buffer_store_dword v{TACC+1}, {vT[4]}, s[{sWS}:{sWS+3}], {sT0} offen sc1")
            A.label("L_notd")
            A.setexec(ALL)
    assert wo_left[0] == 0
    st()
    A(f"s_lshl_b32 {sT0}, {sB}, 7")
    A(f"s_add_u32 {sT0}, {sT0}, {WS_CNT}")
    A(f"v_mov_b32 {vZ}, 1")
    A("s_nop 4")
    for r in range(12):
        A(f"v_mul_f32 v{O+r}, {sF}, v{O+r}")
    lds_put3()
    A(f"s_cmp_lg_u32 {sWAVE}, 3")
    A("s_cbranch_scc1 L_notick")
    A.setexec(1)
    A(f"buffer_atomic_add {vZ}, {vT[4]}, s[{sWS}:{sWS+3}], {sT0} offen sc0")
    A.setexec(ALL)
    A.label("L_notick")
    A("s_waitcnt lgkmcnt(0)")
    A("s_barrier")
    st()
    A(f"s_cmp_eq_u32 {sWAVE}, 3")
    A("s_cbranch_scc1 L_o3")
    for k in range(8):
        A(f"ds_read_b32 v{B+k}, {vA1} offset:{L_P + 768*k}")
    A("s_waitcnt lgkmcnt(4)")
    A(f"v_add_f32 v{B}, v{B}, v{B+1}")
    A(f"v_add_f32 v{B+2}, v{B+2}, v{B+3}")
    A("s_waitcnt lgkmcnt(0)")
    A(f"v_add_f32 v{B+4}, v{B+4}, v{B+5}")
    A(f"v_add_f32 v{B+6}, v{B+6}, v{B+7}")
    A(f"v_add_f32 v{B}, v{B}, v{B+2}")
    A(f"v_add_f32 v{B+4}, v{B+4}, v{B+6}")
    A(f"v_add_f32 {vT[1]}, v{B}, v{B+4}")
    A.rb(vT[2], vT[1])
    A(f"v_cvt_pk_bf16_f32 {vT[3]}, {vT[1]}, {vT[1]}")
    A(f"v_sub_f32 {vT[2]}, {vT[1]}, {vT[2]}")
    A(f"ds_write_b32 {vA1}, {vT[3]} offset:{L_PH}")
    A(f"v_cvt_pk_bf16_f32 {vT[2]}, {vT[2]}, {vT[2]}")
    A(f"ds_write_b32 {vA1}, {vT[2]} offset:{L_PH + 768}")
    A("s_waitcnt lgkmcnt(0)")
    A.label("L_o3")
    A("s_barrier")
    for k in range(3):
        A(f"ds_read_b128 v[{O+4*k}:{O+4*k+3}], {vQ0} offset:{L_PH + 128*k}")
    BO = R0
    YD = R0 + 48
    def yout(c):
        for r in range(4):
            A(f"v_add_f32_dpp v{YD+4*c+r}, v{YD+4*c+r}, v{YD+4*c+r} row_ror:8 row_mask:0xf bank_mask:0xf")
        A.setexec(M_LO)
        A(f"ds_write_b128 {vAY}, v[{YD+4*c}:{YD+4*c+3}] offset:{L_YP + c*512}")
        A.setexec(ALL)
    def omfma(rg, c):
        n = rg * 5 + c
        cc = "0" if rg == 0 else f"v[{YD+4*c}:{YD+4*c+3}]"
        vq.wait(("wo", n))
        A(f"v_mfma_f32_16x16x32_bf16 v[{YD+4*c}:{YD+4*c+3}], a[{4*n}:{4*n+3}], v[{BO+4*rg}:{BO+4*rg+3}], {cc}")
    ands = [(rg, r) for rg in range(12) for r in range(4)]
    def oand():
        if ands:
            rg, r = ands.pop(0)
            if r == 0 and rg % 4 == 0:
                A(f"s_waitcnt lgkmcnt({2 - rg//4})")
            A(f"v_and_b32 v{BO+4*rg+r}, v{O+rg}, {vM[r]}")
    for _ in range(6): oand()
    for rg in range(NR):
        for c in range(5):
            omfma(rg, c)
            oand(); oand()
    while ands: oand()
    A("s_nop 1")
    for c in range(5):
        for rg in range(NR, 12):
            omfma(rg, c)
        if c > 0:
            yout(c - 1)
    A("s_nop 1")
    yout(4)
    A("s_waitcnt lgkmcnt(0)")
    A("s_barrier")
    st()
    for k in range(2):
        for w in range(4):
            A(f"ds_read_b32 v{O+4*k+w}, {vYA[k]} offset:{L_YP + 2560*w}")
    A(f"s_cmp_eq_u32 {sWAVE}, 3")
    A("s_cbranch_scc1 L_two")
    for w in range(4):
        A(f"ds_read_b32 v{O+8+w}, {vYA[2]} offset:{L_YP + 2560*w}")
    A("s_waitcnt lgkmcnt(0)")
    A(f"v_add_f32 v{O+8}, v{O+8}, v{O+9}")
    A(f"v_add_f32 v{O+10}, v{O+10}, v{O+11}")
    A(f"v_add_f32 v{O+8}, v{O+8}, v{O+10}")
    A(f"v_and_or_b32 v{O+8}, v{O+8}, {vMK[1]}, {vCNT}")
    A(f"buffer_atomic_add_f32 v{O+8}, {vA1}, s[{sWS}:{sWS+3}], {sWQOFF} offen offset:{WS_ACC + 2048}")
    A.label("L_two")
    A("s_waitcnt lgkmcnt(0)")
    for k in range(2):
        A(f"v_add_f32 v{O+4*k}, v{O+4*k}, v{O+4*k+1}")
        A(f"v_add_f32 v{O+4*k+2}, v{O+4*k+2}, v{O+4*k+3}")
    for k in range(2):
        A(f"v_add_f32 v{O+4*k}, v{O+4*k}, v{O+4*k+2}")
    for k in range(2):
        A(f"v_and_or_b32 v{O+4*k}, v{O+4*k}, {vMK[0]}, {vCNT}")
        A(f"buffer_atomic_add_f32 v{O+4*k}, {vA1}, s[{sWS}:{sWS+3}], {sWQOFF} offen offset:{WS_ACC + 1024*k}")
    st()
    A(f"s_cmp_lg_u32 {sWAVE}, 3")
    A("s_cbranch_scc1 L_done")
    A("s_waitcnt vmcnt(2)")
    A(f"v_readfirstlane_b32 {sT0}, {vZ}")
    A(f"s_cmp_lg_u32 {sT0}, 0")
    A("s_cbranch_scc1 L_done")
    H = R0
    HN = R0 + 12
    G = R0 + 24
    X = R0 + 36
    XO = R0 + 48
    T1 = R0 + 60
    T2 = R0 + 66
    TB = R0 + 72
    h = [f"v{H+n}" for n in range(11)]
    hn = [f"v{HN+n}" for n in range(11)]
    A("s_load_dwordx2 s[8:9], s[0:1], 0")
    A(f"s_mul_i32 {sT0}, {sB}, 1280")
    A.srd_off(sOUT, 20, sT0, 1280)
    A(f"v_lshlrev_b32 {vT[1]}, 8, {vLANE}")
    A(f"s_movk_i32 {sT1}, {WS_TD}")
    def tdload():
        for k in range(4):
            A(f"buffer_load_dword v{ML+k}, {vT[1]}, s[{sWS}:{sWS+3}], {sT1} offen offset:{k*64} sc1")
    tdload()
    A(f"v_lshrrev_b32 {vT[0]}, 4, {vLANE}")
    A(f"v_mul_u32_u24 {vT[0]}, 15, {vT[0]}")
    A(f"v_and_b32 {vT[2]}, 15, {vLANE}")
    A(f"v_add_lshl_u32 {vT[0]}, {vT[0]}, {vT[2]}, 1")
    A(f"v_cmp_eq_u32 vcc, 15, {vT[2]}")
    A(f"v_mov_b32 {vT[2]}, 0x10000")
    A(f"v_mov_b32 {vMK[1]}, 0")
    A(f"v_cndmask_b32 {vT[0]}, {vT[0]}, {vT[2]}, vcc")
    A.setexec(M_D10)
    A(f"v_mov_b32 {vMK[1]}, -1")
    A.setexec(ALL)
    A(f"v_mov_b32 {vQ0}, {vMK[1]}")
    for r in list(range(G, G + 12)) + list(range(X, X + 12)) + list(range(T1, T1 + 12)) + [H + 11]:
        A(f"v_mov_b32 v{r}, 0")
    A("s_waitcnt lgkmcnt(0)")
    A.srd_off(sX, 8, sT0, 1280)
    for n in range(11):
        A(f"buffer_load_short_d16_hi v{X+n}, {vT[0]}, s[{sX}:{sX+3}], 0 offen offset:{n*120}")
    A("s_waitcnt vmcnt(11)")
    A(f"s_mov_b32 {sSPIN}, {SPIN}")
    A.label("L_tdchk")
    for k in range(4):
        A(f"v_xor_b32 v{ML+k}, {sTAG}, v{ML+k}")
    A(f"v_or3_b32 v{ML}, v{ML}, v{ML+1}, v{ML+2}")
    A(f"v_or_b32 v{ML}, v{ML}, v{ML+3}")
    A(f"v_cmp_ne_u32 vcc, 0, v{ML}")
    A("s_nop 1")
    A("s_cmp_eq_u64 vcc, 0")
    A("s_cbranch_scc1 L_tdok")
    A(f"s_sub_u32 {sSPIN}, {sSPIN}, 1")
    A(f"s_cmp_eq_u32 {sSPIN}, 0")
    A("s_cbranch_scc1 L_tdok")
    A("s_sleep 8")
    tdload()
    A("s_waitcnt vmcnt(0)")
    A("s_branch L_tdchk")
    A.label("L_tdok")
    A(f"v_lshlrev_b32 {vT[1]}, 4, {vLANE}")
    for k in range(16):
        if k % 4 == 0: A(f"s_mov_b32 {sT0}, {WS_TAB + k*1024}")
        A(f"buffer_load_dwordx4 v[{TB+4*k}:{TB+4*k+3}], {vT[1]}, s[{sWS}:{sWS+3}], {sT0} offen offset:{(k%4)*1024} sc1")
    A(f"v_mov_b32 {vZ}, {sTAG}")
    A(f"s_mov_b32 {sT1}, {WS_EP}")
    A.setexec(1)
    A(f"buffer_store_dword {vZ}, {vT[4]}, s[{sWS}:{sWS+3}], {sT1} offen sc1")
    A.setexec(ALL)
    A(f"v_add_u32 {vT[2]}, 0x10000, {vT[1]}")
    A("s_waitcnt vmcnt(1)")
    for k in range(16):
        if k == 8: A("s_waitcnt lgkmcnt(0)")
        A(f"ds_write_b128 {vT[1] if k < 8 else vT[2]}, v[{TB+4*k}:{TB+4*k+3}] offset:{L_SC + (k%8)*1024}")
    A(f"v_lshlrev_b32 {vT[1]}, 2, {vLANE}")
    A(f"s_mov_b32 {sSPIN}, {SPIN}")
    A(f"s_mov_b32 s4, 0x80008000")
    st()
    A.label("L_poll")
    for n in range(11):
        A(f"buffer_load_dword {h[n]}, {vT[1]}, s[{sWS}:{sWS+3}], {sWQOFF} offen offset:{WS_ACC + n*256} sc1")
    A(f"s_sub_u32 {sSPIN}, {sSPIN}, 1")
    A("s_waitcnt vmcnt(0) lgkmcnt(0)")
    A(f"v_min3_f32 {vT[2]}, {h[0]}, {h[1]}, {h[2]}")
    A(f"v_min3_f32 {vT[3]}, {h[3]}, {h[4]}, {h[5]}")
    A(f"v_min3_f32 {vT[2]}, {h[6]}, {h[7]}, {vT[2]}")
    A(f"v_min3_f32 {vT[3]}, {h[8]}, {h[9]}, {vT[3]}")
    A(f"v_min3_f32 {vT[2]}, {h[10]}, {vT[2]}, {vT[3]}")
    A(f"s_cmp_eq_u32 {sSPIN}, 0")
    A("s_cbranch_scc1 L_pollok")
    A(f"v_cmp_neq_f32 vcc, {F(64.0)}, {vT[2]}")
    for n in range(2):
        A.rb(h[n], h[n])
    A("s_or_b32 vcc_lo, vcc_lo, vcc_hi")
    A("s_and_b32 vcc_lo, vcc_lo, s4")
    A("s_cbranch_scc1 L_poll")
    A.label("L_pollok")
    st()
    A.setexec(M_D)
    for n in range(2, 11):
        A.rb(h[n], h[n])
    for n in range(6):
        A(f"v_pk_add_f32 v[{H+2*n}:{H+2*n+1}], v[{H+2*n}:{H+2*n+1}], v[{X+2*n}:{X+2*n+1}]")
    for n in range(11):
        A.rb(h[n], h[n])
    layernorm_seg(A, H, HN, T1, 4, True, vQ0, M_D)
    layernorm_seg(A, HN, HN, T2, 4, False, vQ0, M_D)
    for n in range(11):
        A(f"v_lshrrev_b32 v{X+n}, 15, {hn[n]}")
        A(f"ds_read_u16_d16_hi v{G+n}, v{X+n} offset:{L_SC - 25600}")
    A(f"v_bfi_b32 {hn[10]}, {vQ0}, {hn[10]}, 1.0")
    A(f"v_min3_f32 {vT[2]}, abs({hn[0]}), abs({hn[1]}), abs({hn[2]})")
    A(f"v_max3_f32 {vT[3]}, abs({hn[0]}), abs({hn[1]}), abs({hn[2]})")
    for n in range(3, 11, 2):
        A(f"v_min3_f32 {vT[2]}, abs({hn[n]}), abs({hn[n+1]}), {vT[2]}")
        A(f"v_max3_f32 {vT[3]}, abs({hn[n]}), abs({hn[n+1]}), {vT[3]}")
    A(f"v_cmp_gt_f32 vcc, {F(2.0 ** -27)}, {vT[2]}")
    A(f"v_mov_b32 {vT[2]}, {F(32.0)}")
    A(f"v_cmp_le_f32 s[4:5], {vT[2]}, {vT[3]}")
    A("s_waitcnt lgkmcnt(0)")
    A("s_or_b64 vcc, vcc, s[4:5]")
    A("s_cbranch_scc1 L_direct")
    A.label("L_lookup")
    for n in range(6):
        A(f"v_pk_add_f32 v[{G+2*n}:{G+2*n+1}], v[{G+2*n}:{G+2*n+1}], v[{H+2*n}:{H+2*n+1}]")
    for n in range(6):
        A(f"v_cvt_pk_bf16_f32 v{G+2*n}, v{G+2*n}, v{G+2*n+1}")
    for n in range(11):
        op = "buffer_store_short" if n % 2 == 0 else "buffer_store_short_d16_hi"
        A(f"{op} v{G + (n & ~1)}, {vT[0]}, s[{sOUT}:{sOUT+3}], 0 offen offset:{n*120}")
    A.setexec(ALL)
    if stamps:
        A("s_waitcnt vmcnt(0)")
        st()
        st.flush(sWS, WS_STAMP + 65536, sWAVE, vT[0], vT[1])
        if dbg:
            A("s_load_dwordx2 s[4:5], s[0:1], 88")
            A("s_waitcnt lgkmcnt(0)")
            A.srd(16, "s4", "s5", 256)
            A(f"s_lshl_b32 s6, {sB}, 4")
            A(f"v_mov_b32 {vT[1]}, 0")
            A.setexec(1)
            for k, n in enumerate((3, 4, 5, 11)):
                A(f"s_sub_u32 s7, s{76+2*n}, s76")
                A(f"v_mov_b32 {vT[0]}, s7")
                A(f"buffer_store_dword {vT[0]}, {vT[1]}, s[16:19], s6 offen offset:{4*k}")
            A.setexec(ALL)
    A.label("L_done")
    if stamps:
        st.flush(sWS, WS_STAMP, sWAVE, vT[0], vT[1])
    A.label("L_end")
    A("s_endpgm")
    A.label("L_direct")
    A.setexec(ALL)
    A(f"v_lshrrev_b32 {vT[1]}, 3, {vLANE}")
    A(f"v_mul_u32_u24 {vT[1]}, 2320, {vT[1]}")
    A(f"v_and_b32 {vT[2]}, 7, {vLANE}")
    A(f"v_mul_u32_u24 {vT[2]}, 288, {vT[2]}")
    A(f"v_add_u32 {vT[1]}, {vT[1]}, {vT[2]}")
    A(f"v_add_u32 {vT[1]}, {L_W}, {vT[1]}")
    for n in range(11):
        A(f"v_bfe_u32 {vT[2]}, {hn[n]}, 23, 8")
        A(f"v_subrev_u32 {vT[2]}, 100, {vT[2]}")
        A.setexec(M_D)
        A(f"v_cmp_le_u32 s[4:5], 32, {vT[2]}")
        A.setexec(ALL)
        A.label(f"L_dir{n}")
        A("s_nop 1")
        A("s_cmp_eq_u64 s[4:5], 0")
        A(f"s_cbranch_scc1 L_dirx{n}")
        A(f"s_ff1_i32_b64 {sT0}, s[4:5]")
        A(f"v_readlane_b32 {sT1}, {hn[n]}, {sT0}")
        A(f"s_call_b64 s[6:7], L_eval")
        A(f"v_cmp_eq_u32 vcc, {sT1}, {hn[n]}")
        A("s_nop 1")
        A(f"v_cndmask_b32 v{G+n}, v{G+n}, v{TACC}, vcc")
        A("s_andn2_b64 s[4:5], s[4:5], vcc")
        A(f"s_branch L_dir{n}")
        A.label(f"L_dirx{n}")
    A.setexec(M_D)
    A("s_branch L_lookup")
    A.label("L_eval")
    A("s_nop 1")
    A(f"v_mov_b32 v{TX}, {sT1}")
    A(f"v_mov_b32 v{TX+1}, {sT1}")
    A(f"v_mov_b32 v{TACC}, 0")
    A(f"v_mov_b32 v{TACC+1}, 0")
    A(f"v_mov_b32 {vTA}, {vT[1]}")
    A("s_waitcnt lgkmcnt(0)")
    tab_reads()
    for _ in range(3):
        A(f"s_call_b64 s[{sRET}:{sRET+1}], L_tab")
    A(f"v_add_f32 v{TACC}, v{TACC}, v{TACC+1}")
    A.wave_red("add", f"v{TACC}", sT0)
    A(f"v_mov_b32 v{TACC}, {sT0}")
    tab_finish(f"v{TACC}")
    A(f"v_and_b32 v{TACC}, 0xffff0000, v{TACC}")
    A("s_setpc_b64 s[6:7]")
    A.label("L_tab")
    A("s_waitcnt lgkmcnt(0)")
    def P(r): return f"v[{r}:{r+1}]"
    W1, B1, W2 = TW, TW + 8, TW + 16
    for p in range(4): A(f"v_pk_mul_f32 {P(W1+2*p)}, {P(TX)}, {P(W1+2*p)}")
    for k in range(8): A.rb(f"v{W1+k}", f"v{W1+k}")
    for p in range(4): A(f"v_pk_add_f32 {P(W1+2*p)}, {P(W1+2*p)}, {P(B1+2*p)}")
    for k in range(8): A.rb(f"v{W1+k}", f"v{W1+k}")
    for p in range(4): A(f"v_pk_mul_f32 {P(B1+2*p)}, {P(W1+2*p)}, {P(W1+2*p)}")
    for p in range(4): A(f"v_pk_fma_f32 {P(B1+2*p)}, {P(B1+2*p)}, {P(TK1)}, s[{sK0}:{sK0+1}]")
    for p in range(4): A(f"v_pk_mul_f32 {P(B1+2*p)}, {P(B1+2*p)}, {P(W1+2*p)}")
    for k in range(8): A(f"v_exp_f32 v{B1+k}, v{B1+k}")
    for p in range(4): A(f"v_pk_add_f32 {P(B1+2*p)}, {P(B1+2*p)}, s[{sONE}:{sONE+1}]")
    for k in range(8): A(f"v_rcp_f32 v{B1+k}, v{B1+k}")
    for p in range(4): A(f"v_pk_mul_f32 {P(W1+2*p)}, {P(W1+2*p)}, {P(B1+2*p)}")
    for k in range(8): A.rb(f"v{W1+k}", f"v{W1+k}")
    for p in range(4): A(f"v_pk_fma_f32 {P(TACC)}, {P(W1+2*p)}, {P(W2+2*p)}, {P(TACC)}")
    tab_reads()
    A(f"s_setpc_b64 s[{sRET}:{sRET+1}]")
    acc = (NV + 3) // 4 * 4
    return A.text() + kd(KN, acc + 240, 102, acc)

if __name__ == "__main__":
    kw = eval("dict(%s)" % (sys.argv[2] if len(sys.argv) > 2 else ""))
    open(sys.argv[1], "w").write(gen(**kw))
```

```python
import sys
from asmlib import *

KN = "sequential_preLN__mha_block_cached__mixer_token_mlp__decode_kernel"
HDR = open("sequential_preLN__mha_block_cached__mixer_token_mlp__decode.s.ref").read().split("; Override launch")[0]
LOG2E = 1.4426950408889634
WS_ACC, WS_CNT, WS_ZEND = 0, 12288, 16384
WS_ML = 49152
WS_TD = 28672
WS_EP = 45056
WS_ZF = 45312
WS_TAB = 65536
WS_STAMP = 524288
WS_QP = 1 << 20
WS_SIZE = 2 << 20
L_XN = 0
L_P = 10240
L_QB = L_P + 6144
L_PH = L_QB + 512
L_W = L_PH + 1536
L_TP = L_W + 8 * 2320
L_YP = L_TP + 128
L_SC = L_YP + 10240
L_QS = L_SC + 8192
L_WQ = L_QS + 3072
L_END = L_SC + 65536 + 8192
M_D, M_D10 = 0x7FFF7FFF7FFF7FFF, 0x000003FF7FFF7FFF
M_LO, M_HI, M_T1 = 0x00FF00FF00FF00FF, 0xFF00FF00FF00FF00, 0xFF00FF0000FF00FF
ALL = (1 << 64) - 1
SPIN = 0x100000

class Stamps:
    def __init__(self, A, on, s0): self.A = A; self.on = on; self.s0 = s0; self.n = 0
    def __call__(self):
        if self.on:
            s = self.s0 + 2 * self.n
            self.A(f"s_memrealtime s[{s}:{s+1}]")
            self.n += 1
    def flush(self, srd, base, swave, v0, v1):
        if not self.on: return
        A = self.A
        A("s_waitcnt lgkmcnt(0)")
        A("s_lshl_b32 s6, s2, 2")
        A(f"s_add_u32 s6, s6, {swave}")
        A("s_lshl_b32 s6, s6, 6")
        A(f"s_add_u32 s6, s6, {base}")
        A(f"v_mov_b32 {v1}, 0")
        A.setexec(1)
        for n in range(self.n):
            A(f"v_mov_b32 {v0}, s{self.s0 + 2*n}")
            A(f"buffer_store_dword {v0}, {v1}, s[{srd}:{srd+3}], s6 offen offset:{4*n}")
        A("s_getreg_b32 s7, hwreg(HW_REG_XCC_ID)")
        A(f"v_mov_b32 {v0}, s7")
        A(f"buffer_store_dword {v0}, {v1}, s[{srd}:{srd+3}], s6 offen offset:60")
        A(f"v_mov_b32 {v0}, s51")
        A(f"buffer_store_dword {v0}, {v1}, s[{srd}:{srd+3}], s6 offen offset:56")
        A.setexec(ALL)

class VQ:
    CAP = 54
    CLASS = False
    def __init__(self, A): self.A = A; self.q = []; self.frac = 0.0
    def room(self, n):
        cap = int(self.CAP)
        self.frac += self.CAP - cap
        if self.frac >= 1.0 - 1e-9:
            self.frac -= 1.0; cap += 1
        if len(self.q) > cap - n:
            self.A(f"s_waitcnt vmcnt({cap - n})")
            self.q = self.q[len(self.q) - (cap - n):]
    def op(self, text, tag, nocap=False):
        if nocap:
            self.A(text); self.q.append(tag); return
        cap = int(self.CAP)
        self.frac += self.CAP - cap
        if self.frac >= 1.0 - 1e-9:
            self.frac -= 1.0; cap += 1
        if self.CLASS and cap < 40:
            idx = [i for i, t in enumerate(self.q) if not (isinstance(t, tuple) and t[0] == "wo")]
            if len(idx) >= cap:
                pos = idx[len(idx) - cap]
                self.A(f"s_waitcnt vmcnt({len(self.q) - 1 - pos})")
                self.q = self.q[pos + 1:]
        elif len(self.q) >= cap:
            self.A(f"s_waitcnt vmcnt({cap - 1})")
            self.q = self.q[-(cap - 1):]
        self.A(text)
        self.q.append(tag)
    def wait(self, tag):
        if tag not in self.q: return
        pos = len(self.q) - 1 - self.q[::-1].index(tag)
        self.A(f"s_waitcnt vmcnt({len(self.q) - 1 - pos})")
        self.q = self.q[pos + 1:]

def gen(T=12, ext=4, rot=13, wo_start=0, stamps=False, kf='nt', vf='nt', wf='nt', tab_start=20,
        n1=5, n1b=1, n1c=1, n2=4, capk=8, capv=6, caph=6, wo_rate=1.0, dbg=False, BL=0, pmul=1, tlb=0, st0=False, wo_late=0, cape=54, lift=4, liftcap=54, poll2=False, tabrot=False, rh=(56,48,48), burst=False, order=(0,1,2), eplate=False, wo2=0, cap0=54, nowo=False, notab=False, noend=False, wosame=False, wob=0, wobcap=True, ccap=False, hb=0, bb_=0, ml_at=28, fc_at=36, ost=None, osf='', wopre=None, wof=None):
    if wof is None: wof = wf
    VQ.CLASS = ccap
    if dbg: stamps = True
    A = Asm()
    A.raw(HDR.rstrip())
    A.raw(f"; @launch grid=(256,1,1) block=(256,1,1) lds={L_END}")
    A.raw('.amdgcn_target "amdgcn-amd-amdhsa--gfx950"')
    A.raw(".text")
    A.raw(f".globl {KN}")
    st = Stamps(A, stamps, 76)
    NT = 64
    STEP = 12288
    REGION = 786432
    sX, sK, sV, sWQ, sWO, sWS = 24, 28, 32, 36, 40, 44
    sOUT = 36
    sTAG, sBS, sQG, sRETRY = "s48", "s49", "s50", "s51"
    sWAVE, sB, sH, sHALF, sBH, sT0, sT1 = "s52", "s53", "s54", "s55", "s56", "s57", "s58"
    sKREL, sVREL, sWB, sOFF, sWQOFF, sWOOFF, sM, sL, sF, sSPIN = "s59", "s60", "s61", "s62", "s63", "s64", "s65", "s66", "s67", "s68"
    sB2, sTB, sJMP = "s69", "s3", "s101"
    sK0, sONE, sRET = 70, 72, 74
    sFP, sMK, sTK = 8, 10, "s16"
    vLANE, vKO, vVO, vQ0, vQ1, vQ2, vWO = "v1", "v2", "v3", "v4", "v5", "v6", "v7"
    vM = ["v8", "v9", "v10", "v11"]
    vA0, vA1, vAY, vSC, vXN, vMAX, vZ = "v12", "v13", "v14", "v15", "v16", "v17", "v18"
    vT = [f"v{i}" for i in range(19, 24)]
    QB = 24
    D = 36
    O = 40
    B = 52
    ML = 60
    TW = 64
    TX, TACC, TK1 = 88, 90, 92
    vTA = "v94"
    XS = 95
    vYA = [vQ1, vQ2, vXN]; vCNT = vMAX; vMK = [f"v{TX}", f"v{TX+1}"]
    R0 = 100
    NV = R0 + 12 * T
    AW = 204
    assert NV <= 256 and ext * 12 <= AW
    vq = VQ(A)

    A.raw(".p2align 8")
    A.raw(f".type {KN},@function")
    A.label(KN)
    A("s_cmp_ge_u32 s2, 256")
    A("s_cbranch_scc1 L_end")
    st()
    A("s_load_dwordx8 s[8:15], s[0:1], 0")
    A("s_load_dwordx2 s[16:17], s[0:1], 32")
    A("s_load_dwordx2 s[22:23], s[0:1], 96")
    A(f"v_lshrrev_b32 {vT[0]}, 6, v0")
    A(f"v_and_b32 {vLANE}, 63, v0")
    A(f"v_readfirstlane_b32 {sWAVE}, {vT[0]}")
    A(f"s_and_b32 {sH}, s2, 7")
    A(f"s_lshr_b32 {sT0}, s2, 3")
    A(f"s_lshl_b32 {sH}, {sH}, 2")
    A(f"s_and_b32 {sT1}, {sT0}, 3")
    A(f"s_add_u32 {sH}, {sH}, {sT1}")
    A(f"s_lshr_b32 {sBS}, {sT0}, 2")
    A(f"s_lshr_b32 {sB}, {sT0}, 3")
    A(f"s_and_b32 {sHALF}, {sBS}, 1")
    A(f"s_lshl_b32 {sBH}, {sB}, 5")
    A(f"s_add_u32 {sBH}, {sBH}, {sH}")
    q, i, t0, t1 = vT[0], vT[1], vT[2], vT[3]
    A(f"v_lshrrev_b32 {q}, 4, {vLANE}")
    A(f"v_and_b32 {i}, 15, {vLANE}")
    A(f"v_lshrrev_b32 {t0}, 2, {i}")
    A(f"v_mul_u32_u24 {vKO}, 768, {t0}")
    A(f"v_lshl_add_u32 {vKO}, {q}, 6, {vKO}")
    A(f"v_and_b32 {t0}, 3, {i}")
    A(f"v_lshl_add_u32 {vKO}, {t0}, 4, {vKO}")
    A(f"v_mul_u32_u24 {vVO}, 768, {q}")
    A(f"v_lshl_add_u32 {vVO}, {i}, 4, {vVO}")
    A(f"v_mul_u32_u24 {vQ0}, 24576, {q}")
    A(f"v_lshl_add_u32 {vQ0}, {i}, 4, {vQ0}")
    A(f"v_add_u32 {vQ1}, 256, {vQ0}")
    A(f"v_add_u32 {vQ2}, {12288-128}, {vQ0}")
    A(f"v_cmp_gt_u32 vcc, 8, {i}")
    A(f"v_mul_u32_u24 {vWO}, 1280, {q}")
    A(f"v_lshl_add_u32 {vWO}, {i}, 4, {vWO}")
    A(f"v_cndmask_b32 {vQ1}, {vQ2}, {vQ1}, vcc")
    A(f"v_add_u32 {vQ2}, {12288+128}, {vQ0}")
    for r in range(O, O + 12):
        A(f"v_mov_b32 v{r}, 0")
    A(f"v_lshlrev_b32 {t0}, 4, v0")
    A(f"v_lshlrev_b32 {t1}, 2, {vLANE}")
    A(f"s_lshl_b32 {sT1}, {sBH}, 1")
    A(f"s_add_u32 {sT1}, {sT1}, {sHALF}")
    if rh is None:
        A(f"s_mul_i32 {sKREL}, {sT1}, {rot}")
    else:
        A(f"s_mul_i32 {sKREL}, {sHALF}, {rh[0]}")
        A(f"s_mul_i32 {sT0}, {sH}, {rh[1]}")
        A(f"s_add_u32 {sKREL}, {sKREL}, {sT0}")
        A(f"s_mul_i32 {sT0}, {sB}, {rh[2]}")
        A(f"s_add_u32 {sKREL}, {sKREL}, {sT0}")
    A(f"s_and_b32 {sKREL}, {sKREL}, 63")
    A(f"s_mov_b32 {sVREL}, {sKREL}")
    if BL:
        A(f"s_mul_i32 {sJMP}, {sT1}, {pmul}")
        A(f"s_lshr_b32 {sJMP}, {sJMP}, 2")
        A(f"s_lshl_b32 {sJMP}, {sJMP}, 1")
        A(f"s_mul_i32 {sJMP}, {sJMP}, {BL}")
        A(f"s_add_u32 {sJMP}, {sJMP}, 1")
    A(f"s_mul_i32 {sT1}, {sT1}, {REGION}")
    A(f"s_mul_i32 {sWB}, {sWAVE}, 3072")
    A(f"s_mul_i32 {sOFF}, {sBS}, {80*12288}")
    A(f"s_mul_i32 {sT0}, {sH}, 384")
    A(f"s_add_u32 {sOFF}, {sOFF}, {sT0}")
    A(f"s_mul_i32 {sWQOFF}, {sWAVE}, {8*12288}")
    A(f"s_lshr_b32 {sT0}, {sWAVE}, 1")
    A(f"s_mul_i32 {sWOOFF}, {sT0}, {96*1280}")
    A(f"s_and_b32 {sT0}, {sWAVE}, 1")
    A(f"s_mul_i32 {sT0}, {sT0}, {4*1280}")
    A(f"s_add_u32 {sWOOFF}, {sWOOFF}, {sT0}")
    A(f"s_mul_i32 {sT0}, {sWAVE}, 1280")
    A(f"s_mov_b32 {sRETRY}, 0")
    A("s_waitcnt lgkmcnt(0)")
    if st0: st()
    if tabrot:
        A("s_load_dwordx2 s[4:5], s[0:1], 40")
        A("s_lshl_b32 s6, s2, 2")
        A("s_waitcnt lgkmcnt(0)")
        A(f"s_load_dword {sKREL}, s[4:5], s6")
        A("s_waitcnt lgkmcnt(0)")
        A(f"s_and_b32 {sKREL}, {sKREL}, 63")
        A(f"s_mov_b32 {sVREL}, {sKREL}")
    A.srd_off(sX, 8, sT0, 1280)
    for n in range(5):
        vq.op(f"buffer_load_dword v{XS+n}, {t1}, s[{sX}:{sX+3}], 0 offen offset:{n*256}", "x")
    A.srd_off(sWQ, 14, sOFF, 79 * 12288 + 384)
    for k in range(3):
        for t, o in enumerate((vQ0, vQ1, vQ2)):
            r = AW + k * 12 + t * 4
            vq.op(f"buffer_load_dwordx4 a[{r}:{r+3}], {o}, s[{sWQ}:{sWQ+3}], {sWQOFF} offen {wf}", "wq")
        if k < 2: A(f"s_add_u32 {sWQOFF}, {sWQOFF}, {32*12288}")
    A.srd_off(sK, 10, sT1, REGION)
    A.srd_off(sV, 12, sT1, REGION)
    A(f"s_mul_i32 {sT0}, {sH}, 245760")
    A.srd_off(sWO, 16, sT0, 245760)
    A.srd(sWS, "s22", "s23", WS_SIZE)
    A("s_load_dwordx8 s[8:15], s[0:1], 48")
    A("s_load_dwordx2 s[20:21], s[0:1], 80")
    if not eplate: A(f"s_load_dword {sTAG}, s[22:23], {WS_EP}")

    def treg(slot, t):
        if slot < T:
            r = R0 + slot * 12 + t * 4
            return f"v[{r}:{r+3}]"
        r = (slot - T) * 12 + t * 4
        return f"a[{r}:{r+3}]"
    def ld_tile(slot, isv, n):
        rel, srd, off = (sVREL, sV, vVO) if isv else (sKREL, sK, vKO)
        A(f"s_mul_i32 {sOFF}, {rel}, {STEP}")
        A(f"s_add_u32 {sOFF}, {sOFF}, {sWB}")
        if burst: vq.room(3)
        for t in order:
            vq.op(f"buffer_load_dwordx4 {treg(slot, t)}, {off}, s[{srd}:{srd+3}], {sOFF} offen offset:{t*256} {vf if isv else kf}", ("v" if isv else "k", n), nocap=burst)
        A(f"s_add_u32 {rel}, {rel}, {sJMP if (BL and (n + 1) % BL == 0) else 1}")
        A(f"s_and_b32 {rel}, {rel}, 63")
    def ld_wo(n):
        rg, c = divmod(n, 5)
        if nowo:
            A("s_nop 0"); return
        A(f"s_add_u32 {sOFF}, {sWOOFF}, {0 if wosame else rg*8*1280}")
        vq.op(f"buffer_load_dwordx4 a[{4*n}:{4*n+3}], {vWO}, s[{sWO}:{sWO+3}], {sOFF} offen offset:{c*256} {wof}", ("wo", n), nocap=not wobcap)
    kis = [0]
    def head_k(n):
        for _ in range(n):
            if kis[0] < T + ext:
                ld_tile(kis[0], False, kis[0]); kis[0] += 1
    if wopre is not None:
        A(f"s_mul_i32 {sOFF}, {sBS}, 30720")
        A(f"s_mul_i32 {sT0}, {sWAVE}, 7680")
        A(f"s_add_u32 {sOFF}, {sOFF}, {sT0}")
        A(f"v_lshlrev_b32 {vZ}, 4, {vLANE}")
        for k in range(8):
            if k == 4: A(f"s_add_u32 {sOFF}, {sOFF}, 4096")
            if k == 7: A.setexec(0xffffffff)
            vq.op(f"buffer_load_dwordx4 a[{160+4*k}:{163+4*k}], {vZ}, s[{sWO}:{sWO+3}], {sOFF} offen offset:{(k%4)*1024} {wopre}", "wop")
        A.setexec(ALL)
    head_k(1)
    A("s_cmp_lg_u32 s2, 0")
    A("s_cbranch_scc1 L_nozero")
    for n in range(WS_ZEND // 4096):
        A(f"s_movk_i32 {sT0}, {n*4096}")
        A(f"buffer_store_dwordx4 v[{O}:{O+3}], {t0}, s[{sWS}:{sWS+3}], {sT0} offen sc1")
    A.label("L_nozero")
    A("s_waitcnt lgkmcnt(0)")
    sW = 16
    for ptr, dst in ((8, B), (10, B + 4), (12, D)):
        A.srd(sW, f"s{ptr}", f"s{ptr+1}", 3072)
        vq.op(f"buffer_load_dwordx4 v[{dst}:{dst+3}], {t0}, s[{sW}:{sW+3}], 0 offen", "mw")
    A(f"s_load_dword {sB2}, s[14:15], 0")
    def mktag():
        A(f"s_mul_i32 {sTAG}, {sTAG}, 0x2c9277b5")
        A(f"s_add_u32 {sTAG}, {sTAG}, 0x7f4a7c15")
    if eplate: A(f"s_load_dword {sTAG}, s[22:23], {WS_EP}")
    else: mktag()
    jl = vT[2]
    A(f"v_and_b32 {jl}, 7, {vLANE}")
    A(f"v_and_b32 {t1}, 1, {vLANE}")
    A(f"v_cmp_eq_u32 vcc, 1, {t1}")
    A(f"v_mov_b32 {vT[4]}, 0xffff")
    A(f"v_mov_b32 {vM[3]}, 0xffff0000")
    A(f"v_cndmask_b32 {vT[4]}, {vT[4]}, {vM[3]}, vcc")
    A(f"v_lshrrev_b32 {t1}, 1, {jl}")
    for r in range(4):
        A(f"v_cmp_eq_u32 vcc, {r}, {t1}")
        A("s_nop 1")
        A(f"v_cndmask_b32 {vM[r]}, 0, {vT[4]}, vcc")
    A(f"v_lshl_add_u32 {vAY}, {q}, 3, {jl}")
    A(f"v_lshlrev_b32 {vAY}, 4, {vAY}")
    A(f"s_mul_i32 {sT0}, {sWAVE}, 1536")
    A(f"v_add_u32 {vA0}, {sT0}, {vAY}")
    A(f"s_mul_i32 {sT0}, {sWAVE}, 2560")
    A(f"v_add_u32 {vAY}, {sT0}, {vAY}")
    A(f"v_lshrrev_b32 {t1}, 3, {vLANE}")
    A(f"s_mul_i32 {sT1}, {sBS}, 320")
    A(f"s_add_u32 {sT0}, {sT0}, {sT1}")
    A(f"v_lshl_add_u32 {vXN}, {t1}, 2, {sT0}")
    A(f"s_lshl_b32 {sT0}, {sWAVE}, 11")
    A(f"s_add_u32 {sT0}, {sT0}, {L_SC}")
    A(f"v_lshl_add_u32 {vSC}, {t1}, 2, {sT0}")
    A(f"v_mov_b32 {vMAX}, 0xff800000")
    A(f"v_lshlrev_b32 {vA1}, 2, v0")
    A(f"s_lshl_b32 {sT0}, s2, 2")
    A(f"s_add_u32 {sT0}, {sT0}, {sWAVE}")
    A(f"s_lshr_b32 {sT1}, {sT0}, 9")
    A(f"s_lshl_b32 {sT1}, {sT1}, 15")
    A(f"s_and_b32 {sT0}, {sT0}, 511")
    A(f"s_lshl_b32 {sT0}, {sT0}, 3")
    A(f"s_add_u32 {sT0}, {sT0}, 12800")
    A(f"s_or_b32 {sTB}, {sT0}, {sT1}")
    A(f"v_add_lshl_u32 v{TX}, {jl}, {sTB}, 16")
    A(f"v_mov_b32 v{TX+1}, v{TX}")
    A(f"v_mov_b32 v{TACC}, 0")
    A(f"v_mov_b32 v{TACC+1}, 0")
    K0 = -2.0 * 0.7978845608028654 * LOG2E
    A(f"v_mov_b32 v{TK1}, {F(K0 * 0.044715)}")
    A(f"v_mov_b32 v{TK1+1}, {F(K0 * 0.044715)}")
    A(f"s_mov_b32 s{sK0}, {F(K0)}")
    A(f"s_mov_b32 s{sK0+1}, {F(K0)}")
    A(f"s_mov_b32 s{sONE}, 1.0")
    A(f"s_mov_b32 s{sONE+1}, 1.0")
    A(f"v_mul_u32_u24 {vTA}, 2320, {t1}")
    A(f"v_add_u32 {vTA}, {L_W}, {vTA}")
    vq.CAP = cap0
    head_k(n1 - 1)
    vq.wait("x")
    if not st0: st()
    for n in range(5):
        A(f"v_lshlrev_b32 v{TW+2*n}, 16, v{XS+n}")
        A(f"v_and_b32 v{TW+2*n+1}, 0xffff0000, v{XS+n}")
    layernorm_fast(A, TW, QB, TW + 10, 4, True)
    A(f"s_mul_i32 {sT0}, {sWAVE}, 2560")
    A(f"v_lshl_add_u32 {vT[2]}, {vLANE}, 3, {sT0}")
    for n in range(10):
        A(f"v_cvt_pk_bf16_f32 v{QB+n}, v{QB+n}, v{QB+n}")
    for n in range(5):
        A(f"ds_write_b64 {vT[2]}, v[{QB+2*n}:{QB+2*n+1}] offset:{L_XN + n*512}")
    A(f"v_lshlrev_b32 {vZ}, 4, {vLANE}")
    A(f"v_add_u32 {vT[2]}, {sWB}, {vZ}")
    vq.wait("wq")
    A("s_waitcnt lgkmcnt(0)")
    if eplate: mktag()
    A(f"v_add_u32 {vT[2]}, {L_WQ}, {vT[2]}")
    for k in range(3):
        for t in range(3):
            r = AW + k * 12 + t * 4
            A(f"ds_write_b128 {vT[2]}, a[{r}:{r+3}] offset:{k*12288 + t*1024}")
    head_k(n1b)
    vq.wait("mw")
    A("s_waitcnt lgkmcnt(0)")
    A(f"s_cmp_eq_u32 {sWAVE}, 3")
    A("s_cbranch_scc1 L_now")
    for k, src in enumerate((B, B + 4, D)):
        for n in range(4):
            A(f"v_lshlrev_b32 v{TW+8*k+2*n}, 16, v{src+n}")
            A(f"v_and_b32 v{TW+8*k+2*n+1}, 0xffff0000, v{src+n}")
    A(f"v_mul_u32_u24 {vT[3]}, 2731, v0")
    A(f"v_mul_u32_u24 {vT[2]}, 96, v0")
    A(f"v_lshrrev_b32 {vT[3]}, 16, {vT[3]}")
    A(f"v_lshl_add_u32 {vT[2]}, {vT[3]}, 4, {vT[2]}")
    A(f"v_mov_b32 {vT[3]}, 0")
    A(f"ds_write_b32 {vT[3]}, {vT[3]} offset:{L_TP + 64}")
    for k in range(6):
        A(f"ds_write_b128 {vT[2]}, v[{TW+4*k}:{TW+4*k+3}] offset:{L_W + 16*k}")
    A("s_waitcnt lgkmcnt(0)")
    A.label("L_now")
    for n in range(10):
        A(f"ds_read_b32 v{QB+n}, {vXN} offset:{L_XN + n*32}")
    A(f"v_add_u32 {vT[2]}, {L_WQ}, {vZ}")
    A(f"v_mov_b32 {vT[4]}, 0")
    A("s_waitcnt lgkmcnt(0)")
    A("s_barrier")
    A(f"s_or_b32 {sT0}, s2, {sWAVE}")
    A(f"s_cmp_lg_u32 {sT0}, 0")
    A("s_cbranch_scc1 L_noflag")
    for r in range(4):
        A(f"v_mov_b32 v{ML+r}, {sTAG}")
    A(f"s_mov_b32 {sT0}, {WS_ZF}")
    A.setexec(1)
    A(f"buffer_store_dwordx4 v[{ML}:{ML+3}], {vT[4]}, s[{sWS}:{sWS+3}], {sT0} offen sc1")
    A.setexec(ALL)
    A.label("L_noflag")
    def wq_read(n):
        for t in range(3):
            r = AW + (n % 3) * 12 + t * 4
            A(f"ds_read_b128 a[{r}:{r+3}], {vT[2]} offset:{n*3072 + t*1024}")
    for n in range(3): wq_read(n)
    head_k(n1c)
    for n in range(10):
        bb = B + 4 * (n & 1)
        for r in range(4):
            A(f"v_and_b32 v{bb+r}, v{QB+n}, {vM[r]}")
        A(f"s_waitcnt lgkmcnt({3 * min(2, 9 - n)})")
        A("s_nop 0")
        for t in range(3):
            r = AW + (n % 3) * 12 + t * 4
            A(f"v_mfma_f32_16x16x32_bf16 v[{O+4*t}:{O+4*t+3}], a[{r}:{r+3}], v[{bb}:{bb+3}], v[{O+4*t}:{O+4*t+3}]")
        if n + 3 < 10:
            A("s_nop 3")
            wq_read(n + 3)
    def lds_put3():
        A.setexec(M_LO)
        A(f"ds_write_b128 {vA0}, v[{O}:{O+3}] offset:{L_P}")
        A.setexec(M_T1)
        A(f"ds_write_b128 {vA0}, v[{O+4}:{O+7}] offset:{L_P + 512}")
        A.setexec(M_HI)
        A(f"ds_write_b128 {vA0}, v[{O+8}:{O+11}] offset:{L_P + 768 + 256}")
        A.setexec(ALL)
    A(f"s_mul_i32 {sT0}, {sWAVE}, 1536")
    A(f"v_lshl_add_u32 {vT[2]}, {vLANE}, 2, {sT0}")
    A(f"s_lshl_b32 {sT0}, {sH}, 2")
    A(f"s_add_u32 {sT1}, {sT0}, {sWAVE}")
    A(f"s_lshl_b32 {sT1}, {sT1}, 3")
    A(f"s_add_u32 {sT1}, {sT1}, {sBS}")
    A(f"s_lshl_b32 {sT1}, {sT1}, 10")
    A(f"s_add_u32 {sT1}, {sT1}, {WS_QP}")
    A(f"s_add_u32 {sQG}, {sT0}, {sB}")
    A(f"s_lshl_b32 {sQG}, {sQG}, 2")
    A(f"s_add_u32 {sQG}, {sQG}, {sWAVE}")
    A(f"s_lshl_b32 {sQG}, {sQG}, 11")
    A(f"s_add_u32 {sQG}, {sQG}, {WS_QP}")
    lds_put3()
    A("s_waitcnt lgkmcnt(0)")
    for k in range(6):
        A(f"ds_read_b32 v{B+k}, {vT[2]} offset:{L_P + 256*k}")
    A(f"v_mov_b32 v{D+3}, {sTAG}")
    A("s_waitcnt lgkmcnt(0)")
    for k in range(3):
        A(f"v_add_f32 v{D+k}, v{B+k}, v{B+3+k}")
    vq.op(f"buffer_store_dwordx4 v[{D}:{D+3}], {vZ}, s[{sWS}:{sWS+3}], {sT1} offen sc1", "qst")
    st()
    vq.CAP = caph
    head_k(n2)
    def q_gather(track):
        for k in range(2):
            txt = f"buffer_load_dwordx4 v[{B+4*k}:{B+4*k+3}], {vZ}, s[{sWS}:{sWS+3}], {sQG} offen offset:{1024*k} sc1"
            if track: vq.op(txt, "qg")
            else: A(txt)
    q_gather(True)
    if tlb:
        A(f"v_lshlrev_b32 {vQ0}, 16, {vLANE}")
        A.setexec(0xfff)
        vq.op(f"buffer_load_dword v{ML}, {vQ0}, s[{sV}:{sV+3}], 0 offen nt", "tlb")
        if tlb > 1:
            vq.op(f"buffer_load_dword v{ML+1}, {vQ0}, s[{sK}:{sK+3}], 0 offen nt", "tlb")
            vq.op(f"buffer_load_dword v{ML+2}, {vQ0}, s[{sWO}:{sWO+3}], 0 offen nt", "tlb")
        A.setexec(ALL)
    head_k(T + ext - kis[0] - hb)
    vq.CAP = 54
    head_k(99)
    q, i, t0, t1 = vT[0], vT[1], vT[2], vT[3]
    A(f"v_and_b32 {t0}, 32, {vLANE}")
    A(f"v_and_b32 {t1}, 3, {vLANE}")
    A(f"v_lshl_add_u32 {t0}, {t1}, 3, {t0}")
    A(f"v_bfe_u32 {t1}, {vLANE}, 2, 3")
    A(f"v_add_lshl_u32 {vXN}, {t0}, {t1}, 1")
    A(f"s_mul_i32 {sT0}, {sWAVE}, 768")
    A(f"v_lshlrev_b32 {vQ0}, 2, {vLANE}")
    A(f"v_add_u32 {vQ1}, {sT0}, {vQ0}")
    A(f"v_and_b32 {t0}, 3, {vLANE}")
    A(f"v_lshl_add_u32 {t0}, {q}, 2, {t0}")
    A(f"v_and_b32 {t1}, 8, {vLANE}")
    A(f"v_add_lshl_u32 {vQ2}, {t0}, {t1}, 4")
    A(f"v_cmp_gt_u32 vcc, 8, {i}")
    A(f"v_add_u32 {t1}, 16, {t0}")
    A(f"v_subrev_u32 {t0}, 8, {t0}")
    A(f"v_cndmask_b32 {t0}, {t0}, {t1}, vcc")
    A(f"v_lshlrev_b32 {t0}, 4, {t0}")
    for r in range(12):
        A(f"v_mov_b32 v{QB+r}, 0")
    vq.wait("qg")
    A(f"s_mov_b32 {sSPIN}, {SPIN}")
    A.label("L_qchk")
    A(f"v_cmp_ne_u32 vcc, {sTAG}, v{B+3}")
    A(f"v_cmp_ne_u32 s[4:5], {sTAG}, v{B+7}")
    A("s_nop 1")
    A("s_or_b64 vcc, vcc, s[4:5]")
    A("s_cbranch_scc0 L_qok")
    A(f"s_sub_u32 {sSPIN}, {sSPIN}, 1")
    A(f"s_cmp_eq_u32 {sSPIN}, 0")
    A("s_cbranch_scc1 L_qok")
    A(f"s_add_u32 {sRETRY}, {sRETRY}, 1")
    A("s_sleep 2")
    q_gather(False)
    A("s_waitcnt vmcnt(0)")
    A("s_branch L_qchk")
    A.label("L_qok")
    for k in range(3):
        A(f"v_add_f32 v{B+k}, v{B+k}, v{B+4+k}")
    for k in range(3):
        A(f"ds_write_b32 {vQ1}, v{B+k} offset:{L_QS + 256*k}")
    A("s_waitcnt lgkmcnt(0)")
    A("s_barrier")
    for k in range(12):
        A(f"ds_read_b32 v{O+k}, {vQ0} offset:{L_QS + 256*k}")
    A("s_waitcnt lgkmcnt(0)")
    for k in range(3):
        A(f"v_add_f32 v{O+k}, v{O+k}, v{O+3+k}")
        A(f"v_add_f32 v{O+6+k}, v{O+6+k}, v{O+9+k}")
    for k in range(3):
        A(f"v_add_f32 v{O+k}, v{O+k}, v{O+6+k}")
    for k in range(3):
        A(f"v_cvt_pk_bf16_f32 v{O+k}, v{O+k}, v{O+k}")
    for k in range(3):
        A(f"ds_write_b16 {vXN}, v{O+k} offset:{L_QB + 128*k}")
    A("s_waitcnt lgkmcnt(0)")
    A.setexec(M_LO)
    A(f"ds_read_b128 v[{QB}:{QB+3}], {vQ2} offset:{L_QB}")
    A.setexec(M_HI)
    A(f"ds_read_b128 v[{QB+8}:{QB+11}], {vQ2} offset:{L_QB}")
    A.setexec(M_T1)
    A(f"ds_read_b128 v[{QB+4}:{QB+7}], {t0} offset:{L_QB}")
    A.setexec(ALL)
    for r in range(O, O + 12):
        A(f"v_mov_b32 v{r}, 0")
    def tab_reads():
        for k in range(6):
            A(f"ds_read_b128 v[{TW+4*k}:{TW+4*k+3}], {vTA} offset:{16*k}")
        A(f"v_add_u32 {vTA}, 96, {vTA}")
    A("s_waitcnt lgkmcnt(0)")
    tab_reads()
    ncalls = [0]
    published = [False]
    def tab_finish(dst):
        A.rb(dst, dst)
        A(f"v_add_f32 {dst}, {sB2}, {dst}")
        A(f"v_cvt_pk_bf16_f32 {dst}, {dst}, {dst}")
    def tab_publish():
        ta, tb = f"v{TACC}", f"v{TACC+1}"
        A(f"v_add_f32 {ta}, {ta}, {tb}")
        A("s_nop 1")
        A(f"v_add_f32_dpp {ta}, {ta}, {ta} row_ror:8 row_mask:0xf bank_mask:0xf")
        A(f"v_mov_b32 {tb}, {ta}")
        A("s_nop 1")
        A(f"v_permlane16_swap_b32 {ta}, {tb}")
        A(f"v_add_f32 {ta}, {ta}, {tb}")
        A(f"v_mov_b32 {tb}, {ta}")
        A("s_nop 1")
        A(f"v_permlane32_swap_b32 {ta}, {tb}")
        A(f"v_add_f32 {ta}, {ta}, {tb}")
        tab_finish(ta)
        A(f"s_lshl_b32 {sT0}, {sWAVE}, 4")
        A(f"v_lshl_add_u32 {tb}, {vLANE}, 1, {sT0}")
        A(f"s_lshl_b32 {sT1}, s2, 6")
        A(f"s_add_u32 {sT1}, {sT1}, {sT0}")
        A(f"s_add_u32 {sT1}, {sT1}, {WS_TAB}")
        A.setexec(0xff)
        A(f"ds_write_b16 {tb}, {ta} offset:{L_TP}")
        A.setexec(1)
        A("s_waitcnt lgkmcnt(0)")
        A(f"ds_read_b128 v[{TW}:{TW+3}], {tb} offset:{L_TP}")
        A("s_waitcnt lgkmcnt(0)")
        vq.op(f"buffer_store_dwordx4 v[{TW}:{TW+3}], {vT[4]}, s[{sWS}:{sWS+3}], {sT1} offen sc1", "tab")
        A.setexec(ALL)
    A(f"s_lshl_b32 {sB2}, {sB2}, 16")
    st()
    s = vT[0]
    slot_of = list(range(T + ext))
    nxt = [T + ext]
    def refill(slot):
        if slot >= T or nxt[0] >= 2 * NT: return False
        m = nxt[0]; nxt[0] += 1
        slot_of.append(slot)
        ld_tile(slot, m >= NT, m % NT)
        return True
    NR = 4
    NR = 6
    use_order = [rg * 5 + c for rg in range(NR) for c in range(5)] + [rg * 5 + c for c in range(5) for rg in range(NR, 12)]
    late = use_order[60 - wo_late:]
    wo_order = [k for k in list(range(3 * ext, 60)) + list(range(3 * ext)) if k not in late] + late
    wo_left = [60]
    if wob:
        f = -(-3 * ext // 5) * 5
        wo_order = list(range(f, 60)) + list(range(f))
    def wo_step(n):
        if wob:
            if n % wob != wob - 1 or wo_left[0] == 0: return False
            assert wo_order[60 - wo_left[0]] >= 3 * ext or n >= T + ext
            for _ in range(wob):
                ld_wo(wo_order[60 - wo_left[0]]); wo_left[0] -= 1
            return True
        if n < wo_start or wo_left[0] <= wo_late: return False
        if not wo2 and (n - wo_start + 1) * wo_rate < 60 - wo_left[0] + 1 - 1e-9: return False
        k = wo_order[60 - wo_left[0]]
        if k < 3 * ext and n % 1000 < T + k // 3: return False
        ld_wo(k); wo_left[0] -= 1
        return True
    vq.CAP = capk
    for n in range(NT):
        if n == NT - T or wo_left[0] <= wo_late: vq.CAP = capv
        if n >= NT - bb_: vq.CAP = 54
        slot = slot_of[n]
        vq.wait(("k", n))
        for tt in range(3):
            c = "0" if tt == 0 else f"v[{D}:{D+3}]"
            A(f"v_mfma_f32_16x16x32_bf16 v[{D}:{D+3}], {treg(slot, tt)}, v[{QB+4*tt}:{QB+4*tt+3}], {c}")
        if not refill(slot): A("s_nop 6")
        if not wo_step(n): A("s_nop 0")
        if n < wo2: wo_step(n + 1000)
        s2 = vT[1]
        A(f"v_mov_b32_dpp {s}, v{D} quad_perm:[0,0,0,0] row_mask:0xf bank_mask:0xf")
        A(f"v_mov_b32_dpp {s2}, v{D+2} quad_perm:[2,2,2,2] row_mask:0xf bank_mask:0xf")
        A("s_nop 0")
        A(f"v_add_f32_dpp {s}, v{D+1}, {s} quad_perm:[1,1,1,1] row_mask:0xf bank_mask:0xf")
        A(f"v_add_f32_dpp {s2}, v{D+3}, {s2} quad_perm:[3,3,3,3] row_mask:0xf bank_mask:0xf")
        A(f"v_add_f32 {s}, {s}, {s2}")
        A.rb(s, s)
        A(f"v_mul_f32 {s}, {F(192 ** -0.5)}, {s}")
        A.rb(s, s)
        A(f"v_max_f32 {vMAX}, {vMAX}, {s}")
        A(f"ds_write_b32 {vSC}, {s} offset:{n*32}")
        if n >= tab_start:
            if ncalls[0] < 24:
                if not notab: A(f"s_call_b64 s[{sRET}:{sRET+1}], L_tab")
                ncalls[0] += 1
            elif not published[0]:
                published[0] = True
                tab_publish()
    assert published[0]
    st()
    A.wave_red("max", vMAX, sM)
    A(f"s_lshl_b32 {sT0}, {sWAVE}, 11")
    A(f"s_add_u32 {sT0}, {sT0}, {L_SC}")
    A(f"v_lshl_add_u32 {vT[0]}, {vLANE}, 5, {sT0}")
    A("s_waitcnt lgkmcnt(0)")
    A(f"ds_read_b128 v[{B}:{B+3}], {vT[0]}")
    A(f"ds_read_b128 v[{B+4}:{B+7}], {vT[0]} offset:16")
    A("s_waitcnt lgkmcnt(0)")
    for r in range(8):
        A(f"v_subrev_f32 v{B+r}, {sM}, v{B+r}")
    for r in range(8):
        A(f"v_mul_f32 v{B+r}, {F(LOG2E)}, v{B+r}")
    for r in range(8):
        A(f"v_exp_f32 v{B+r}, v{B+r}")
    A("s_nop 0")
    A(f"v_add_f32 {vT[1]}, v{B}, v{B+1}")
    for r in range(2, 8):
        A(f"v_add_f32 {vT[1]}, {vT[1]}, v{B+r}")
    for r in range(8):
        A(f"v_cvt_pk_bf16_f32 v{B+r}, v{B+r}, v{B+r}")
    A(f"ds_write_b128 {vT[0]}, v[{B}:{B+3}]")
    A(f"ds_write_b128 {vT[0]}, v[{B+4}:{B+7}] offset:16")
    A.wave_red("add", vT[1], sL)
    A(f"v_mov_b32 v{ML}, {sM}")
    A(f"v_mov_b32 v{ML+1}, {sL}")
    A(f"v_mov_b32 v{ML+2}, {sTAG}")
    A(f"v_mov_b32 v{ML+3}, {sTAG}")
    A(f"s_lshl_b32 {sT0}, {sBH}, 7")
    A(f"s_add_u32 {sT0}, {sT0}, {WS_ML}")
    A(f"v_lshl_add_u32 {vZ}, {vLANE}, 4, {sT0}")
    A(f"s_mov_b32 {sT0}, {WS_ZF}")
    A(f"v_writelane_b32 {vZ}, {sT0}, 8")
    A(f"s_lshl_b32 {sT1}, {sHALF}, 2")
    A(f"s_add_u32 {sT1}, {sT1}, {sWAVE}")
    A(f"s_lshl_b32 {sT1}, {sT1}, 4")
    A.setexec(1)
    vq.op(f"buffer_store_dwordx4 v[{ML}:{ML+3}], {vZ}, s[{sWS}:{sWS+3}], {sT1} offen sc1", "mlst")
    A.setexec(ALL)
    vq.CAP = capv
    PP = [QB + n for n in range(8)]
    A("s_waitcnt lgkmcnt(0)")
    for n in range(4):
        A(f"ds_read_b32 v{PP[n]}, {vSC} offset:{n*32}")
    def fcalc():
        vq.wait("ml")
        A(f"s_mov_b32 {sSPIN}, {SPIN}")
        A.label("L_mlchk")
        A(f"v_cmp_ne_u32 vcc, {sTAG}, v{ML+2}")
        A("s_nop 1")
        A("s_and_b32 vcc_lo, vcc_lo, 0x1ff")
        A("s_cbranch_scc0 L_mlok")
        A(f"s_sub_u32 {sSPIN}, {sSPIN}, 1")
        A(f"s_cmp_eq_u32 {sSPIN}, 0")
        A("s_cbranch_scc1 L_mlok")
        A("s_sleep 8")
        A.setexec(0x1ff)
        A(f"buffer_load_dwordx4 v[{ML}:{ML+3}], {vZ}, s[{sWS}:{sWS+3}], 0 offen sc1")
        A.setexec(ALL)
        A("s_waitcnt vmcnt(0)")
        A("s_branch L_mlchk")
        A.label("L_mlok")
        mm, e = vT[0], vT[1]
        A(f"v_mov_b32 {mm}, v{ML}")
        for stp in Asm.DPP_STEPS[:3]:
            A("s_nop 1")
            A(f"v_max_f32_dpp {mm}, {mm}, {mm} {stp}")
        A(f"v_sub_f32 {e}, v{ML}, {mm}")
        A(f"v_sub_f32 {mm}, {sM}, {mm}")
        A(f"v_mul_f32 {e}, {F(LOG2E)}, {e}")
        A(f"v_mul_f32 {mm}, {F(LOG2E)}, {mm}")
        A(f"v_exp_f32 {e}, {e}")
        A(f"v_exp_f32 {mm}, {mm}")
        A(f"v_mul_f32 {e}, {e}, v{ML+1}")
        for stp in Asm.DPP_STEPS[:3]:
            A("s_nop 1")
            A(f"v_add_f32_dpp {e}, {e}, {e} {stp}")
        A(f"v_rcp_f32 {e}, {e}")
        A("s_nop 0")
        A(f"v_mul_f32 {e}, {e}, {mm}")
        A("s_nop 0")
        A(f"v_readfirstlane_b32 {sF}, {e}")
        A(f"s_mov_b32 s{sFP}, {sF}")
        A(f"s_mov_b32 s{sFP+1}, {sF}")
        for k, m in enumerate((M_LO, M_T1, M_HI)):
            A(f"s_mov_b32 s{sMK+2*k}, 0x{m & 0xffffffff:08x}")
            A(f"s_mov_b32 s{sMK+2*k+1}, 0x{m >> 32:08x}")
        A(f"v_lshrrev_b32 {vT[0]}, 4, {vLANE}")
        A(f"s_lshr_b32 {sT0}, {sWAVE}, 1")
        A(f"s_mul_i32 {sT0}, {sT0}, 24")
        A(f"s_and_b32 {sT1}, {sWAVE}, 1")
        A(f"s_lshl_b32 {sT1}, {sT1}, 2")
        A(f"s_add_u32 {sT0}, {sT0}, {sT1}")
        A(f"v_add_lshl_u32 {vT[0]}, {vT[0]}, {sT0}, 4")
        A(f"v_and_b32 {vT[1]}, 15, {vLANE}")
        A(f"v_min_u32 {vT[1]}, 11, {vT[1]}")
        A(f"v_lshrrev_b32 {vT[2]}, 2, {vT[1]}")
        A(f"v_lshl_add_u32 {vT[0]}, {vT[2]}, 7, {vT[0]}")
        A(f"v_and_b32 {vT[1]}, 3, {vT[1]}")
        A(f"v_lshl_add_u32 {vQ0}, {vT[1]}, 2, {vT[0]}")
        A(f"s_lshl_b32 {sTK}, {sB}, 7")
        A(f"s_add_u32 {sTK}, {sTK}, {WS_CNT}")
        A(f"v_mov_b32 {vZ}, 1")
        A(f"v_lshrrev_b32 {vT[0]}, 4, v0")
        A(f"v_mul_u32_u24 {vT[0]}, 15, {vT[0]}")
        A(f"v_and_b32 {vT[1]}, 15, v0")
        A(f"v_add_u32 {vT[0]}, {vT[0]}, {vT[1]}")
        A(f"v_cmp_eq_u32 vcc, 15, {vT[1]}")
        A(f"v_mov_b32 {vCNT}, 1.0")
        A(f"v_mov_b32 {vMK[0]}, -1")
        A(f"v_cndmask_b32 {vCNT}, 0, {vCNT}, vcc")
        A(f"v_cndmask_b32 {vMK[0]}, {vMK[0]}, 0, vcc")
        A(f"v_cmp_gt_u32 vcc, 160, {vT[0]}")
        for k in range(3):
            col, t = vT[2], vT[3]
            A(f"v_add_u32 {col}, {240*k}, {vT[0]}")
            A(f"v_min_u32 {col}, 639, {col}")
            A(f"v_and_b32 {vYA[k]}, 0x3e0, {col}")
            A(f"v_and_b32 {t}, 7, {col}")
            A(f"v_lshl_add_u32 {vYA[k]}, {t}, 2, {vYA[k]}")
            A(f"v_bfe_u32 {t}, {col}, 3, 2")
            A(f"v_add_lshl_u32 {vYA[k]}, {vYA[k]}, {t}, 2")
        A(f"v_cndmask_b32 {vMK[1]}, 0, {vMK[0]}, vcc")
        A(f"s_mul_i32 {sWQOFF}, {sB}, 3072")
    for n in range(NT):
        slot = slot_of[NT + n]
        bb = B + 4 * (n & 1)
        if n + 4 < NT:
            A(f"ds_read_b32 v{PP[(n+4)%8]}, {vSC} offset:{(n+4)*32}")
            A("s_waitcnt lgkmcnt(4)")
        else:
            A(f"s_waitcnt lgkmcnt({NT-1-n})")
        for r in range(4):
            A(f"v_and_b32 v{bb+r}, v{PP[n%8]}, {vM[r]}")
        vq.wait(("v", n))
        A("s_nop 1")
        for tt in range(3):
            A(f"v_mfma_f32_16x16x32_bf16 v[{O+4*tt}:{O+4*tt+3}], {treg(slot, tt)}, v[{bb}:{bb+3}], v[{O+4*tt}:{O+4*tt+3}]")
        if lift and n == NT - T - lift: vq.CAP = liftcap
        refill(slot)
        wo_step(NT + n)
        if n == NT - T - 1:
            assert wo_left[0] == wo_late
            vq.CAP = cape
            for k in late: ld_wo(k)
            wo_left[0] = 0
        if n == ml_at:
            A.setexec(0x1ff)
            vq.op(f"buffer_load_dwordx4 v[{ML}:{ML+3}], {vZ}, s[{sWS}:{sWS+3}], 0 offen sc1", "ml")
            A.setexec(ALL)
        if n == fc_at:
            fcalc()
        if n == 8:
            vq.wait("tab")
            A(f"v_mov_b32 v{TACC+1}, 1")
            A.setexec(1)
            A(f"ds_add_rtn_u32 v{TACC}, {vT[4]}, v{TACC+1} offset:{L_TP + 64}")
            A("s_waitcnt lgkmcnt(0)")
            A(f"v_readfirstlane_b32 {sT0}, v{TACC}")
            A(f"s_cmp_lg_u32 {sT0}, 3")
            A("s_cbranch_scc1 L_notd")
            A(f"s_lshl_b32 {sT0}, s2, 6")
            A(f"s_add_u32 {sT0}, {sT0}, {WS_TD}")
            A(f"v_mov_b32 v{TACC+1}, {sTAG}")
            A(f"buffer_store_dword v{TACC+1}, {vT[4]}, s[{sWS}:{sWS+3}], {sT0} offen sc1")
            A.label("L_notd")
            A.setexec(ALL)
    assert wo_left[0] == 0
    st()
    if noend: A("s_endpgm")
    A("s_nop 5")
    for t, off in enumerate((L_P, L_P + 512, L_P + 1024)):
        A(f"s_mov_b64 exec, s[{sMK+2*t}:{sMK+2*t+1}]")
        A(f"v_pk_mul_f32 v[{O+4*t}:{O+4*t+1}], v[{O+4*t}:{O+4*t+1}], s[{sFP}:{sFP+1}]")
        A(f"v_pk_mul_f32 v[{O+4*t+2}:{O+4*t+3}], v[{O+4*t+2}:{O+4*t+3}], s[{sFP}:{sFP+1}]")
        A(f"ds_write_b128 {vA0}, v[{O+4*t}:{O+4*t+3}] offset:{off}")
    A.setexec(1)
    A(f"s_cmp_lg_u32 {sWAVE}, 3")
    A("s_cbranch_scc1 L_notick")
    A(f"buffer_atomic_add {vZ}, {vT[4]}, s[{sWS}:{sWS+3}], {sTK} offen sc0")
    A.label("L_notick")
    A.setexec(ALL)
    A("s_waitcnt lgkmcnt(0)")
    A("s_barrier")
    st()
    assert L_P % 256 == 0
    for k in range(4):
        A(f"ds_read2st64_b32 v[{B+2*k}:{B+2*k+1}], {vQ0} offset0:{L_P//256 + 6*k} offset1:{L_P//256 + 6*k + 3}")
    A("s_waitcnt lgkmcnt(2)")
    A(f"v_pk_add_f32 v[{B}:{B+1}], v[{B}:{B+1}], v[{B+2}:{B+3}]")
    A("s_waitcnt lgkmcnt(0)")
    A(f"v_pk_add_f32 v[{B+4}:{B+5}], v[{B+4}:{B+5}], v[{B+6}:{B+7}]")
    A(f"v_pk_add_f32 v[{B}:{B+1}], v[{B}:{B+1}], v[{B+4}:{B+5}]")
    A(f"v_add_f32 v{B}, v{B}, v{B+1}")
    A(f"v_cvt_pk_bf16_f32 v{B+2}, v{B}, v{B}")
    A(f"v_and_b32 v{B+1}, 0xffff0000, v{B+2}")
    A(f"v_sub_f32 v{B+1}, v{B}, v{B+1}")
    A(f"v_cvt_pk_bf16_f32 v{B+3}, v{B+1}, v{B+1}")
    BO = R0
    YD = R0 + 48
    def omfma(rg, c):
        n = rg * 5 + c
        cc = "0" if rg == 0 else f"v[{YD+4*c}:{YD+4*c+3}]"
        vq.wait(("wo", n))
        A(f"v_mfma_f32_16x16x32_bf16 v[{YD+4*c}:{YD+4*c+3}], a[{4*n}:{4*n+3}], v[{BO+4*rg}:{BO+4*rg+3}], {cc}")
    hi = lambda rg: f"v_mov_b32_dpp v{O+rg}, v{B+2} row_newbcast:{rg} row_mask:0xf bank_mask:0x3"
    lo = lambda rg: f"v_mov_b32_dpp v{O+rg}, v{B+3} row_newbcast:{rg} row_mask:0xf bank_mask:0xc"
    fill = [hi(0), hi(1), hi(2)]
    for rg in range(12):
        fill.append(lo(rg))
        for r in range(4):
            fill.append(f"v_and_b32 v{BO+4*rg+r}, v{O+rg}, {vM[r]}")
        if rg + 3 < 12: fill.append(hi(rg + 3))
    def emit(k):
        for _ in range(k):
            if fill: A(fill.pop(0))
    emit(10)
    NR2 = 6
    for rg in range(NR2):
        for c in range(5):
            omfma(rg, c)
            emit(2)
    emit(99)
    A("s_nop 1")
    def ypieces(c):
        p = [f"v_add_f32_dpp v{YD+4*c+r}, v{YD+4*c+r}, v{YD+4*c+r} row_ror:8 row_mask:0xf bank_mask:0xf" for r in range(4)]
        return p
    def ywrite(c):
        A(f"s_mov_b64 exec, s[{sMK}:{sMK+1}]")
        A(f"ds_write_b128 {vAY}, v[{YD+4*c}:{YD+4*c+3}] offset:{L_YP + c*512}")
        A.setexec(ALL)
    for c in range(5):
        p = ypieces(c - 2) if c >= 2 else []
        for k, rg in enumerate(range(NR2, 12)):
            omfma(rg, c)
            if p and k in (2, 3):
                A(p.pop(0)); A(p.pop(0))
            if c >= 2 and k == 4:
                ywrite(c - 2)
    for x in ypieces(3): A(x)
    ywrite(3)
    A("s_nop 0")
    for x in ypieces(4): A(x)
    ywrite(4)
    A("s_waitcnt lgkmcnt(0)")
    A("s_barrier")
    st()
    for k in range(2):
        for w in range(4):
            A(f"ds_read_b32 v{O+4*k+w}, {vYA[k]} offset:{L_YP + 2560*w}")
    A(f"s_cmp_eq_u32 {sWAVE}, 3")
    A("s_cbranch_scc1 L_two")
    for w in range(4):
        A(f"ds_read_b32 v{O+8+w}, {vYA[2]} offset:{L_YP + 2560*w}")
    A("s_waitcnt lgkmcnt(0)")
    A(f"v_add_f32 v{O+8}, v{O+8}, v{O+9}")
    A(f"v_add_f32 v{O+10}, v{O+10}, v{O+11}")
    A(f"v_add_f32 v{O+8}, v{O+8}, v{O+10}")
    A(f"v_and_or_b32 v{O+8}, v{O+8}, {vMK[1]}, {vCNT}")
    A(f"buffer_atomic_add_f32 v{O+8}, {vA1}, s[{sWS}:{sWS+3}], {sWQOFF} offen offset:{WS_ACC + 2048}")
    A.label("L_two")
    A("s_waitcnt lgkmcnt(0)")
    for k in range(2):
        A(f"v_add_f32 v{O+4*k}, v{O+4*k}, v{O+4*k+1}")
        A(f"v_add_f32 v{O+4*k+2}, v{O+4*k+2}, v{O+4*k+3}")
    for k in range(2):
        A(f"v_add_f32 v{O+4*k}, v{O+4*k}, v{O+4*k+2}")
    for k in range(2):
        A(f"v_and_or_b32 v{O+4*k}, v{O+4*k}, {vMK[0]}, {vCNT}")
        A(f"buffer_atomic_add_f32 v{O+4*k}, {vA1}, s[{sWS}:{sWS+3}], {sWQOFF} offen offset:{WS_ACC + 1024*k}")
    st()
    A(f"s_cmp_lg_u32 {sWAVE}, 3")
    A("s_cbranch_scc1 L_done")
    A("s_waitcnt vmcnt(2)")
    A(f"v_readfirstlane_b32 {sT0}, {vZ}")
    A(f"s_cmp_lg_u32 {sT0}, 0")
    A("s_cbranch_scc1 L_done")
    H = R0
    HN = R0 + 12
    G = R0 + 24
    X = R0 + 36
    XO = R0 + 48
    T1 = R0 + 60
    T2 = R0 + 66
    TB = R0 + 72
    h = [f"v{H+n}" for n in range(11)]
    hn = [f"v{HN+n}" for n in range(11)]
    A("s_load_dwordx2 s[8:9], s[0:1], 0")
    A(f"s_mul_i32 {sT0}, {sB}, 1280")
    A.srd_off(sOUT, 20, sT0, 1280)
    A(f"v_lshlrev_b32 {vT[1]}, 8, {vLANE}")
    A(f"s_movk_i32 {sT1}, {WS_TD}")
    def tdload():
        for k in range(4):
            A(f"buffer_load_dword v{ML+k}, {vT[1]}, s[{sWS}:{sWS+3}], {sT1} offen offset:{k*64} sc1")
    tdload()
    A(f"v_lshrrev_b32 {vT[0]}, 4, {vLANE}")
    A(f"v_mul_u32_u24 {vT[0]}, 15, {vT[0]}")
    A(f"v_and_b32 {vT[2]}, 15, {vLANE}")
    A(f"v_add_lshl_u32 {vT[0]}, {vT[0]}, {vT[2]}, 1")
    A(f"v_cmp_eq_u32 vcc, 15, {vT[2]}")
    A(f"v_mov_b32 {vT[2]}, 0x10000")
    A(f"v_mov_b32 {vMK[1]}, 0")
    A(f"v_cndmask_b32 {vT[0]}, {vT[0]}, {vT[2]}, vcc")
    A.setexec(M_D10)
    A(f"v_mov_b32 {vMK[1]}, -1")
    A.setexec(ALL)
    A(f"v_mov_b32 {vQ0}, {vMK[1]}")
    for r in list(range(G, G + 12)) + list(range(X, X + 12)) + list(range(T1, T1 + 12)) + [H + 11]:
        A(f"v_mov_b32 v{r}, 0")
    A("s_waitcnt lgkmcnt(0)")
    A.srd_off(sX, 8, sT0, 1280)
    for n in range(11):
        A(f"buffer_load_short_d16_hi v{X+n}, {vT[0]}, s[{sX}:{sX+3}], 0 offen offset:{n*120}")
    A("s_waitcnt vmcnt(11)")
    A(f"s_mov_b32 {sSPIN}, {SPIN}")
    A.label("L_tdchk")
    for k in range(4):
        A(f"v_xor_b32 v{ML+k}, {sTAG}, v{ML+k}")
    A(f"v_or3_b32 v{ML}, v{ML}, v{ML+1}, v{ML+2}")
    A(f"v_or_b32 v{ML}, v{ML}, v{ML+3}")
    A(f"v_cmp_ne_u32 vcc, 0, v{ML}")
    A("s_nop 1")
    A("s_cmp_eq_u64 vcc, 0")
    A("s_cbranch_scc1 L_tdok")
    A(f"s_sub_u32 {sSPIN}, {sSPIN}, 1")
    A(f"s_cmp_eq_u32 {sSPIN}, 0")
    A("s_cbranch_scc1 L_tdok")
    A("s_sleep 8")
    tdload()
    A("s_waitcnt vmcnt(0)")
    A("s_branch L_tdchk")
    A.label("L_tdok")
    A(f"v_lshlrev_b32 {vT[1]}, 4, {vLANE}")
    for k in range(16):
        if k % 4 == 0: A(f"s_mov_b32 {sT0}, {WS_TAB + k*1024}")
        A(f"buffer_load_dwordx4 v[{TB+4*k}:{TB+4*k+3}], {vT[1]}, s[{sWS}:{sWS+3}], {sT0} offen offset:{(k%4)*1024} sc1")
    A(f"v_mov_b32 {vZ}, {sTAG}")
    A(f"s_mov_b32 {sT1}, {WS_EP}")
    A.setexec(1)
    A(f"buffer_store_dword {vZ}, {vT[4]}, s[{sWS}:{sWS+3}], {sT1} offen sc1")
    A.setexec(ALL)
    A(f"v_add_u32 {vT[2]}, 0x10000, {vT[1]}")
    A("s_waitcnt vmcnt(1)")
    for k in range(16):
        if k == 8: A("s_waitcnt lgkmcnt(0)")
        A(f"ds_write_b128 {vT[1] if k < 8 else vT[2]}, v[{TB+4*k}:{TB+4*k+3}] offset:{L_SC + (k%8)*1024}")
    A(f"v_lshlrev_b32 {vT[1]}, 2, {vLANE}")
    A(f"s_mov_b32 {sSPIN}, {SPIN}")
    A(f"s_mov_b32 s4, 0x80008000")
    st()
    A.label("L_poll")
    for n in range(11):
        A(f"buffer_load_dword {h[n]}, {vT[1]}, s[{sWS}:{sWS+3}], {sWQOFF} offen offset:{WS_ACC + n*256} sc1")
    A(f"s_sub_u32 {sSPIN}, {sSPIN}, 1")
    A("s_waitcnt vmcnt(0) lgkmcnt(0)")
    A(f"v_min3_f32 {vT[2]}, {h[0]}, {h[1]}, {h[2]}")
    A(f"v_min3_f32 {vT[3]}, {h[3]}, {h[4]}, {h[5]}")
    A(f"v_min3_f32 {vT[2]}, {h[6]}, {h[7]}, {vT[2]}")
    A(f"v_min3_f32 {vT[3]}, {h[8]}, {h[9]}, {vT[3]}")
    A(f"v_min3_f32 {vT[2]}, {h[10]}, {vT[2]}, {vT[3]}")
    A(f"s_cmp_eq_u32 {sSPIN}, 0")
    A("s_cbranch_scc1 L_pollok")
    A(f"v_cmp_neq_f32 vcc, {F(64.0)}, {vT[2]}")
    for n in range(2):
        A.rb(h[n], h[n])
    A("s_or_b32 vcc_lo, vcc_lo, vcc_hi")
    A("s_and_b32 vcc_lo, vcc_lo, s4")
    A("s_cbranch_scc1 L_poll")
    A.label("L_pollok")
    st()
    A.setexec(M_D)
    for n in range(2, 11):
        A.rb(h[n], h[n])
    for n in range(6):
        A(f"v_pk_add_f32 v[{H+2*n}:{H+2*n+1}], v[{H+2*n}:{H+2*n+1}], v[{X+2*n}:{X+2*n+1}]")
    for n in range(11):
        A.rb(h[n], h[n])
    layernorm_seg(A, H, HN, T1, 4, True, vQ0, M_D)
    layernorm_seg(A, HN, HN, T2, 4, False, vQ0, M_D)
    for n in range(11):
        A(f"v_lshrrev_b32 v{X+n}, 15, {hn[n]}")
        A(f"ds_read_u16_d16_hi v{G+n}, v{X+n} offset:{L_SC - 25600}")
    A(f"v_bfi_b32 {hn[10]}, {vQ0}, {hn[10]}, 1.0")
    A(f"v_min3_f32 {vT[2]}, abs({hn[0]}), abs({hn[1]}), abs({hn[2]})")
    A(f"v_max3_f32 {vT[3]}, abs({hn[0]}), abs({hn[1]}), abs({hn[2]})")
    for n in range(3, 11, 2):
        A(f"v_min3_f32 {vT[2]}, abs({hn[n]}), abs({hn[n+1]}), {vT[2]}")
        A(f"v_max3_f32 {vT[3]}, abs({hn[n]}), abs({hn[n+1]}), {vT[3]}")
    A(f"v_cmp_gt_f32 vcc, {F(2.0 ** -27)}, {vT[2]}")
    A(f"v_mov_b32 {vT[2]}, {F(32.0)}")
    A(f"v_cmp_le_f32 s[4:5], {vT[2]}, {vT[3]}")
    A("s_waitcnt lgkmcnt(0)")
    A("s_or_b64 vcc, vcc, s[4:5]")
    A("s_cbranch_scc1 L_direct")
    A.label("L_lookup")
    for n in range(6):
        A(f"v_pk_add_f32 v[{G+2*n}:{G+2*n+1}], v[{G+2*n}:{G+2*n+1}], v[{H+2*n}:{H+2*n+1}]")
    for n in range(6):
        A(f"v_cvt_pk_bf16_f32 v{G+2*n}, v{G+2*n}, v{G+2*n+1}")
    if ost is None:
        for n in range(11):
            op = "buffer_store_short" if n % 2 == 0 else "buffer_store_short_d16_hi"
            A(f"{op} v{G + (n & ~1)}, {vT[0]}, s[{sOUT}:{sOUT+3}], 0 offen offset:{n*120} {osf}")
        A.setexec(ALL)
    else:
        for n in range(11):
            op = "ds_write_b16" if n % 2 == 0 else "ds_write_b16_d16_hi"
            A(f"{op} {vT[0]}, v{G + (n & ~1)} offset:{L_XN + n*120}")
        A.setexec(ALL)
        A(f"v_lshlrev_b32 {vT[1]}, 4, {vLANE}")
        A("s_waitcnt lgkmcnt(0)")
        A(f"ds_read_b128 v[{G}:{G+3}], {vT[1]} offset:{L_XN}")
        A(f"ds_read_b128 v[{G+4}:{G+7}], {vT[1]} offset:{L_XN + 1024}")
        A("s_waitcnt lgkmcnt(1)")
        A(f"buffer_store_dwordx4 v[{G}:{G+3}], {vT[1]}, s[{sOUT}:{sOUT+3}], 0 offen {osf}")
        A("s_waitcnt lgkmcnt(0)")
        A(f"buffer_store_dwordx4 v[{G+4}:{G+7}], {vT[1]}, s[{sOUT}:{sOUT+3}], 0 offen offset:1024 {osf}")
    if stamps:
        A("s_waitcnt vmcnt(0)")
        st()
        st.flush(sWS, WS_STAMP + 65536, sWAVE, vT[0], vT[1])
        if dbg:
            A("s_load_dwordx2 s[4:5], s[0:1], 88")
            A("s_waitcnt lgkmcnt(0)")
            A.srd(16, "s4", "s5", 256)
            A(f"s_lshl_b32 s6, {sB}, 4")
            A(f"v_mov_b32 {vT[1]}, 0")
            A.setexec(1)
            for k, n in enumerate((3, 4, 5, 11)):
                A(f"s_sub_u32 s7, s{76+2*n}, s76")
                A(f"v_mov_b32 {vT[0]}, s7")
                A(f"buffer_store_dword {vT[0]}, {vT[1]}, s[16:19], s6 offen offset:{4*k}")
            A.setexec(ALL)
    A.label("L_done")
    if stamps:
        st.flush(sWS, WS_STAMP, sWAVE, vT[0], vT[1])
    A.label("L_end")
    A("s_endpgm")
    A.label("L_direct")
    A.setexec(ALL)
    A(f"v_lshrrev_b32 {vT[1]}, 3, {vLANE}")
    A(f"v_mul_u32_u24 {vT[1]}, 2320, {vT[1]}")
    A(f"v_and_b32 {vT[2]}, 7, {vLANE}")
    A(f"v_mul_u32_u24 {vT[2]}, 288, {vT[2]}")
    A(f"v_add_u32 {vT[1]}, {vT[1]}, {vT[2]}")
    A(f"v_add_u32 {vT[1]}, {L_W}, {vT[1]}")
    for n in range(11):
        A(f"v_bfe_u32 {vT[2]}, {hn[n]}, 23, 8")
        A(f"v_subrev_u32 {vT[2]}, 100, {vT[2]}")
        A.setexec(M_D)
        A(f"v_cmp_le_u32 s[4:5], 32, {vT[2]}")
        A.setexec(ALL)
        A.label(f"L_dir{n}")
        A("s_nop 1")
        A("s_cmp_eq_u64 s[4:5], 0")
        A(f"s_cbranch_scc1 L_dirx{n}")
        A(f"s_ff1_i32_b64 {sT0}, s[4:5]")
        A(f"v_readlane_b32 {sT1}, {hn[n]}, {sT0}")
        A(f"s_call_b64 s[6:7], L_eval")
        A(f"v_cmp_eq_u32 vcc, {sT1}, {hn[n]}")
        A("s_nop 1")
        A(f"v_cndmask_b32 v{G+n}, v{G+n}, v{TACC}, vcc")
        A("s_andn2_b64 s[4:5], s[4:5], vcc")
        A(f"s_branch L_dir{n}")
        A.label(f"L_dirx{n}")
    A.setexec(M_D)
    A("s_branch L_lookup")
    A.label("L_eval")
    A("s_nop 1")
    A(f"v_mov_b32 v{TX}, {sT1}")
    A(f"v_mov_b32 v{TX+1}, {sT1}")
    A(f"v_mov_b32 v{TACC}, 0")
    A(f"v_mov_b32 v{TACC+1}, 0")
    A(f"v_mov_b32 {vTA}, {vT[1]}")
    A("s_waitcnt lgkmcnt(0)")
    tab_reads()
    for _ in range(3):
        A(f"s_call_b64 s[{sRET}:{sRET+1}], L_tab")
    A(f"v_add_f32 v{TACC}, v{TACC}, v{TACC+1}")
    A.wave_red("add", f"v{TACC}", sT0)
    A(f"v_mov_b32 v{TACC}, {sT0}")
    tab_finish(f"v{TACC}")
    A(f"v_and_b32 v{TACC}, 0xffff0000, v{TACC}")
    A("s_setpc_b64 s[6:7]")
    A.label("L_tab")
    A("s_waitcnt lgkmcnt(0)")
    def P(r): return f"v[{r}:{r+1}]"
    W1, B1, W2 = TW, TW + 8, TW + 16
    for p in range(4): A(f"v_pk_mul_f32 {P(W1+2*p)}, {P(TX)}, {P(W1+2*p)}")
    for k in range(8): A.rb(f"v{W1+k}", f"v{W1+k}")
    for p in range(4): A(f"v_pk_add_f32 {P(W1+2*p)}, {P(W1+2*p)}, {P(B1+2*p)}")
    for k in range(8): A.rb(f"v{W1+k}", f"v{W1+k}")
    for p in range(4): A(f"v_pk_mul_f32 {P(B1+2*p)}, {P(W1+2*p)}, {P(W1+2*p)}")
    for p in range(4): A(f"v_pk_fma_f32 {P(B1+2*p)}, {P(B1+2*p)}, {P(TK1)}, s[{sK0}:{sK0+1}]")
    for p in range(4): A(f"v_pk_mul_f32 {P(B1+2*p)}, {P(B1+2*p)}, {P(W1+2*p)}")
    for k in range(8): A(f"v_exp_f32 v{B1+k}, v{B1+k}")
    for p in range(4): A(f"v_pk_add_f32 {P(B1+2*p)}, {P(B1+2*p)}, s[{sONE}:{sONE+1}]")
    for k in range(8): A(f"v_rcp_f32 v{B1+k}, v{B1+k}")
    for p in range(4): A(f"v_pk_mul_f32 {P(W1+2*p)}, {P(W1+2*p)}, {P(B1+2*p)}")
    for k in range(8): A.rb(f"v{W1+k}", f"v{W1+k}")
    for p in range(4): A(f"v_pk_fma_f32 {P(TACC)}, {P(W1+2*p)}, {P(W2+2*p)}, {P(TACC)}")
    tab_reads()
    A(f"s_setpc_b64 s[{sRET}:{sRET+1}]")
    acc = (NV + 3) // 4 * 4
    return A.text() + kd(KN, acc + 240, 102, acc)

if __name__ == "__main__":
    kw = eval("dict(%s)" % (sys.argv[2] if len(sys.argv) > 2 else ""))
    open(sys.argv[1], "w").write(gen(**kw))
```

```python
import sys
from asmlib import *

KN = "sequential_preLN__mha_block_cached__mixer_token_mlp__decode_kernel"
HDR = open("sequential_preLN__mha_block_cached__mixer_token_mlp__decode.s.ref").read().split("; Override launch")[0]
LOG2E = 1.4426950408889634
WS_ACC, WS_CNT, WS_ZEND = 0, 12288, 16384
WS_ML = 49152
WS_TD = 28672
WS_EP = 45056
WS_ZF = 45312
WS_TAB = 65536
WS_STAMP = 524288
WS_QP = 1 << 20
WS_SIZE = 2 << 20
L_XN = 0
L_P = 10240
L_QB = L_P + 6144
L_PH = L_QB + 512
L_W = L_PH + 1536
L_TP = L_W + 8 * 2320
L_YP = L_TP + 128
L_SC = L_YP + 10240
L_QS = L_SC + 8192
L_WQ = L_QS + 3072
L_END = L_SC + 65536 + 8192
M_D, M_D10 = 0x7FFF7FFF7FFF7FFF, 0x000003FF7FFF7FFF
M_LO, M_HI, M_T1 = 0x00FF00FF00FF00FF, 0xFF00FF00FF00FF00, 0xFF00FF0000FF00FF
ALL = (1 << 64) - 1
SPIN = 0x100000

class Stamps:
    def __init__(self, A, on, s0): self.A = A; self.on = on; self.s0 = s0; self.n = 0
    def __call__(self):
        if self.on:
            s = self.s0 + 2 * self.n
            self.A(f"s_memrealtime s[{s}:{s+1}]")
            self.n += 1
    def flush(self, srd, base, swave, v0, v1):
        if not self.on: return
        A = self.A
        A("s_waitcnt lgkmcnt(0)")
        A("s_lshl_b32 s6, s2, 2")
        A(f"s_add_u32 s6, s6, {swave}")
        A("s_lshl_b32 s6, s6, 6")
        A(f"s_add_u32 s6, s6, {base}")
        A(f"v_mov_b32 {v1}, 0")
        A.setexec(1)
        for n in range(self.n):
            A(f"v_mov_b32 {v0}, s{self.s0 + 2*n}")
            A(f"buffer_store_dword {v0}, {v1}, s[{srd}:{srd+3}], s6 offen offset:{4*n}")
        A("s_getreg_b32 s7, hwreg(HW_REG_XCC_ID)")
        A(f"v_mov_b32 {v0}, s7")
        A(f"buffer_store_dword {v0}, {v1}, s[{srd}:{srd+3}], s6 offen offset:60")
        A(f"v_mov_b32 {v0}, s51")
        A(f"buffer_store_dword {v0}, {v1}, s[{srd}:{srd+3}], s6 offen offset:56")
        A.setexec(ALL)

class VQ:
    CAP = 54
    CLASS = False
    def __init__(self, A): self.A = A; self.q = []; self.frac = 0.0
    def room(self, n):
        cap = int(self.CAP)
        self.frac += self.CAP - cap
        if self.frac >= 1.0 - 1e-9:
            self.frac -= 1.0; cap += 1
        if len(self.q) > cap - n:
            self.A(f"s_waitcnt vmcnt({cap - n})")
            self.q = self.q[len(self.q) - (cap - n):]
    def op(self, text, tag, nocap=False):
        if nocap:
            self.A(text); self.q.append(tag); return
        cap = int(self.CAP)
        self.frac += self.CAP - cap
        if self.frac >= 1.0 - 1e-9:
            self.frac -= 1.0; cap += 1
        if self.CLASS and cap < 40:
            idx = [i for i, t in enumerate(self.q) if not (isinstance(t, tuple) and t[0] == "wo")]
            if len(idx) >= cap:
                pos = idx[len(idx) - cap]
                self.A(f"s_waitcnt vmcnt({len(self.q) - 1 - pos})")
                self.q = self.q[pos + 1:]
        elif len(self.q) >= cap:
            self.A(f"s_waitcnt vmcnt({cap - 1})")
            self.q = self.q[-(cap - 1):]
        self.A(text)
        self.q.append(tag)
    def wait(self, tag):
        if tag not in self.q: return
        pos = len(self.q) - 1 - self.q[::-1].index(tag)
        self.A(f"s_waitcnt vmcnt({len(self.q) - 1 - pos})")
        self.q = self.q[pos + 1:]

def gen(T=12, ext=4, rot=13, wo_start=0, stamps=False, kf='nt', vf='nt', wf='nt', tab_start=20,
        n1=5, n1b=1, n1c=1, n2=4, capk=8, capv=6, caph=6, wo_rate=1.0, dbg=False, BL=0, pmul=1, tlb=0, st0=False, wo_late=0, cape=54, lift=4, liftcap=54, poll2=False, tabrot=False, rh=(56,48,48), burst=False, order=(0,1,2), eplate=False, wo2=0, cap0=54, nowo=False, notab=False, noend=False, wosame=False, wob=0, wobcap=True, ccap=False, hb=0, bb_=0, ml_at=28, fc_at=36, ost=None, osf='', wopre=None, wof=None, wopre2=None):
    if wof is None: wof = wf
    VQ.CLASS = ccap
    if dbg: stamps = True
    A = Asm()
    A.raw(HDR.rstrip())
    A.raw(f"; @launch grid=(256,1,1) block=(256,1,1) lds={L_END}")
    A.raw('.amdgcn_target "amdgcn-amd-amdhsa--gfx950"')
    A.raw(".text")
    A.raw(f".globl {KN}")
    st = Stamps(A, stamps, 76)
    NT = 64
    STEP = 12288
    REGION = 786432
    sX, sK, sV, sWQ, sWO, sWS = 24, 28, 32, 36, 40, 44
    sOUT = 36
    sTAG, sBS, sQG, sRETRY = "s48", "s49", "s50", "s51"
    sWAVE, sB, sH, sHALF, sBH, sT0, sT1 = "s52", "s53", "s54", "s55", "s56", "s57", "s58"
    sKREL, sVREL, sWB, sOFF, sWQOFF, sWOOFF, sM, sL, sF, sSPIN = "s59", "s60", "s61", "s62", "s63", "s64", "s65", "s66", "s67", "s68"
    sB2, sTB, sJMP = "s69", "s3", "s101"
    sK0, sONE, sRET = 70, 72, 74
    sFP, sMK, sTK = 8, 10, "s16"
    vLANE, vKO, vVO, vQ0, vQ1, vQ2, vWO = "v1", "v2", "v3", "v4", "v5", "v6", "v7"
    vM = ["v8", "v9", "v10", "v11"]
    vA0, vA1, vAY, vSC, vXN, vMAX, vZ = "v12", "v13", "v14", "v15", "v16", "v17", "v18"
    vT = [f"v{i}" for i in range(19, 24)]
    QB = 24
    D = 36
    O = 40
    B = 52
    ML = 60
    TW = 64
    TX, TACC, TK1 = 88, 90, 92
    vTA = "v94"
    XS = 95
    vYA = [vQ1, vQ2, vXN]; vCNT = vMAX; vMK = [f"v{TX}", f"v{TX+1}"]
    R0 = 100
    NV = R0 + 12 * T
    AW = 204
    assert NV <= 256 and ext * 12 <= AW
    vq = VQ(A)

    A.raw(".p2align 8")
    A.raw(f".type {KN},@function")
    A.label(KN)
    A("s_cmp_ge_u32 s2, 256")
    A("s_cbranch_scc1 L_end")
    st()
    A("s_load_dwordx8 s[8:15], s[0:1], 0")
    A("s_load_dwordx2 s[16:17], s[0:1], 32")
    A("s_load_dwordx2 s[22:23], s[0:1], 96")
    A(f"v_lshrrev_b32 {vT[0]}, 6, v0")
    A(f"v_and_b32 {vLANE}, 63, v0")
    A(f"v_readfirstlane_b32 {sWAVE}, {vT[0]}")
    A(f"s_and_b32 {sH}, s2, 7")
    A(f"s_lshr_b32 {sT0}, s2, 3")
    A(f"s_lshl_b32 {sH}, {sH}, 2")
    A(f"s_and_b32 {sT1}, {sT0}, 3")
    A(f"s_add_u32 {sH}, {sH}, {sT1}")
    A(f"s_lshr_b32 {sBS}, {sT0}, 2")
    A(f"s_lshr_b32 {sB}, {sT0}, 3")
    A(f"s_and_b32 {sHALF}, {sBS}, 1")
    A(f"s_lshl_b32 {sBH}, {sB}, 5")
    A(f"s_add_u32 {sBH}, {sBH}, {sH}")
    q, i, t0, t1 = vT[0], vT[1], vT[2], vT[3]
    A(f"v_lshrrev_b32 {q}, 4, {vLANE}")
    A(f"v_and_b32 {i}, 15, {vLANE}")
    A(f"v_lshrrev_b32 {t0}, 2, {i}")
    A(f"v_mul_u32_u24 {vKO}, 768, {t0}")
    A(f"v_lshl_add_u32 {vKO}, {q}, 6, {vKO}")
    A(f"v_and_b32 {t0}, 3, {i}")
    A(f"v_lshl_add_u32 {vKO}, {t0}, 4, {vKO}")
    A(f"v_mul_u32_u24 {vVO}, 768, {q}")
    A(f"v_lshl_add_u32 {vVO}, {i}, 4, {vVO}")
    A(f"v_mul_u32_u24 {vQ0}, 24576, {q}")
    A(f"v_lshl_add_u32 {vQ0}, {i}, 4, {vQ0}")
    A(f"v_add_u32 {vQ1}, 256, {vQ0}")
    A(f"v_add_u32 {vQ2}, {12288-128}, {vQ0}")
    A(f"v_cmp_gt_u32 vcc, 8, {i}")
    A(f"v_mul_u32_u24 {vWO}, 1280, {q}")
    A(f"v_lshl_add_u32 {vWO}, {i}, 4, {vWO}")
    A(f"v_cndmask_b32 {vQ1}, {vQ2}, {vQ1}, vcc")
    A(f"v_add_u32 {vQ2}, {12288+128}, {vQ0}")
    for r in range(O, O + 12):
        A(f"v_mov_b32 v{r}, 0")
    A(f"v_lshlrev_b32 {t0}, 4, v0")
    A(f"v_lshlrev_b32 {t1}, 2, {vLANE}")
    A(f"s_lshl_b32 {sT1}, {sBH}, 1")
    A(f"s_add_u32 {sT1}, {sT1}, {sHALF}")
    if rh is None:
        A(f"s_mul_i32 {sKREL}, {sT1}, {rot}")
    else:
        A(f"s_mul_i32 {sKREL}, {sHALF}, {rh[0]}")
        A(f"s_mul_i32 {sT0}, {sH}, {rh[1]}")
        A(f"s_add_u32 {sKREL}, {sKREL}, {sT0}")
        A(f"s_mul_i32 {sT0}, {sB}, {rh[2]}")
        A(f"s_add_u32 {sKREL}, {sKREL}, {sT0}")
    A(f"s_and_b32 {sKREL}, {sKREL}, 63")
    A(f"s_mov_b32 {sVREL}, {sKREL}")
    if BL:
        A(f"s_mul_i32 {sJMP}, {sT1}, {pmul}")
        A(f"s_lshr_b32 {sJMP}, {sJMP}, 2")
        A(f"s_lshl_b32 {sJMP}, {sJMP}, 1")
        A(f"s_mul_i32 {sJMP}, {sJMP}, {BL}")
        A(f"s_add_u32 {sJMP}, {sJMP}, 1")
    A(f"s_mul_i32 {sT1}, {sT1}, {REGION}")
    A(f"s_mul_i32 {sWB}, {sWAVE}, 3072")
    A(f"s_mul_i32 {sOFF}, {sBS}, {80*12288}")
    A(f"s_mul_i32 {sT0}, {sH}, 384")
    A(f"s_add_u32 {sOFF}, {sOFF}, {sT0}")
    A(f"s_mul_i32 {sWQOFF}, {sWAVE}, {8*12288}")
    A(f"s_lshr_b32 {sT0}, {sWAVE}, 1")
    A(f"s_mul_i32 {sWOOFF}, {sT0}, {96*1280}")
    A(f"s_and_b32 {sT0}, {sWAVE}, 1")
    A(f"s_mul_i32 {sT0}, {sT0}, {4*1280}")
    A(f"s_add_u32 {sWOOFF}, {sWOOFF}, {sT0}")
    A(f"s_mul_i32 {sT0}, {sWAVE}, 1280")
    A(f"s_mov_b32 {sRETRY}, 0")
    A("s_waitcnt lgkmcnt(0)")
    if st0: st()
    if tabrot:
        A("s_load_dwordx2 s[4:5], s[0:1], 40")
        A("s_lshl_b32 s6, s2, 2")
        A("s_waitcnt lgkmcnt(0)")
        A(f"s_load_dword {sKREL}, s[4:5], s6")
        A("s_waitcnt lgkmcnt(0)")
        A(f"s_and_b32 {sKREL}, {sKREL}, 63")
        A(f"s_mov_b32 {sVREL}, {sKREL}")
    A.srd_off(sX, 8, sT0, 1280)
    for n in range(5):
        vq.op(f"buffer_load_dword v{XS+n}, {t1}, s[{sX}:{sX+3}], 0 offen offset:{n*256}", "x")
    A.srd_off(sWQ, 14, sOFF, 79 * 12288 + 384)
    for k in range(3):
        for t, o in enumerate((vQ0, vQ1, vQ2)):
            r = AW + k * 12 + t * 4
            vq.op(f"buffer_load_dwordx4 a[{r}:{r+3}], {o}, s[{sWQ}:{sWQ+3}], {sWQOFF} offen {wf}", "wq")
        if k < 2: A(f"s_add_u32 {sWQOFF}, {sWQOFF}, {32*12288}")
    A.srd_off(sK, 10, sT1, REGION)
    A.srd_off(sV, 12, sT1, REGION)
    A(f"s_mul_i32 {sT0}, {sH}, 245760")
    A.srd_off(sWO, 16, sT0, 245760)
    A.srd(sWS, "s22", "s23", WS_SIZE)
    A("s_load_dwordx8 s[8:15], s[0:1], 48")
    A("s_load_dwordx2 s[20:21], s[0:1], 80")
    if not eplate: A(f"s_load_dword {sTAG}, s[22:23], {WS_EP}")

    def treg(slot, t):
        if slot < T:
            r = R0 + slot * 12 + t * 4
            return f"v[{r}:{r+3}]"
        r = (slot - T) * 12 + t * 4
        return f"a[{r}:{r+3}]"
    def ld_tile(slot, isv, n):
        rel, srd, off = (sVREL, sV, vVO) if isv else (sKREL, sK, vKO)
        A(f"s_mul_i32 {sOFF}, {rel}, {STEP}")
        A(f"s_add_u32 {sOFF}, {sOFF}, {sWB}")
        if burst: vq.room(3)
        for t in order:
            vq.op(f"buffer_load_dwordx4 {treg(slot, t)}, {off}, s[{srd}:{srd+3}], {sOFF} offen offset:{t*256} {vf if isv else kf}", ("v" if isv else "k", n), nocap=burst)
        A(f"s_add_u32 {rel}, {rel}, {sJMP if (BL and (n + 1) % BL == 0) else 1}")
        A(f"s_and_b32 {rel}, {rel}, 63")
    def ld_wo(n):
        rg, c = divmod(n, 5)
        if nowo:
            A("s_nop 0"); return
        A(f"s_add_u32 {sOFF}, {sWOOFF}, {0 if wosame else rg*8*1280}")
        vq.op(f"buffer_load_dwordx4 a[{4*n}:{4*n+3}], {vWO}, s[{sWO}:{sWO+3}], {sOFF} offen offset:{c*256} {wof}", ("wo", n), nocap=not wobcap)
    kis = [0]
    def head_k(n):
        for _ in range(n):
            if kis[0] < T + ext:
                ld_tile(kis[0], False, kis[0]); kis[0] += 1
    def wo_touch(wopre):
        A(f"s_mul_i32 {sOFF}, {sBS}, 30720")
        A(f"s_mul_i32 {sT0}, {sWAVE}, 7680")
        A(f"s_add_u32 {sOFF}, {sOFF}, {sT0}")
        A(f"v_lshlrev_b32 {vZ}, 4, {vLANE}")
        for k in range(8):
            if k == 4: A(f"s_add_u32 {sOFF}, {sOFF}, 4096")
            if k == 7: A.setexec(0xffffffff)
            vq.op(f"buffer_load_dwordx4 a[{160+4*k}:{163+4*k}], {vZ}, s[{sWO}:{sWO+3}], {sOFF} offen offset:{(k%4)*1024} {wopre}", "wop")
        A.setexec(ALL)
    if wopre is not None: wo_touch(wopre)
    head_k(1)
    A("s_cmp_lg_u32 s2, 0")
    A("s_cbranch_scc1 L_nozero")
    for n in range(WS_ZEND // 4096):
        A(f"s_movk_i32 {sT0}, {n*4096}")
        A(f"buffer_store_dwordx4 v[{O}:{O+3}], {t0}, s[{sWS}:{sWS+3}], {sT0} offen sc1")
    A.label("L_nozero")
    A("s_waitcnt lgkmcnt(0)")
    sW = 16
    for ptr, dst in ((8, B), (10, B + 4), (12, D)):
        A.srd(sW, f"s{ptr}", f"s{ptr+1}", 3072)
        vq.op(f"buffer_load_dwordx4 v[{dst}:{dst+3}], {t0}, s[{sW}:{sW+3}], 0 offen", "mw")
    A(f"s_load_dword {sB2}, s[14:15], 0")
    def mktag():
        A(f"s_mul_i32 {sTAG}, {sTAG}, 0x2c9277b5")
        A(f"s_add_u32 {sTAG}, {sTAG}, 0x7f4a7c15")
    if eplate: A(f"s_load_dword {sTAG}, s[22:23], {WS_EP}")
    else: mktag()
    jl = vT[2]
    A(f"v_and_b32 {jl}, 7, {vLANE}")
    A(f"v_and_b32 {t1}, 1, {vLANE}")
    A(f"v_cmp_eq_u32 vcc, 1, {t1}")
    A(f"v_mov_b32 {vT[4]}, 0xffff")
    A(f"v_mov_b32 {vM[3]}, 0xffff0000")
    A(f"v_cndmask_b32 {vT[4]}, {vT[4]}, {vM[3]}, vcc")
    A(f"v_lshrrev_b32 {t1}, 1, {jl}")
    for r in range(4):
        A(f"v_cmp_eq_u32 vcc, {r}, {t1}")
        A("s_nop 1")
        A(f"v_cndmask_b32 {vM[r]}, 0, {vT[4]}, vcc")
    A(f"v_lshl_add_u32 {vAY}, {q}, 3, {jl}")
    A(f"v_lshlrev_b32 {vAY}, 4, {vAY}")
    A(f"s_mul_i32 {sT0}, {sWAVE}, 1536")
    A(f"v_add_u32 {vA0}, {sT0}, {vAY}")
    A(f"s_mul_i32 {sT0}, {sWAVE}, 2560")
    A(f"v_add_u32 {vAY}, {sT0}, {vAY}")
    A(f"v_lshrrev_b32 {t1}, 3, {vLANE}")
    A(f"s_mul_i32 {sT1}, {sBS}, 320")
    A(f"s_add_u32 {sT0}, {sT0}, {sT1}")
    A(f"v_lshl_add_u32 {vXN}, {t1}, 2, {sT0}")
    A(f"s_lshl_b32 {sT0}, {sWAVE}, 11")
    A(f"s_add_u32 {sT0}, {sT0}, {L_SC}")
    A(f"v_lshl_add_u32 {vSC}, {t1}, 2, {sT0}")
    A(f"v_mov_b32 {vMAX}, 0xff800000")
    A(f"v_lshlrev_b32 {vA1}, 2, v0")
    A(f"s_lshl_b32 {sT0}, s2, 2")
    A(f"s_add_u32 {sT0}, {sT0}, {sWAVE}")
    A(f"s_lshr_b32 {sT1}, {sT0}, 9")
    A(f"s_lshl_b32 {sT1}, {sT1}, 15")
    A(f"s_and_b32 {sT0}, {sT0}, 511")
    A(f"s_lshl_b32 {sT0}, {sT0}, 3")
    A(f"s_add_u32 {sT0}, {sT0}, 12800")
    A(f"s_or_b32 {sTB}, {sT0}, {sT1}")
    A(f"v_add_lshl_u32 v{TX}, {jl}, {sTB}, 16")
    A(f"v_mov_b32 v{TX+1}, v{TX}")
    A(f"v_mov_b32 v{TACC}, 0")
    A(f"v_mov_b32 v{TACC+1}, 0")
    K0 = -2.0 * 0.7978845608028654 * LOG2E
    A(f"v_mov_b32 v{TK1}, {F(K0 * 0.044715)}")
    A(f"v_mov_b32 v{TK1+1}, {F(K0 * 0.044715)}")
    A(f"s_mov_b32 s{sK0}, {F(K0)}")
    A(f"s_mov_b32 s{sK0+1}, {F(K0)}")
    A(f"s_mov_b32 s{sONE}, 1.0")
    A(f"s_mov_b32 s{sONE+1}, 1.0")
    A(f"v_mul_u32_u24 {vTA}, 2320, {t1}")
    A(f"v_add_u32 {vTA}, {L_W}, {vTA}")
    vq.CAP = cap0
    head_k(n1 - 1)
    vq.wait("x")
    if not st0: st()
    for n in range(5):
        A(f"v_lshlrev_b32 v{TW+2*n}, 16, v{XS+n}")
        A(f"v_and_b32 v{TW+2*n+1}, 0xffff0000, v{XS+n}")
    layernorm_fast(A, TW, QB, TW + 10, 4, True)
    A(f"s_mul_i32 {sT0}, {sWAVE}, 2560")
    A(f"v_lshl_add_u32 {vT[2]}, {vLANE}, 3, {sT0}")
    for n in range(10):
        A(f"v_cvt_pk_bf16_f32 v{QB+n}, v{QB+n}, v{QB+n}")
    for n in range(5):
        A(f"ds_write_b64 {vT[2]}, v[{QB+2*n}:{QB+2*n+1}] offset:{L_XN + n*512}")
    A(f"v_lshlrev_b32 {vZ}, 4, {vLANE}")
    A(f"v_add_u32 {vT[2]}, {sWB}, {vZ}")
    vq.wait("wq")
    A("s_waitcnt lgkmcnt(0)")
    if eplate: mktag()
    A(f"v_add_u32 {vT[2]}, {L_WQ}, {vT[2]}")
    for k in range(3):
        for t in range(3):
            r = AW + k * 12 + t * 4
            A(f"ds_write_b128 {vT[2]}, a[{r}:{r+3}] offset:{k*12288 + t*1024}")
    if wopre2 is not None:
        vq.wait("wop")
        wo_touch(wopre2)
    head_k(n1b)
    vq.wait("mw")
    A("s_waitcnt lgkmcnt(0)")
    A(f"s_cmp_eq_u32 {sWAVE}, 3")
    A("s_cbranch_scc1 L_now")
    for k, src in enumerate((B, B + 4, D)):
        for n in range(4):
            A(f"v_lshlrev_b32 v{TW+8*k+2*n}, 16, v{src+n}")
            A(f"v_and_b32 v{TW+8*k+2*n+1}, 0xffff0000, v{src+n}")
    A(f"v_mul_u32_u24 {vT[3]}, 2731, v0")
    A(f"v_mul_u32_u24 {vT[2]}, 96, v0")
    A(f"v_lshrrev_b32 {vT[3]}, 16, {vT[3]}")
    A(f"v_lshl_add_u32 {vT[2]}, {vT[3]}, 4, {vT[2]}")
    A(f"v_mov_b32 {vT[3]}, 0")
    A(f"ds_write_b32 {vT[3]}, {vT[3]} offset:{L_TP + 64}")
    for k in range(6):
        A(f"ds_write_b128 {vT[2]}, v[{TW+4*k}:{TW+4*k+3}] offset:{L_W + 16*k}")
    A("s_waitcnt lgkmcnt(0)")
    A.label("L_now")
    for n in range(10):
        A(f"ds_read_b32 v{QB+n}, {vXN} offset:{L_XN + n*32}")
    A(f"v_add_u32 {vT[2]}, {L_WQ}, {vZ}")
    A(f"v_mov_b32 {vT[4]}, 0")
    A("s_waitcnt lgkmcnt(0)")
    A("s_barrier")
    A(f"s_or_b32 {sT0}, s2, {sWAVE}")
    A(f"s_cmp_lg_u32 {sT0}, 0")
    A("s_cbranch_scc1 L_noflag")
    for r in range(4):
        A(f"v_mov_b32 v{ML+r}, {sTAG}")
    A(f"s_mov_b32 {sT0}, {WS_ZF}")
    A.setexec(1)
    A(f"buffer_store_dwordx4 v[{ML}:{ML+3}], {vT[4]}, s[{sWS}:{sWS+3}], {sT0} offen sc1")
    A.setexec(ALL)
    A.label("L_noflag")
    def wq_read(n):
        for t in range(3):
            r = AW + (n % 3) * 12 + t * 4
            A(f"ds_read_b128 a[{r}:{r+3}], {vT[2]} offset:{n*3072 + t*1024}")
    for n in range(3): wq_read(n)
    head_k(n1c)
    for n in range(10):
        bb = B + 4 * (n & 1)
        for r in range(4):
            A(f"v_and_b32 v{bb+r}, v{QB+n}, {vM[r]}")
        A(f"s_waitcnt lgkmcnt({3 * min(2, 9 - n)})")
        A("s_nop 0")
        for t in range(3):
            r = AW + (n % 3) * 12 + t * 4
            A(f"v_mfma_f32_16x16x32_bf16 v[{O+4*t}:{O+4*t+3}], a[{r}:{r+3}], v[{bb}:{bb+3}], v[{O+4*t}:{O+4*t+3}]")
        if n + 3 < 10:
            A("s_nop 3")
            wq_read(n + 3)
    def lds_put3():
        A.setexec(M_LO)
        A(f"ds_write_b128 {vA0}, v[{O}:{O+3}] offset:{L_P}")
        A.setexec(M_T1)
        A(f"ds_write_b128 {vA0}, v[{O+4}:{O+7}] offset:{L_P + 512}")
        A.setexec(M_HI)
        A(f"ds_write_b128 {vA0}, v[{O+8}:{O+11}] offset:{L_P + 768 + 256}")
        A.setexec(ALL)
    A(f"s_mul_i32 {sT0}, {sWAVE}, 1536")
    A(f"v_lshl_add_u32 {vT[2]}, {vLANE}, 2, {sT0}")
    A(f"s_lshl_b32 {sT0}, {sH}, 2")
    A(f"s_add_u32 {sT1}, {sT0}, {sWAVE}")
    A(f"s_lshl_b32 {sT1}, {sT1}, 3")
    A(f"s_add_u32 {sT1}, {sT1}, {sBS}")
    A(f"s_lshl_b32 {sT1}, {sT1}, 10")
    A(f"s_add_u32 {sT1}, {sT1}, {WS_QP}")
    A(f"s_add_u32 {sQG}, {sT0}, {sB}")
    A(f"s_lshl_b32 {sQG}, {sQG}, 2")
    A(f"s_add_u32 {sQG}, {sQG}, {sWAVE}")
    A(f"s_lshl_b32 {sQG}, {sQG}, 11")
    A(f"s_add_u32 {sQG}, {sQG}, {WS_QP}")
    lds_put3()
    A("s_waitcnt lgkmcnt(0)")
    for k in range(6):
        A(f"ds_read_b32 v{B+k}, {vT[2]} offset:{L_P + 256*k}")
    A(f"v_mov_b32 v{D+3}, {sTAG}")
    A("s_waitcnt lgkmcnt(0)")
    for k in range(3):
        A(f"v_add_f32 v{D+k}, v{B+k}, v{B+3+k}")
    vq.op(f"buffer_store_dwordx4 v[{D}:{D+3}], {vZ}, s[{sWS}:{sWS+3}], {sT1} offen sc1", "qst")
    st()
    vq.CAP = caph
    head_k(n2)
    def q_gather(track):
        for k in range(2):
            txt = f"buffer_load_dwordx4 v[{B+4*k}:{B+4*k+3}], {vZ}, s[{sWS}:{sWS+3}], {sQG} offen offset:{1024*k} sc1"
            if track: vq.op(txt, "qg")
            else: A(txt)
    q_gather(True)
    if tlb:
        A(f"v_lshlrev_b32 {vQ0}, 16, {vLANE}")
        A.setexec(0xfff)
        vq.op(f"buffer_load_dword v{ML}, {vQ0}, s[{sV}:{sV+3}], 0 offen nt", "tlb")
        if tlb > 1:
            vq.op(f"buffer_load_dword v{ML+1}, {vQ0}, s[{sK}:{sK+3}], 0 offen nt", "tlb")
            vq.op(f"buffer_load_dword v{ML+2}, {vQ0}, s[{sWO}:{sWO+3}], 0 offen nt", "tlb")
        A.setexec(ALL)
    head_k(T + ext - kis[0] - hb)
    vq.CAP = 54
    head_k(99)
    q, i, t0, t1 = vT[0], vT[1], vT[2], vT[3]
    A(f"v_and_b32 {t0}, 32, {vLANE}")
    A(f"v_and_b32 {t1}, 3, {vLANE}")
    A(f"v_lshl_add_u32 {t0}, {t1}, 3, {t0}")
    A(f"v_bfe_u32 {t1}, {vLANE}, 2, 3")
    A(f"v_add_lshl_u32 {vXN}, {t0}, {t1}, 1")
    A(f"s_mul_i32 {sT0}, {sWAVE}, 768")
    A(f"v_lshlrev_b32 {vQ0}, 2, {vLANE}")
    A(f"v_add_u32 {vQ1}, {sT0}, {vQ0}")
    A(f"v_and_b32 {t0}, 3, {vLANE}")
    A(f"v_lshl_add_u32 {t0}, {q}, 2, {t0}")
    A(f"v_and_b32 {t1}, 8, {vLANE}")
    A(f"v_add_lshl_u32 {vQ2}, {t0}, {t1}, 4")
    A(f"v_cmp_gt_u32 vcc, 8, {i}")
    A(f"v_add_u32 {t1}, 16, {t0}")
    A(f"v_subrev_u32 {t0}, 8, {t0}")
    A(f"v_cndmask_b32 {t0}, {t0}, {t1}, vcc")
    A(f"v_lshlrev_b32 {t0}, 4, {t0}")
    for r in range(12):
        A(f"v_mov_b32 v{QB+r}, 0")
    vq.wait("qg")
    A(f"s_mov_b32 {sSPIN}, {SPIN}")
    A.label("L_qchk")
    A(f"v_cmp_ne_u32 vcc, {sTAG}, v{B+3}")
    A(f"v_cmp_ne_u32 s[4:5], {sTAG}, v{B+7}")
    A("s_nop 1")
    A("s_or_b64 vcc, vcc, s[4:5]")
    A("s_cbranch_scc0 L_qok")
    A(f"s_sub_u32 {sSPIN}, {sSPIN}, 1")
    A(f"s_cmp_eq_u32 {sSPIN}, 0")
    A("s_cbranch_scc1 L_qok")
    A(f"s_add_u32 {sRETRY}, {sRETRY}, 1")
    A("s_sleep 2")
    q_gather(False)
    A("s_waitcnt vmcnt(0)")
    A("s_branch L_qchk")
    A.label("L_qok")
    for k in range(3):
        A(f"v_add_f32 v{B+k}, v{B+k}, v{B+4+k}")
    for k in range(3):
        A(f"ds_write_b32 {vQ1}, v{B+k} offset:{L_QS + 256*k}")
    A("s_waitcnt lgkmcnt(0)")
    A("s_barrier")
    for k in range(12):
        A(f"ds_read_b32 v{O+k}, {vQ0} offset:{L_QS + 256*k}")
    A("s_waitcnt lgkmcnt(0)")
    for k in range(3):
        A(f"v_add_f32 v{O+k}, v{O+k}, v{O+3+k}")
        A(f"v_add_f32 v{O+6+k}, v{O+6+k}, v{O+9+k}")
    for k in range(3):
        A(f"v_add_f32 v{O+k}, v{O+k}, v{O+6+k}")
    for k in range(3):
        A(f"v_cvt_pk_bf16_f32 v{O+k}, v{O+k}, v{O+k}")
    for k in range(3):
        A(f"ds_write_b16 {vXN}, v{O+k} offset:{L_QB + 128*k}")
    A("s_waitcnt lgkmcnt(0)")
    A.setexec(M_LO)
    A(f"ds_read_b128 v[{QB}:{QB+3}], {vQ2} offset:{L_QB}")
    A.setexec(M_HI)
    A(f"ds_read_b128 v[{QB+8}:{QB+11}], {vQ2} offset:{L_QB}")
    A.setexec(M_T1)
    A(f"ds_read_b128 v[{QB+4}:{QB+7}], {t0} offset:{L_QB}")
    A.setexec(ALL)
    for r in range(O, O + 12):
        A(f"v_mov_b32 v{r}, 0")
    def tab_reads():
        for k in range(6):
            A(f"ds_read_b128 v[{TW+4*k}:{TW+4*k+3}], {vTA} offset:{16*k}")
        A(f"v_add_u32 {vTA}, 96, {vTA}")
    A("s_waitcnt lgkmcnt(0)")
    tab_reads()
    ncalls = [0]
    published = [False]
    def tab_finish(dst):
        A.rb(dst, dst)
        A(f"v_add_f32 {dst}, {sB2}, {dst}")
        A(f"v_cvt_pk_bf16_f32 {dst}, {dst}, {dst}")
    def tab_publish():
        ta, tb = f"v{TACC}", f"v{TACC+1}"
        A(f"v_add_f32 {ta}, {ta}, {tb}")
        A("s_nop 1")
        A(f"v_add_f32_dpp {ta}, {ta}, {ta} row_ror:8 row_mask:0xf bank_mask:0xf")
        A(f"v_mov_b32 {tb}, {ta}")
        A("s_nop 1")
        A(f"v_permlane16_swap_b32 {ta}, {tb}")
        A(f"v_add_f32 {ta}, {ta}, {tb}")
        A(f"v_mov_b32 {tb}, {ta}")
        A("s_nop 1")
        A(f"v_permlane32_swap_b32 {ta}, {tb}")
        A(f"v_add_f32 {ta}, {ta}, {tb}")
        tab_finish(ta)
        A(f"s_lshl_b32 {sT0}, {sWAVE}, 4")
        A(f"v_lshl_add_u32 {tb}, {vLANE}, 1, {sT0}")
        A(f"s_lshl_b32 {sT1}, s2, 6")
        A(f"s_add_u32 {sT1}, {sT1}, {sT0}")
        A(f"s_add_u32 {sT1}, {sT1}, {WS_TAB}")
        A.setexec(0xff)
        A(f"ds_write_b16 {tb}, {ta} offset:{L_TP}")
        A.setexec(1)
        A("s_waitcnt lgkmcnt(0)")
        A(f"ds_read_b128 v[{TW}:{TW+3}], {tb} offset:{L_TP}")
        A("s_waitcnt lgkmcnt(0)")
        vq.op(f"buffer_store_dwordx4 v[{TW}:{TW+3}], {vT[4]}, s[{sWS}:{sWS+3}], {sT1} offen sc1", "tab")
        A.setexec(ALL)
    A(f"s_lshl_b32 {sB2}, {sB2}, 16")
    st()
    s = vT[0]
    slot_of = list(range(T + ext))
    nxt = [T + ext]
    def refill(slot):
        if slot >= T or nxt[0] >= 2 * NT: return False
        m = nxt[0]; nxt[0] += 1
        slot_of.append(slot)
        ld_tile(slot, m >= NT, m % NT)
        return True
    NR = 4
    NR = 6
    use_order = [rg * 5 + c for rg in range(NR) for c in range(5)] + [rg * 5 + c for c in range(5) for rg in range(NR, 12)]
    late = use_order[60 - wo_late:]
    wo_order = [k for k in list(range(3 * ext, 60)) + list(range(3 * ext)) if k not in late] + late
    wo_left = [60]
    if wob:
        f = -(-3 * ext // 5) * 5
        wo_order = list(range(f, 60)) + list(range(f))
    def wo_step(n):
        if wob:
            if n % wob != wob - 1 or wo_left[0] == 0: return False
            assert wo_order[60 - wo_left[0]] >= 3 * ext or n >= T + ext
            for _ in range(wob):
                ld_wo(wo_order[60 - wo_left[0]]); wo_left[0] -= 1
            return True
        if n < wo_start or wo_left[0] <= wo_late: return False
        if not wo2 and (n - wo_start + 1) * wo_rate < 60 - wo_left[0] + 1 - 1e-9: return False
        k = wo_order[60 - wo_left[0]]
        if k < 3 * ext and n % 1000 < T + k // 3: return False
        ld_wo(k); wo_left[0] -= 1
        return True
    vq.CAP = capk
    for n in range(NT):
        if n == NT - T or wo_left[0] <= wo_late: vq.CAP = capv
        if n >= NT - bb_: vq.CAP = 54
        slot = slot_of[n]
        vq.wait(("k", n))
        for tt in range(3):
            c = "0" if tt == 0 else f"v[{D}:{D+3}]"
            A(f"v_mfma_f32_16x16x32_bf16 v[{D}:{D+3}], {treg(slot, tt)}, v[{QB+4*tt}:{QB+4*tt+3}], {c}")
        if not refill(slot): A("s_nop 6")
        if not wo_step(n): A("s_nop 0")
        if n < wo2: wo_step(n + 1000)
        s2 = vT[1]
        A(f"v_mov_b32_dpp {s}, v{D} quad_perm:[0,0,0,0] row_mask:0xf bank_mask:0xf")
        A(f"v_mov_b32_dpp {s2}, v{D+2} quad_perm:[2,2,2,2] row_mask:0xf bank_mask:0xf")
        A("s_nop 0")
        A(f"v_add_f32_dpp {s}, v{D+1}, {s} quad_perm:[1,1,1,1] row_mask:0xf bank_mask:0xf")
        A(f"v_add_f32_dpp {s2}, v{D+3}, {s2} quad_perm:[3,3,3,3] row_mask:0xf bank_mask:0xf")
        A(f"v_add_f32 {s}, {s}, {s2}")
        A.rb(s, s)
        A(f"v_mul_f32 {s}, {F(192 ** -0.5)}, {s}")
        A.rb(s, s)
        A(f"v_max_f32 {vMAX}, {vMAX}, {s}")
        A(f"ds_write_b32 {vSC}, {s} offset:{n*32}")
        if n >= tab_start:
            if ncalls[0] < 24:
                if not notab: A(f"s_call_b64 s[{sRET}:{sRET+1}], L_tab")
                ncalls[0] += 1
            elif not published[0]:
                published[0] = True
                tab_publish()
    assert published[0]
    st()
    A.wave_red("max", vMAX, sM)
    A(f"s_lshl_b32 {sT0}, {sWAVE}, 11")
    A(f"s_add_u32 {sT0}, {sT0}, {L_SC}")
    A(f"v_lshl_add_u32 {vT[0]}, {vLANE}, 5, {sT0}")
    A("s_waitcnt lgkmcnt(0)")
    A(f"ds_read_b128 v[{B}:{B+3}], {vT[0]}")
    A(f"ds_read_b128 v[{B+4}:{B+7}], {vT[0]} offset:16")
    A("s_waitcnt lgkmcnt(0)")
    for r in range(8):
        A(f"v_subrev_f32 v{B+r}, {sM}, v{B+r}")
    for r in range(8):
        A(f"v_mul_f32 v{B+r}, {F(LOG2E)}, v{B+r}")
    for r in range(8):
        A(f"v_exp_f32 v{B+r}, v{B+r}")
    A("s_nop 0")
    A(f"v_add_f32 {vT[1]}, v{B}, v{B+1}")
    for r in range(2, 8):
        A(f"v_add_f32 {vT[1]}, {vT[1]}, v{B+r}")
    for r in range(8):
        A(f"v_cvt_pk_bf16_f32 v{B+r}, v{B+r}, v{B+r}")
    A(f"ds_write_b128 {vT[0]}, v[{B}:{B+3}]")
    A(f"ds_write_b128 {vT[0]}, v[{B+4}:{B+7}] offset:16")
    A.wave_red("add", vT[1], sL)
    A(f"v_mov_b32 v{ML}, {sM}")
    A(f"v_mov_b32 v{ML+1}, {sL}")
    A(f"v_mov_b32 v{ML+2}, {sTAG}")
    A(f"v_mov_b32 v{ML+3}, {sTAG}")
    A(f"s_lshl_b32 {sT0}, {sBH}, 7")
    A(f"s_add_u32 {sT0}, {sT0}, {WS_ML}")
    A(f"v_lshl_add_u32 {vZ}, {vLANE}, 4, {sT0}")
    A(f"s_mov_b32 {sT0}, {WS_ZF}")
    A(f"v_writelane_b32 {vZ}, {sT0}, 8")
    A(f"s_lshl_b32 {sT1}, {sHALF}, 2")
    A(f"s_add_u32 {sT1}, {sT1}, {sWAVE}")
    A(f"s_lshl_b32 {sT1}, {sT1}, 4")
    A.setexec(1)
    vq.op(f"buffer_store_dwordx4 v[{ML}:{ML+3}], {vZ}, s[{sWS}:{sWS+3}], {sT1} offen sc1", "mlst")
    A.setexec(ALL)
    vq.CAP = capv
    PP = [QB + n for n in range(8)]
    A("s_waitcnt lgkmcnt(0)")
    for n in range(4):
        A(f"ds_read_b32 v{PP[n]}, {vSC} offset:{n*32}")
    def fcalc():
        vq.wait("ml")
        A(f"s_mov_b32 {sSPIN}, {SPIN}")
        A.label("L_mlchk")
        A(f"v_cmp_ne_u32 vcc, {sTAG}, v{ML+2}")
        A("s_nop 1")
        A("s_and_b32 vcc_lo, vcc_lo, 0x1ff")
        A("s_cbranch_scc0 L_mlok")
        A(f"s_sub_u32 {sSPIN}, {sSPIN}, 1")
        A(f"s_cmp_eq_u32 {sSPIN}, 0")
        A("s_cbranch_scc1 L_mlok")
        A("s_sleep 8")
        A.setexec(0x1ff)
        A(f"buffer_load_dwordx4 v[{ML}:{ML+3}], {vZ}, s[{sWS}:{sWS+3}], 0 offen sc1")
        A.setexec(ALL)
        A("s_waitcnt vmcnt(0)")
        A("s_branch L_mlchk")
        A.label("L_mlok")
        mm, e = vT[0], vT[1]
        A(f"v_mov_b32 {mm}, v{ML}")
        for stp in Asm.DPP_STEPS[:3]:
            A("s_nop 1")
            A(f"v_max_f32_dpp {mm}, {mm}, {mm} {stp}")
        A(f"v_sub_f32 {e}, v{ML}, {mm}")
        A(f"v_sub_f32 {mm}, {sM}, {mm}")
        A(f"v_mul_f32 {e}, {F(LOG2E)}, {e}")
        A(f"v_mul_f32 {mm}, {F(LOG2E)}, {mm}")
        A(f"v_exp_f32 {e}, {e}")
        A(f"v_exp_f32 {mm}, {mm}")
        A(f"v_mul_f32 {e}, {e}, v{ML+1}")
        for stp in Asm.DPP_STEPS[:3]:
            A("s_nop 1")
            A(f"v_add_f32_dpp {e}, {e}, {e} {stp}")
        A(f"v_rcp_f32 {e}, {e}")
        A("s_nop 0")
        A(f"v_mul_f32 {e}, {e}, {mm}")
        A("s_nop 0")
        A(f"v_readfirstlane_b32 {sF}, {e}")
        A(f"s_mov_b32 s{sFP}, {sF}")
        A(f"s_mov_b32 s{sFP+1}, {sF}")
        for k, m in enumerate((M_LO, M_T1, M_HI)):
            A(f"s_mov_b32 s{sMK+2*k}, 0x{m & 0xffffffff:08x}")
            A(f"s_mov_b32 s{sMK+2*k+1}, 0x{m >> 32:08x}")
        A(f"v_lshrrev_b32 {vT[0]}, 4, {vLANE}")
        A(f"s_lshr_b32 {sT0}, {sWAVE}, 1")
        A(f"s_mul_i32 {sT0}, {sT0}, 24")
        A(f"s_and_b32 {sT1}, {sWAVE}, 1")
        A(f"s_lshl_b32 {sT1}, {sT1}, 2")
        A(f"s_add_u32 {sT0}, {sT0}, {sT1}")
        A(f"v_add_lshl_u32 {vT[0]}, {vT[0]}, {sT0}, 4")
        A(f"v_and_b32 {vT[1]}, 15, {vLANE}")
        A(f"v_min_u32 {vT[1]}, 11, {vT[1]}")
        A(f"v_lshrrev_b32 {vT[2]}, 2, {vT[1]}")
        A(f"v_lshl_add_u32 {vT[0]}, {vT[2]}, 7, {vT[0]}")
        A(f"v_and_b32 {vT[1]}, 3, {vT[1]}")
        A(f"v_lshl_add_u32 {vQ0}, {vT[1]}, 2, {vT[0]}")
        A(f"s_lshl_b32 {sTK}, {sB}, 7")
        A(f"s_add_u32 {sTK}, {sTK}, {WS_CNT}")
        A(f"v_mov_b32 {vZ}, 1")
        A(f"v_lshrrev_b32 {vT[0]}, 4, v0")
        A(f"v_mul_u32_u24 {vT[0]}, 15, {vT[0]}")
        A(f"v_and_b32 {vT[1]}, 15, v0")
        A(f"v_add_u32 {vT[0]}, {vT[0]}, {vT[1]}")
        A(f"v_cmp_eq_u32 vcc, 15, {vT[1]}")
        A(f"v_mov_b32 {vCNT}, 1.0")
        A(f"v_mov_b32 {vMK[0]}, -1")
        A(f"v_cndmask_b32 {vCNT}, 0, {vCNT}, vcc")
        A(f"v_cndmask_b32 {vMK[0]}, {vMK[0]}, 0, vcc")
        A(f"v_cmp_gt_u32 vcc, 160, {vT[0]}")
        for k in range(3):
            col, t = vT[2], vT[3]
            A(f"v_add_u32 {col}, {240*k}, {vT[0]}")
            A(f"v_min_u32 {col}, 639, {col}")
            A(f"v_and_b32 {vYA[k]}, 0x3e0, {col}")
            A(f"v_and_b32 {t}, 7, {col}")
            A(f"v_lshl_add_u32 {vYA[k]}, {t}, 2, {vYA[k]}")
            A(f"v_bfe_u32 {t}, {col}, 3, 2")
            A(f"v_add_lshl_u32 {vYA[k]}, {vYA[k]}, {t}, 2")
        A(f"v_cndmask_b32 {vMK[1]}, 0, {vMK[0]}, vcc")
        A(f"s_mul_i32 {sWQOFF}, {sB}, 3072")
    for n in range(NT):
        slot = slot_of[NT + n]
        bb = B + 4 * (n & 1)
        if n + 4 < NT:
            A(f"ds_read_b32 v{PP[(n+4)%8]}, {vSC} offset:{(n+4)*32}")
            A("s_waitcnt lgkmcnt(4)")
        else:
            A(f"s_waitcnt lgkmcnt({NT-1-n})")
        for r in range(4):
            A(f"v_and_b32 v{bb+r}, v{PP[n%8]}, {vM[r]}")
        vq.wait(("v", n))
        A("s_nop 1")
        for tt in range(3):
            A(f"v_mfma_f32_16x16x32_bf16 v[{O+4*tt}:{O+4*tt+3}], {treg(slot, tt)}, v[{bb}:{bb+3}], v[{O+4*tt}:{O+4*tt+3}]")
        if lift and n == NT - T - lift: vq.CAP = liftcap
        refill(slot)
        wo_step(NT + n)
        if n == NT - T - 1:
            assert wo_left[0] == wo_late
            vq.CAP = cape
            for k in late: ld_wo(k)
            wo_left[0] = 0
        if n == ml_at:
            A.setexec(0x1ff)
            vq.op(f"buffer_load_dwordx4 v[{ML}:{ML+3}], {vZ}, s[{sWS}:{sWS+3}], 0 offen sc1", "ml")
            A.setexec(ALL)
        if n == fc_at:
            fcalc()
        if n == 8:
            vq.wait("tab")
            A(f"v_mov_b32 v{TACC+1}, 1")
            A.setexec(1)
            A(f"ds_add_rtn_u32 v{TACC}, {vT[4]}, v{TACC+1} offset:{L_TP + 64}")
            A("s_waitcnt lgkmcnt(0)")
            A(f"v_readfirstlane_b32 {sT0}, v{TACC}")
            A(f"s_cmp_lg_u32 {sT0}, 3")
            A("s_cbranch_scc1 L_notd")
            A(f"s_lshl_b32 {sT0}, s2, 6")
            A(f"s_add_u32 {sT0}, {sT0}, {WS_TD}")
            A(f"v_mov_b32 v{TACC+1}, {sTAG}")
            A(f"buffer_store_dword v{TACC+1}, {vT[4]}, s[{sWS}:{sWS+3}], {sT0} offen sc1")
            A.label("L_notd")
            A.setexec(ALL)
    assert wo_left[0] == 0
    st()
    if noend: A("s_endpgm")
    A("s_nop 5")
    for t, off in enumerate((L_P, L_P + 512, L_P + 1024)):
        A(f"s_mov_b64 exec, s[{sMK+2*t}:{sMK+2*t+1}]")
        A(f"v_pk_mul_f32 v[{O+4*t}:{O+4*t+1}], v[{O+4*t}:{O+4*t+1}], s[{sFP}:{sFP+1}]")
        A(f"v_pk_mul_f32 v[{O+4*t+2}:{O+4*t+3}], v[{O+4*t+2}:{O+4*t+3}], s[{sFP}:{sFP+1}]")
        A(f"ds_write_b128 {vA0}, v[{O+4*t}:{O+4*t+3}] offset:{off}")
    A.setexec(1)
    A(f"s_cmp_lg_u32 {sWAVE}, 3")
    A("s_cbranch_scc1 L_notick")
    A(f"buffer_atomic_add {vZ}, {vT[4]}, s[{sWS}:{sWS+3}], {sTK} offen sc0")
    A.label("L_notick")
    A.setexec(ALL)
    A("s_waitcnt lgkmcnt(0)")
    A("s_barrier")
    st()
    assert L_P % 256 == 0
    for k in range(4):
        A(f"ds_read2st64_b32 v[{B+2*k}:{B+2*k+1}], {vQ0} offset0:{L_P//256 + 6*k} offset1:{L_P//256 + 6*k + 3}")
    A("s_waitcnt lgkmcnt(2)")
    A(f"v_pk_add_f32 v[{B}:{B+1}], v[{B}:{B+1}], v[{B+2}:{B+3}]")
    A("s_waitcnt lgkmcnt(0)")
    A(f"v_pk_add_f32 v[{B+4}:{B+5}], v[{B+4}:{B+5}], v[{B+6}:{B+7}]")
    A(f"v_pk_add_f32 v[{B}:{B+1}], v[{B}:{B+1}], v[{B+4}:{B+5}]")
    A(f"v_add_f32 v{B}, v{B}, v{B+1}")
    A(f"v_cvt_pk_bf16_f32 v{B+2}, v{B}, v{B}")
    A(f"v_and_b32 v{B+1}, 0xffff0000, v{B+2}")
    A(f"v_sub_f32 v{B+1}, v{B}, v{B+1}")
    A(f"v_cvt_pk_bf16_f32 v{B+3}, v{B+1}, v{B+1}")
    BO = R0
    YD = R0 + 48
    def omfma(rg, c):
        n = rg * 5 + c
        cc = "0" if rg == 0 else f"v[{YD+4*c}:{YD+4*c+3}]"
        vq.wait(("wo", n))
        A(f"v_mfma_f32_16x16x32_bf16 v[{YD+4*c}:{YD+4*c+3}], a[{4*n}:{4*n+3}], v[{BO+4*rg}:{BO+4*rg+3}], {cc}")
    hi = lambda rg: f"v_mov_b32_dpp v{O+rg}, v{B+2} row_newbcast:{rg} row_mask:0xf bank_mask:0x3"
    lo = lambda rg: f"v_mov_b32_dpp v{O+rg}, v{B+3} row_newbcast:{rg} row_mask:0xf bank_mask:0xc"
    fill = [hi(0), hi(1), hi(2)]
    for rg in range(12):
        fill.append(lo(rg))
        for r in range(4):
            fill.append(f"v_and_b32 v{BO+4*rg+r}, v{O+rg}, {vM[r]}")
        if rg + 3 < 12: fill.append(hi(rg + 3))
    def emit(k):
        for _ in range(k):
            if fill: A(fill.pop(0))
    emit(10)
    NR2 = 6
    for rg in range(NR2):
        for c in range(5):
            omfma(rg, c)
            emit(2)
    emit(99)
    A("s_nop 1")
    def ypieces(c):
        p = [f"v_add_f32_dpp v{YD+4*c+r}, v{YD+4*c+r}, v{YD+4*c+r} row_ror:8 row_mask:0xf bank_mask:0xf" for r in range(4)]
        return p
    def ywrite(c):
        A(f"s_mov_b64 exec, s[{sMK}:{sMK+1}]")
        A(f"ds_write_b128 {vAY}, v[{YD+4*c}:{YD+4*c+3}] offset:{L_YP + c*512}")
        A.setexec(ALL)
    for c in range(5):
        p = ypieces(c - 2) if c >= 2 else []
        for k, rg in enumerate(range(NR2, 12)):
            omfma(rg, c)
            if p and k in (2, 3):
                A(p.pop(0)); A(p.pop(0))
            if c >= 2 and k == 4:
                ywrite(c - 2)
    for x in ypieces(3): A(x)
    ywrite(3)
    A("s_nop 0")
    for x in ypieces(4): A(x)
    ywrite(4)
    A("s_waitcnt lgkmcnt(0)")
    A("s_barrier")
    st()
    for k in range(2):
        for w in range(4):
            A(f"ds_read_b32 v{O+4*k+w}, {vYA[k]} offset:{L_YP + 2560*w}")
    A(f"s_cmp_eq_u32 {sWAVE}, 3")
    A("s_cbranch_scc1 L_two")
    for w in range(4):
        A(f"ds_read_b32 v{O+8+w}, {vYA[2]} offset:{L_YP + 2560*w}")
    A("s_waitcnt lgkmcnt(0)")
    A(f"v_add_f32 v{O+8}, v{O+8}, v{O+9}")
    A(f"v_add_f32 v{O+10}, v{O+10}, v{O+11}")
    A(f"v_add_f32 v{O+8}, v{O+8}, v{O+10}")
    A(f"v_and_or_b32 v{O+8}, v{O+8}, {vMK[1]}, {vCNT}")
    A(f"buffer_atomic_add_f32 v{O+8}, {vA1}, s[{sWS}:{sWS+3}], {sWQOFF} offen offset:{WS_ACC + 2048}")
    A.label("L_two")
    A("s_waitcnt lgkmcnt(0)")
    for k in range(2):
        A(f"v_add_f32 v{O+4*k}, v{O+4*k}, v{O+4*k+1}")
        A(f"v_add_f32 v{O+4*k+2}, v{O+4*k+2}, v{O+4*k+3}")
    for k in range(2):
        A(f"v_add_f32 v{O+4*k}, v{O+4*k}, v{O+4*k+2}")
    for k in range(2):
        A(f"v_and_or_b32 v{O+4*k}, v{O+4*k}, {vMK[0]}, {vCNT}")
        A(f"buffer_atomic_add_f32 v{O+4*k}, {vA1}, s[{sWS}:{sWS+3}], {sWQOFF} offen offset:{WS_ACC + 1024*k}")
    st()
    A(f"s_cmp_lg_u32 {sWAVE}, 3")
    A("s_cbranch_scc1 L_done")
    A("s_waitcnt vmcnt(2)")
    A(f"v_readfirstlane_b32 {sT0}, {vZ}")
    A(f"s_cmp_lg_u32 {sT0}, 0")
    A("s_cbranch_scc1 L_done")
    H = R0
    HN = R0 + 12
    G = R0 + 24
    X = R0 + 36
    XO = R0 + 48
    T1 = R0 + 60
    T2 = R0 + 66
    TB = R0 + 72
    h = [f"v{H+n}" for n in range(11)]
    hn = [f"v{HN+n}" for n in range(11)]
    A("s_load_dwordx2 s[8:9], s[0:1], 0")
    A(f"s_mul_i32 {sT0}, {sB}, 1280")
    A.srd_off(sOUT, 20, sT0, 1280)
    A(f"v_lshlrev_b32 {vT[1]}, 8, {vLANE}")
    A(f"s_movk_i32 {sT1}, {WS_TD}")
    def tdload():
        for k in range(4):
            A(f"buffer_load_dword v{ML+k}, {vT[1]}, s[{sWS}:{sWS+3}], {sT1} offen offset:{k*64} sc1")
    tdload()
    A(f"v_lshrrev_b32 {vT[0]}, 4, {vLANE}")
    A(f"v_mul_u32_u24 {vT[0]}, 15, {vT[0]}")
    A(f"v_and_b32 {vT[2]}, 15, {vLANE}")
    A(f"v_add_lshl_u32 {vT[0]}, {vT[0]}, {vT[2]}, 1")
    A(f"v_cmp_eq_u32 vcc, 15, {vT[2]}")
    A(f"v_mov_b32 {vT[2]}, 0x10000")
    A(f"v_mov_b32 {vMK[1]}, 0")
    A(f"v_cndmask_b32 {vT[0]}, {vT[0]}, {vT[2]}, vcc")
    A.setexec(M_D10)
    A(f"v_mov_b32 {vMK[1]}, -1")
    A.setexec(ALL)
    A(f"v_mov_b32 {vQ0}, {vMK[1]}")
    for r in list(range(G, G + 12)) + list(range(X, X + 12)) + list(range(T1, T1 + 12)) + [H + 11]:
        A(f"v_mov_b32 v{r}, 0")
    A("s_waitcnt lgkmcnt(0)")
    A.srd_off(sX, 8, sT0, 1280)
    for n in range(11):
        A(f"buffer_load_short_d16_hi v{X+n}, {vT[0]}, s[{sX}:{sX+3}], 0 offen offset:{n*120}")
    A("s_waitcnt vmcnt(11)")
    A(f"s_mov_b32 {sSPIN}, {SPIN}")
    A.label("L_tdchk")
    for k in range(4):
        A(f"v_xor_b32 v{ML+k}, {sTAG}, v{ML+k}")
    A(f"v_or3_b32 v{ML}, v{ML}, v{ML+1}, v{ML+2}")
    A(f"v_or_b32 v{ML}, v{ML}, v{ML+3}")
    A(f"v_cmp_ne_u32 vcc, 0, v{ML}")
    A("s_nop 1")
    A("s_cmp_eq_u64 vcc, 0")
    A("s_cbranch_scc1 L_tdok")
    A(f"s_sub_u32 {sSPIN}, {sSPIN}, 1")
    A(f"s_cmp_eq_u32 {sSPIN}, 0")
    A("s_cbranch_scc1 L_tdok")
    A("s_sleep 8")
    tdload()
    A("s_waitcnt vmcnt(0)")
    A("s_branch L_tdchk")
    A.label("L_tdok")
    A(f"v_lshlrev_b32 {vT[1]}, 4, {vLANE}")
    for k in range(16):
        if k % 4 == 0: A(f"s_mov_b32 {sT0}, {WS_TAB + k*1024}")
        A(f"buffer_load_dwordx4 v[{TB+4*k}:{TB+4*k+3}], {vT[1]}, s[{sWS}:{sWS+3}], {sT0} offen offset:{(k%4)*1024} sc1")
    A(f"v_mov_b32 {vZ}, {sTAG}")
    A(f"s_mov_b32 {sT1}, {WS_EP}")
    A.setexec(1)
    A(f"buffer_store_dword {vZ}, {vT[4]}, s[{sWS}:{sWS+3}], {sT1} offen sc1")
    A.setexec(ALL)
    A(f"v_add_u32 {vT[2]}, 0x10000, {vT[1]}")
    A("s_waitcnt vmcnt(1)")
    for k in range(16):
        if k == 8: A("s_waitcnt lgkmcnt(0)")
        A(f"ds_write_b128 {vT[1] if k < 8 else vT[2]}, v[{TB+4*k}:{TB+4*k+3}] offset:{L_SC + (k%8)*1024}")
    A(f"v_lshlrev_b32 {vT[1]}, 2, {vLANE}")
    A(f"s_mov_b32 {sSPIN}, {SPIN}")
    A(f"s_mov_b32 s4, 0x80008000")
    st()
    A.label("L_poll")
    for n in range(11):
        A(f"buffer_load_dword {h[n]}, {vT[1]}, s[{sWS}:{sWS+3}], {sWQOFF} offen offset:{WS_ACC + n*256} sc1")
    A(f"s_sub_u32 {sSPIN}, {sSPIN}, 1")
    A("s_waitcnt vmcnt(0) lgkmcnt(0)")
    A(f"v_min3_f32 {vT[2]}, {h[0]}, {h[1]}, {h[2]}")
    A(f"v_min3_f32 {vT[3]}, {h[3]}, {h[4]}, {h[5]}")
    A(f"v_min3_f32 {vT[2]}, {h[6]}, {h[7]}, {vT[2]}")
    A(f"v_min3_f32 {vT[3]}, {h[8]}, {h[9]}, {vT[3]}")
    A(f"v_min3_f32 {vT[2]}, {h[10]}, {vT[2]}, {vT[3]}")
    A(f"s_cmp_eq_u32 {sSPIN}, 0")
    A("s_cbranch_scc1 L_pollok")
    A(f"v_cmp_neq_f32 vcc, {F(64.0)}, {vT[2]}")
    for n in range(2):
        A.rb(h[n], h[n])
    A("s_or_b32 vcc_lo, vcc_lo, vcc_hi")
    A("s_and_b32 vcc_lo, vcc_lo, s4")
    A("s_cbranch_scc1 L_poll")
    A.label("L_pollok")
    st()
    A.setexec(M_D)
    for n in range(2, 11):
        A.rb(h[n], h[n])
    for n in range(6):
        A(f"v_pk_add_f32 v[{H+2*n}:{H+2*n+1}], v[{H+2*n}:{H+2*n+1}], v[{X+2*n}:{X+2*n+1}]")
    for n in range(11):
        A.rb(h[n], h[n])
    layernorm_seg(A, H, HN, T1, 4, True, vQ0, M_D)
    layernorm_seg(A, HN, HN, T2, 4, False, vQ0, M_D)
    for n in range(11):
        A(f"v_lshrrev_b32 v{X+n}, 15, {hn[n]}")
        A(f"ds_read_u16_d16_hi v{G+n}, v{X+n} offset:{L_SC - 25600}")
    A(f"v_bfi_b32 {hn[10]}, {vQ0}, {hn[10]}, 1.0")
    A(f"v_min3_f32 {vT[2]}, abs({hn[0]}), abs({hn[1]}), abs({hn[2]})")
    A(f"v_max3_f32 {vT[3]}, abs({hn[0]}), abs({hn[1]}), abs({hn[2]})")
    for n in range(3, 11, 2):
        A(f"v_min3_f32 {vT[2]}, abs({hn[n]}), abs({hn[n+1]}), {vT[2]}")
        A(f"v_max3_f32 {vT[3]}, abs({hn[n]}), abs({hn[n+1]}), {vT[3]}")
    A(f"v_cmp_gt_f32 vcc, {F(2.0 ** -27)}, {vT[2]}")
    A(f"v_mov_b32 {vT[2]}, {F(32.0)}")
    A(f"v_cmp_le_f32 s[4:5], {vT[2]}, {vT[3]}")
    A("s_waitcnt lgkmcnt(0)")
    A("s_or_b64 vcc, vcc, s[4:5]")
    A("s_cbranch_scc1 L_direct")
    A.label("L_lookup")
    for n in range(6):
        A(f"v_pk_add_f32 v[{G+2*n}:{G+2*n+1}], v[{G+2*n}:{G+2*n+1}], v[{H+2*n}:{H+2*n+1}]")
    for n in range(6):
        A(f"v_cvt_pk_bf16_f32 v{G+2*n}, v{G+2*n}, v{G+2*n+1}")
    if ost is None:
        for n in range(11):
            op = "buffer_store_short" if n % 2 == 0 else "buffer_store_short_d16_hi"
            A(f"{op} v{G + (n & ~1)}, {vT[0]}, s[{sOUT}:{sOUT+3}], 0 offen offset:{n*120} {osf}")
        A.setexec(ALL)
    else:
        for n in range(11):
            op = "ds_write_b16" if n % 2 == 0 else "ds_write_b16_d16_hi"
            A(f"{op} {vT[0]}, v{G + (n & ~1)} offset:{L_XN + n*120}")
        A.setexec(ALL)
        A(f"v_lshlrev_b32 {vT[1]}, 4, {vLANE}")
        A("s_waitcnt lgkmcnt(0)")
        A(f"ds_read_b128 v[{G}:{G+3}], {vT[1]} offset:{L_XN}")
        A(f"ds_read_b128 v[{G+4}:{G+7}], {vT[1]} offset:{L_XN + 1024}")
        A("s_waitcnt lgkmcnt(1)")
        A(f"buffer_store_dwordx4 v[{G}:{G+3}], {vT[1]}, s[{sOUT}:{sOUT+3}], 0 offen {osf}")
        A("s_waitcnt lgkmcnt(0)")
        A(f"buffer_store_dwordx4 v[{G+4}:{G+7}], {vT[1]}, s[{sOUT}:{sOUT+3}], 0 offen offset:1024 {osf}")
    if stamps:
        A("s_waitcnt vmcnt(0)")
        st()
        st.flush(sWS, WS_STAMP + 65536, sWAVE, vT[0], vT[1])
        if dbg:
            A("s_load_dwordx2 s[4:5], s[0:1], 88")
            A("s_waitcnt lgkmcnt(0)")
            A.srd(16, "s4", "s5", 256)
            A(f"s_lshl_b32 s6, {sB}, 4")
            A(f"v_mov_b32 {vT[1]}, 0")
            A.setexec(1)
            for k, n in enumerate((3, 4, 5, 11)):
                A(f"s_sub_u32 s7, s{76+2*n}, s76")
                A(f"v_mov_b32 {vT[0]}, s7")
                A(f"buffer_store_dword {vT[0]}, {vT[1]}, s[16:19], s6 offen offset:{4*k}")
            A.setexec(ALL)
    A.label("L_done")
    if stamps:
        st.flush(sWS, WS_STAMP, sWAVE, vT[0], vT[1])
    A.label("L_end")
    A("s_endpgm")
    A.label("L_direct")
    A.setexec(ALL)
    A(f"v_lshrrev_b32 {vT[1]}, 3, {vLANE}")
    A(f"v_mul_u32_u24 {vT[1]}, 2320, {vT[1]}")
    A(f"v_and_b32 {vT[2]}, 7, {vLANE}")
    A(f"v_mul_u32_u24 {vT[2]}, 288, {vT[2]}")
    A(f"v_add_u32 {vT[1]}, {vT[1]}, {vT[2]}")
    A(f"v_add_u32 {vT[1]}, {L_W}, {vT[1]}")
    for n in range(11):
        A(f"v_bfe_u32 {vT[2]}, {hn[n]}, 23, 8")
        A(f"v_subrev_u32 {vT[2]}, 100, {vT[2]}")
        A.setexec(M_D)
        A(f"v_cmp_le_u32 s[4:5], 32, {vT[2]}")
        A.setexec(ALL)
        A.label(f"L_dir{n}")
        A("s_nop 1")
        A("s_cmp_eq_u64 s[4:5], 0")
        A(f"s_cbranch_scc1 L_dirx{n}")
        A(f"s_ff1_i32_b64 {sT0}, s[4:5]")
        A(f"v_readlane_b32 {sT1}, {hn[n]}, {sT0}")
        A(f"s_call_b64 s[6:7], L_eval")
        A(f"v_cmp_eq_u32 vcc, {sT1}, {hn[n]}")
        A("s_nop 1")
        A(f"v_cndmask_b32 v{G+n}, v{G+n}, v{TACC}, vcc")
        A("s_andn2_b64 s[4:5], s[4:5], vcc")
        A(f"s_branch L_dir{n}")
        A.label(f"L_dirx{n}")
    A.setexec(M_D)
    A("s_branch L_lookup")
    A.label("L_eval")
    A("s_nop 1")
    A(f"v_mov_b32 v{TX}, {sT1}")
    A(f"v_mov_b32 v{TX+1}, {sT1}")
    A(f"v_mov_b32 v{TACC}, 0")
    A(f"v_mov_b32 v{TACC+1}, 0")
    A(f"v_mov_b32 {vTA}, {vT[1]}")
    A("s_waitcnt lgkmcnt(0)")
    tab_reads()
    for _ in range(3):
        A(f"s_call_b64 s[{sRET}:{sRET+1}], L_tab")
    A(f"v_add_f32 v{TACC}, v{TACC}, v{TACC+1}")
    A.wave_red("add", f"v{TACC}", sT0)
    A(f"v_mov_b32 v{TACC}, {sT0}")
    tab_finish(f"v{TACC}")
    A(f"v_and_b32 v{TACC}, 0xffff0000, v{TACC}")
    A("s_setpc_b64 s[6:7]")
    A.label("L_tab")
    A("s_waitcnt lgkmcnt(0)")
    def P(r): return f"v[{r}:{r+1}]"
    W1, B1, W2 = TW, TW + 8, TW + 16
    for p in range(4): A(f"v_pk_mul_f32 {P(W1+2*p)}, {P(TX)}, {P(W1+2*p)}")
    for k in range(8): A.rb(f"v{W1+k}", f"v{W1+k}")
    for p in range(4): A(f"v_pk_add_f32 {P(W1+2*p)}, {P(W1+2*p)}, {P(B1+2*p)}")
    for k in range(8): A.rb(f"v{W1+k}", f"v{W1+k}")
    for p in range(4): A(f"v_pk_mul_f32 {P(B1+2*p)}, {P(W1+2*p)}, {P(W1+2*p)}")
    for p in range(4): A(f"v_pk_fma_f32 {P(B1+2*p)}, {P(B1+2*p)}, {P(TK1)}, s[{sK0}:{sK0+1}]")
    for p in range(4): A(f"v_pk_mul_f32 {P(B1+2*p)}, {P(B1+2*p)}, {P(W1+2*p)}")
    for k in range(8): A(f"v_exp_f32 v{B1+k}, v{B1+k}")
    for p in range(4): A(f"v_pk_add_f32 {P(B1+2*p)}, {P(B1+2*p)}, s[{sONE}:{sONE+1}]")
    for k in range(8): A(f"v_rcp_f32 v{B1+k}, v{B1+k}")
    for p in range(4): A(f"v_pk_mul_f32 {P(W1+2*p)}, {P(W1+2*p)}, {P(B1+2*p)}")
    for k in range(8): A.rb(f"v{W1+k}", f"v{W1+k}")
    for p in range(4): A(f"v_pk_fma_f32 {P(TACC)}, {P(W1+2*p)}, {P(W2+2*p)}, {P(TACC)}")
    tab_reads()
    A(f"s_setpc_b64 s[{sRET}:{sRET+1}]")
    acc = (NV + 3) // 4 * 4
    return A.text() + kd(KN, acc + 240, 102, acc)

if __name__ == "__main__":
    kw = eval("dict(%s)" % (sys.argv[2] if len(sys.argv) > 2 else ""))
    open(sys.argv[1], "w").write(gen(**kw))
```

```python
import sys
from asmlib import *

KN = "sequential_preLN__mha_block_cached__mixer_token_mlp__decode_kernel"
HDR = open("sequential_preLN__mha_block_cached__mixer_token_mlp__decode.s.ref").read().split("; Override launch")[0]
LOG2E = 1.4426950408889634
WS_ACC, WS_CNT, WS_ZEND = 0, 12288, 16384
WS_ML = 49152
WS_TD = 28672
WS_EP = 45056
WS_ZF = 45312
WS_TAB = 65536
WS_STAMP = 524288
WS_QP = 1 << 20
WS_SIZE = 2 << 20
L_XN = 0
L_P = 10240
L_QB = L_P + 6144
L_PH = L_QB + 512
L_W = L_PH + 1536
L_TP = L_W + 8 * 2320
L_YP = L_TP + 128
L_SC = L_YP + 10240
L_QS = L_SC + 8192
L_WQ = L_QS + 3072
L_END = L_SC + 65536 + 8192
M_D, M_D10 = 0x7FFF7FFF7FFF7FFF, 0x000003FF7FFF7FFF
M_LO, M_HI, M_T1 = 0x00FF00FF00FF00FF, 0xFF00FF00FF00FF00, 0xFF00FF0000FF00FF
ALL = (1 << 64) - 1
SPIN = 0x100000

class Stamps:
    def __init__(self, A, on, s0): self.A = A; self.on = on; self.s0 = s0; self.n = 0
    def __call__(self):
        if self.on:
            s = self.s0 + 2 * self.n
            self.A(f"s_memrealtime s[{s}:{s+1}]")
            self.n += 1
    def flush(self, srd, base, swave, v0, v1):
        if not self.on: return
        A = self.A
        A("s_waitcnt lgkmcnt(0)")
        A("s_lshl_b32 s6, s2, 2")
        A(f"s_add_u32 s6, s6, {swave}")
        A("s_lshl_b32 s6, s6, 6")
        A(f"s_add_u32 s6, s6, {base}")
        A(f"v_mov_b32 {v1}, 0")
        A.setexec(1)
        for n in range(self.n):
            A(f"v_mov_b32 {v0}, s{self.s0 + 2*n}")
            A(f"buffer_store_dword {v0}, {v1}, s[{srd}:{srd+3}], s6 offen offset:{4*n}")
        A("s_getreg_b32 s7, hwreg(HW_REG_XCC_ID)")
        A(f"v_mov_b32 {v0}, s7")
        A(f"buffer_store_dword {v0}, {v1}, s[{srd}:{srd+3}], s6 offen offset:60")
        A(f"v_mov_b32 {v0}, s51")
        A(f"buffer_store_dword {v0}, {v1}, s[{srd}:{srd+3}], s6 offen offset:56")
        A.setexec(ALL)

class VQ:
    CAP = 54
    CLASS = False
    def __init__(self, A): self.A = A; self.q = []; self.frac = 0.0
    def room(self, n):
        cap = int(self.CAP)
        self.frac += self.CAP - cap
        if self.frac >= 1.0 - 1e-9:
            self.frac -= 1.0; cap += 1
        if len(self.q) > cap - n:
            self.A(f"s_waitcnt vmcnt({cap - n})")
            self.q = self.q[len(self.q) - (cap - n):]
    def op(self, text, tag, nocap=False):
        if nocap:
            self.A(text); self.q.append(tag); return
        cap = int(self.CAP)
        self.frac += self.CAP - cap
        if self.frac >= 1.0 - 1e-9:
            self.frac -= 1.0; cap += 1
        if self.CLASS and cap < 40:
            idx = [i for i, t in enumerate(self.q) if not (isinstance(t, tuple) and t[0] == "wo")]
            if len(idx) >= cap:
                pos = idx[len(idx) - cap]
                self.A(f"s_waitcnt vmcnt({len(self.q) - 1 - pos})")
                self.q = self.q[pos + 1:]
        elif len(self.q) >= cap:
            self.A(f"s_waitcnt vmcnt({cap - 1})")
            self.q = self.q[-(cap - 1):]
        self.A(text)
        self.q.append(tag)
    def wait(self, tag):
        if tag not in self.q: return
        pos = len(self.q) - 1 - self.q[::-1].index(tag)
        self.A(f"s_waitcnt vmcnt({len(self.q) - 1 - pos})")
        self.q = self.q[pos + 1:]

def gen(T=12, ext=4, rot=13, wo_start=0, stamps=False, kf='nt', vf='nt', wf='nt', tab_start=20,
        n1=3, n1b=1, n1c=1, n2=4, capk=8, capv=6, caph=6, wo_rate=1.0, dbg=False, BL=0, pmul=1, tlb=0, st0=False, wo_late=0, cape=54, lift=4, liftcap=54, poll2=False, tabrot=False, rh=(56,48,48), burst=False, order=(0,1,2), eplate=False, wo2=0, cap0=54, nowo=False, notab=False, noend=False, wosame=False, wob=0, wobcap=True, ccap=False, hb=0, bb_=0, ml_at=28, fc_at=36, ost=None, osf='', wopre='nt', wof='', wopre2='sc1', noqx=False, nopub=False, qsf='sc1', qlf='sc1', noqst=False, noqld=False, notabst=False, nomlx=False, notd=False):
    if wof is None: wof = wf
    VQ.CLASS = ccap
    if dbg: stamps = True
    A = Asm()
    A.raw(HDR.rstrip())
    A.raw(f"; @launch grid=(256,1,1) block=(256,1,1) lds={L_END}")
    A.raw('.amdgcn_target "amdgcn-amd-amdhsa--gfx950"')
    A.raw(".text")
    A.raw(f".globl {KN}")
    st = Stamps(A, stamps, 76)
    NT = 64
    STEP = 12288
    REGION = 786432
    sX, sK, sV, sWQ, sWO, sWS = 24, 28, 32, 36, 40, 44
    sOUT = 36
    sTAG, sBS, sQG, sRETRY = "s48", "s49", "s50", "s51"
    sWAVE, sB, sH, sHALF, sBH, sT0, sT1 = "s52", "s53", "s54", "s55", "s56", "s57", "s58"
    sKREL, sVREL, sWB, sOFF, sWQOFF, sWOOFF, sM, sL, sF, sSPIN = "s59", "s60", "s61", "s62", "s63", "s64", "s65", "s66", "s67", "s68"
    sB2, sTB, sJMP = "s69", "s3", "s101"
    sK0, sONE, sRET = 70, 72, 74
    sFP, sMK, sTK = 8, 10, "s16"
    vLANE, vKO, vVO, vQ0, vQ1, vQ2, vWO = "v1", "v2", "v3", "v4", "v5", "v6", "v7"
    vM = ["v8", "v9", "v10", "v11"]
    vA0, vA1, vAY, vSC, vXN, vMAX, vZ = "v12", "v13", "v14", "v15", "v16", "v17", "v18"
    vT = [f"v{i}" for i in range(19, 24)]
    QB = 24
    D = 36
    O = 40
    B = 52
    ML = 60
    TW = 64
    TX, TACC, TK1 = 88, 90, 92
    vTA = "v94"
    XS = 95
    vYA = [vQ1, vQ2, vXN]; vCNT = vMAX; vMK = [f"v{TX}", f"v{TX+1}"]
    R0 = 100
    NV = R0 + 12 * T
    AW = 204
    assert NV <= 256 and ext * 12 <= AW
    vq = VQ(A)

    A.raw(".p2align 8")
    A.raw(f".type {KN},@function")
    A.label(KN)
    A("s_cmp_ge_u32 s2, 256")
    A("s_cbranch_scc1 L_end")
    st()
    A("s_load_dwordx8 s[8:15], s[0:1], 0")
    A("s_load_dwordx2 s[16:17], s[0:1], 32")
    A("s_load_dwordx2 s[22:23], s[0:1], 96")
    A(f"v_lshrrev_b32 {vT[0]}, 6, v0")
    A(f"v_and_b32 {vLANE}, 63, v0")
    A(f"v_readfirstlane_b32 {sWAVE}, {vT[0]}")
    A(f"s_and_b32 {sH}, s2, 7")
    A(f"s_lshr_b32 {sT0}, s2, 3")
    A(f"s_lshl_b32 {sH}, {sH}, 2")
    A(f"s_and_b32 {sT1}, {sT0}, 3")
    A(f"s_add_u32 {sH}, {sH}, {sT1}")
    A(f"s_lshr_b32 {sBS}, {sT0}, 2")
    A(f"s_lshr_b32 {sB}, {sT0}, 3")
    A(f"s_and_b32 {sHALF}, {sBS}, 1")
    A(f"s_lshl_b32 {sBH}, {sB}, 5")
    A(f"s_add_u32 {sBH}, {sBH}, {sH}")
    q, i, t0, t1 = vT[0], vT[1], vT[2], vT[3]
    A(f"v_lshrrev_b32 {q}, 4, {vLANE}")
    A(f"v_and_b32 {i}, 15, {vLANE}")
    A(f"v_lshrrev_b32 {t0}, 2, {i}")
    A(f"v_mul_u32_u24 {vKO}, 768, {t0}")
    A(f"v_lshl_add_u32 {vKO}, {q}, 6, {vKO}")
    A(f"v_and_b32 {t0}, 3, {i}")
    A(f"v_lshl_add_u32 {vKO}, {t0}, 4, {vKO}")
    A(f"v_mul_u32_u24 {vVO}, 768, {q}")
    A(f"v_lshl_add_u32 {vVO}, {i}, 4, {vVO}")
    A(f"v_mul_u32_u24 {vQ0}, 24576, {q}")
    A(f"v_lshl_add_u32 {vQ0}, {i}, 4, {vQ0}")
    A(f"v_add_u32 {vQ1}, 256, {vQ0}")
    A(f"v_add_u32 {vQ2}, {12288-128}, {vQ0}")
    A(f"v_cmp_gt_u32 vcc, 8, {i}")
    A(f"v_mul_u32_u24 {vWO}, 1280, {q}")
    A(f"v_lshl_add_u32 {vWO}, {i}, 4, {vWO}")
    A(f"v_cndmask_b32 {vQ1}, {vQ2}, {vQ1}, vcc")
    A(f"v_add_u32 {vQ2}, {12288+128}, {vQ0}")
    for r in range(O, O + 12):
        A(f"v_mov_b32 v{r}, 0")
    A(f"v_lshlrev_b32 {t0}, 4, v0")
    A(f"v_lshlrev_b32 {t1}, 2, {vLANE}")
    A(f"s_lshl_b32 {sT1}, {sBH}, 1")
    A(f"s_add_u32 {sT1}, {sT1}, {sHALF}")
    if rh is None:
        A(f"s_mul_i32 {sKREL}, {sT1}, {rot}")
    else:
        A(f"s_mul_i32 {sKREL}, {sHALF}, {rh[0]}")
        A(f"s_mul_i32 {sT0}, {sH}, {rh[1]}")
        A(f"s_add_u32 {sKREL}, {sKREL}, {sT0}")
        A(f"s_mul_i32 {sT0}, {sB}, {rh[2]}")
        A(f"s_add_u32 {sKREL}, {sKREL}, {sT0}")
    A(f"s_and_b32 {sKREL}, {sKREL}, 63")
    A(f"s_mov_b32 {sVREL}, {sKREL}")
    if BL:
        A(f"s_mul_i32 {sJMP}, {sT1}, {pmul}")
        A(f"s_lshr_b32 {sJMP}, {sJMP}, 2")
        A(f"s_lshl_b32 {sJMP}, {sJMP}, 1")
        A(f"s_mul_i32 {sJMP}, {sJMP}, {BL}")
        A(f"s_add_u32 {sJMP}, {sJMP}, 1")
    A(f"s_mul_i32 {sT1}, {sT1}, {REGION}")
    A(f"s_mul_i32 {sWB}, {sWAVE}, 3072")
    A(f"s_mul_i32 {sOFF}, {sBS}, {80*12288}")
    A(f"s_mul_i32 {sT0}, {sH}, 384")
    A(f"s_add_u32 {sOFF}, {sOFF}, {sT0}")
    A(f"s_mul_i32 {sWQOFF}, {sWAVE}, {8*12288}")
    A(f"s_lshr_b32 {sT0}, {sWAVE}, 1")
    A(f"s_mul_i32 {sWOOFF}, {sT0}, {96*1280}")
    A(f"s_and_b32 {sT0}, {sWAVE}, 1")
    A(f"s_mul_i32 {sT0}, {sT0}, {4*1280}")
    A(f"s_add_u32 {sWOOFF}, {sWOOFF}, {sT0}")
    A(f"s_mul_i32 {sT0}, {sWAVE}, 1280")
    A(f"s_mov_b32 {sRETRY}, 0")
    A("s_waitcnt lgkmcnt(0)")
    if st0: st()
    if tabrot:
        A("s_load_dwordx2 s[4:5], s[0:1], 40")
        A("s_lshl_b32 s6, s2, 2")
        A("s_waitcnt lgkmcnt(0)")
        A(f"s_load_dword {sKREL}, s[4:5], s6")
        A("s_waitcnt lgkmcnt(0)")
        A(f"s_and_b32 {sKREL}, {sKREL}, 63")
        A(f"s_mov_b32 {sVREL}, {sKREL}")
    A.srd_off(sX, 8, sT0, 1280)
    for n in range(5):
        vq.op(f"buffer_load_dword v{XS+n}, {t1}, s[{sX}:{sX+3}], 0 offen offset:{n*256}", "x")
    A.srd_off(sWQ, 14, sOFF, 79 * 12288 + 384)
    for k in range(3):
        for t, o in enumerate((vQ0, vQ1, vQ2)):
            r = AW + k * 12 + t * 4
            vq.op(f"buffer_load_dwordx4 a[{r}:{r+3}], {o}, s[{sWQ}:{sWQ+3}], {sWQOFF} offen {wf}", "wq")
        if k < 2: A(f"s_add_u32 {sWQOFF}, {sWQOFF}, {32*12288}")
    A.srd_off(sK, 10, sT1, REGION)
    A.srd_off(sV, 12, sT1, REGION)
    A(f"s_mul_i32 {sT0}, {sH}, 245760")
    A.srd_off(sWO, 16, sT0, 245760)
    A.srd(sWS, "s22", "s23", WS_SIZE)
    A("s_load_dwordx8 s[8:15], s[0:1], 48")
    A("s_load_dwordx2 s[20:21], s[0:1], 80")
    if not eplate: A(f"s_load_dword {sTAG}, s[22:23], {WS_EP}")

    def treg(slot, t):
        if slot < T:
            r = R0 + slot * 12 + t * 4
            return f"v[{r}:{r+3}]"
        r = (slot - T) * 12 + t * 4
        return f"a[{r}:{r+3}]"
    def ld_tile(slot, isv, n):
        rel, srd, off = (sVREL, sV, vVO) if isv else (sKREL, sK, vKO)
        A(f"s_mul_i32 {sOFF}, {rel}, {STEP}")
        A(f"s_add_u32 {sOFF}, {sOFF}, {sWB}")
        if burst: vq.room(3)
        for t in order:
            vq.op(f"buffer_load_dwordx4 {treg(slot, t)}, {off}, s[{srd}:{srd+3}], {sOFF} offen offset:{t*256} {vf if isv else kf}", ("v" if isv else "k", n), nocap=burst)
        A(f"s_add_u32 {rel}, {rel}, {sJMP if (BL and (n + 1) % BL == 0) else 1}")
        A(f"s_and_b32 {rel}, {rel}, 63")
    def ld_wo(n):
        rg, c = divmod(n, 5)
        if nowo:
            A("s_nop 0"); return
        A(f"s_add_u32 {sOFF}, {sWOOFF}, {0 if wosame else rg*8*1280}")
        vq.op(f"buffer_load_dwordx4 a[{4*n}:{4*n+3}], {vWO}, s[{sWO}:{sWO+3}], {sOFF} offen offset:{c*256} {wof}", ("wo", n), nocap=not wobcap)
    kis = [0]
    def head_k(n):
        for _ in range(n):
            if kis[0] < T + ext:
                ld_tile(kis[0], False, kis[0]); kis[0] += 1
    def wo_touch(wopre):
        A(f"s_mul_i32 {sOFF}, {sBS}, 30720")
        A(f"s_mul_i32 {sT0}, {sWAVE}, 7680")
        A(f"s_add_u32 {sOFF}, {sOFF}, {sT0}")
        A(f"v_lshlrev_b32 {vZ}, 4, {vLANE}")
        for k in range(8):
            if k == 4: A(f"s_add_u32 {sOFF}, {sOFF}, 4096")
            if k == 7: A.setexec(0xffffffff)
            vq.op(f"buffer_load_dwordx4 a[{160+4*k}:{163+4*k}], {vZ}, s[{sWO}:{sWO+3}], {sOFF} offen offset:{(k%4)*1024} {wopre}", "wop")
        A.setexec(ALL)
    if wopre is not None: wo_touch(wopre)
    head_k(1)
    A("s_cmp_lg_u32 s2, 0")
    A("s_cbranch_scc1 L_nozero")
    for n in range(WS_ZEND // 4096):
        A(f"s_movk_i32 {sT0}, {n*4096}")
        A(f"buffer_store_dwordx4 v[{O}:{O+3}], {t0}, s[{sWS}:{sWS+3}], {sT0} offen sc1")
    A.label("L_nozero")
    A("s_waitcnt lgkmcnt(0)")
    sW = 16
    for ptr, dst in ((8, B), (10, B + 4), (12, D)):
        A.srd(sW, f"s{ptr}", f"s{ptr+1}", 3072)
        vq.op(f"buffer_load_dwordx4 v[{dst}:{dst+3}], {t0}, s[{sW}:{sW+3}], 0 offen", "mw")
    A(f"s_load_dword {sB2}, s[14:15], 0")
    def mktag():
        A(f"s_mul_i32 {sTAG}, {sTAG}, 0x2c9277b5")
        A(f"s_add_u32 {sTAG}, {sTAG}, 0x7f4a7c15")
    if eplate: A(f"s_load_dword {sTAG}, s[22:23], {WS_EP}")
    else: mktag()
    jl = vT[2]
    A(f"v_and_b32 {jl}, 7, {vLANE}")
    A(f"v_and_b32 {t1}, 1, {vLANE}")
    A(f"v_cmp_eq_u32 vcc, 1, {t1}")
    A(f"v_mov_b32 {vT[4]}, 0xffff")
    A(f"v_mov_b32 {vM[3]}, 0xffff0000")
    A(f"v_cndmask_b32 {vT[4]}, {vT[4]}, {vM[3]}, vcc")
    A(f"v_lshrrev_b32 {t1}, 1, {jl}")
    for r in range(4):
        A(f"v_cmp_eq_u32 vcc, {r}, {t1}")
        A("s_nop 1")
        A(f"v_cndmask_b32 {vM[r]}, 0, {vT[4]}, vcc")
    A(f"v_lshl_add_u32 {vAY}, {q}, 3, {jl}")
    A(f"v_lshlrev_b32 {vAY}, 4, {vAY}")
    A(f"s_mul_i32 {sT0}, {sWAVE}, 1536")
    A(f"v_add_u32 {vA0}, {sT0}, {vAY}")
    A(f"s_mul_i32 {sT0}, {sWAVE}, 2560")
    A(f"v_add_u32 {vAY}, {sT0}, {vAY}")
    A(f"v_lshrrev_b32 {t1}, 3, {vLANE}")
    A(f"s_mul_i32 {sT1}, {sBS}, 320")
    A(f"s_add_u32 {sT0}, {sT0}, {sT1}")
    A(f"v_lshl_add_u32 {vXN}, {t1}, 2, {sT0}")
    A(f"s_lshl_b32 {sT0}, {sWAVE}, 11")
    A(f"s_add_u32 {sT0}, {sT0}, {L_SC}")
    A(f"v_lshl_add_u32 {vSC}, {t1}, 2, {sT0}")
    A(f"v_mov_b32 {vMAX}, 0xff800000")
    A(f"v_lshlrev_b32 {vA1}, 2, v0")
    A(f"s_lshl_b32 {sT0}, s2, 2")
    A(f"s_add_u32 {sT0}, {sT0}, {sWAVE}")
    A(f"s_lshr_b32 {sT1}, {sT0}, 9")
    A(f"s_lshl_b32 {sT1}, {sT1}, 15")
    A(f"s_and_b32 {sT0}, {sT0}, 511")
    A(f"s_lshl_b32 {sT0}, {sT0}, 3")
    A(f"s_add_u32 {sT0}, {sT0}, 12800")
    A(f"s_or_b32 {sTB}, {sT0}, {sT1}")
    A(f"v_add_lshl_u32 v{TX}, {jl}, {sTB}, 16")
    A(f"v_mov_b32 v{TX+1}, v{TX}")
    A(f"v_mov_b32 v{TACC}, 0")
    A(f"v_mov_b32 v{TACC+1}, 0")
    K0 = -2.0 * 0.7978845608028654 * LOG2E
    A(f"v_mov_b32 v{TK1}, {F(K0 * 0.044715)}")
    A(f"v_mov_b32 v{TK1+1}, {F(K0 * 0.044715)}")
    A(f"s_mov_b32 s{sK0}, {F(K0)}")
    A(f"s_mov_b32 s{sK0+1}, {F(K0)}")
    A(f"s_mov_b32 s{sONE}, 1.0")
    A(f"s_mov_b32 s{sONE+1}, 1.0")
    A(f"v_mul_u32_u24 {vTA}, 2320, {t1}")
    A(f"v_add_u32 {vTA}, {L_W}, {vTA}")
    vq.CAP = cap0
    head_k(n1 - 1)
    vq.wait("x")
    if not st0: st()
    for n in range(5):
        A(f"v_lshlrev_b32 v{TW+2*n}, 16, v{XS+n}")
        A(f"v_and_b32 v{TW+2*n+1}, 0xffff0000, v{XS+n}")
    layernorm_fast(A, TW, QB, TW + 10, 4, True)
    A(f"s_mul_i32 {sT0}, {sWAVE}, 2560")
    A(f"v_lshl_add_u32 {vT[2]}, {vLANE}, 3, {sT0}")
    for n in range(10):
        A(f"v_cvt_pk_bf16_f32 v{QB+n}, v{QB+n}, v{QB+n}")
    for n in range(5):
        A(f"ds_write_b64 {vT[2]}, v[{QB+2*n}:{QB+2*n+1}] offset:{L_XN + n*512}")
    A(f"v_lshlrev_b32 {vZ}, 4, {vLANE}")
    A(f"v_add_u32 {vT[2]}, {sWB}, {vZ}")
    vq.wait("wq")
    A("s_waitcnt lgkmcnt(0)")
    if eplate: mktag()
    A(f"v_add_u32 {vT[2]}, {L_WQ}, {vT[2]}")
    for k in range(3):
        for t in range(3):
            r = AW + k * 12 + t * 4
            A(f"ds_write_b128 {vT[2]}, a[{r}:{r+3}] offset:{k*12288 + t*1024}")
    if wopre2 is not None:
        vq.wait("wop")
        wo_touch(wopre2)
    head_k(n1b)
    vq.wait("mw")
    A("s_waitcnt lgkmcnt(0)")
    A(f"s_cmp_eq_u32 {sWAVE}, 3")
    A("s_cbranch_scc1 L_now")
    for k, src in enumerate((B, B + 4, D)):
        for n in range(4):
            A(f"v_lshlrev_b32 v{TW+8*k+2*n}, 16, v{src+n}")
            A(f"v_and_b32 v{TW+8*k+2*n+1}, 0xffff0000, v{src+n}")
    A(f"v_mul_u32_u24 {vT[3]}, 2731, v0")
    A(f"v_mul_u32_u24 {vT[2]}, 96, v0")
    A(f"v_lshrrev_b32 {vT[3]}, 16, {vT[3]}")
    A(f"v_lshl_add_u32 {vT[2]}, {vT[3]}, 4, {vT[2]}")
    A(f"v_mov_b32 {vT[3]}, 0")
    A(f"ds_write_b32 {vT[3]}, {vT[3]} offset:{L_TP + 64}")
    for k in range(6):
        A(f"ds_write_b128 {vT[2]}, v[{TW+4*k}:{TW+4*k+3}] offset:{L_W + 16*k}")
    A("s_waitcnt lgkmcnt(0)")
    A.label("L_now")
    for n in range(10):
        A(f"ds_read_b32 v{QB+n}, {vXN} offset:{L_XN + n*32}")
    A(f"v_add_u32 {vT[2]}, {L_WQ}, {vZ}")
    A(f"v_mov_b32 {vT[4]}, 0")
    A("s_waitcnt lgkmcnt(0)")
    A("s_barrier")
    A(f"s_or_b32 {sT0}, s2, {sWAVE}")
    A(f"s_cmp_lg_u32 {sT0}, 0")
    A("s_cbranch_scc1 L_noflag")
    for r in range(4):
        A(f"v_mov_b32 v{ML+r}, {sTAG}")
    A(f"s_mov_b32 {sT0}, {WS_ZF}")
    A.setexec(1)
    A(f"buffer_store_dwordx4 v[{ML}:{ML+3}], {vT[4]}, s[{sWS}:{sWS+3}], {sT0} offen sc1")
    A.setexec(ALL)
    A.label("L_noflag")
    def wq_read(n):
        for t in range(3):
            r = AW + (n % 3) * 12 + t * 4
            A(f"ds_read_b128 a[{r}:{r+3}], {vT[2]} offset:{n*3072 + t*1024}")
    for n in range(3): wq_read(n)
    head_k(n1c)
    for n in range(10):
        bb = B + 4 * (n & 1)
        for r in range(4):
            A(f"v_and_b32 v{bb+r}, v{QB+n}, {vM[r]}")
        A(f"s_waitcnt lgkmcnt({3 * min(2, 9 - n)})")
        A("s_nop 0")
        for t in range(3):
            r = AW + (n % 3) * 12 + t * 4
            A(f"v_mfma_f32_16x16x32_bf16 v[{O+4*t}:{O+4*t+3}], a[{r}:{r+3}], v[{bb}:{bb+3}], v[{O+4*t}:{O+4*t+3}]")
        if n + 3 < 10:
            A("s_nop 3")
            wq_read(n + 3)
    def lds_put3():
        A.setexec(M_LO)
        A(f"ds_write_b128 {vA0}, v[{O}:{O+3}] offset:{L_P}")
        A.setexec(M_T1)
        A(f"ds_write_b128 {vA0}, v[{O+4}:{O+7}] offset:{L_P + 512}")
        A.setexec(M_HI)
        A(f"ds_write_b128 {vA0}, v[{O+8}:{O+11}] offset:{L_P + 768 + 256}")
        A.setexec(ALL)
    A(f"s_mul_i32 {sT0}, {sWAVE}, 1536")
    A(f"v_lshl_add_u32 {vT[2]}, {vLANE}, 2, {sT0}")
    A(f"s_lshl_b32 {sT0}, {sH}, 2")
    A(f"s_add_u32 {sT1}, {sT0}, {sWAVE}")
    A(f"s_lshl_b32 {sT1}, {sT1}, 3")
    A(f"s_add_u32 {sT1}, {sT1}, {sBS}")
    A(f"s_lshl_b32 {sT1}, {sT1}, 10")
    A(f"s_add_u32 {sT1}, {sT1}, {WS_QP}")
    A(f"s_add_u32 {sQG}, {sT0}, {sB}")
    A(f"s_lshl_b32 {sQG}, {sQG}, 2")
    A(f"s_add_u32 {sQG}, {sQG}, {sWAVE}")
    A(f"s_lshl_b32 {sQG}, {sQG}, 11")
    A(f"s_add_u32 {sQG}, {sQG}, {WS_QP}")
    lds_put3()
    A("s_waitcnt lgkmcnt(0)")
    for k in range(6):
        A(f"ds_read_b32 v{B+k}, {vT[2]} offset:{L_P + 256*k}")
    A(f"v_mov_b32 v{D+3}, {sTAG}")
    A("s_waitcnt lgkmcnt(0)")
    for k in range(3):
        A(f"v_add_f32 v{D+k}, v{B+k}, v{B+3+k}")
    if not (noqx or noqst): vq.op(f"buffer_store_dwordx4 v[{D}:{D+3}], {vZ}, s[{sWS}:{sWS+3}], {sT1} offen {qsf}", "qst")
    st()
    vq.CAP = caph
    head_k(n2)
    def q_gather(track):
        for k in range(2):
            txt = f"buffer_load_dwordx4 v[{B+4*k}:{B+4*k+3}], {vZ}, s[{sWS}:{sWS+3}], {sQG} offen offset:{1024*k} {qlf}"
            if track: vq.op(txt, "qg")
            else: A(txt)
    if not (noqx or noqld): q_gather(True)
    if tlb:
        A(f"v_lshlrev_b32 {vQ0}, 16, {vLANE}")
        A.setexec(0xfff)
        vq.op(f"buffer_load_dword v{ML}, {vQ0}, s[{sV}:{sV+3}], 0 offen nt", "tlb")
        if tlb > 1:
            vq.op(f"buffer_load_dword v{ML+1}, {vQ0}, s[{sK}:{sK+3}], 0 offen nt", "tlb")
            vq.op(f"buffer_load_dword v{ML+2}, {vQ0}, s[{sWO}:{sWO+3}], 0 offen nt", "tlb")
        A.setexec(ALL)
    head_k(T + ext - kis[0] - hb)
    vq.CAP = 54
    head_k(99)
    q, i, t0, t1 = vT[0], vT[1], vT[2], vT[3]
    A(f"v_and_b32 {t0}, 32, {vLANE}")
    A(f"v_and_b32 {t1}, 3, {vLANE}")
    A(f"v_lshl_add_u32 {t0}, {t1}, 3, {t0}")
    A(f"v_bfe_u32 {t1}, {vLANE}, 2, 3")
    A(f"v_add_lshl_u32 {vXN}, {t0}, {t1}, 1")
    A(f"s_mul_i32 {sT0}, {sWAVE}, 768")
    A(f"v_lshlrev_b32 {vQ0}, 2, {vLANE}")
    A(f"v_add_u32 {vQ1}, {sT0}, {vQ0}")
    A(f"v_and_b32 {t0}, 3, {vLANE}")
    A(f"v_lshl_add_u32 {t0}, {q}, 2, {t0}")
    A(f"v_and_b32 {t1}, 8, {vLANE}")
    A(f"v_add_lshl_u32 {vQ2}, {t0}, {t1}, 4")
    A(f"v_cmp_gt_u32 vcc, 8, {i}")
    A(f"v_add_u32 {t1}, 16, {t0}")
    A(f"v_subrev_u32 {t0}, 8, {t0}")
    A(f"v_cndmask_b32 {t0}, {t0}, {t1}, vcc")
    A(f"v_lshlrev_b32 {t0}, 4, {t0}")
    for r in range(12):
        A(f"v_mov_b32 v{QB+r}, 0")
    vq.wait("qg")
    A(f"s_mov_b32 {sSPIN}, {1 if (noqx or noqst or noqld) else SPIN}")
    A.label("L_qchk")
    A(f"v_cmp_ne_u32 vcc, {sTAG}, v{B+3}")
    A(f"v_cmp_ne_u32 s[4:5], {sTAG}, v{B+7}")
    A("s_nop 1")
    A("s_or_b64 vcc, vcc, s[4:5]")
    A("s_cbranch_scc0 L_qok")
    A(f"s_sub_u32 {sSPIN}, {sSPIN}, 1")
    A(f"s_cmp_eq_u32 {sSPIN}, 0")
    A("s_cbranch_scc1 L_qok")
    A(f"s_add_u32 {sRETRY}, {sRETRY}, 1")
    A("s_sleep 2")
    q_gather(False)
    A("s_waitcnt vmcnt(0)")
    A("s_branch L_qchk")
    A.label("L_qok")
    for k in range(3):
        A(f"v_add_f32 v{B+k}, v{B+k}, v{B+4+k}")
    for k in range(3):
        A(f"ds_write_b32 {vQ1}, v{B+k} offset:{L_QS + 256*k}")
    A("s_waitcnt lgkmcnt(0)")
    A("s_barrier")
    for k in range(12):
        A(f"ds_read_b32 v{O+k}, {vQ0} offset:{L_QS + 256*k}")
    A("s_waitcnt lgkmcnt(0)")
    for k in range(3):
        A(f"v_add_f32 v{O+k}, v{O+k}, v{O+3+k}")
        A(f"v_add_f32 v{O+6+k}, v{O+6+k}, v{O+9+k}")
    for k in range(3):
        A(f"v_add_f32 v{O+k}, v{O+k}, v{O+6+k}")
    for k in range(3):
        A(f"v_cvt_pk_bf16_f32 v{O+k}, v{O+k}, v{O+k}")
    for k in range(3):
        A(f"ds_write_b16 {vXN}, v{O+k} offset:{L_QB + 128*k}")
    A("s_waitcnt lgkmcnt(0)")
    A.setexec(M_LO)
    A(f"ds_read_b128 v[{QB}:{QB+3}], {vQ2} offset:{L_QB}")
    A.setexec(M_HI)
    A(f"ds_read_b128 v[{QB+8}:{QB+11}], {vQ2} offset:{L_QB}")
    A.setexec(M_T1)
    A(f"ds_read_b128 v[{QB+4}:{QB+7}], {t0} offset:{L_QB}")
    A.setexec(ALL)
    for r in range(O, O + 12):
        A(f"v_mov_b32 v{r}, 0")
    def tab_reads():
        for k in range(6):
            A(f"ds_read_b128 v[{TW+4*k}:{TW+4*k+3}], {vTA} offset:{16*k}")
        A(f"v_add_u32 {vTA}, 96, {vTA}")
    A("s_waitcnt lgkmcnt(0)")
    tab_reads()
    ncalls = [0]
    published = [False]
    def tab_finish(dst):
        A.rb(dst, dst)
        A(f"v_add_f32 {dst}, {sB2}, {dst}")
        A(f"v_cvt_pk_bf16_f32 {dst}, {dst}, {dst}")
    def tab_publish():
        ta, tb = f"v{TACC}", f"v{TACC+1}"
        A(f"v_add_f32 {ta}, {ta}, {tb}")
        A("s_nop 1")
        A(f"v_add_f32_dpp {ta}, {ta}, {ta} row_ror:8 row_mask:0xf bank_mask:0xf")
        A(f"v_mov_b32 {tb}, {ta}")
        A("s_nop 1")
        A(f"v_permlane16_swap_b32 {ta}, {tb}")
        A(f"v_add_f32 {ta}, {ta}, {tb}")
        A(f"v_mov_b32 {tb}, {ta}")
        A("s_nop 1")
        A(f"v_permlane32_swap_b32 {ta}, {tb}")
        A(f"v_add_f32 {ta}, {ta}, {tb}")
        tab_finish(ta)
        A(f"s_lshl_b32 {sT0}, {sWAVE}, 4")
        A(f"v_lshl_add_u32 {tb}, {vLANE}, 1, {sT0}")
        A(f"s_lshl_b32 {sT1}, s2, 6")
        A(f"s_add_u32 {sT1}, {sT1}, {sT0}")
        A(f"s_add_u32 {sT1}, {sT1}, {WS_TAB}")
        A.setexec(0xff)
        A(f"ds_write_b16 {tb}, {ta} offset:{L_TP}")
        A.setexec(1)
        A("s_waitcnt lgkmcnt(0)")
        A(f"ds_read_b128 v[{TW}:{TW+3}], {tb} offset:{L_TP}")
        A("s_waitcnt lgkmcnt(0)")
        if not (nopub or notabst): vq.op(f"buffer_store_dwordx4 v[{TW}:{TW+3}], {vT[4]}, s[{sWS}:{sWS+3}], {sT1} offen sc1", "tab")
        A.setexec(ALL)
    A(f"s_lshl_b32 {sB2}, {sB2}, 16")
    st()
    s = vT[0]
    slot_of = list(range(T + ext))
    nxt = [T + ext]
    def refill(slot):
        if slot >= T or nxt[0] >= 2 * NT: return False
        m = nxt[0]; nxt[0] += 1
        slot_of.append(slot)
        ld_tile(slot, m >= NT, m % NT)
        return True
    NR = 4
    NR = 6
    use_order = [rg * 5 + c for rg in range(NR) for c in range(5)] + [rg * 5 + c for c in range(5) for rg in range(NR, 12)]
    late = use_order[60 - wo_late:]
    wo_order = [k for k in list(range(3 * ext, 60)) + list(range(3 * ext)) if k not in late] + late
    wo_left = [60]
    if wob:
        f = -(-3 * ext // 5) * 5
        wo_order = list(range(f, 60)) + list(range(f))
    def wo_step(n):
        if wob:
            if n % wob != wob - 1 or wo_left[0] == 0: return False
            assert wo_order[60 - wo_left[0]] >= 3 * ext or n >= T + ext
            for _ in range(wob):
                ld_wo(wo_order[60 - wo_left[0]]); wo_left[0] -= 1
            return True
        if n < wo_start or wo_left[0] <= wo_late: return False
        if not wo2 and (n - wo_start + 1) * wo_rate < 60 - wo_left[0] + 1 - 1e-9: return False
        k = wo_order[60 - wo_left[0]]
        if k < 3 * ext and n % 1000 < T + k // 3: return False
        ld_wo(k); wo_left[0] -= 1
        return True
    vq.CAP = capk
    for n in range(NT):
        if n == NT - T or wo_left[0] <= wo_late: vq.CAP = capv
        if n >= NT - bb_: vq.CAP = 54
        slot = slot_of[n]
        vq.wait(("k", n))
        for tt in range(3):
            c = "0" if tt == 0 else f"v[{D}:{D+3}]"
            A(f"v_mfma_f32_16x16x32_bf16 v[{D}:{D+3}], {treg(slot, tt)}, v[{QB+4*tt}:{QB+4*tt+3}], {c}")
        if not refill(slot): A("s_nop 6")
        if not wo_step(n): A("s_nop 0")
        if n < wo2: wo_step(n + 1000)
        s2 = vT[1]
        A(f"v_mov_b32_dpp {s}, v{D} quad_perm:[0,0,0,0] row_mask:0xf bank_mask:0xf")
        A(f"v_mov_b32_dpp {s2}, v{D+2} quad_perm:[2,2,2,2] row_mask:0xf bank_mask:0xf")
        A("s_nop 0")
        A(f"v_add_f32_dpp {s}, v{D+1}, {s} quad_perm:[1,1,1,1] row_mask:0xf bank_mask:0xf")
        A(f"v_add_f32_dpp {s2}, v{D+3}, {s2} quad_perm:[3,3,3,3] row_mask:0xf bank_mask:0xf")
        A(f"v_add_f32 {s}, {s}, {s2}")
        A.rb(s, s)
        A(f"v_mul_f32 {s}, {F(192 ** -0.5)}, {s}")
        A.rb(s, s)
        A(f"v_max_f32 {vMAX}, {vMAX}, {s}")
        A(f"ds_write_b32 {vSC}, {s} offset:{n*32}")
        if n >= tab_start:
            if ncalls[0] < 24:
                if not notab: A(f"s_call_b64 s[{sRET}:{sRET+1}], L_tab")
                ncalls[0] += 1
            elif not published[0]:
                published[0] = True
                tab_publish()
    assert published[0]
    st()
    A.wave_red("max", vMAX, sM)
    A(f"s_lshl_b32 {sT0}, {sWAVE}, 11")
    A(f"s_add_u32 {sT0}, {sT0}, {L_SC}")
    A(f"v_lshl_add_u32 {vT[0]}, {vLANE}, 5, {sT0}")
    A("s_waitcnt lgkmcnt(0)")
    A(f"ds_read_b128 v[{B}:{B+3}], {vT[0]}")
    A(f"ds_read_b128 v[{B+4}:{B+7}], {vT[0]} offset:16")
    A("s_waitcnt lgkmcnt(0)")
    for r in range(8):
        A(f"v_subrev_f32 v{B+r}, {sM}, v{B+r}")
    for r in range(8):
        A(f"v_mul_f32 v{B+r}, {F(LOG2E)}, v{B+r}")
    for r in range(8):
        A(f"v_exp_f32 v{B+r}, v{B+r}")
    A("s_nop 0")
    A(f"v_add_f32 {vT[1]}, v{B}, v{B+1}")
    for r in range(2, 8):
        A(f"v_add_f32 {vT[1]}, {vT[1]}, v{B+r}")
    for r in range(8):
        A(f"v_cvt_pk_bf16_f32 v{B+r}, v{B+r}, v{B+r}")
    A(f"ds_write_b128 {vT[0]}, v[{B}:{B+3}]")
    A(f"ds_write_b128 {vT[0]}, v[{B+4}:{B+7}] offset:16")
    A.wave_red("add", vT[1], sL)
    A(f"v_mov_b32 v{ML}, {sM}")
    A(f"v_mov_b32 v{ML+1}, {sL}")
    A(f"v_mov_b32 v{ML+2}, {sTAG}")
    A(f"v_mov_b32 v{ML+3}, {sTAG}")
    A(f"s_lshl_b32 {sT0}, {sBH}, 7")
    A(f"s_add_u32 {sT0}, {sT0}, {WS_ML}")
    A(f"v_lshl_add_u32 {vZ}, {vLANE}, 4, {sT0}")
    A(f"s_mov_b32 {sT0}, {WS_ZF}")
    A(f"v_writelane_b32 {vZ}, {sT0}, 8")
    A(f"s_lshl_b32 {sT1}, {sHALF}, 2")
    A(f"s_add_u32 {sT1}, {sT1}, {sWAVE}")
    A(f"s_lshl_b32 {sT1}, {sT1}, 4")
    A.setexec(1)
    if not (nopub or nomlx): vq.op(f"buffer_store_dwordx4 v[{ML}:{ML+3}], {vZ}, s[{sWS}:{sWS+3}], {sT1} offen sc1", "mlst")
    A.setexec(ALL)
    vq.CAP = capv
    PP = [QB + n for n in range(8)]
    A("s_waitcnt lgkmcnt(0)")
    for n in range(4):
        A(f"ds_read_b32 v{PP[n]}, {vSC} offset:{n*32}")
    def fcalc():
        vq.wait("ml")
        A(f"s_mov_b32 {sSPIN}, {SPIN}")
        A.label("L_mlchk")
        A(f"v_cmp_ne_u32 vcc, {sTAG}, v{ML+2}")
        A("s_nop 1")
        A("s_and_b32 vcc_lo, vcc_lo, 0x1ff")
        A("s_cbranch_scc0 L_mlok")
        A(f"s_sub_u32 {sSPIN}, {sSPIN}, 1")
        A(f"s_cmp_eq_u32 {sSPIN}, 0")
        A("s_cbranch_scc1 L_mlok")
        A("s_sleep 8")
        A.setexec(0x1ff)
        A(f"buffer_load_dwordx4 v[{ML}:{ML+3}], {vZ}, s[{sWS}:{sWS+3}], 0 offen sc1")
        A.setexec(ALL)
        A("s_waitcnt vmcnt(0)")
        A("s_branch L_mlchk")
        A.label("L_mlok")
        mm, e = vT[0], vT[1]
        A(f"v_mov_b32 {mm}, v{ML}")
        for stp in Asm.DPP_STEPS[:3]:
            A("s_nop 1")
            A(f"v_max_f32_dpp {mm}, {mm}, {mm} {stp}")
        A(f"v_sub_f32 {e}, v{ML}, {mm}")
        A(f"v_sub_f32 {mm}, {sM}, {mm}")
        A(f"v_mul_f32 {e}, {F(LOG2E)}, {e}")
        A(f"v_mul_f32 {mm}, {F(LOG2E)}, {mm}")
        A(f"v_exp_f32 {e}, {e}")
        A(f"v_exp_f32 {mm}, {mm}")
        A(f"v_mul_f32 {e}, {e}, v{ML+1}")
        for stp in Asm.DPP_STEPS[:3]:
            A("s_nop 1")
            A(f"v_add_f32_dpp {e}, {e}, {e} {stp}")
        A(f"v_rcp_f32 {e}, {e}")
        A("s_nop 0")
        A(f"v_mul_f32 {e}, {e}, {mm}")
        A("s_nop 0")
        A(f"v_readfirstlane_b32 {sF}, {e}")
        A(f"s_mov_b32 s{sFP}, {sF}")
        A(f"s_mov_b32 s{sFP+1}, {sF}")
        for k, m in enumerate((M_LO, M_T1, M_HI)):
            A(f"s_mov_b32 s{sMK+2*k}, 0x{m & 0xffffffff:08x}")
            A(f"s_mov_b32 s{sMK+2*k+1}, 0x{m >> 32:08x}")
        A(f"v_lshrrev_b32 {vT[0]}, 4, {vLANE}")
        A(f"s_lshr_b32 {sT0}, {sWAVE}, 1")
        A(f"s_mul_i32 {sT0}, {sT0}, 24")
        A(f"s_and_b32 {sT1}, {sWAVE}, 1")
        A(f"s_lshl_b32 {sT1}, {sT1}, 2")
        A(f"s_add_u32 {sT0}, {sT0}, {sT1}")
        A(f"v_add_lshl_u32 {vT[0]}, {vT[0]}, {sT0}, 4")
        A(f"v_and_b32 {vT[1]}, 15, {vLANE}")
        A(f"v_min_u32 {vT[1]}, 11, {vT[1]}")
        A(f"v_lshrrev_b32 {vT[2]}, 2, {vT[1]}")
        A(f"v_lshl_add_u32 {vT[0]}, {vT[2]}, 7, {vT[0]}")
        A(f"v_and_b32 {vT[1]}, 3, {vT[1]}")
        A(f"v_lshl_add_u32 {vQ0}, {vT[1]}, 2, {vT[0]}")
        A(f"s_lshl_b32 {sTK}, {sB}, 7")
        A(f"s_add_u32 {sTK}, {sTK}, {WS_CNT}")
        A(f"v_mov_b32 {vZ}, 1")
        A(f"v_lshrrev_b32 {vT[0]}, 4, v0")
        A(f"v_mul_u32_u24 {vT[0]}, 15, {vT[0]}")
        A(f"v_and_b32 {vT[1]}, 15, v0")
        A(f"v_add_u32 {vT[0]}, {vT[0]}, {vT[1]}")
        A(f"v_cmp_eq_u32 vcc, 15, {vT[1]}")
        A(f"v_mov_b32 {vCNT}, 1.0")
        A(f"v_mov_b32 {vMK[0]}, -1")
        A(f"v_cndmask_b32 {vCNT}, 0, {vCNT}, vcc")
        A(f"v_cndmask_b32 {vMK[0]}, {vMK[0]}, 0, vcc")
        A(f"v_cmp_gt_u32 vcc, 160, {vT[0]}")
        for k in range(3):
            col, t = vT[2], vT[3]
            A(f"v_add_u32 {col}, {240*k}, {vT[0]}")
            A(f"v_min_u32 {col}, 639, {col}")
            A(f"v_and_b32 {vYA[k]}, 0x3e0, {col}")
            A(f"v_and_b32 {t}, 7, {col}")
            A(f"v_lshl_add_u32 {vYA[k]}, {t}, 2, {vYA[k]}")
            A(f"v_bfe_u32 {t}, {col}, 3, 2")
            A(f"v_add_lshl_u32 {vYA[k]}, {vYA[k]}, {t}, 2")
        A(f"v_cndmask_b32 {vMK[1]}, 0, {vMK[0]}, vcc")
        A(f"s_mul_i32 {sWQOFF}, {sB}, 3072")
    for n in range(NT):
        slot = slot_of[NT + n]
        bb = B + 4 * (n & 1)
        if n + 4 < NT:
            A(f"ds_read_b32 v{PP[(n+4)%8]}, {vSC} offset:{(n+4)*32}")
            A("s_waitcnt lgkmcnt(4)")
        else:
            A(f"s_waitcnt lgkmcnt({NT-1-n})")
        for r in range(4):
            A(f"v_and_b32 v{bb+r}, v{PP[n%8]}, {vM[r]}")
        vq.wait(("v", n))
        A("s_nop 1")
        for tt in range(3):
            A(f"v_mfma_f32_16x16x32_bf16 v[{O+4*tt}:{O+4*tt+3}], {treg(slot, tt)}, v[{bb}:{bb+3}], v[{O+4*tt}:{O+4*tt+3}]")
        if lift and n == NT - T - lift: vq.CAP = liftcap
        refill(slot)
        wo_step(NT + n)
        if n == NT - T - 1:
            assert wo_left[0] == wo_late
            vq.CAP = cape
            for k in late: ld_wo(k)
            wo_left[0] = 0
        if n == ml_at and not (nopub or nomlx):
            A.setexec(0x1ff)
            vq.op(f"buffer_load_dwordx4 v[{ML}:{ML+3}], {vZ}, s[{sWS}:{sWS+3}], 0 offen sc1", "ml")
            A.setexec(ALL)
        if n == fc_at:
            fcalc()
        if n == 8 and not (nopub or notd):
            vq.wait("tab")
            A(f"v_mov_b32 v{TACC+1}, 1")
            A.setexec(1)
            A(f"ds_add_rtn_u32 v{TACC}, {vT[4]}, v{TACC+1} offset:{L_TP + 64}")
            A("s_waitcnt lgkmcnt(0)")
            A(f"v_readfirstlane_b32 {sT0}, v{TACC}")
            A(f"s_cmp_lg_u32 {sT0}, 3")
            A("s_cbranch_scc1 L_notd")
            A(f"s_lshl_b32 {sT0}, s2, 6")
            A(f"s_add_u32 {sT0}, {sT0}, {WS_TD}")
            A(f"v_mov_b32 v{TACC+1}, {sTAG}")
            A(f"buffer_store_dword v{TACC+1}, {vT[4]}, s[{sWS}:{sWS+3}], {sT0} offen sc1")
            A.label("L_notd")
            A.setexec(ALL)
    assert wo_left[0] == 0
    st()
    if noend: A("s_endpgm")
    A("s_nop 5")
    for t, off in enumerate((L_P, L_P + 512, L_P + 1024)):
        A(f"s_mov_b64 exec, s[{sMK+2*t}:{sMK+2*t+1}]")
        A(f"v_pk_mul_f32 v[{O+4*t}:{O+4*t+1}], v[{O+4*t}:{O+4*t+1}], s[{sFP}:{sFP+1}]")
        A(f"v_pk_mul_f32 v[{O+4*t+2}:{O+4*t+3}], v[{O+4*t+2}:{O+4*t+3}], s[{sFP}:{sFP+1}]")
        A(f"ds_write_b128 {vA0}, v[{O+4*t}:{O+4*t+3}] offset:{off}")
    A.setexec(1)
    A(f"s_cmp_lg_u32 {sWAVE}, 3")
    A("s_cbranch_scc1 L_notick")
    A(f"buffer_atomic_add {vZ}, {vT[4]}, s[{sWS}:{sWS+3}], {sTK} offen sc0")
    A.label("L_notick")
    A.setexec(ALL)
    A("s_waitcnt lgkmcnt(0)")
    A("s_barrier")
    st()
    assert L_P % 256 == 0
    for k in range(4):
        A(f"ds_read2st64_b32 v[{B+2*k}:{B+2*k+1}], {vQ0} offset0:{L_P//256 + 6*k} offset1:{L_P//256 + 6*k + 3}")
    A("s_waitcnt lgkmcnt(2)")
    A(f"v_pk_add_f32 v[{B}:{B+1}], v[{B}:{B+1}], v[{B+2}:{B+3}]")
    A("s_waitcnt lgkmcnt(0)")
    A(f"v_pk_add_f32 v[{B+4}:{B+5}], v[{B+4}:{B+5}], v[{B+6}:{B+7}]")
    A(f"v_pk_add_f32 v[{B}:{B+1}], v[{B}:{B+1}], v[{B+4}:{B+5}]")
    A(f"v_add_f32 v{B}, v{B}, v{B+1}")
    A(f"v_cvt_pk_bf16_f32 v{B+2}, v{B}, v{B}")
    A(f"v_and_b32 v{B+1}, 0xffff0000, v{B+2}")
    A(f"v_sub_f32 v{B+1}, v{B}, v{B+1}")
    A(f"v_cvt_pk_bf16_f32 v{B+3}, v{B+1}, v{B+1}")
    BO = R0
    YD = R0 + 48
    def omfma(rg, c):
        n = rg * 5 + c
        cc = "0" if rg == 0 else f"v[{YD+4*c}:{YD+4*c+3}]"
        vq.wait(("wo", n))
        A(f"v_mfma_f32_16x16x32_bf16 v[{YD+4*c}:{YD+4*c+3}], a[{4*n}:{4*n+3}], v[{BO+4*rg}:{BO+4*rg+3}], {cc}")
    hi = lambda rg: f"v_mov_b32_dpp v{O+rg}, v{B+2} row_newbcast:{rg} row_mask:0xf bank_mask:0x3"
    lo = lambda rg: f"v_mov_b32_dpp v{O+rg}, v{B+3} row_newbcast:{rg} row_mask:0xf bank_mask:0xc"
    fill = [hi(0), hi(1), hi(2)]
    for rg in range(12):
        fill.append(lo(rg))
        for r in range(4):
            fill.append(f"v_and_b32 v{BO+4*rg+r}, v{O+rg}, {vM[r]}")
        if rg + 3 < 12: fill.append(hi(rg + 3))
    def emit(k):
        for _ in range(k):
            if fill: A(fill.pop(0))
    emit(10)
    NR2 = 6
    for rg in range(NR2):
        for c in range(5):
            omfma(rg, c)
            emit(2)
    emit(99)
    A("s_nop 1")
    def ypieces(c):
        p = [f"v_add_f32_dpp v{YD+4*c+r}, v{YD+4*c+r}, v{YD+4*c+r} row_ror:8 row_mask:0xf bank_mask:0xf" for r in range(4)]
        return p
    def ywrite(c):
        A(f"s_mov_b64 exec, s[{sMK}:{sMK+1}]")
        A(f"ds_write_b128 {vAY}, v[{YD+4*c}:{YD+4*c+3}] offset:{L_YP + c*512}")
        A.setexec(ALL)
    for c in range(5):
        p = ypieces(c - 2) if c >= 2 else []
        for k, rg in enumerate(range(NR2, 12)):
            omfma(rg, c)
            if p and k in (2, 3):
                A(p.pop(0)); A(p.pop(0))
            if c >= 2 and k == 4:
                ywrite(c - 2)
    for x in ypieces(3): A(x)
    ywrite(3)
    A("s_nop 0")
    for x in ypieces(4): A(x)
    ywrite(4)
    A("s_waitcnt lgkmcnt(0)")
    A("s_barrier")
    st()
    for k in range(2):
        for w in range(4):
            A(f"ds_read_b32 v{O+4*k+w}, {vYA[k]} offset:{L_YP + 2560*w}")
    A(f"s_cmp_eq_u32 {sWAVE}, 3")
    A("s_cbranch_scc1 L_two")
    for w in range(4):
        A(f"ds_read_b32 v{O+8+w}, {vYA[2]} offset:{L_YP + 2560*w}")
    A("s_waitcnt lgkmcnt(0)")
    A(f"v_add_f32 v{O+8}, v{O+8}, v{O+9}")
    A(f"v_add_f32 v{O+10}, v{O+10}, v{O+11}")
    A(f"v_add_f32 v{O+8}, v{O+8}, v{O+10}")
    A(f"v_and_or_b32 v{O+8}, v{O+8}, {vMK[1]}, {vCNT}")
    A(f"buffer_atomic_add_f32 v{O+8}, {vA1}, s[{sWS}:{sWS+3}], {sWQOFF} offen offset:{WS_ACC + 2048}")
    A.label("L_two")
    A("s_waitcnt lgkmcnt(0)")
    for k in range(2):
        A(f"v_add_f32 v{O+4*k}, v{O+4*k}, v{O+4*k+1}")
        A(f"v_add_f32 v{O+4*k+2}, v{O+4*k+2}, v{O+4*k+3}")
    for k in range(2):
        A(f"v_add_f32 v{O+4*k}, v{O+4*k}, v{O+4*k+2}")
    for k in range(2):
        A(f"v_and_or_b32 v{O+4*k}, v{O+4*k}, {vMK[0]}, {vCNT}")
        A(f"buffer_atomic_add_f32 v{O+4*k}, {vA1}, s[{sWS}:{sWS+3}], {sWQOFF} offen offset:{WS_ACC + 1024*k}")
    st()
    A(f"s_cmp_lg_u32 {sWAVE}, 3")
    A("s_cbranch_scc1 L_done")
    A("s_waitcnt vmcnt(2)")
    A(f"v_readfirstlane_b32 {sT0}, {vZ}")
    A(f"s_cmp_lg_u32 {sT0}, 0")
    A("s_cbranch_scc1 L_done")
    H = R0
    HN = R0 + 12
    G = R0 + 24
    X = R0 + 36
    XO = R0 + 48
    T1 = R0 + 60
    T2 = R0 + 66
    TB = R0 + 72
    h = [f"v{H+n}" for n in range(11)]
    hn = [f"v{HN+n}" for n in range(11)]
    A("s_load_dwordx2 s[8:9], s[0:1], 0")
    A(f"s_mul_i32 {sT0}, {sB}, 1280")
    A.srd_off(sOUT, 20, sT0, 1280)
    A(f"v_lshlrev_b32 {vT[1]}, 8, {vLANE}")
    A(f"s_movk_i32 {sT1}, {WS_TD}")
    def tdload():
        for k in range(4):
            A(f"buffer_load_dword v{ML+k}, {vT[1]}, s[{sWS}:{sWS+3}], {sT1} offen offset:{k*64} sc1")
    tdload()
    A(f"v_lshrrev_b32 {vT[0]}, 4, {vLANE}")
    A(f"v_mul_u32_u24 {vT[0]}, 15, {vT[0]}")
    A(f"v_and_b32 {vT[2]}, 15, {vLANE}")
    A(f"v_add_lshl_u32 {vT[0]}, {vT[0]}, {vT[2]}, 1")
    A(f"v_cmp_eq_u32 vcc, 15, {vT[2]}")
    A(f"v_mov_b32 {vT[2]}, 0x10000")
    A(f"v_mov_b32 {vMK[1]}, 0")
    A(f"v_cndmask_b32 {vT[0]}, {vT[0]}, {vT[2]}, vcc")
    A.setexec(M_D10)
    A(f"v_mov_b32 {vMK[1]}, -1")
    A.setexec(ALL)
    A(f"v_mov_b32 {vQ0}, {vMK[1]}")
    for r in list(range(G, G + 12)) + list(range(X, X + 12)) + list(range(T1, T1 + 12)) + [H + 11]:
        A(f"v_mov_b32 v{r}, 0")
    A("s_waitcnt lgkmcnt(0)")
    A.srd_off(sX, 8, sT0, 1280)
    for n in range(11):
        A(f"buffer_load_short_d16_hi v{X+n}, {vT[0]}, s[{sX}:{sX+3}], 0 offen offset:{n*120}")
    A("s_waitcnt vmcnt(11)")
    A(f"s_mov_b32 {sSPIN}, {SPIN}")
    A.label("L_tdchk")
    for k in range(4):
        A(f"v_xor_b32 v{ML+k}, {sTAG}, v{ML+k}")
    A(f"v_or3_b32 v{ML}, v{ML}, v{ML+1}, v{ML+2}")
    A(f"v_or_b32 v{ML}, v{ML}, v{ML+3}")
    A(f"v_cmp_ne_u32 vcc, 0, v{ML}")
    A("s_nop 1")
    A("s_cmp_eq_u64 vcc, 0")
    A("s_cbranch_scc1 L_tdok")
    A(f"s_sub_u32 {sSPIN}, {sSPIN}, 1")
    A(f"s_cmp_eq_u32 {sSPIN}, 0")
    A("s_cbranch_scc1 L_tdok")
    A("s_sleep 8")
    tdload()
    A("s_waitcnt vmcnt(0)")
    A("s_branch L_tdchk")
    A.label("L_tdok")
    A(f"v_lshlrev_b32 {vT[1]}, 4, {vLANE}")
    for k in range(16):
        if k % 4 == 0: A(f"s_mov_b32 {sT0}, {WS_TAB + k*1024}")
        A(f"buffer_load_dwordx4 v[{TB+4*k}:{TB+4*k+3}], {vT[1]}, s[{sWS}:{sWS+3}], {sT0} offen offset:{(k%4)*1024} sc1")
    A(f"v_mov_b32 {vZ}, {sTAG}")
    A(f"s_mov_b32 {sT1}, {WS_EP}")
    A.setexec(1)
    A(f"buffer_store_dword {vZ}, {vT[4]}, s[{sWS}:{sWS+3}], {sT1} offen sc1")
    A.setexec(ALL)
    A(f"v_add_u32 {vT[2]}, 0x10000, {vT[1]}")
    A("s_waitcnt vmcnt(1)")
    for k in range(16):
        if k == 8: A("s_waitcnt lgkmcnt(0)")
        A(f"ds_write_b128 {vT[1] if k < 8 else vT[2]}, v[{TB+4*k}:{TB+4*k+3}] offset:{L_SC + (k%8)*1024}")
    A(f"v_lshlrev_b32 {vT[1]}, 2, {vLANE}")
    A(f"s_mov_b32 {sSPIN}, {SPIN}")
    A(f"s_mov_b32 s4, 0x80008000")
    st()
    A.label("L_poll")
    for n in range(11):
        A(f"buffer_load_dword {h[n]}, {vT[1]}, s[{sWS}:{sWS+3}], {sWQOFF} offen offset:{WS_ACC + n*256} sc1")
    A(f"s_sub_u32 {sSPIN}, {sSPIN}, 1")
    A("s_waitcnt vmcnt(0) lgkmcnt(0)")
    A(f"v_min3_f32 {vT[2]}, {h[0]}, {h[1]}, {h[2]}")
    A(f"v_min3_f32 {vT[3]}, {h[3]}, {h[4]}, {h[5]}")
    A(f"v_min3_f32 {vT[2]}, {h[6]}, {h[7]}, {vT[2]}")
    A(f"v_min3_f32 {vT[3]}, {h[8]}, {h[9]}, {vT[3]}")
    A(f"v_min3_f32 {vT[2]}, {h[10]}, {vT[2]}, {vT[3]}")
    A(f"s_cmp_eq_u32 {sSPIN}, 0")
    A("s_cbranch_scc1 L_pollok")
    A(f"v_cmp_neq_f32 vcc, {F(64.0)}, {vT[2]}")
    for n in range(2):
        A.rb(h[n], h[n])
    A("s_or_b32 vcc_lo, vcc_lo, vcc_hi")
    A("s_and_b32 vcc_lo, vcc_lo, s4")
    A("s_cbranch_scc1 L_poll")
    A.label("L_pollok")
    st()
    A.setexec(M_D)
    for n in range(2, 11):
        A.rb(h[n], h[n])
    for n in range(6):
        A(f"v_pk_add_f32 v[{H+2*n}:{H+2*n+1}], v[{H+2*n}:{H+2*n+1}], v[{X+2*n}:{X+2*n+1}]")
    for n in range(11):
        A.rb(h[n], h[n])
    layernorm_seg(A, H, HN, T1, 4, True, vQ0, M_D)
    layernorm_seg(A, HN, HN, T2, 4, False, vQ0, M_D)
    for n in range(11):
        A(f"v_lshrrev_b32 v{X+n}, 15, {hn[n]}")
        A(f"ds_read_u16_d16_hi v{G+n}, v{X+n} offset:{L_SC - 25600}")
    A(f"v_bfi_b32 {hn[10]}, {vQ0}, {hn[10]}, 1.0")
    A(f"v_min3_f32 {vT[2]}, abs({hn[0]}), abs({hn[1]}), abs({hn[2]})")
    A(f"v_max3_f32 {vT[3]}, abs({hn[0]}), abs({hn[1]}), abs({hn[2]})")
    for n in range(3, 11, 2):
        A(f"v_min3_f32 {vT[2]}, abs({hn[n]}), abs({hn[n+1]}), {vT[2]}")
        A(f"v_max3_f32 {vT[3]}, abs({hn[n]}), abs({hn[n+1]}), {vT[3]}")
    A(f"v_cmp_gt_f32 vcc, {F(2.0 ** -27)}, {vT[2]}")
    A(f"v_mov_b32 {vT[2]}, {F(32.0)}")
    A(f"v_cmp_le_f32 s[4:5], {vT[2]}, {vT[3]}")
    A("s_waitcnt lgkmcnt(0)")
    A("s_or_b64 vcc, vcc, s[4:5]")
    A("s_cbranch_scc1 L_direct")
    A.label("L_lookup")
    for n in range(6):
        A(f"v_pk_add_f32 v[{G+2*n}:{G+2*n+1}], v[{G+2*n}:{G+2*n+1}], v[{H+2*n}:{H+2*n+1}]")
    for n in range(6):
        A(f"v_cvt_pk_bf16_f32 v{G+2*n}, v{G+2*n}, v{G+2*n+1}")
    if ost is None:
        for n in range(11):
            op = "buffer_store_short" if n % 2 == 0 else "buffer_store_short_d16_hi"
            A(f"{op} v{G + (n & ~1)}, {vT[0]}, s[{sOUT}:{sOUT+3}], 0 offen offset:{n*120} {osf}")
        A.setexec(ALL)
    else:
        for n in range(11):
            op = "ds_write_b16" if n % 2 == 0 else "ds_write_b16_d16_hi"
            A(f"{op} {vT[0]}, v{G + (n & ~1)} offset:{L_XN + n*120}")
        A.setexec(ALL)
        A(f"v_lshlrev_b32 {vT[1]}, 4, {vLANE}")
        A("s_waitcnt lgkmcnt(0)")
        A(f"ds_read_b128 v[{G}:{G+3}], {vT[1]} offset:{L_XN}")
        A(f"ds_read_b128 v[{G+4}:{G+7}], {vT[1]} offset:{L_XN + 1024}")
        A("s_waitcnt lgkmcnt(1)")
        A(f"buffer_store_dwordx4 v[{G}:{G+3}], {vT[1]}, s[{sOUT}:{sOUT+3}], 0 offen {osf}")
        A("s_waitcnt lgkmcnt(0)")
        A(f"buffer_store_dwordx4 v[{G+4}:{G+7}], {vT[1]}, s[{sOUT}:{sOUT+3}], 0 offen offset:1024 {osf}")
    if stamps:
        A("s_waitcnt vmcnt(0)")
        st()
        st.flush(sWS, WS_STAMP + 65536, sWAVE, vT[0], vT[1])
        if dbg:
            A("s_load_dwordx2 s[4:5], s[0:1], 88")
            A("s_waitcnt lgkmcnt(0)")
            A.srd(16, "s4", "s5", 256)
            A(f"s_lshl_b32 s6, {sB}, 4")
            A(f"v_mov_b32 {vT[1]}, 0")
            A.setexec(1)
            for k, n in enumerate((3, 4, 5, 11)):
                A(f"s_sub_u32 s7, s{76+2*n}, s76")
                A(f"v_mov_b32 {vT[0]}, s7")
                A(f"buffer_store_dword {vT[0]}, {vT[1]}, s[16:19], s6 offen offset:{4*k}")
            A.setexec(ALL)
    A.label("L_done")
    if stamps:
        st.flush(sWS, WS_STAMP, sWAVE, vT[0], vT[1])
    A.label("L_end")
    A("s_endpgm")
    A.label("L_direct")
    A.setexec(ALL)
    A(f"v_lshrrev_b32 {vT[1]}, 3, {vLANE}")
    A(f"v_mul_u32_u24 {vT[1]}, 2320, {vT[1]}")
    A(f"v_and_b32 {vT[2]}, 7, {vLANE}")
    A(f"v_mul_u32_u24 {vT[2]}, 288, {vT[2]}")
    A(f"v_add_u32 {vT[1]}, {vT[1]}, {vT[2]}")
    A(f"v_add_u32 {vT[1]}, {L_W}, {vT[1]}")
    for n in range(11):
        A(f"v_bfe_u32 {vT[2]}, {hn[n]}, 23, 8")
        A(f"v_subrev_u32 {vT[2]}, 100, {vT[2]}")
        A.setexec(M_D)
        A(f"v_cmp_le_u32 s[4:5], 32, {vT[2]}")
        A.setexec(ALL)
        A.label(f"L_dir{n}")
        A("s_nop 1")
        A("s_cmp_eq_u64 s[4:5], 0")
        A(f"s_cbranch_scc1 L_dirx{n}")
        A(f"s_ff1_i32_b64 {sT0}, s[4:5]")
        A(f"v_readlane_b32 {sT1}, {hn[n]}, {sT0}")
        A(f"s_call_b64 s[6:7], L_eval")
        A(f"v_cmp_eq_u32 vcc, {sT1}, {hn[n]}")
        A("s_nop 1")
        A(f"v_cndmask_b32 v{G+n}, v{G+n}, v{TACC}, vcc")
        A("s_andn2_b64 s[4:5], s[4:5], vcc")
        A(f"s_branch L_dir{n}")
        A.label(f"L_dirx{n}")
    A.setexec(M_D)
    A("s_branch L_lookup")
    A.label("L_eval")
    A("s_nop 1")
    A(f"v_mov_b32 v{TX}, {sT1}")
    A(f"v_mov_b32 v{TX+1}, {sT1}")
    A(f"v_mov_b32 v{TACC}, 0")
    A(f"v_mov_b32 v{TACC+1}, 0")
    A(f"v_mov_b32 {vTA}, {vT[1]}")
    A("s_waitcnt lgkmcnt(0)")
    tab_reads()
    for _ in range(3):
        A(f"s_call_b64 s[{sRET}:{sRET+1}], L_tab")
    A(f"v_add_f32 v{TACC}, v{TACC}, v{TACC+1}")
    A.wave_red("add", f"v{TACC}", sT0)
    A(f"v_mov_b32 v{TACC}, {sT0}")
    tab_finish(f"v{TACC}")
    A(f"v_and_b32 v{TACC}, 0xffff0000, v{TACC}")
    A("s_setpc_b64 s[6:7]")
    A.label("L_tab")
    A("s_waitcnt lgkmcnt(0)")
    def P(r): return f"v[{r}:{r+1}]"
    W1, B1, W2 = TW, TW + 8, TW + 16
    for p in range(4): A(f"v_pk_mul_f32 {P(W1+2*p)}, {P(TX)}, {P(W1+2*p)}")
    for k in range(8): A.rb(f"v{W1+k}", f"v{W1+k}")
    for p in range(4): A(f"v_pk_add_f32 {P(W1+2*p)}, {P(W1+2*p)}, {P(B1+2*p)}")
    for k in range(8): A.rb(f"v{W1+k}", f"v{W1+k}")
    for p in range(4): A(f"v_pk_mul_f32 {P(B1+2*p)}, {P(W1+2*p)}, {P(W1+2*p)}")
    for p in range(4): A(f"v_pk_fma_f32 {P(B1+2*p)}, {P(B1+2*p)}, {P(TK1)}, s[{sK0}:{sK0+1}]")
    for p in range(4): A(f"v_pk_mul_f32 {P(B1+2*p)}, {P(B1+2*p)}, {P(W1+2*p)}")
    for k in range(8): A(f"v_exp_f32 v{B1+k}, v{B1+k}")
    for p in range(4): A(f"v_pk_add_f32 {P(B1+2*p)}, {P(B1+2*p)}, s[{sONE}:{sONE+1}]")
    for k in range(8): A(f"v_rcp_f32 v{B1+k}, v{B1+k}")
    for p in range(4): A(f"v_pk_mul_f32 {P(W1+2*p)}, {P(W1+2*p)}, {P(B1+2*p)}")
    for k in range(8): A.rb(f"v{W1+k}", f"v{W1+k}")
    for p in range(4): A(f"v_pk_fma_f32 {P(TACC)}, {P(W1+2*p)}, {P(W2+2*p)}, {P(TACC)}")
    tab_reads()
    A(f"s_setpc_b64 s[{sRET}:{sRET+1}]")
    acc = (NV + 3) // 4 * 4
    return A.text() + kd(KN, acc + 240, 102, acc)

if __name__ == "__main__":
    kw = eval("dict(%s)" % (sys.argv[2] if len(sys.argv) > 2 else ""))
    open(sys.argv[1], "w").write(gen(**kw))
```

```python
import sys
from asmlib import *

KN = "sequential_preLN__mha_block_cached__mixer_token_mlp__decode_kernel"
HDR = open("sequential_preLN__mha_block_cached__mixer_token_mlp__decode.s.ref").read().split("; Override launch")[0]
LOG2E = 1.4426950408889634
WS_ACC, WS_CNT, WS_ZEND = 0, 12288, 16384
WS_ML = 49152
WS_EP = 45056
WS_ZF = 45312
WS_TAB = 65536
WS_STAMP = 524288
WS_QP = 1 << 20
WS_SIZE = 2 << 20
L_XN = 0
L_P = 10240
L_QB = L_P + 6144
L_PH = L_QB + 512
L_W = L_PH + 1536
L_TP = L_W + 8 * 2320
L_YP = L_TP + 256
L_SC = L_YP + 10240
L_QS = L_SC + 8192
L_WQ = L_QS + 3072
L_END = L_SC + 65536 + 8192
M_D, M_D10 = 0x7FFF7FFF7FFF7FFF, 0x000003FF7FFF7FFF
M_LO, M_HI, M_T1 = 0x00FF00FF00FF00FF, 0xFF00FF00FF00FF00, 0xFF00FF0000FF00FF
ALL = (1 << 64) - 1
SPIN = 0x100000

class Stamps:
    def __init__(self, A, on, s0): self.A = A; self.on = on; self.s0 = s0; self.n = 0
    def __call__(self):
        if self.on:
            s = self.s0 + 2 * self.n
            self.A(f"s_memrealtime s[{s}:{s+1}]")
            self.n += 1
    def flush(self, srd, base, swave, v0, v1):
        if not self.on: return
        A = self.A
        A("s_waitcnt lgkmcnt(0)")
        A("s_lshl_b32 s6, s2, 2")
        A(f"s_add_u32 s6, s6, {swave}")
        A("s_lshl_b32 s6, s6, 6")
        A(f"s_add_u32 s6, s6, {base}")
        A(f"v_mov_b32 {v1}, 0")
        A.setexec(1)
        for n in range(self.n):
            A(f"v_mov_b32 {v0}, s{self.s0 + 2*n}")
            A(f"buffer_store_dword {v0}, {v1}, s[{srd}:{srd+3}], s6 offen offset:{4*n}")
        A("s_getreg_b32 s7, hwreg(HW_REG_XCC_ID)")
        A(f"v_mov_b32 {v0}, s7")
        A(f"buffer_store_dword {v0}, {v1}, s[{srd}:{srd+3}], s6 offen offset:60")
        A(f"v_mov_b32 {v0}, s51")
        A(f"buffer_store_dword {v0}, {v1}, s[{srd}:{srd+3}], s6 offen offset:56")
        A.setexec(ALL)

class VQ:
    CAP = 54
    CLASS = False
    def __init__(self, A): self.A = A; self.q = []; self.frac = 0.0
    def room(self, n):
        cap = int(self.CAP)
        self.frac += self.CAP - cap
        if self.frac >= 1.0 - 1e-9:
            self.frac -= 1.0; cap += 1
        if len(self.q) > cap - n:
            self.A(f"s_waitcnt vmcnt({cap - n})")
            self.q = self.q[len(self.q) - (cap - n):]
    def op(self, text, tag, nocap=False):
        if nocap:
            self.A(text); self.q.append(tag); return
        cap = int(self.CAP)
        self.frac += self.CAP - cap
        if self.frac >= 1.0 - 1e-9:
            self.frac -= 1.0; cap += 1
        if self.CLASS and cap < 40:
            idx = [i for i, t in enumerate(self.q) if not (isinstance(t, tuple) and t[0] == "wo")]
            if len(idx) >= cap:
                pos = idx[len(idx) - cap]
                self.A(f"s_waitcnt vmcnt({len(self.q) - 1 - pos})")
                self.q = self.q[pos + 1:]
        elif len(self.q) >= cap:
            self.A(f"s_waitcnt vmcnt({cap - 1})")
            self.q = self.q[-(cap - 1):]
        self.A(text)
        self.q.append(tag)
    def wait(self, tag):
        if tag not in self.q: return
        pos = len(self.q) - 1 - self.q[::-1].index(tag)
        self.A(f"s_waitcnt vmcnt({len(self.q) - 1 - pos})")
        self.q = self.q[pos + 1:]

def gen(T=12, ext=4, rot=13, wo_start=0, stamps=False, kf='nt', vf='nt', wf='nt', tab_start=20,
        n1=3, n1b=1, n1c=1, n2=4, capk=8, capv=6, caph=6, wo_rate=1.0, dbg=False, BL=0, pmul=1, tlb=0, st0=False, wo_late=0, cape=54, lift=4, liftcap=54, poll2=False, tabrot=False, rh=(56,48,48), burst=False, order=(0,1,2), eplate=False, wo2=0, cap0=54, nowo=False, notab=False, noend=False, wosame=False, wob=0, wobcap=True, ccap=False, hb=0, bb_=0, ml_at=28, fc_at=36, ost=None, osf='', wopre='nt', wof='', wopre2='sc1', noqx=False, nopub=False, qsf='sc1 nt', qlf='sc1 nt', psf='sc1 nt', plf='sc1 nt', noqst=False, noqld=False, notabst=False, nomlx=False, notd=False):
    if wof is None: wof = wf
    VQ.CLASS = ccap
    if dbg: stamps = True
    A = Asm()
    A.raw(HDR.rstrip())
    A.raw(f"; @launch grid=(256,1,1) block=(256,1,1) lds={L_END}")
    A.raw('.amdgcn_target "amdgcn-amd-amdhsa--gfx950"')
    A.raw(".text")
    A.raw(f".globl {KN}")
    st = Stamps(A, stamps, 76)
    NT = 64
    STEP = 12288
    REGION = 786432
    sX, sK, sV, sWQ, sWO, sWS = 24, 28, 32, 36, 40, 44
    sOUT = 36
    sTAG, sBS, sQG, sRETRY = "s48", "s49", "s50", "s51"
    sWAVE, sB, sH, sHALF, sBH, sT0, sT1 = "s52", "s53", "s54", "s55", "s56", "s57", "s58"
    sKREL, sVREL, sWB, sOFF, sWQOFF, sWOOFF, sM, sL, sF, sSPIN = "s59", "s60", "s61", "s62", "s63", "s64", "s65", "s66", "s67", "s68"
    sB2, sTB, sJMP = "s69", "s3", "s101"
    sK0, sONE, sRET = 70, 72, 74
    sFP, sMK, sTK = 8, 10, "s16"
    vLANE, vKO, vVO, vQ0, vQ1, vQ2, vWO = "v1", "v2", "v3", "v4", "v5", "v6", "v7"
    vM = ["v8", "v9", "v10", "v11"]
    vA0, vA1, vAY, vSC, vXN, vMAX, vZ = "v12", "v13", "v14", "v15", "v16", "v17", "v18"
    vT = [f"v{i}" for i in range(19, 24)]
    QB = 24
    D = 36
    O = 40
    B = 52
    ML = 60
    TW = 64
    TX, TACC, TK1 = 88, 90, 92
    vTA = "v94"
    XS = 95
    vYA = [vQ1, vQ2, vXN]; vCNT = vMAX; vMK = [f"v{TX}", f"v{TX+1}"]
    R0 = 100
    NV = R0 + 12 * T
    AW = 204
    assert NV <= 256 and ext * 12 <= AW
    vq = VQ(A)

    A.raw(".p2align 8")
    A.raw(f".type {KN},@function")
    A.label(KN)
    A("s_cmp_ge_u32 s2, 256")
    A("s_cbranch_scc1 L_end")
    st()
    A("s_load_dwordx8 s[8:15], s[0:1], 0")
    A("s_load_dwordx2 s[16:17], s[0:1], 32")
    A("s_load_dwordx2 s[22:23], s[0:1], 96")
    A(f"v_lshrrev_b32 {vT[0]}, 6, v0")
    A(f"v_and_b32 {vLANE}, 63, v0")
    A(f"v_readfirstlane_b32 {sWAVE}, {vT[0]}")
    A(f"s_and_b32 {sH}, s2, 7")
    A(f"s_lshr_b32 {sT0}, s2, 3")
    A(f"s_lshl_b32 {sH}, {sH}, 2")
    A(f"s_and_b32 {sT1}, {sT0}, 3")
    A(f"s_add_u32 {sH}, {sH}, {sT1}")
    A(f"s_lshr_b32 {sBS}, {sT0}, 2")
    A(f"s_lshr_b32 {sB}, {sT0}, 3")
    A(f"s_and_b32 {sHALF}, {sBS}, 1")
    A(f"s_lshl_b32 {sBH}, {sB}, 5")
    A(f"s_add_u32 {sBH}, {sBH}, {sH}")
    q, i, t0, t1 = vT[0], vT[1], vT[2], vT[3]
    A(f"v_lshrrev_b32 {q}, 4, {vLANE}")
    A(f"v_and_b32 {i}, 15, {vLANE}")
    A(f"v_lshrrev_b32 {t0}, 2, {i}")
    A(f"v_mul_u32_u24 {vKO}, 768, {t0}")
    A(f"v_lshl_add_u32 {vKO}, {q}, 6, {vKO}")
    A(f"v_and_b32 {t0}, 3, {i}")
    A(f"v_lshl_add_u32 {vKO}, {t0}, 4, {vKO}")
    A(f"v_mul_u32_u24 {vVO}, 768, {q}")
    A(f"v_lshl_add_u32 {vVO}, {i}, 4, {vVO}")
    A(f"v_mul_u32_u24 {vQ0}, 24576, {q}")
    A(f"v_lshl_add_u32 {vQ0}, {i}, 4, {vQ0}")
    A(f"v_add_u32 {vQ1}, 256, {vQ0}")
    A(f"v_add_u32 {vQ2}, {12288-128}, {vQ0}")
    A(f"v_cmp_gt_u32 vcc, 8, {i}")
    A(f"v_mul_u32_u24 {vWO}, 1280, {q}")
    A(f"v_lshl_add_u32 {vWO}, {i}, 4, {vWO}")
    A(f"v_cndmask_b32 {vQ1}, {vQ2}, {vQ1}, vcc")
    A(f"v_add_u32 {vQ2}, {12288+128}, {vQ0}")
    for r in range(O, O + 12):
        A(f"v_mov_b32 v{r}, 0")
    A(f"v_lshlrev_b32 {t0}, 4, v0")
    A(f"v_lshlrev_b32 {t1}, 2, {vLANE}")
    A(f"s_lshl_b32 {sT1}, {sBH}, 1")
    A(f"s_add_u32 {sT1}, {sT1}, {sHALF}")
    if rh is None:
        A(f"s_mul_i32 {sKREL}, {sT1}, {rot}")
    else:
        A(f"s_mul_i32 {sKREL}, {sHALF}, {rh[0]}")
        A(f"s_mul_i32 {sT0}, {sH}, {rh[1]}")
        A(f"s_add_u32 {sKREL}, {sKREL}, {sT0}")
        A(f"s_mul_i32 {sT0}, {sB}, {rh[2]}")
        A(f"s_add_u32 {sKREL}, {sKREL}, {sT0}")
    A(f"s_and_b32 {sKREL}, {sKREL}, 63")
    A(f"s_mov_b32 {sVREL}, {sKREL}")
    if BL:
        A(f"s_mul_i32 {sJMP}, {sT1}, {pmul}")
        A(f"s_lshr_b32 {sJMP}, {sJMP}, 2")
        A(f"s_lshl_b32 {sJMP}, {sJMP}, 1")
        A(f"s_mul_i32 {sJMP}, {sJMP}, {BL}")
        A(f"s_add_u32 {sJMP}, {sJMP}, 1")
    A(f"s_mul_i32 {sT1}, {sT1}, {REGION}")
    A(f"s_mul_i32 {sWB}, {sWAVE}, 3072")
    A(f"s_mul_i32 {sOFF}, {sBS}, {80*12288}")
    A(f"s_mul_i32 {sT0}, {sH}, 384")
    A(f"s_add_u32 {sOFF}, {sOFF}, {sT0}")
    A(f"s_mul_i32 {sWQOFF}, {sWAVE}, {8*12288}")
    A(f"s_lshr_b32 {sT0}, {sWAVE}, 1")
    A(f"s_mul_i32 {sWOOFF}, {sT0}, {96*1280}")
    A(f"s_and_b32 {sT0}, {sWAVE}, 1")
    A(f"s_mul_i32 {sT0}, {sT0}, {4*1280}")
    A(f"s_add_u32 {sWOOFF}, {sWOOFF}, {sT0}")
    A(f"s_mul_i32 {sT0}, {sWAVE}, 1280")
    A(f"s_mov_b32 {sRETRY}, 0")
    A("s_waitcnt lgkmcnt(0)")
    if st0: st()
    if tabrot:
        A("s_load_dwordx2 s[4:5], s[0:1], 40")
        A("s_lshl_b32 s6, s2, 2")
        A("s_waitcnt lgkmcnt(0)")
        A(f"s_load_dword {sKREL}, s[4:5], s6")
        A("s_waitcnt lgkmcnt(0)")
        A(f"s_and_b32 {sKREL}, {sKREL}, 63")
        A(f"s_mov_b32 {sVREL}, {sKREL}")
    A.srd_off(sX, 8, sT0, 1280)
    for n in range(5):
        vq.op(f"buffer_load_dword v{XS+n}, {t1}, s[{sX}:{sX+3}], 0 offen offset:{n*256}", "x")
    A.srd_off(sWQ, 14, sOFF, 79 * 12288 + 384)
    for k in range(3):
        for t, o in enumerate((vQ0, vQ1, vQ2)):
            r = AW + k * 12 + t * 4
            vq.op(f"buffer_load_dwordx4 a[{r}:{r+3}], {o}, s[{sWQ}:{sWQ+3}], {sWQOFF} offen {wf}", "wq")
        if k < 2: A(f"s_add_u32 {sWQOFF}, {sWQOFF}, {32*12288}")
    A.srd_off(sK, 10, sT1, REGION)
    A.srd_off(sV, 12, sT1, REGION)
    A(f"s_mul_i32 {sT0}, {sH}, 245760")
    A.srd_off(sWO, 16, sT0, 245760)
    A.srd(sWS, "s22", "s23", WS_SIZE)
    A("s_load_dwordx8 s[8:15], s[0:1], 48")
    A("s_load_dwordx2 s[20:21], s[0:1], 80")
    if not eplate: A(f"s_load_dword {sTAG}, s[22:23], {WS_EP}")

    def treg(slot, t):
        if slot < T:
            r = R0 + slot * 12 + t * 4
            return f"v[{r}:{r+3}]"
        r = (slot - T) * 12 + t * 4
        return f"a[{r}:{r+3}]"
    def ld_tile(slot, isv, n):
        rel, srd, off = (sVREL, sV, vVO) if isv else (sKREL, sK, vKO)
        A(f"s_mul_i32 {sOFF}, {rel}, {STEP}")
        A(f"s_add_u32 {sOFF}, {sOFF}, {sWB}")
        if burst: vq.room(3)
        for t in order:
            vq.op(f"buffer_load_dwordx4 {treg(slot, t)}, {off}, s[{srd}:{srd+3}], {sOFF} offen offset:{t*256} {vf if isv else kf}", ("v" if isv else "k", n), nocap=burst)
        A(f"s_add_u32 {rel}, {rel}, {sJMP if (BL and (n + 1) % BL == 0) else 1}")
        A(f"s_and_b32 {rel}, {rel}, 63")
    def ld_wo(n):
        rg, c = divmod(n, 5)
        if nowo:
            A("s_nop 0"); return
        A(f"s_add_u32 {sOFF}, {sWOOFF}, {0 if wosame else rg*8*1280}")
        vq.op(f"buffer_load_dwordx4 a[{4*n}:{4*n+3}], {vWO}, s[{sWO}:{sWO+3}], {sOFF} offen offset:{c*256} {wof}", ("wo", n), nocap=not wobcap)
    kis = [0]
    def head_k(n):
        for _ in range(n):
            if kis[0] < T + ext:
                ld_tile(kis[0], False, kis[0]); kis[0] += 1
    def wo_touch(wopre):
        A(f"s_mul_i32 {sOFF}, {sBS}, 30720")
        A(f"s_mul_i32 {sT0}, {sWAVE}, 7680")
        A(f"s_add_u32 {sOFF}, {sOFF}, {sT0}")
        A(f"v_lshlrev_b32 {vZ}, 4, {vLANE}")
        for k in range(8):
            if k == 4: A(f"s_add_u32 {sOFF}, {sOFF}, 4096")
            if k == 7: A.setexec(0xffffffff)
            vq.op(f"buffer_load_dwordx4 a[{160+4*k}:{163+4*k}], {vZ}, s[{sWO}:{sWO+3}], {sOFF} offen offset:{(k%4)*1024} {wopre}", "wop")
        A.setexec(ALL)
    if wopre is not None: wo_touch(wopre)
    head_k(1)
    A("s_cmp_lg_u32 s2, 0")
    A("s_cbranch_scc1 L_nozero")
    for n in range(WS_ZEND // 4096):
        A(f"s_movk_i32 {sT0}, {n*4096}")
        A(f"buffer_store_dwordx4 v[{O}:{O+3}], {t0}, s[{sWS}:{sWS+3}], {sT0} offen sc1")
    A.label("L_nozero")
    A("s_waitcnt lgkmcnt(0)")
    sW = 16
    for ptr, dst in ((8, B), (10, B + 4), (12, D)):
        A.srd(sW, f"s{ptr}", f"s{ptr+1}", 3072)
        vq.op(f"buffer_load_dwordx4 v[{dst}:{dst+3}], {t0}, s[{sW}:{sW+3}], 0 offen", "mw")
    A(f"s_load_dword {sB2}, s[14:15], 0")
    def mktag():
        A(f"s_mul_i32 {sTAG}, {sTAG}, 0x2c9277b5")
        A(f"s_add_u32 {sTAG}, {sTAG}, 0x7f4a7c15")
    if eplate: A(f"s_load_dword {sTAG}, s[22:23], {WS_EP}")
    else: mktag()
    jl = vT[2]
    A(f"v_and_b32 {jl}, 7, {vLANE}")
    A(f"v_and_b32 {t1}, 1, {vLANE}")
    A(f"v_cmp_eq_u32 vcc, 1, {t1}")
    A(f"v_mov_b32 {vT[4]}, 0xffff")
    A(f"v_mov_b32 {vM[3]}, 0xffff0000")
    A(f"v_cndmask_b32 {vT[4]}, {vT[4]}, {vM[3]}, vcc")
    A(f"v_lshrrev_b32 {t1}, 1, {jl}")
    for r in range(4):
        A(f"v_cmp_eq_u32 vcc, {r}, {t1}")
        A("s_nop 1")
        A(f"v_cndmask_b32 {vM[r]}, 0, {vT[4]}, vcc")
    A(f"v_lshl_add_u32 {vAY}, {q}, 3, {jl}")
    A(f"v_lshlrev_b32 {vAY}, 4, {vAY}")
    A(f"s_mul_i32 {sT0}, {sWAVE}, 1536")
    A(f"v_add_u32 {vA0}, {sT0}, {vAY}")
    A(f"s_mul_i32 {sT0}, {sWAVE}, 2560")
    A(f"v_add_u32 {vAY}, {sT0}, {vAY}")
    A(f"v_lshrrev_b32 {t1}, 3, {vLANE}")
    A(f"s_mul_i32 {sT1}, {sBS}, 320")
    A(f"s_add_u32 {sT0}, {sT0}, {sT1}")
    A(f"v_lshl_add_u32 {vXN}, {t1}, 2, {sT0}")
    A(f"s_lshl_b32 {sT0}, {sWAVE}, 11")
    A(f"s_add_u32 {sT0}, {sT0}, {L_SC}")
    A(f"v_lshl_add_u32 {vSC}, {t1}, 2, {sT0}")
    A(f"v_mov_b32 {vMAX}, 0xff800000")
    A(f"v_lshlrev_b32 {vA1}, 2, v0")
    A(f"s_lshl_b32 {sT0}, s2, 2")
    A(f"s_add_u32 {sT0}, {sT0}, {sWAVE}")
    A(f"s_lshr_b32 {sT1}, {sT0}, 9")
    A(f"s_lshl_b32 {sT1}, {sT1}, 15")
    A(f"s_and_b32 {sT0}, {sT0}, 511")
    A(f"s_lshl_b32 {sT0}, {sT0}, 3")
    A(f"s_add_u32 {sT0}, {sT0}, 12800")
    A(f"s_or_b32 {sTB}, {sT0}, {sT1}")
    A(f"v_add_lshl_u32 v{TX}, {jl}, {sTB}, 16")
    A(f"v_mov_b32 v{TX+1}, v{TX}")
    A(f"v_mov_b32 v{TACC}, 0")
    A(f"v_mov_b32 v{TACC+1}, 0")
    K0 = -2.0 * 0.7978845608028654 * LOG2E
    A(f"v_mov_b32 v{TK1}, {F(K0 * 0.044715)}")
    A(f"v_mov_b32 v{TK1+1}, {F(K0 * 0.044715)}")
    A(f"s_mov_b32 s{sK0}, {F(K0)}")
    A(f"s_mov_b32 s{sK0+1}, {F(K0)}")
    A(f"s_mov_b32 s{sONE}, 1.0")
    A(f"s_mov_b32 s{sONE+1}, 1.0")
    A(f"v_mul_u32_u24 {vTA}, 2320, {t1}")
    A(f"v_add_u32 {vTA}, {L_W}, {vTA}")
    vq.CAP = cap0
    head_k(n1 - 1)
    vq.wait("x")
    if not st0: st()
    for n in range(5):
        A(f"v_lshlrev_b32 v{TW+2*n}, 16, v{XS+n}")
        A(f"v_and_b32 v{TW+2*n+1}, 0xffff0000, v{XS+n}")
    layernorm_fast(A, TW, QB, TW + 10, 4, True)
    A(f"s_mul_i32 {sT0}, {sWAVE}, 2560")
    A(f"v_lshl_add_u32 {vT[2]}, {vLANE}, 3, {sT0}")
    for n in range(10):
        A(f"v_cvt_pk_bf16_f32 v{QB+n}, v{QB+n}, v{QB+n}")
    for n in range(5):
        A(f"ds_write_b64 {vT[2]}, v[{QB+2*n}:{QB+2*n+1}] offset:{L_XN + n*512}")
    A(f"v_lshlrev_b32 {vZ}, 4, {vLANE}")
    A(f"v_add_u32 {vT[2]}, {sWB}, {vZ}")
    vq.wait("wq")
    A("s_waitcnt lgkmcnt(0)")
    if eplate: mktag()
    A(f"v_add_u32 {vT[2]}, {L_WQ}, {vT[2]}")
    for k in range(3):
        for t in range(3):
            r = AW + k * 12 + t * 4
            A(f"ds_write_b128 {vT[2]}, a[{r}:{r+3}] offset:{k*12288 + t*1024}")
    if wopre2 is not None:
        vq.wait("wop")
        wo_touch(wopre2)
    head_k(n1b)
    vq.wait("mw")
    A("s_waitcnt lgkmcnt(0)")
    A(f"s_cmp_eq_u32 {sWAVE}, 3")
    A("s_cbranch_scc1 L_now")
    for k, src in enumerate((B, B + 4, D)):
        for n in range(4):
            A(f"v_lshlrev_b32 v{TW+8*k+2*n}, 16, v{src+n}")
            A(f"v_and_b32 v{TW+8*k+2*n+1}, 0xffff0000, v{src+n}")
    A(f"v_mul_u32_u24 {vT[3]}, 2731, v0")
    A(f"v_mul_u32_u24 {vT[2]}, 96, v0")
    A(f"v_lshrrev_b32 {vT[3]}, 16, {vT[3]}")
    A(f"v_lshl_add_u32 {vT[2]}, {vT[3]}, 4, {vT[2]}")
    A(f"v_mov_b32 {vT[3]}, 0")
    A(f"ds_write_b32 {vT[3]}, {vT[3]} offset:{L_TP + 128}")
    for k in range(6):
        A(f"ds_write_b128 {vT[2]}, v[{TW+4*k}:{TW+4*k+3}] offset:{L_W + 16*k}")
    A("s_waitcnt lgkmcnt(0)")
    A.label("L_now")
    for n in range(10):
        A(f"ds_read_b32 v{QB+n}, {vXN} offset:{L_XN + n*32}")
    A(f"v_add_u32 {vT[2]}, {L_WQ}, {vZ}")
    A(f"v_mov_b32 {vT[4]}, 0")
    A("s_waitcnt lgkmcnt(0)")
    A("s_barrier")
    A(f"s_or_b32 {sT0}, s2, {sWAVE}")
    A(f"s_cmp_lg_u32 {sT0}, 0")
    A("s_cbranch_scc1 L_noflag")
    for r in range(4):
        A(f"v_mov_b32 v{ML+r}, {sTAG}")
    A(f"s_mov_b32 {sT0}, {WS_ZF}")
    A.setexec(1)
    A(f"buffer_store_dwordx4 v[{ML}:{ML+3}], {vT[4]}, s[{sWS}:{sWS+3}], {sT0} offen sc1")
    A.setexec(ALL)
    A.label("L_noflag")
    def wq_read(n):
        for t in range(3):
            r = AW + (n % 3) * 12 + t * 4
            A(f"ds_read_b128 a[{r}:{r+3}], {vT[2]} offset:{n*3072 + t*1024}")
    for n in range(3): wq_read(n)
    head_k(n1c)
    for n in range(10):
        bb = B + 4 * (n & 1)
        for r in range(4):
            A(f"v_and_b32 v{bb+r}, v{QB+n}, {vM[r]}")
        A(f"s_waitcnt lgkmcnt({3 * min(2, 9 - n)})")
        A("s_nop 0")
        for t in range(3):
            r = AW + (n % 3) * 12 + t * 4
            A(f"v_mfma_f32_16x16x32_bf16 v[{O+4*t}:{O+4*t+3}], a[{r}:{r+3}], v[{bb}:{bb+3}], v[{O+4*t}:{O+4*t+3}]")
        if n + 3 < 10:
            A("s_nop 3")
            wq_read(n + 3)
    def lds_put3():
        A.setexec(M_LO)
        A(f"ds_write_b128 {vA0}, v[{O}:{O+3}] offset:{L_P}")
        A.setexec(M_T1)
        A(f"ds_write_b128 {vA0}, v[{O+4}:{O+7}] offset:{L_P + 512}")
        A.setexec(M_HI)
        A(f"ds_write_b128 {vA0}, v[{O+8}:{O+11}] offset:{L_P + 768 + 256}")
        A.setexec(ALL)
    A(f"s_mul_i32 {sT0}, {sWAVE}, 1536")
    A(f"v_lshl_add_u32 {vT[2]}, {vLANE}, 2, {sT0}")
    A(f"s_lshl_b32 {sT0}, {sH}, 2")
    A(f"s_add_u32 {sT1}, {sT0}, {sWAVE}")
    A(f"s_lshl_b32 {sT1}, {sT1}, 3")
    A(f"s_add_u32 {sT1}, {sT1}, {sBS}")
    A(f"s_lshl_b32 {sT1}, {sT1}, 10")
    A(f"s_add_u32 {sT1}, {sT1}, {WS_QP}")
    A(f"s_add_u32 {sQG}, {sT0}, {sB}")
    A(f"s_lshl_b32 {sQG}, {sQG}, 2")
    A(f"s_add_u32 {sQG}, {sQG}, {sWAVE}")
    A(f"s_lshl_b32 {sQG}, {sQG}, 11")
    A(f"s_add_u32 {sQG}, {sQG}, {WS_QP}")
    lds_put3()
    A("s_waitcnt lgkmcnt(0)")
    for k in range(6):
        A(f"ds_read_b32 v{B+k}, {vT[2]} offset:{L_P + 256*k}")
    A(f"v_mov_b32 v{D+3}, {sTAG}")
    A("s_waitcnt lgkmcnt(0)")
    for k in range(3):
        A(f"v_add_f32 v{D+k}, v{B+k}, v{B+3+k}")
    if not (noqx or noqst): vq.op(f"buffer_store_dwordx4 v[{D}:{D+3}], {vZ}, s[{sWS}:{sWS+3}], {sT1} offen {qsf}", "qst")
    st()
    vq.CAP = caph
    head_k(n2)
    def q_gather(track):
        for k in range(2):
            txt = f"buffer_load_dwordx4 v[{B+4*k}:{B+4*k+3}], {vZ}, s[{sWS}:{sWS+3}], {sQG} offen offset:{1024*k} {qlf}"
            if track: vq.op(txt, "qg")
            else: A(txt)
    if not (noqx or noqld): q_gather(True)
    if tlb:
        A(f"v_lshlrev_b32 {vQ0}, 16, {vLANE}")
        A.setexec(0xfff)
        vq.op(f"buffer_load_dword v{ML}, {vQ0}, s[{sV}:{sV+3}], 0 offen nt", "tlb")
        if tlb > 1:
            vq.op(f"buffer_load_dword v{ML+1}, {vQ0}, s[{sK}:{sK+3}], 0 offen nt", "tlb")
            vq.op(f"buffer_load_dword v{ML+2}, {vQ0}, s[{sWO}:{sWO+3}], 0 offen nt", "tlb")
        A.setexec(ALL)
    head_k(T + ext - kis[0] - hb)
    vq.CAP = 54
    head_k(99)
    q, i, t0, t1 = vT[0], vT[1], vT[2], vT[3]
    A(f"v_and_b32 {t0}, 32, {vLANE}")
    A(f"v_and_b32 {t1}, 3, {vLANE}")
    A(f"v_lshl_add_u32 {t0}, {t1}, 3, {t0}")
    A(f"v_bfe_u32 {t1}, {vLANE}, 2, 3")
    A(f"v_add_lshl_u32 {vXN}, {t0}, {t1}, 1")
    A(f"s_mul_i32 {sT0}, {sWAVE}, 768")
    A(f"v_lshlrev_b32 {vQ0}, 2, {vLANE}")
    A(f"v_add_u32 {vQ1}, {sT0}, {vQ0}")
    A(f"v_and_b32 {t0}, 3, {vLANE}")
    A(f"v_lshl_add_u32 {t0}, {q}, 2, {t0}")
    A(f"v_and_b32 {t1}, 8, {vLANE}")
    A(f"v_add_lshl_u32 {vQ2}, {t0}, {t1}, 4")
    A(f"v_cmp_gt_u32 vcc, 8, {i}")
    A(f"v_add_u32 {t1}, 16, {t0}")
    A(f"v_subrev_u32 {t0}, 8, {t0}")
    A(f"v_cndmask_b32 {t0}, {t0}, {t1}, vcc")
    A(f"v_lshlrev_b32 {t0}, 4, {t0}")
    for r in range(12):
        A(f"v_mov_b32 v{QB+r}, 0")
    vq.wait("qg")
    A(f"s_mov_b32 {sSPIN}, {1 if (noqx or noqst or noqld) else SPIN}")
    A.label("L_qchk")
    A(f"v_cmp_ne_u32 vcc, {sTAG}, v{B+3}")
    A(f"v_cmp_ne_u32 s[4:5], {sTAG}, v{B+7}")
    A("s_nop 1")
    A("s_or_b64 vcc, vcc, s[4:5]")
    A("s_cbranch_scc0 L_qok")
    A(f"s_sub_u32 {sSPIN}, {sSPIN}, 1")
    A(f"s_cmp_eq_u32 {sSPIN}, 0")
    A("s_cbranch_scc1 L_qok")
    A(f"s_add_u32 {sRETRY}, {sRETRY}, 1")
    A("s_sleep 2")
    q_gather(False)
    A("s_waitcnt vmcnt(0)")
    A("s_branch L_qchk")
    A.label("L_qok")
    for k in range(3):
        A(f"v_add_f32 v{B+k}, v{B+k}, v{B+4+k}")
    for k in range(3):
        A(f"ds_write_b32 {vQ1}, v{B+k} offset:{L_QS + 256*k}")
    A("s_waitcnt lgkmcnt(0)")
    A("s_barrier")
    for k in range(12):
        A(f"ds_read_b32 v{O+k}, {vQ0} offset:{L_QS + 256*k}")
    A("s_waitcnt lgkmcnt(0)")
    for k in range(3):
        A(f"v_add_f32 v{O+k}, v{O+k}, v{O+3+k}")
        A(f"v_add_f32 v{O+6+k}, v{O+6+k}, v{O+9+k}")
    for k in range(3):
        A(f"v_add_f32 v{O+k}, v{O+k}, v{O+6+k}")
    for k in range(3):
        A(f"v_cvt_pk_bf16_f32 v{O+k}, v{O+k}, v{O+k}")
    for k in range(3):
        A(f"ds_write_b16 {vXN}, v{O+k} offset:{L_QB + 128*k}")
    A("s_waitcnt lgkmcnt(0)")
    A.setexec(M_LO)
    A(f"ds_read_b128 v[{QB}:{QB+3}], {vQ2} offset:{L_QB}")
    A.setexec(M_HI)
    A(f"ds_read_b128 v[{QB+8}:{QB+11}], {vQ2} offset:{L_QB}")
    A.setexec(M_T1)
    A(f"ds_read_b128 v[{QB+4}:{QB+7}], {t0} offset:{L_QB}")
    A.setexec(ALL)
    for r in range(O, O + 12):
        A(f"v_mov_b32 v{r}, 0")
    def tab_reads():
        for k in range(6):
            A(f"ds_read_b128 v[{TW+4*k}:{TW+4*k+3}], {vTA} offset:{16*k}")
        A(f"v_add_u32 {vTA}, 96, {vTA}")
    A("s_waitcnt lgkmcnt(0)")
    tab_reads()
    ncalls = [0]
    published = [False]
    def tab_finish(dst):
        A.rb(dst, dst)
        A(f"v_add_f32 {dst}, {sB2}, {dst}")
        A(f"v_cvt_pk_bf16_f32 {dst}, {dst}, {dst}")
    def tab_publish():
        ta, tb = f"v{TACC}", f"v{TACC+1}"
        A(f"v_add_f32 {ta}, {ta}, {tb}")
        A("s_nop 1")
        A(f"v_add_f32_dpp {ta}, {ta}, {ta} row_ror:8 row_mask:0xf bank_mask:0xf")
        A(f"v_mov_b32 {tb}, {ta}")
        A("s_nop 1")
        A(f"v_permlane16_swap_b32 {ta}, {tb}")
        A(f"v_add_f32 {ta}, {ta}, {tb}")
        A(f"v_mov_b32 {tb}, {ta}")
        A("s_nop 1")
        A(f"v_permlane32_swap_b32 {ta}, {tb}")
        A(f"v_add_f32 {ta}, {ta}, {tb}")
        tab_finish(ta)
        A(f"s_lshl_b32 {sT0}, {sWAVE}, 4")
        A(f"v_lshl_add_u32 {tb}, {vLANE}, 1, {sT0}")
        A.setexec(0xff)
        A(f"ds_write_b16 {tb}, {ta} offset:{L_TP}")
        A.setexec(ALL)
    A(f"s_lshl_b32 {sB2}, {sB2}, 16")
    st()
    s = vT[0]
    slot_of = list(range(T + ext))
    nxt = [T + ext]
    def refill(slot):
        if slot >= T or nxt[0] >= 2 * NT: return False
        m = nxt[0]; nxt[0] += 1
        slot_of.append(slot)
        ld_tile(slot, m >= NT, m % NT)
        return True
    NR = 4
    NR = 6
    use_order = [rg * 5 + c for rg in range(NR) for c in range(5)] + [rg * 5 + c for c in range(5) for rg in range(NR, 12)]
    late = use_order[60 - wo_late:]
    wo_order = [k for k in list(range(3 * ext, 60)) + list(range(3 * ext)) if k not in late] + late
    wo_left = [60]
    if wob:
        f = -(-3 * ext // 5) * 5
        wo_order = list(range(f, 60)) + list(range(f))
    def wo_step(n):
        if wob:
            if n % wob != wob - 1 or wo_left[0] == 0: return False
            assert wo_order[60 - wo_left[0]] >= 3 * ext or n >= T + ext
            for _ in range(wob):
                ld_wo(wo_order[60 - wo_left[0]]); wo_left[0] -= 1
            return True
        if n < wo_start or wo_left[0] <= wo_late: return False
        if not wo2 and (n - wo_start + 1) * wo_rate < 60 - wo_left[0] + 1 - 1e-9: return False
        k = wo_order[60 - wo_left[0]]
        if k < 3 * ext and n % 1000 < T + k // 3: return False
        ld_wo(k); wo_left[0] -= 1
        return True
    vq.CAP = capk
    for n in range(NT):
        if n == NT - T or wo_left[0] <= wo_late: vq.CAP = capv
        if n >= NT - bb_: vq.CAP = 54
        slot = slot_of[n]
        vq.wait(("k", n))
        for tt in range(3):
            c = "0" if tt == 0 else f"v[{D}:{D+3}]"
            A(f"v_mfma_f32_16x16x32_bf16 v[{D}:{D+3}], {treg(slot, tt)}, v[{QB+4*tt}:{QB+4*tt+3}], {c}")
        if not refill(slot): A("s_nop 6")
        if not wo_step(n): A("s_nop 0")
        if n < wo2: wo_step(n + 1000)
        s2 = vT[1]
        A(f"v_mov_b32_dpp {s}, v{D} quad_perm:[0,0,0,0] row_mask:0xf bank_mask:0xf")
        A(f"v_mov_b32_dpp {s2}, v{D+2} quad_perm:[2,2,2,2] row_mask:0xf bank_mask:0xf")
        A("s_nop 0")
        A(f"v_add_f32_dpp {s}, v{D+1}, {s} quad_perm:[1,1,1,1] row_mask:0xf bank_mask:0xf")
        A(f"v_add_f32_dpp {s2}, v{D+3}, {s2} quad_perm:[3,3,3,3] row_mask:0xf bank_mask:0xf")
        A(f"v_add_f32 {s}, {s}, {s2}")
        A.rb(s, s)
        A(f"v_mul_f32 {s}, {F(192 ** -0.5)}, {s}")
        A.rb(s, s)
        A(f"v_max_f32 {vMAX}, {vMAX}, {s}")
        A(f"ds_write_b32 {vSC}, {s} offset:{n*32}")
        if n >= tab_start:
            if ncalls[0] < 24:
                if not notab: A(f"s_call_b64 s[{sRET}:{sRET+1}], L_tab")
                ncalls[0] += 1
            elif not published[0]:
                published[0] = True
                tab_publish()
    assert published[0]
    st()
    A.wave_red("max", vMAX, sM)
    A(f"s_lshl_b32 {sT0}, {sWAVE}, 11")
    A(f"s_add_u32 {sT0}, {sT0}, {L_SC}")
    A(f"v_lshl_add_u32 {vT[0]}, {vLANE}, 5, {sT0}")
    A("s_waitcnt lgkmcnt(0)")
    A(f"ds_read_b128 v[{B}:{B+3}], {vT[0]}")
    A(f"ds_read_b128 v[{B+4}:{B+7}], {vT[0]} offset:16")
    A("s_waitcnt lgkmcnt(0)")
    for r in range(8):
        A(f"v_subrev_f32 v{B+r}, {sM}, v{B+r}")
    for r in range(8):
        A(f"v_mul_f32 v{B+r}, {F(LOG2E)}, v{B+r}")
    for r in range(8):
        A(f"v_exp_f32 v{B+r}, v{B+r}")
    A("s_nop 0")
    A(f"v_add_f32 {vT[1]}, v{B}, v{B+1}")
    for r in range(2, 8):
        A(f"v_add_f32 {vT[1]}, {vT[1]}, v{B+r}")
    for r in range(8):
        A(f"v_cvt_pk_bf16_f32 v{B+r}, v{B+r}, v{B+r}")
    A(f"ds_write_b128 {vT[0]}, v[{B}:{B+3}]")
    A(f"ds_write_b128 {vT[0]}, v[{B+4}:{B+7}] offset:16")
    A.wave_red("add", vT[1], sL)
    A(f"v_mov_b32 v{ML}, {sM}")
    A(f"v_mov_b32 v{ML+1}, {sL}")
    A(f"v_mov_b32 v{ML+2}, {sTAG}")
    A(f"v_mov_b32 v{ML+3}, {sTAG}")
    A(f"s_lshl_b32 {sT0}, {sBH}, 7")
    A(f"s_add_u32 {sT0}, {sT0}, {WS_ML}")
    A(f"v_lshl_add_u32 {vZ}, {vLANE}, 4, {sT0}")
    A(f"s_mov_b32 {sT0}, {WS_ZF}")
    A(f"v_writelane_b32 {vZ}, {sT0}, 8")
    A(f"s_lshl_b32 {sT1}, {sWAVE}, 4")
    A(f"v_mov_b32 {vT[0]}, {sT1}")
    A(f"v_mov_b32 {vT[1]}, 1")
    A.setexec(1)
    A(f"ds_write_b128 {vT[0]}, v[{ML}:{ML+3}] offset:{L_TP + 64}")
    A("s_waitcnt lgkmcnt(0)")
    A(f"ds_add_rtn_u32 {vT[1]}, {vT[4]}, {vT[1]} offset:{L_TP + 128}")
    A("s_waitcnt lgkmcnt(0)")
    A(f"v_readfirstlane_b32 {sT0}, {vT[1]}")
    A.setexec(0xff)
    A(f"s_cmp_lg_u32 {sT0}, 3")
    A("s_cbranch_scc1 L_nopub")
    A(f"v_lshlrev_b32 {vT[0]}, 3, {vLANE}")
    A(f"v_lshlrev_b32 {vT[1]}, 4, {vLANE}")
    A(f"ds_read_b64 v[{ML}:{ML+1}], {vT[0]} offset:{L_TP}")
    A(f"ds_read_b128 v[{TW}:{TW+3}], {vT[1]} offset:{L_TP + 64}")
    A(f"s_lshl_b32 {sT0}, s2, 7")
    A(f"s_add_u32 {sT0}, {sT0}, {WS_TAB}")
    A(f"s_lshl_b32 {sT1}, {sHALF}, 6")
    A("s_waitcnt lgkmcnt(0)")
    if not nopub:
        A(f"buffer_store_dwordx4 v[{ML}:{ML+3}], {vT[1]}, s[{sWS}:{sWS+3}], {sT0} offen {psf}")
        A.setexec(0xf)
        A(f"buffer_store_dwordx4 v[{TW}:{TW+3}], {vZ}, s[{sWS}:{sWS+3}], {sT1} offen {psf}")
    A.label("L_nopub")
    A.setexec(ALL)
    vq.CAP = capv
    PP = [QB + n for n in range(8)]
    A("s_waitcnt lgkmcnt(0)")
    for n in range(4):
        A(f"ds_read_b32 v{PP[n]}, {vSC} offset:{n*32}")
    def fcalc():
        vq.wait("ml")
        A(f"s_mov_b32 {sSPIN}, {SPIN}")
        A.label("L_mlchk")
        A(f"v_cmp_ne_u32 vcc, {sTAG}, v{ML+2}")
        A("s_nop 1")
        A("s_and_b32 vcc_lo, vcc_lo, 0x1ff")
        A("s_cbranch_scc0 L_mlok")
        A(f"s_sub_u32 {sSPIN}, {sSPIN}, 1")
        A(f"s_cmp_eq_u32 {sSPIN}, 0")
        A("s_cbranch_scc1 L_mlok")
        A("s_sleep 8")
        A.setexec(0x1ff)
        A(f"buffer_load_dwordx4 v[{ML}:{ML+3}], {vZ}, s[{sWS}:{sWS+3}], 0 offen {plf}")
        A.setexec(ALL)
        A("s_waitcnt vmcnt(0)")
        A("s_branch L_mlchk")
        A.label("L_mlok")
        mm, e = vT[0], vT[1]
        A(f"v_mov_b32 {mm}, v{ML}")
        for stp in Asm.DPP_STEPS[:3]:
            A("s_nop 1")
            A(f"v_max_f32_dpp {mm}, {mm}, {mm} {stp}")
        A(f"v_sub_f32 {e}, v{ML}, {mm}")
        A(f"v_sub_f32 {mm}, {sM}, {mm}")
        A(f"v_mul_f32 {e}, {F(LOG2E)}, {e}")
        A(f"v_mul_f32 {mm}, {F(LOG2E)}, {mm}")
        A(f"v_exp_f32 {e}, {e}")
        A(f"v_exp_f32 {mm}, {mm}")
        A(f"v_mul_f32 {e}, {e}, v{ML+1}")
        for stp in Asm.DPP_STEPS[:3]:
            A("s_nop 1")
            A(f"v_add_f32_dpp {e}, {e}, {e} {stp}")
        A(f"v_rcp_f32 {e}, {e}")
        A("s_nop 0")
        A(f"v_mul_f32 {e}, {e}, {mm}")
        A("s_nop 0")
        A(f"v_readfirstlane_b32 {sF}, {e}")
        A(f"s_mov_b32 s{sFP}, {sF}")
        A(f"s_mov_b32 s{sFP+1}, {sF}")
        for k, m in enumerate((M_LO, M_T1, M_HI)):
            A(f"s_mov_b32 s{sMK+2*k}, 0x{m & 0xffffffff:08x}")
            A(f"s_mov_b32 s{sMK+2*k+1}, 0x{m >> 32:08x}")
        A(f"v_lshrrev_b32 {vT[0]}, 4, {vLANE}")
        A(f"s_lshr_b32 {sT0}, {sWAVE}, 1")
        A(f"s_mul_i32 {sT0}, {sT0}, 24")
        A(f"s_and_b32 {sT1}, {sWAVE}, 1")
        A(f"s_lshl_b32 {sT1}, {sT1}, 2")
        A(f"s_add_u32 {sT0}, {sT0}, {sT1}")
        A(f"v_add_lshl_u32 {vT[0]}, {vT[0]}, {sT0}, 4")
        A(f"v_and_b32 {vT[1]}, 15, {vLANE}")
        A(f"v_min_u32 {vT[1]}, 11, {vT[1]}")
        A(f"v_lshrrev_b32 {vT[2]}, 2, {vT[1]}")
        A(f"v_lshl_add_u32 {vT[0]}, {vT[2]}, 7, {vT[0]}")
        A(f"v_and_b32 {vT[1]}, 3, {vT[1]}")
        A(f"v_lshl_add_u32 {vQ0}, {vT[1]}, 2, {vT[0]}")
        A(f"s_lshl_b32 {sTK}, {sB}, 7")
        A(f"s_add_u32 {sTK}, {sTK}, {WS_CNT}")
        A(f"v_mov_b32 {vZ}, 1")
        A(f"v_lshrrev_b32 {vT[0]}, 4, v0")
        A(f"v_mul_u32_u24 {vT[0]}, 15, {vT[0]}")
        A(f"v_and_b32 {vT[1]}, 15, v0")
        A(f"v_add_u32 {vT[0]}, {vT[0]}, {vT[1]}")
        A(f"v_cmp_eq_u32 vcc, 15, {vT[1]}")
        A(f"v_mov_b32 {vCNT}, 1.0")
        A(f"v_mov_b32 {vMK[0]}, -1")
        A(f"v_cndmask_b32 {vCNT}, 0, {vCNT}, vcc")
        A(f"v_cndmask_b32 {vMK[0]}, {vMK[0]}, 0, vcc")
        A(f"v_cmp_gt_u32 vcc, 160, {vT[0]}")
        for k in range(3):
            col, t = vT[2], vT[3]
            A(f"v_add_u32 {col}, {240*k}, {vT[0]}")
            A(f"v_min_u32 {col}, 639, {col}")
            A(f"v_and_b32 {vYA[k]}, 0x3e0, {col}")
            A(f"v_and_b32 {t}, 7, {col}")
            A(f"v_lshl_add_u32 {vYA[k]}, {t}, 2, {vYA[k]}")
            A(f"v_bfe_u32 {t}, {col}, 3, 2")
            A(f"v_add_lshl_u32 {vYA[k]}, {vYA[k]}, {t}, 2")
        A(f"v_cndmask_b32 {vMK[1]}, 0, {vMK[0]}, vcc")
        A(f"s_mul_i32 {sWQOFF}, {sB}, 3072")
    for n in range(NT):
        slot = slot_of[NT + n]
        bb = B + 4 * (n & 1)
        if n + 4 < NT:
            A(f"ds_read_b32 v{PP[(n+4)%8]}, {vSC} offset:{(n+4)*32}")
            A("s_waitcnt lgkmcnt(4)")
        else:
            A(f"s_waitcnt lgkmcnt({NT-1-n})")
        for r in range(4):
            A(f"v_and_b32 v{bb+r}, v{PP[n%8]}, {vM[r]}")
        vq.wait(("v", n))
        A("s_nop 1")
        for tt in range(3):
            A(f"v_mfma_f32_16x16x32_bf16 v[{O+4*tt}:{O+4*tt+3}], {treg(slot, tt)}, v[{bb}:{bb+3}], v[{O+4*tt}:{O+4*tt+3}]")
        if lift and n == NT - T - lift: vq.CAP = liftcap
        refill(slot)
        wo_step(NT + n)
        if n == NT - T - 1:
            assert wo_left[0] == wo_late
            vq.CAP = cape
            for k in late: ld_wo(k)
            wo_left[0] = 0
        if n == ml_at and not (nopub or nomlx):
            A.setexec(0x1ff)
            vq.op(f"buffer_load_dwordx4 v[{ML}:{ML+3}], {vZ}, s[{sWS}:{sWS+3}], 0 offen {plf}", "ml")
            A.setexec(ALL)
        if n == fc_at:
            fcalc()
    assert wo_left[0] == 0
    st()
    if noend: A("s_endpgm")
    A("s_nop 5")
    for t, off in enumerate((L_P, L_P + 512, L_P + 1024)):
        A(f"s_mov_b64 exec, s[{sMK+2*t}:{sMK+2*t+1}]")
        A(f"v_pk_mul_f32 v[{O+4*t}:{O+4*t+1}], v[{O+4*t}:{O+4*t+1}], s[{sFP}:{sFP+1}]")
        A(f"v_pk_mul_f32 v[{O+4*t+2}:{O+4*t+3}], v[{O+4*t+2}:{O+4*t+3}], s[{sFP}:{sFP+1}]")
        A(f"ds_write_b128 {vA0}, v[{O+4*t}:{O+4*t+3}] offset:{off}")
    A.setexec(1)
    A(f"s_cmp_lg_u32 {sWAVE}, 3")
    A("s_cbranch_scc1 L_notick")
    A(f"buffer_atomic_add {vZ}, {vT[4]}, s[{sWS}:{sWS+3}], {sTK} offen sc0")
    A.label("L_notick")
    A.setexec(ALL)
    A("s_waitcnt lgkmcnt(0)")
    A("s_barrier")
    st()
    assert L_P % 256 == 0
    for k in range(4):
        A(f"ds_read2st64_b32 v[{B+2*k}:{B+2*k+1}], {vQ0} offset0:{L_P//256 + 6*k} offset1:{L_P//256 + 6*k + 3}")
    A("s_waitcnt lgkmcnt(2)")
    A(f"v_pk_add_f32 v[{B}:{B+1}], v[{B}:{B+1}], v[{B+2}:{B+3}]")
    A("s_waitcnt lgkmcnt(0)")
    A(f"v_pk_add_f32 v[{B+4}:{B+5}], v[{B+4}:{B+5}], v[{B+6}:{B+7}]")
    A(f"v_pk_add_f32 v[{B}:{B+1}], v[{B}:{B+1}], v[{B+4}:{B+5}]")
    A(f"v_add_f32 v{B}, v{B}, v{B+1}")
    A(f"v_cvt_pk_bf16_f32 v{B+2}, v{B}, v{B}")
    A(f"v_and_b32 v{B+1}, 0xffff0000, v{B+2}")
    A(f"v_sub_f32 v{B+1}, v{B}, v{B+1}")
    A(f"v_cvt_pk_bf16_f32 v{B+3}, v{B+1}, v{B+1}")
    BO = R0
    YD = R0 + 48
    def omfma(rg, c):
        n = rg * 5 + c
        cc = "0" if rg == 0 else f"v[{YD+4*c}:{YD+4*c+3}]"
        vq.wait(("wo", n))
        A(f"v_mfma_f32_16x16x32_bf16 v[{YD+4*c}:{YD+4*c+3}], a[{4*n}:{4*n+3}], v[{BO+4*rg}:{BO+4*rg+3}], {cc}")
    hi = lambda rg: f"v_mov_b32_dpp v{O+rg}, v{B+2} row_newbcast:{rg} row_mask:0xf bank_mask:0x3"
    lo = lambda rg: f"v_mov_b32_dpp v{O+rg}, v{B+3} row_newbcast:{rg} row_mask:0xf bank_mask:0xc"
    fill = [hi(0), hi(1), hi(2)]
    for rg in range(12):
        fill.append(lo(rg))
        for r in range(4):
            fill.append(f"v_and_b32 v{BO+4*rg+r}, v{O+rg}, {vM[r]}")
        if rg + 3 < 12: fill.append(hi(rg + 3))
    def emit(k):
        for _ in range(k):
            if fill: A(fill.pop(0))
    emit(10)
    NR2 = 6
    for rg in range(NR2):
        for c in range(5):
            omfma(rg, c)
            emit(2)
    emit(99)
    A("s_nop 1")
    def ypieces(c):
        p = [f"v_add_f32_dpp v{YD+4*c+r}, v{YD+4*c+r}, v{YD+4*c+r} row_ror:8 row_mask:0xf bank_mask:0xf" for r in range(4)]
        return p
    def ywrite(c):
        A(f"s_mov_b64 exec, s[{sMK}:{sMK+1}]")
        A(f"ds_write_b128 {vAY}, v[{YD+4*c}:{YD+4*c+3}] offset:{L_YP + c*512}")
        A.setexec(ALL)
    for c in range(5):
        p = ypieces(c - 2) if c >= 2 else []
        for k, rg in enumerate(range(NR2, 12)):
            omfma(rg, c)
            if p and k in (2, 3):
                A(p.pop(0)); A(p.pop(0))
            if c >= 2 and k == 4:
                ywrite(c - 2)
    for x in ypieces(3): A(x)
    ywrite(3)
    A("s_nop 0")
    for x in ypieces(4): A(x)
    ywrite(4)
    A("s_waitcnt lgkmcnt(0)")
    A("s_barrier")
    st()
    for k in range(2):
        for w in range(4):
            A(f"ds_read_b32 v{O+4*k+w}, {vYA[k]} offset:{L_YP + 2560*w}")
    A(f"s_cmp_eq_u32 {sWAVE}, 3")
    A("s_cbranch_scc1 L_two")
    for w in range(4):
        A(f"ds_read_b32 v{O+8+w}, {vYA[2]} offset:{L_YP + 2560*w}")
    A("s_waitcnt lgkmcnt(0)")
    A(f"v_add_f32 v{O+8}, v{O+8}, v{O+9}")
    A(f"v_add_f32 v{O+10}, v{O+10}, v{O+11}")
    A(f"v_add_f32 v{O+8}, v{O+8}, v{O+10}")
    A(f"v_and_or_b32 v{O+8}, v{O+8}, {vMK[1]}, {vCNT}")
    A(f"buffer_atomic_add_f32 v{O+8}, {vA1}, s[{sWS}:{sWS+3}], {sWQOFF} offen offset:{WS_ACC + 2048}")
    A.label("L_two")
    A("s_waitcnt lgkmcnt(0)")
    for k in range(2):
        A(f"v_add_f32 v{O+4*k}, v{O+4*k}, v{O+4*k+1}")
        A(f"v_add_f32 v{O+4*k+2}, v{O+4*k+2}, v{O+4*k+3}")
    for k in range(2):
        A(f"v_add_f32 v{O+4*k}, v{O+4*k}, v{O+4*k+2}")
    for k in range(2):
        A(f"v_and_or_b32 v{O+4*k}, v{O+4*k}, {vMK[0]}, {vCNT}")
        A(f"buffer_atomic_add_f32 v{O+4*k}, {vA1}, s[{sWS}:{sWS+3}], {sWQOFF} offen offset:{WS_ACC + 1024*k}")
    st()
    A(f"s_cmp_lg_u32 {sWAVE}, 3")
    A("s_cbranch_scc1 L_done")
    A("s_waitcnt vmcnt(2)")
    A(f"v_readfirstlane_b32 {sT0}, {vZ}")
    A(f"s_cmp_lg_u32 {sT0}, 0")
    A("s_cbranch_scc1 L_done")
    H = R0
    HN = R0 + 12
    G = R0 + 24
    X = R0 + 36
    XO = R0 + 48
    T1 = R0 + 60
    T2 = R0 + 66
    TB = R0 + 72
    h = [f"v{H+n}" for n in range(11)]
    hn = [f"v{HN+n}" for n in range(11)]
    A("s_load_dwordx2 s[8:9], s[0:1], 0")
    A(f"s_mul_i32 {sT0}, {sB}, 1280")
    A.srd_off(sOUT, 20, sT0, 1280)
    A(f"v_lshrrev_b32 {vT[0]}, 4, {vLANE}")
    A(f"v_mul_u32_u24 {vT[0]}, 15, {vT[0]}")
    A(f"v_and_b32 {vT[2]}, 15, {vLANE}")
    A(f"v_add_lshl_u32 {vT[0]}, {vT[0]}, {vT[2]}, 1")
    A(f"v_cmp_eq_u32 vcc, 15, {vT[2]}")
    A(f"v_mov_b32 {vT[2]}, 0x10000")
    A(f"v_mov_b32 {vMK[1]}, 0")
    A(f"v_cndmask_b32 {vT[0]}, {vT[0]}, {vT[2]}, vcc")
    A.setexec(M_D10)
    A(f"v_mov_b32 {vMK[1]}, -1")
    A.setexec(ALL)
    A(f"v_mov_b32 {vQ0}, {vMK[1]}")
    for r in list(range(G, G + 12)) + list(range(X, X + 12)) + list(range(T1, T1 + 12)) + [H + 11]:
        A(f"v_mov_b32 v{r}, 0")
    A("s_waitcnt lgkmcnt(0)")
    A.srd_off(sX, 8, sT0, 1280)
    for n in range(11):
        A(f"buffer_load_short_d16_hi v{X+n}, {vT[0]}, s[{sX}:{sX+3}], 0 offen offset:{n*120}")
    A(f"v_lshlrev_b32 {vT[1]}, 4, {vLANE}")
    A(f"v_lshlrev_b32 {vT[2]}, 3, {vLANE}")
    A(f"s_mov_b32 {sSPIN}, {SPIN}")
    A.label("L_tabld")
    for k in range(32):
        if k % 4 == 0: A(f"s_mov_b32 {sT0}, {WS_TAB + k*1024}")
        A(f"buffer_load_dwordx4 a[{4*k}:{4*k+3}], {vT[1]}, s[{sWS}:{sWS+3}], {sT0} offen offset:{(k%4)*1024} {plf}")
    A(f"v_mov_b32 {vT[3]}, 0")
    A(f"v_add_u32 {vZ}, 0x10000, {vT[2]}")
    for k in range(32):
        if k % 8 == 0: A(f"s_waitcnt vmcnt({24 - k}) lgkmcnt(0)")
        A(f"v_accvgpr_read_b32 v{TB + (k & 1)}, a{4*k+2}")
        A(f"ds_write_b64 {vT[2] if k < 16 else vZ}, a[{4*k}:{4*k+1}] offset:{L_SC + (k%16)*512}")
        A(f"v_xor_b32 v{TB + (k & 1)}, {sTAG}, v{TB + (k & 1)}")
        if k & 1: A(f"v_or3_b32 {vT[3]}, v{TB}, v{TB+1}, {vT[3]}")
    A(f"v_cmp_ne_u32 vcc, 0, {vT[3]}")
    A(f"s_sub_u32 {sSPIN}, {sSPIN}, 1")
    A("s_waitcnt lgkmcnt(0)")
    A(f"s_cmp_eq_u32 {sSPIN}, 0")
    A("s_cbranch_scc1 L_tabok")
    A("s_cbranch_vccz L_tabok")
    A("s_sleep 8")
    A("s_branch L_tabld")
    A.label("L_tabok")
    A(f"v_mov_b32 {vZ}, {sTAG}")
    A(f"s_mov_b32 {sT1}, {WS_EP}")
    A.setexec(1)
    A(f"buffer_store_dword {vZ}, {vT[4]}, s[{sWS}:{sWS+3}], {sT1} offen sc1")
    A.setexec(ALL)
    A(f"v_lshlrev_b32 {vT[1]}, 2, {vLANE}")
    A(f"s_mov_b32 {sSPIN}, {SPIN}")
    A(f"s_mov_b32 s4, 0x80008000")
    st()
    A.label("L_poll")
    for n in range(11):
        A(f"buffer_load_dword {h[n]}, {vT[1]}, s[{sWS}:{sWS+3}], {sWQOFF} offen offset:{WS_ACC + n*256} sc1")
    A(f"s_sub_u32 {sSPIN}, {sSPIN}, 1")
    A("s_waitcnt vmcnt(0) lgkmcnt(0)")
    A(f"v_min3_f32 {vT[2]}, {h[0]}, {h[1]}, {h[2]}")
    A(f"v_min3_f32 {vT[3]}, {h[3]}, {h[4]}, {h[5]}")
    A(f"v_min3_f32 {vT[2]}, {h[6]}, {h[7]}, {vT[2]}")
    A(f"v_min3_f32 {vT[3]}, {h[8]}, {h[9]}, {vT[3]}")
    A(f"v_min3_f32 {vT[2]}, {h[10]}, {vT[2]}, {vT[3]}")
    A(f"s_cmp_eq_u32 {sSPIN}, 0")
    A("s_cbranch_scc1 L_pollok")
    A(f"v_cmp_neq_f32 vcc, {F(64.0)}, {vT[2]}")
    for n in range(2):
        A.rb(h[n], h[n])
    A("s_or_b32 vcc_lo, vcc_lo, vcc_hi")
    A("s_and_b32 vcc_lo, vcc_lo, s4")
    A("s_cbranch_scc1 L_poll")
    A.label("L_pollok")
    st()
    A.setexec(M_D)
    for n in range(2, 11):
        A.rb(h[n], h[n])
    for n in range(6):
        A(f"v_pk_add_f32 v[{H+2*n}:{H+2*n+1}], v[{H+2*n}:{H+2*n+1}], v[{X+2*n}:{X+2*n+1}]")
    for n in range(11):
        A.rb(h[n], h[n])
    layernorm_seg(A, H, HN, T1, 4, True, vQ0, M_D)
    layernorm_seg(A, HN, HN, T2, 4, False, vQ0, M_D)
    for n in range(11):
        A(f"v_lshrrev_b32 v{X+n}, 15, {hn[n]}")
        A(f"ds_read_u16_d16_hi v{G+n}, v{X+n} offset:{L_SC - 25600}")
    A(f"v_bfi_b32 {hn[10]}, {vQ0}, {hn[10]}, 1.0")
    A(f"v_min3_f32 {vT[2]}, abs({hn[0]}), abs({hn[1]}), abs({hn[2]})")
    A(f"v_max3_f32 {vT[3]}, abs({hn[0]}), abs({hn[1]}), abs({hn[2]})")
    for n in range(3, 11, 2):
        A(f"v_min3_f32 {vT[2]}, abs({hn[n]}), abs({hn[n+1]}), {vT[2]}")
        A(f"v_max3_f32 {vT[3]}, abs({hn[n]}), abs({hn[n+1]}), {vT[3]}")
    A(f"v_cmp_gt_f32 vcc, {F(2.0 ** -27)}, {vT[2]}")
    A(f"v_mov_b32 {vT[2]}, {F(32.0)}")
    A(f"v_cmp_le_f32 s[4:5], {vT[2]}, {vT[3]}")
    A("s_waitcnt lgkmcnt(0)")
    A("s_or_b64 vcc, vcc, s[4:5]")
    A("s_cbranch_scc1 L_direct")
    A.label("L_lookup")
    for n in range(6):
        A(f"v_pk_add_f32 v[{G+2*n}:{G+2*n+1}], v[{G+2*n}:{G+2*n+1}], v[{H+2*n}:{H+2*n+1}]")
    for n in range(6):
        A(f"v_cvt_pk_bf16_f32 v{G+2*n}, v{G+2*n}, v{G+2*n+1}")
    if ost is None:
        for n in range(11):
            op = "buffer_store_short" if n % 2 == 0 else "buffer_store_short_d16_hi"
            A(f"{op} v{G + (n & ~1)}, {vT[0]}, s[{sOUT}:{sOUT+3}], 0 offen offset:{n*120} {osf}")
        A.setexec(ALL)
    else:
        for n in range(11):
            op = "ds_write_b16" if n % 2 == 0 else "ds_write_b16_d16_hi"
            A(f"{op} {vT[0]}, v{G + (n & ~1)} offset:{L_XN + n*120}")
        A.setexec(ALL)
        A(f"v_lshlrev_b32 {vT[1]}, 4, {vLANE}")
        A("s_waitcnt lgkmcnt(0)")
        A(f"ds_read_b128 v[{G}:{G+3}], {vT[1]} offset:{L_XN}")
        A(f"ds_read_b128 v[{G+4}:{G+7}], {vT[1]} offset:{L_XN + 1024}")
        A("s_waitcnt lgkmcnt(1)")
        A(f"buffer_store_dwordx4 v[{G}:{G+3}], {vT[1]}, s[{sOUT}:{sOUT+3}], 0 offen {osf}")
        A("s_waitcnt lgkmcnt(0)")
        A(f"buffer_store_dwordx4 v[{G+4}:{G+7}], {vT[1]}, s[{sOUT}:{sOUT+3}], 0 offen offset:1024 {osf}")
    if stamps:
        A("s_waitcnt vmcnt(0)")
        st()
        st.flush(sWS, WS_STAMP + 65536, sWAVE, vT[0], vT[1])
        if dbg:
            A("s_load_dwordx2 s[4:5], s[0:1], 88")
            A("s_waitcnt lgkmcnt(0)")
            A.srd(16, "s4", "s5", 256)
            A(f"s_lshl_b32 s6, {sB}, 4")
            A(f"v_mov_b32 {vT[1]}, 0")
            A.setexec(1)
            for k, n in enumerate((3, 4, 5, 11)):
                A(f"s_sub_u32 s7, s{76+2*n}, s76")
                A(f"v_mov_b32 {vT[0]}, s7")
                A(f"buffer_store_dword {vT[0]}, {vT[1]}, s[16:19], s6 offen offset:{4*k}")
            A.setexec(ALL)
    A.label("L_done")
    if stamps:
        st.flush(sWS, WS_STAMP, sWAVE, vT[0], vT[1])
    A.label("L_end")
    A("s_endpgm")
    A.label("L_direct")
    A.setexec(ALL)
    A(f"v_lshrrev_b32 {vT[1]}, 3, {vLANE}")
    A(f"v_mul_u32_u24 {vT[1]}, 2320, {vT[1]}")
    A(f"v_and_b32 {vT[2]}, 7, {vLANE}")
    A(f"v_mul_u32_u24 {vT[2]}, 288, {vT[2]}")
    A(f"v_add_u32 {vT[1]}, {vT[1]}, {vT[2]}")
    A(f"v_add_u32 {vT[1]}, {L_W}, {vT[1]}")
    for n in range(11):
        A(f"v_bfe_u32 {vT[2]}, {hn[n]}, 23, 8")
        A(f"v_subrev_u32 {vT[2]}, 100, {vT[2]}")
        A.setexec(M_D)
        A(f"v_cmp_le_u32 s[4:5], 32, {vT[2]}")
        A.setexec(ALL)
        A.label(f"L_dir{n}")
        A("s_nop 1")
        A("s_cmp_eq_u64 s[4:5], 0")
        A(f"s_cbranch_scc1 L_dirx{n}")
        A(f"s_ff1_i32_b64 {sT0}, s[4:5]")
        A(f"v_readlane_b32 {sT1}, {hn[n]}, {sT0}")
        A(f"s_call_b64 s[6:7], L_eval")
        A(f"v_cmp_eq_u32 vcc, {sT1}, {hn[n]}")
        A("s_nop 1")
        A(f"v_cndmask_b32 v{G+n}, v{G+n}, v{TACC}, vcc")
        A("s_andn2_b64 s[4:5], s[4:5], vcc")
        A(f"s_branch L_dir{n}")
        A.label(f"L_dirx{n}")
    A.setexec(M_D)
    A("s_branch L_lookup")
    A.label("L_eval")
    A("s_nop 1")
    A(f"v_mov_b32 v{TX}, {sT1}")
    A(f"v_mov_b32 v{TX+1}, {sT1}")
    A(f"v_mov_b32 v{TACC}, 0")
    A(f"v_mov_b32 v{TACC+1}, 0")
    A(f"v_mov_b32 {vTA}, {vT[1]}")
    A("s_waitcnt lgkmcnt(0)")
    tab_reads()
    for _ in range(3):
        A(f"s_call_b64 s[{sRET}:{sRET+1}], L_tab")
    A(f"v_add_f32 v{TACC}, v{TACC}, v{TACC+1}")
    A.wave_red("add", f"v{TACC}", sT0)
    A(f"v_mov_b32 v{TACC}, {sT0}")
    tab_finish(f"v{TACC}")
    A(f"v_and_b32 v{TACC}, 0xffff0000, v{TACC}")
    A("s_setpc_b64 s[6:7]")
    A.label("L_tab")
    A("s_waitcnt lgkmcnt(0)")
    def P(r): return f"v[{r}:{r+1}]"
    W1, B1, W2 = TW, TW + 8, TW + 16
    for p in range(4): A(f"v_pk_mul_f32 {P(W1+2*p)}, {P(TX)}, {P(W1+2*p)}")
    for k in range(8): A.rb(f"v{W1+k}", f"v{W1+k}")
    for p in range(4): A(f"v_pk_add_f32 {P(W1+2*p)}, {P(W1+2*p)}, {P(B1+2*p)}")
    for k in range(8): A.rb(f"v{W1+k}", f"v{W1+k}")
    for p in range(4): A(f"v_pk_mul_f32 {P(B1+2*p)}, {P(W1+2*p)}, {P(W1+2*p)}")
    for p in range(4): A(f"v_pk_fma_f32 {P(B1+2*p)}, {P(B1+2*p)}, {P(TK1)}, s[{sK0}:{sK0+1}]")
    for p in range(4): A(f"v_pk_mul_f32 {P(B1+2*p)}, {P(B1+2*p)}, {P(W1+2*p)}")
    for k in range(8): A(f"v_exp_f32 v{B1+k}, v{B1+k}")
    for p in range(4): A(f"v_pk_add_f32 {P(B1+2*p)}, {P(B1+2*p)}, s[{sONE}:{sONE+1}]")
    for k in range(8): A(f"v_rcp_f32 v{B1+k}, v{B1+k}")
    for p in range(4): A(f"v_pk_mul_f32 {P(W1+2*p)}, {P(W1+2*p)}, {P(B1+2*p)}")
    for k in range(8): A.rb(f"v{W1+k}", f"v{W1+k}")
    for p in range(4): A(f"v_pk_fma_f32 {P(TACC)}, {P(W1+2*p)}, {P(W2+2*p)}, {P(TACC)}")
    tab_reads()
    A(f"s_setpc_b64 s[{sRET}:{sRET+1}]")
    acc = (NV + 3) // 4 * 4
    return A.text() + kd(KN, acc + 240, 102, acc)

if __name__ == "__main__":
    kw = eval("dict(%s)" % (sys.argv[2] if len(sys.argv) > 2 else ""))
    open(sys.argv[1], "w").write(gen(**kw))
```

```python
import sys
from asmlib import *

KN = "sequential_preLN__mha_block_cached__mixer_token_mlp__decode_kernel"
HDR = open("sequential_preLN__mha_block_cached__mixer_token_mlp__decode.s.ref").read().split("; Override launch")[0]
LOG2E = 1.4426950408889634
WS_ACC, WS_CNT, WS_ZEND = 0, 12288, 16384
WS_ML = 49152
WS_EP = 45056
WS_ZF = 45312
WS_TAB = 65536
WS_STAMP = 524288
WS_QP = 1 << 20
WS_SIZE = 2 << 20
L_XN = 0
L_P = 10240
L_QB = L_P + 6144
L_PH = L_QB + 512
L_W = L_PH + 1536
L_TP = L_W + 8 * 2320
L_YP = L_TP + 256
L_SC = L_YP + 10240
L_QS = L_SC + 8192
L_WQ = L_QS + 3072
L_END = L_SC + 65536 + 8192
M_D, M_D10 = 0x7FFF7FFF7FFF7FFF, 0x000003FF7FFF7FFF
M_LO, M_HI, M_T1 = 0x00FF00FF00FF00FF, 0xFF00FF00FF00FF00, 0xFF00FF0000FF00FF
ALL = (1 << 64) - 1
SPIN = 0x100000

class Stamps:
    def __init__(self, A, on, s0): self.A = A; self.on = on; self.s0 = s0; self.n = 0
    def __call__(self):
        if self.on:
            s = self.s0 + 2 * self.n
            self.A(f"s_memrealtime s[{s}:{s+1}]")
            self.n += 1
    def flush(self, srd, base, swave, v0, v1):
        if not self.on: return
        A = self.A
        A("s_waitcnt lgkmcnt(0)")
        A("s_lshl_b32 s6, s2, 2")
        A(f"s_add_u32 s6, s6, {swave}")
        A("s_lshl_b32 s6, s6, 6")
        A(f"s_add_u32 s6, s6, {base}")
        A(f"v_mov_b32 {v1}, 0")
        A.setexec(1)
        for n in range(self.n):
            A(f"v_mov_b32 {v0}, s{self.s0 + 2*n}")
            A(f"buffer_store_dword {v0}, {v1}, s[{srd}:{srd+3}], s6 offen offset:{4*n}")
        A("s_getreg_b32 s7, hwreg(HW_REG_XCC_ID)")
        A(f"v_mov_b32 {v0}, s7")
        A(f"buffer_store_dword {v0}, {v1}, s[{srd}:{srd+3}], s6 offen offset:60")
        A(f"v_mov_b32 {v0}, s51")
        A(f"buffer_store_dword {v0}, {v1}, s[{srd}:{srd+3}], s6 offen offset:56")
        A.setexec(ALL)

class VQ:
    CAP = 54
    CLASS = False
    def __init__(self, A): self.A = A; self.q = []; self.frac = 0.0
    def room(self, n):
        cap = int(self.CAP)
        self.frac += self.CAP - cap
        if self.frac >= 1.0 - 1e-9:
            self.frac -= 1.0; cap += 1
        if len(self.q) > cap - n:
            self.A(f"s_waitcnt vmcnt({cap - n})")
            self.q = self.q[len(self.q) - (cap - n):]
    def op(self, text, tag, nocap=False):
        if nocap:
            self.A(text); self.q.append(tag); return
        cap = int(self.CAP)
        self.frac += self.CAP - cap
        if self.frac >= 1.0 - 1e-9:
            self.frac -= 1.0; cap += 1
        if self.CLASS and cap < 40:
            idx = [i for i, t in enumerate(self.q) if not (isinstance(t, tuple) and t[0] == "wo")]
            if len(idx) >= cap:
                pos = idx[len(idx) - cap]
                self.A(f"s_waitcnt vmcnt({len(self.q) - 1 - pos})")
                self.q = self.q[pos + 1:]
        elif len(self.q) >= cap:
            self.A(f"s_waitcnt vmcnt({cap - 1})")
            self.q = self.q[-(cap - 1):]
        self.A(text)
        self.q.append(tag)
    def wait(self, tag):
        if tag not in self.q: return
        pos = len(self.q) - 1 - self.q[::-1].index(tag)
        self.A(f"s_waitcnt vmcnt({len(self.q) - 1 - pos})")
        self.q = self.q[pos + 1:]

def gen(T=12, ext=4, rot=13, wo_start=0, stamps=False, kf='nt', vf='nt', wf='nt', tab_start=20,
        n1=3, n1b=1, n1c=1, n2=4, capk=8, capv=6, caph=6, wo_rate=1.0, dbg=False, BL=0, pmul=1, tlb=0, st0=False, wo_late=0, cape=54, lift=4, liftcap=54, poll2=False, tabrot=False, rh=(56,48,48), burst=False, order=(0,1,2), eplate=False, wo2=0, cap0=54, nowo=False, notab=False, noend=False, wosame=False, wob=0, wobcap=True, ccap=False, hb=0, bb_=0, ml_at=28, fc_at=36, ost=None, osf='', wopre='nt', wof='', wopre2=None, noqx=False, nopub=False, wopair='sc1', wolite=0, qsf='sc1 nt', qlf='sc1 nt', psf='sc1 nt', plf='sc1 nt', noqst=False, noqld=False, notabst=False, nomlx=False, notd=False):
    if wof is None: wof = wf
    VQ.CLASS = ccap
    if dbg: stamps = True
    A = Asm()
    A.raw(HDR.rstrip())
    A.raw(f"; @launch grid=(256,1,1) block=(256,1,1) lds={L_END}")
    A.raw('.amdgcn_target "amdgcn-amd-amdhsa--gfx950"')
    A.raw(".text")
    A.raw(f".globl {KN}")
    st = Stamps(A, stamps, 76)
    NT = 64
    STEP = 12288
    REGION = 786432
    sX, sK, sV, sWQ, sWO, sWS = 24, 28, 32, 36, 40, 44
    sOUT = 36
    sTAG, sBS, sQG, sRETRY = "s48", "s49", "s50", "s51"
    sWAVE, sB, sH, sHALF, sBH, sT0, sT1 = "s52", "s53", "s54", "s55", "s56", "s57", "s58"
    sKREL, sVREL, sWB, sOFF, sWQOFF, sWOOFF, sM, sL, sF, sSPIN = "s59", "s60", "s61", "s62", "s63", "s64", "s65", "s66", "s67", "s68"
    sB2, sTB, sJMP = "s69", "s3", "s101"
    sK0, sONE, sRET = 70, 72, 74
    sFP, sMK, sTK = 8, 10, "s16"
    vLANE, vKO, vVO, vQ0, vQ1, vQ2, vWO = "v1", "v2", "v3", "v4", "v5", "v6", "v7"
    vM = ["v8", "v9", "v10", "v11"]
    vA0, vA1, vAY, vSC, vXN, vMAX, vZ = "v12", "v13", "v14", "v15", "v16", "v17", "v18"
    vT = [f"v{i}" for i in range(19, 24)]
    QB = 24
    D = 36
    O = 40
    B = 52
    ML = 60
    TW = 64
    TX, TACC, TK1 = 88, 90, 92
    vTA = "v94"
    XS = 95
    vYA = [vQ1, vQ2, vXN]; vCNT = vMAX; vMK = [f"v{TX}", f"v{TX+1}"]
    R0 = 100
    NV = R0 + 12 * T
    AW = 204
    assert NV <= 256 and ext * 12 <= AW
    vq = VQ(A)

    A.raw(".p2align 8")
    A.raw(f".type {KN},@function")
    A.label(KN)
    A("s_cmp_ge_u32 s2, 256")
    A("s_cbranch_scc1 L_end")
    st()
    A("s_load_dwordx8 s[8:15], s[0:1], 0")
    A("s_load_dwordx2 s[16:17], s[0:1], 32")
    A("s_load_dwordx2 s[22:23], s[0:1], 96")
    A(f"v_lshrrev_b32 {vT[0]}, 6, v0")
    A(f"v_and_b32 {vLANE}, 63, v0")
    A(f"v_readfirstlane_b32 {sWAVE}, {vT[0]}")
    A(f"s_and_b32 {sH}, s2, 7")
    A(f"s_lshr_b32 {sT0}, s2, 3")
    A(f"s_lshl_b32 {sH}, {sH}, 2")
    A(f"s_and_b32 {sT1}, {sT0}, 3")
    A(f"s_add_u32 {sH}, {sH}, {sT1}")
    A(f"s_lshr_b32 {sBS}, {sT0}, 2")
    A(f"s_lshr_b32 {sB}, {sT0}, 3")
    A(f"s_and_b32 {sHALF}, {sBS}, 1")
    A(f"s_lshl_b32 {sBH}, {sB}, 5")
    A(f"s_add_u32 {sBH}, {sBH}, {sH}")
    q, i, t0, t1 = vT[0], vT[1], vT[2], vT[3]
    A(f"v_lshrrev_b32 {q}, 4, {vLANE}")
    A(f"v_and_b32 {i}, 15, {vLANE}")
    A(f"v_lshrrev_b32 {t0}, 2, {i}")
    A(f"v_mul_u32_u24 {vKO}, 768, {t0}")
    A(f"v_lshl_add_u32 {vKO}, {q}, 6, {vKO}")
    A(f"v_and_b32 {t0}, 3, {i}")
    A(f"v_lshl_add_u32 {vKO}, {t0}, 4, {vKO}")
    A(f"v_mul_u32_u24 {vVO}, 768, {q}")
    A(f"v_lshl_add_u32 {vVO}, {i}, 4, {vVO}")
    A(f"v_mul_u32_u24 {vQ0}, 24576, {q}")
    A(f"v_lshl_add_u32 {vQ0}, {i}, 4, {vQ0}")
    A(f"v_add_u32 {vQ1}, 256, {vQ0}")
    A(f"v_add_u32 {vQ2}, {12288-128}, {vQ0}")
    A(f"v_cmp_gt_u32 vcc, 8, {i}")
    A(f"v_mul_u32_u24 {vWO}, 1280, {q}")
    A(f"v_lshl_add_u32 {vWO}, {i}, 4, {vWO}")
    A(f"v_cndmask_b32 {vQ1}, {vQ2}, {vQ1}, vcc")
    A(f"v_add_u32 {vQ2}, {12288+128}, {vQ0}")
    for r in range(O, O + 12):
        A(f"v_mov_b32 v{r}, 0")
    A(f"v_lshlrev_b32 {t0}, 4, v0")
    A(f"v_lshlrev_b32 {t1}, 2, {vLANE}")
    A(f"s_lshl_b32 {sT1}, {sBH}, 1")
    A(f"s_add_u32 {sT1}, {sT1}, {sHALF}")
    if rh is None:
        A(f"s_mul_i32 {sKREL}, {sT1}, {rot}")
    else:
        A(f"s_mul_i32 {sKREL}, {sHALF}, {rh[0]}")
        A(f"s_mul_i32 {sT0}, {sH}, {rh[1]}")
        A(f"s_add_u32 {sKREL}, {sKREL}, {sT0}")
        A(f"s_mul_i32 {sT0}, {sB}, {rh[2]}")
        A(f"s_add_u32 {sKREL}, {sKREL}, {sT0}")
    A(f"s_and_b32 {sKREL}, {sKREL}, 63")
    A(f"s_mov_b32 {sVREL}, {sKREL}")
    if BL:
        A(f"s_mul_i32 {sJMP}, {sT1}, {pmul}")
        A(f"s_lshr_b32 {sJMP}, {sJMP}, 2")
        A(f"s_lshl_b32 {sJMP}, {sJMP}, 1")
        A(f"s_mul_i32 {sJMP}, {sJMP}, {BL}")
        A(f"s_add_u32 {sJMP}, {sJMP}, 1")
    A(f"s_mul_i32 {sT1}, {sT1}, {REGION}")
    A(f"s_mul_i32 {sWB}, {sWAVE}, 3072")
    A(f"s_mul_i32 {sOFF}, {sBS}, {80*12288}")
    A(f"s_mul_i32 {sT0}, {sH}, 384")
    A(f"s_add_u32 {sOFF}, {sOFF}, {sT0}")
    A(f"s_mul_i32 {sWQOFF}, {sWAVE}, {8*12288}")
    A(f"s_lshr_b32 {sT0}, {sWAVE}, 1")
    A(f"s_mul_i32 {sWOOFF}, {sT0}, {96*1280}")
    A(f"s_and_b32 {sT0}, {sWAVE}, 1")
    A(f"s_mul_i32 {sT0}, {sT0}, {4*1280}")
    A(f"s_add_u32 {sWOOFF}, {sWOOFF}, {sT0}")
    A(f"s_mul_i32 {sT0}, {sWAVE}, 1280")
    A(f"s_mov_b32 {sRETRY}, 0")
    A("s_waitcnt lgkmcnt(0)")
    if st0: st()
    if tabrot:
        A("s_load_dwordx2 s[4:5], s[0:1], 40")
        A("s_lshl_b32 s6, s2, 2")
        A("s_waitcnt lgkmcnt(0)")
        A(f"s_load_dword {sKREL}, s[4:5], s6")
        A("s_waitcnt lgkmcnt(0)")
        A(f"s_and_b32 {sKREL}, {sKREL}, 63")
        A(f"s_mov_b32 {sVREL}, {sKREL}")
    A.srd_off(sX, 8, sT0, 1280)
    for n in range(5):
        vq.op(f"buffer_load_dword v{XS+n}, {t1}, s[{sX}:{sX+3}], 0 offen offset:{n*256}", "x")
    A.srd_off(sWQ, 14, sOFF, 79 * 12288 + 384)
    for k in range(3):
        for t, o in enumerate((vQ0, vQ1, vQ2)):
            r = AW + k * 12 + t * 4
            vq.op(f"buffer_load_dwordx4 a[{r}:{r+3}], {o}, s[{sWQ}:{sWQ+3}], {sWQOFF} offen {wf}", "wq")
        if k < 2: A(f"s_add_u32 {sWQOFF}, {sWQOFF}, {32*12288}")
    A.srd_off(sK, 10, sT1, REGION)
    A.srd_off(sV, 12, sT1, REGION)
    A(f"s_mul_i32 {sT0}, {sH}, 245760")
    A.srd_off(sWO, 16, sT0, 245760)
    A.srd(sWS, "s22", "s23", WS_SIZE)
    A("s_load_dwordx8 s[8:15], s[0:1], 48")
    A("s_load_dwordx2 s[20:21], s[0:1], 80")
    if not eplate: A(f"s_load_dword {sTAG}, s[22:23], {WS_EP}")

    def treg(slot, t):
        if slot < T:
            r = R0 + slot * 12 + t * 4
            return f"v[{r}:{r+3}]"
        r = (slot - T) * 12 + t * 4
        return f"a[{r}:{r+3}]"
    def ld_tile(slot, isv, n):
        rel, srd, off = (sVREL, sV, vVO) if isv else (sKREL, sK, vKO)
        A(f"s_mul_i32 {sOFF}, {rel}, {STEP}")
        A(f"s_add_u32 {sOFF}, {sOFF}, {sWB}")
        if burst: vq.room(3)
        for t in order:
            vq.op(f"buffer_load_dwordx4 {treg(slot, t)}, {off}, s[{srd}:{srd+3}], {sOFF} offen offset:{t*256} {vf if isv else kf}", ("v" if isv else "k", n), nocap=burst)
        A(f"s_add_u32 {rel}, {rel}, {sJMP if (BL and (n + 1) % BL == 0) else 1}")
        A(f"s_and_b32 {rel}, {rel}, 63")
    def ld_wo(n):
        rg, c = divmod(n, 5)
        if nowo:
            A("s_nop 0"); return
        A(f"s_add_u32 {sOFF}, {sWOOFF}, {0 if wosame else rg*8*1280}")
        vq.op(f"buffer_load_dwordx4 a[{4*n}:{4*n+3}], {vWO}, s[{sWO}:{sWO+3}], {sOFF} offen offset:{c*256} {wof}", ("wo", n), nocap=not wobcap)
    kis = [0]
    def head_k(n):
        for _ in range(n):
            if kis[0] < T + ext:
                ld_tile(kis[0], False, kis[0]); kis[0] += 1
    def wo_touch(wopre):
        A(f"s_mul_i32 {sOFF}, {sBS}, 30720")
        A(f"s_mul_i32 {sT0}, {sWAVE}, 7680")
        A(f"s_add_u32 {sOFF}, {sOFF}, {sT0}")
        if wolite:
            if wolite == 2:
                A(f"v_lshlrev_b32 {vZ}, 4, {vLANE}")
                for k in range(8):
                    if k == 7: A.setexec(0xffffffff)
                    if k == 4: A(f"s_add_u32 {sT0}, {sOFF}, 4096")
                    vq.op(f"buffer_load_dwordx4 a[{160+4*k}:{163+4*k}], {vZ}, s[{sWO}:{sWO+3}], {sOFF if k < 4 else sT0} offen offset:{(k%4)*1024} nt", "wop")
                A.setexec((1 << 60) - 1)
                A(f"v_lshlrev_b32 {vZ}, 7, {vLANE}")
                vq.op(f"buffer_load_dword a120, {vZ}, s[{sWO}:{sWO+3}], {sOFF} offen sc1", "wop")
            else:
                A(f"v_lshlrev_b32 {vZ}, 7, {vLANE}")
                A.setexec((1 << 60) - 1)
                for fl in ("nt", "sc1"):
                    for k in range(2):
                        vq.op(f"buffer_load_dword a{120+k}, {vZ}, s[{sWO}:{sWO+3}], {sOFF} offen offset:{64*k} {fl}", "wop")
            A.setexec(ALL)
            return
        A(f"v_lshlrev_b32 {vZ}, 4, {vLANE}")
        for k in range(8):
            if k == 4: A(f"s_add_u32 {sOFF}, {sOFF}, 4096")
            if k == 7: A.setexec(0xffffffff)
            vq.op(f"buffer_load_dwordx4 a[{160+4*k}:{163+4*k}], {vZ}, s[{sWO}:{sWO+3}], {sOFF} offen offset:{(k%4)*1024} {wopre}", "wop")
            if wopair is not None:
                vq.op(f"buffer_load_dwordx4 a[{120+4*k}:{123+4*k}], {vZ}, s[{sWO}:{sWO+3}], {sOFF} offen offset:{(k%4)*1024} {wopair}", "wop")
        A.setexec(ALL)
    if wopre is not None: wo_touch(wopre)
    head_k(1)
    A("s_cmp_lg_u32 s2, 0")
    A("s_cbranch_scc1 L_nozero")
    for n in range(WS_ZEND // 4096):
        A(f"s_movk_i32 {sT0}, {n*4096}")
        A(f"buffer_store_dwordx4 v[{O}:{O+3}], {t0}, s[{sWS}:{sWS+3}], {sT0} offen sc1")
    A.label("L_nozero")
    A("s_waitcnt lgkmcnt(0)")
    sW = 16
    for ptr, dst in ((8, B), (10, B + 4), (12, D)):
        A.srd(sW, f"s{ptr}", f"s{ptr+1}", 3072)
        vq.op(f"buffer_load_dwordx4 v[{dst}:{dst+3}], {t0}, s[{sW}:{sW+3}], 0 offen", "mw")
    A(f"s_load_dword {sB2}, s[14:15], 0")
    def mktag():
        A(f"s_mul_i32 {sTAG}, {sTAG}, 0x2c9277b5")
        A(f"s_add_u32 {sTAG}, {sTAG}, 0x7f4a7c15")
    if eplate: A(f"s_load_dword {sTAG}, s[22:23], {WS_EP}")
    else: mktag()
    jl = vT[2]
    A(f"v_and_b32 {jl}, 7, {vLANE}")
    A(f"v_and_b32 {t1}, 1, {vLANE}")
    A(f"v_cmp_eq_u32 vcc, 1, {t1}")
    A(f"v_mov_b32 {vT[4]}, 0xffff")
    A(f"v_mov_b32 {vM[3]}, 0xffff0000")
    A(f"v_cndmask_b32 {vT[4]}, {vT[4]}, {vM[3]}, vcc")
    A(f"v_lshrrev_b32 {t1}, 1, {jl}")
    for r in range(4):
        A(f"v_cmp_eq_u32 vcc, {r}, {t1}")
        A("s_nop 1")
        A(f"v_cndmask_b32 {vM[r]}, 0, {vT[4]}, vcc")
    A(f"v_lshl_add_u32 {vAY}, {q}, 3, {jl}")
    A(f"v_lshlrev_b32 {vAY}, 4, {vAY}")
    A(f"s_mul_i32 {sT0}, {sWAVE}, 1536")
    A(f"v_add_u32 {vA0}, {sT0}, {vAY}")
    A(f"s_mul_i32 {sT0}, {sWAVE}, 2560")
    A(f"v_add_u32 {vAY}, {sT0}, {vAY}")
    A(f"v_lshrrev_b32 {t1}, 3, {vLANE}")
    A(f"s_mul_i32 {sT1}, {sBS}, 320")
    A(f"s_add_u32 {sT0}, {sT0}, {sT1}")
    A(f"v_lshl_add_u32 {vXN}, {t1}, 2, {sT0}")
    A(f"s_lshl_b32 {sT0}, {sWAVE}, 11")
    A(f"s_add_u32 {sT0}, {sT0}, {L_SC}")
    A(f"v_lshl_add_u32 {vSC}, {t1}, 2, {sT0}")
    A(f"v_mov_b32 {vMAX}, 0xff800000")
    A(f"v_lshlrev_b32 {vA1}, 2, v0")
    A(f"s_lshl_b32 {sT0}, s2, 2")
    A(f"s_add_u32 {sT0}, {sT0}, {sWAVE}")
    A(f"s_lshr_b32 {sT1}, {sT0}, 9")
    A(f"s_lshl_b32 {sT1}, {sT1}, 15")
    A(f"s_and_b32 {sT0}, {sT0}, 511")
    A(f"s_lshl_b32 {sT0}, {sT0}, 3")
    A(f"s_add_u32 {sT0}, {sT0}, 12800")
    A(f"s_or_b32 {sTB}, {sT0}, {sT1}")
    A(f"v_add_lshl_u32 v{TX}, {jl}, {sTB}, 16")
    A(f"v_mov_b32 v{TX+1}, v{TX}")
    A(f"v_mov_b32 v{TACC}, 0")
    A(f"v_mov_b32 v{TACC+1}, 0")
    K0 = -2.0 * 0.7978845608028654 * LOG2E
    A(f"v_mov_b32 v{TK1}, {F(K0 * 0.044715)}")
    A(f"v_mov_b32 v{TK1+1}, {F(K0 * 0.044715)}")
    A(f"s_mov_b32 s{sK0}, {F(K0)}")
    A(f"s_mov_b32 s{sK0+1}, {F(K0)}")
    A(f"s_mov_b32 s{sONE}, 1.0")
    A(f"s_mov_b32 s{sONE+1}, 1.0")
    A(f"v_mul_u32_u24 {vTA}, 2320, {t1}")
    A(f"v_add_u32 {vTA}, {L_W}, {vTA}")
    vq.CAP = cap0
    head_k(n1 - 1)
    vq.wait("x")
    if not st0: st()
    for n in range(5):
        A(f"v_lshlrev_b32 v{TW+2*n}, 16, v{XS+n}")
        A(f"v_and_b32 v{TW+2*n+1}, 0xffff0000, v{XS+n}")
    layernorm_fast(A, TW, QB, TW + 10, 4, True)
    A(f"s_mul_i32 {sT0}, {sWAVE}, 2560")
    A(f"v_lshl_add_u32 {vT[2]}, {vLANE}, 3, {sT0}")
    for n in range(10):
        A(f"v_cvt_pk_bf16_f32 v{QB+n}, v{QB+n}, v{QB+n}")
    for n in range(5):
        A(f"ds_write_b64 {vT[2]}, v[{QB+2*n}:{QB+2*n+1}] offset:{L_XN + n*512}")
    A(f"v_lshlrev_b32 {vZ}, 4, {vLANE}")
    A(f"v_add_u32 {vT[2]}, {sWB}, {vZ}")
    vq.wait("wq")
    A("s_waitcnt lgkmcnt(0)")
    if eplate: mktag()
    A(f"v_add_u32 {vT[2]}, {L_WQ}, {vT[2]}")
    for k in range(3):
        for t in range(3):
            r = AW + k * 12 + t * 4
            A(f"ds_write_b128 {vT[2]}, a[{r}:{r+3}] offset:{k*12288 + t*1024}")
    if wopre2 is not None:
        vq.wait("wop")
        wo_touch(wopre2)
    head_k(n1b)
    vq.wait("mw")
    A("s_waitcnt lgkmcnt(0)")
    A(f"s_cmp_eq_u32 {sWAVE}, 3")
    A("s_cbranch_scc1 L_now")
    for k, src in enumerate((B, B + 4, D)):
        for n in range(4):
            A(f"v_lshlrev_b32 v{TW+8*k+2*n}, 16, v{src+n}")
            A(f"v_and_b32 v{TW+8*k+2*n+1}, 0xffff0000, v{src+n}")
    A(f"v_mul_u32_u24 {vT[3]}, 2731, v0")
    A(f"v_mul_u32_u24 {vT[2]}, 96, v0")
    A(f"v_lshrrev_b32 {vT[3]}, 16, {vT[3]}")
    A(f"v_lshl_add_u32 {vT[2]}, {vT[3]}, 4, {vT[2]}")
    A(f"v_mov_b32 {vT[3]}, 0")
    A(f"ds_write_b32 {vT[3]}, {vT[3]} offset:{L_TP + 128}")
    for k in range(6):
        A(f"ds_write_b128 {vT[2]}, v[{TW+4*k}:{TW+4*k+3}] offset:{L_W + 16*k}")
    A("s_waitcnt lgkmcnt(0)")
    A.label("L_now")
    for n in range(10):
        A(f"ds_read_b32 v{QB+n}, {vXN} offset:{L_XN + n*32}")
    A(f"v_add_u32 {vT[2]}, {L_WQ}, {vZ}")
    A(f"v_mov_b32 {vT[4]}, 0")
    A("s_waitcnt lgkmcnt(0)")
    A("s_barrier")
    A(f"s_or_b32 {sT0}, s2, {sWAVE}")
    A(f"s_cmp_lg_u32 {sT0}, 0")
    A("s_cbranch_scc1 L_noflag")
    for r in range(4):
        A(f"v_mov_b32 v{ML+r}, {sTAG}")
    A(f"s_mov_b32 {sT0}, {WS_ZF}")
    A.setexec(1)
    A(f"buffer_store_dwordx4 v[{ML}:{ML+3}], {vT[4]}, s[{sWS}:{sWS+3}], {sT0} offen sc1")
    A.setexec(ALL)
    A.label("L_noflag")
    def wq_read(n):
        for t in range(3):
            r = AW + (n % 3) * 12 + t * 4
            A(f"ds_read_b128 a[{r}:{r+3}], {vT[2]} offset:{n*3072 + t*1024}")
    for n in range(3): wq_read(n)
    head_k(n1c)
    for n in range(10):
        bb = B + 4 * (n & 1)
        for r in range(4):
            A(f"v_and_b32 v{bb+r}, v{QB+n}, {vM[r]}")
        A(f"s_waitcnt lgkmcnt({3 * min(2, 9 - n)})")
        A("s_nop 0")
        for t in range(3):
            r = AW + (n % 3) * 12 + t * 4
            A(f"v_mfma_f32_16x16x32_bf16 v[{O+4*t}:{O+4*t+3}], a[{r}:{r+3}], v[{bb}:{bb+3}], v[{O+4*t}:{O+4*t+3}]")
        if n + 3 < 10:
            A("s_nop 3")
            wq_read(n + 3)
    def lds_put3():
        A.setexec(M_LO)
        A(f"ds_write_b128 {vA0}, v[{O}:{O+3}] offset:{L_P}")
        A.setexec(M_T1)
        A(f"ds_write_b128 {vA0}, v[{O+4}:{O+7}] offset:{L_P + 512}")
        A.setexec(M_HI)
        A(f"ds_write_b128 {vA0}, v[{O+8}:{O+11}] offset:{L_P + 768 + 256}")
        A.setexec(ALL)
    A(f"s_mul_i32 {sT0}, {sWAVE}, 1536")
    A(f"v_lshl_add_u32 {vT[2]}, {vLANE}, 2, {sT0}")
    A(f"s_lshl_b32 {sT0}, {sH}, 2")
    A(f"s_add_u32 {sT1}, {sT0}, {sWAVE}")
    A(f"s_lshl_b32 {sT1}, {sT1}, 3")
    A(f"s_add_u32 {sT1}, {sT1}, {sBS}")
    A(f"s_lshl_b32 {sT1}, {sT1}, 10")
    A(f"s_add_u32 {sT1}, {sT1}, {WS_QP}")
    A(f"s_add_u32 {sQG}, {sT0}, {sB}")
    A(f"s_lshl_b32 {sQG}, {sQG}, 2")
    A(f"s_add_u32 {sQG}, {sQG}, {sWAVE}")
    A(f"s_lshl_b32 {sQG}, {sQG}, 11")
    A(f"s_add_u32 {sQG}, {sQG}, {WS_QP}")
    lds_put3()
    A("s_waitcnt lgkmcnt(0)")
    for k in range(6):
        A(f"ds_read_b32 v{B+k}, {vT[2]} offset:{L_P + 256*k}")
    A(f"v_mov_b32 v{D+3}, {sTAG}")
    A("s_waitcnt lgkmcnt(0)")
    for k in range(3):
        A(f"v_add_f32 v{D+k}, v{B+k}, v{B+3+k}")
    if not (noqx or noqst): vq.op(f"buffer_store_dwordx4 v[{D}:{D+3}], {vZ}, s[{sWS}:{sWS+3}], {sT1} offen {qsf}", "qst")
    st()
    vq.CAP = caph
    head_k(n2)
    def q_gather(track):
        for k in range(2):
            txt = f"buffer_load_dwordx4 v[{B+4*k}:{B+4*k+3}], {vZ}, s[{sWS}:{sWS+3}], {sQG} offen offset:{1024*k} {qlf}"
            if track: vq.op(txt, "qg")
            else: A(txt)
    if not (noqx or noqld): q_gather(True)
    if tlb:
        A(f"v_lshlrev_b32 {vQ0}, 16, {vLANE}")
        A.setexec(0xfff)
        vq.op(f"buffer_load_dword v{ML}, {vQ0}, s[{sV}:{sV+3}], 0 offen nt", "tlb")
        if tlb > 1:
            vq.op(f"buffer_load_dword v{ML+1}, {vQ0}, s[{sK}:{sK+3}], 0 offen nt", "tlb")
            vq.op(f"buffer_load_dword v{ML+2}, {vQ0}, s[{sWO}:{sWO+3}], 0 offen nt", "tlb")
        A.setexec(ALL)
    head_k(T + ext - kis[0] - hb)
    vq.CAP = 54
    head_k(99)
    q, i, t0, t1 = vT[0], vT[1], vT[2], vT[3]
    A(f"v_and_b32 {t0}, 32, {vLANE}")
    A(f"v_and_b32 {t1}, 3, {vLANE}")
    A(f"v_lshl_add_u32 {t0}, {t1}, 3, {t0}")
    A(f"v_bfe_u32 {t1}, {vLANE}, 2, 3")
    A(f"v_add_lshl_u32 {vXN}, {t0}, {t1}, 1")
    A(f"s_mul_i32 {sT0}, {sWAVE}, 768")
    A(f"v_lshlrev_b32 {vQ0}, 2, {vLANE}")
    A(f"v_add_u32 {vQ1}, {sT0}, {vQ0}")
    A(f"v_and_b32 {t0}, 3, {vLANE}")
    A(f"v_lshl_add_u32 {t0}, {q}, 2, {t0}")
    A(f"v_and_b32 {t1}, 8, {vLANE}")
    A(f"v_add_lshl_u32 {vQ2}, {t0}, {t1}, 4")
    A(f"v_cmp_gt_u32 vcc, 8, {i}")
    A(f"v_add_u32 {t1}, 16, {t0}")
    A(f"v_subrev_u32 {t0}, 8, {t0}")
    A(f"v_cndmask_b32 {t0}, {t0}, {t1}, vcc")
    A(f"v_lshlrev_b32 {t0}, 4, {t0}")
    for r in range(12):
        A(f"v_mov_b32 v{QB+r}, 0")
    vq.wait("qg")
    A(f"s_mov_b32 {sSPIN}, {1 if (noqx or noqst or noqld) else SPIN}")
    A.label("L_qchk")
    A(f"v_cmp_ne_u32 vcc, {sTAG}, v{B+3}")
    A(f"v_cmp_ne_u32 s[4:5], {sTAG}, v{B+7}")
    A("s_nop 1")
    A("s_or_b64 vcc, vcc, s[4:5]")
    A("s_cbranch_scc0 L_qok")
    A(f"s_sub_u32 {sSPIN}, {sSPIN}, 1")
    A(f"s_cmp_eq_u32 {sSPIN}, 0")
    A("s_cbranch_scc1 L_qok")
    A(f"s_add_u32 {sRETRY}, {sRETRY}, 1")
    A("s_sleep 2")
    q_gather(False)
    A("s_waitcnt vmcnt(0)")
    A("s_branch L_qchk")
    A.label("L_qok")
    for k in range(3):
        A(f"v_add_f32 v{B+k}, v{B+k}, v{B+4+k}")
    for k in range(3):
        A(f"ds_write_b32 {vQ1}, v{B+k} offset:{L_QS + 256*k}")
    A("s_waitcnt lgkmcnt(0)")
    A("s_barrier")
    for k in range(12):
        A(f"ds_read_b32 v{O+k}, {vQ0} offset:{L_QS + 256*k}")
    A("s_waitcnt lgkmcnt(0)")
    for k in range(3):
        A(f"v_add_f32 v{O+k}, v{O+k}, v{O+3+k}")
        A(f"v_add_f32 v{O+6+k}, v{O+6+k}, v{O+9+k}")
    for k in range(3):
        A(f"v_add_f32 v{O+k}, v{O+k}, v{O+6+k}")
    for k in range(3):
        A(f"v_cvt_pk_bf16_f32 v{O+k}, v{O+k}, v{O+k}")
    for k in range(3):
        A(f"ds_write_b16 {vXN}, v{O+k} offset:{L_QB + 128*k}")
    A("s_waitcnt lgkmcnt(0)")
    A.setexec(M_LO)
    A(f"ds_read_b128 v[{QB}:{QB+3}], {vQ2} offset:{L_QB}")
    A.setexec(M_HI)
    A(f"ds_read_b128 v[{QB+8}:{QB+11}], {vQ2} offset:{L_QB}")
    A.setexec(M_T1)
    A(f"ds_read_b128 v[{QB+4}:{QB+7}], {t0} offset:{L_QB}")
    A.setexec(ALL)
    for r in range(O, O + 12):
        A(f"v_mov_b32 v{r}, 0")
    def tab_reads():
        for k in range(6):
            A(f"ds_read_b128 v[{TW+4*k}:{TW+4*k+3}], {vTA} offset:{16*k}")
        A(f"v_add_u32 {vTA}, 96, {vTA}")
    A("s_waitcnt lgkmcnt(0)")
    tab_reads()
    ncalls = [0]
    published = [False]
    def tab_finish(dst):
        A.rb(dst, dst)
        A(f"v_add_f32 {dst}, {sB2}, {dst}")
        A(f"v_cvt_pk_bf16_f32 {dst}, {dst}, {dst}")
    def tab_publish():
        ta, tb = f"v{TACC}", f"v{TACC+1}"
        A(f"v_add_f32 {ta}, {ta}, {tb}")
        A("s_nop 1")
        A(f"v_add_f32_dpp {ta}, {ta}, {ta} row_ror:8 row_mask:0xf bank_mask:0xf")
        A(f"v_mov_b32 {tb}, {ta}")
        A("s_nop 1")
        A(f"v_permlane16_swap_b32 {ta}, {tb}")
        A(f"v_add_f32 {ta}, {ta}, {tb}")
        A(f"v_mov_b32 {tb}, {ta}")
        A("s_nop 1")
        A(f"v_permlane32_swap_b32 {ta}, {tb}")
        A(f"v_add_f32 {ta}, {ta}, {tb}")
        tab_finish(ta)
        A(f"s_lshl_b32 {sT0}, {sWAVE}, 4")
        A(f"v_lshl_add_u32 {tb}, {vLANE}, 1, {sT0}")
        A.setexec(0xff)
        A(f"ds_write_b16 {tb}, {ta} offset:{L_TP}")
        A.setexec(ALL)
    A(f"s_lshl_b32 {sB2}, {sB2}, 16")
    st()
    s = vT[0]
    slot_of = list(range(T + ext))
    nxt = [T + ext]
    def refill(slot):
        if slot >= T or nxt[0] >= 2 * NT: return False
        m = nxt[0]; nxt[0] += 1
        slot_of.append(slot)
        ld_tile(slot, m >= NT, m % NT)
        return True
    NR = 4
    NR = 6
    use_order = [rg * 5 + c for rg in range(NR) for c in range(5)] + [rg * 5 + c for c in range(5) for rg in range(NR, 12)]
    late = use_order[60 - wo_late:]
    wo_order = [k for k in list(range(3 * ext, 60)) + list(range(3 * ext)) if k not in late] + late
    wo_left = [60]
    if wob:
        f = -(-3 * ext // 5) * 5
        wo_order = list(range(f, 60)) + list(range(f))
    def wo_step(n):
        if wob:
            if n % wob != wob - 1 or wo_left[0] == 0: return False
            assert wo_order[60 - wo_left[0]] >= 3 * ext or n >= T + ext
            for _ in range(wob):
                ld_wo(wo_order[60 - wo_left[0]]); wo_left[0] -= 1
            return True
        if n < wo_start or wo_left[0] <= wo_late: return False
        if not wo2 and (n - wo_start + 1) * wo_rate < 60 - wo_left[0] + 1 - 1e-9: return False
        k = wo_order[60 - wo_left[0]]
        if k < 3 * ext and n % 1000 < T + k // 3: return False
        ld_wo(k); wo_left[0] -= 1
        return True
    vq.CAP = capk
    for n in range(NT):
        if n == NT - T or wo_left[0] <= wo_late: vq.CAP = capv
        if n >= NT - bb_: vq.CAP = 54
        slot = slot_of[n]
        vq.wait(("k", n))
        for tt in range(3):
            c = "0" if tt == 0 else f"v[{D}:{D+3}]"
            A(f"v_mfma_f32_16x16x32_bf16 v[{D}:{D+3}], {treg(slot, tt)}, v[{QB+4*tt}:{QB+4*tt+3}], {c}")
        if not refill(slot): A("s_nop 6")
        if not wo_step(n): A("s_nop 0")
        if n < wo2: wo_step(n + 1000)
        s2 = vT[1]
        A(f"v_mov_b32_dpp {s}, v{D} quad_perm:[0,0,0,0] row_mask:0xf bank_mask:0xf")
        A(f"v_mov_b32_dpp {s2}, v{D+2} quad_perm:[2,2,2,2] row_mask:0xf bank_mask:0xf")
        A("s_nop 0")
        A(f"v_add_f32_dpp {s}, v{D+1}, {s} quad_perm:[1,1,1,1] row_mask:0xf bank_mask:0xf")
        A(f"v_add_f32_dpp {s2}, v{D+3}, {s2} quad_perm:[3,3,3,3] row_mask:0xf bank_mask:0xf")
        A(f"v_add_f32 {s}, {s}, {s2}")
        A.rb(s, s)
        A(f"v_mul_f32 {s}, {F(192 ** -0.5)}, {s}")
        A.rb(s, s)
        A(f"v_max_f32 {vMAX}, {vMAX}, {s}")
        A(f"ds_write_b32 {vSC}, {s} offset:{n*32}")
        if n >= tab_start:
            if ncalls[0] < 24:
                if not notab: A(f"s_call_b64 s[{sRET}:{sRET+1}], L_tab")
                ncalls[0] += 1
            elif not published[0]:
                published[0] = True
                tab_publish()
    assert published[0]
    st()
    A.wave_red("max", vMAX, sM)
    A(f"s_lshl_b32 {sT0}, {sWAVE}, 11")
    A(f"s_add_u32 {sT0}, {sT0}, {L_SC}")
    A(f"v_lshl_add_u32 {vT[0]}, {vLANE}, 5, {sT0}")
    A("s_waitcnt lgkmcnt(0)")
    A(f"ds_read_b128 v[{B}:{B+3}], {vT[0]}")
    A(f"ds_read_b128 v[{B+4}:{B+7}], {vT[0]} offset:16")
    A("s_waitcnt lgkmcnt(0)")
    for r in range(8):
        A(f"v_subrev_f32 v{B+r}, {sM}, v{B+r}")
    for r in range(8):
        A(f"v_mul_f32 v{B+r}, {F(LOG2E)}, v{B+r}")
    for r in range(8):
        A(f"v_exp_f32 v{B+r}, v{B+r}")
    A("s_nop 0")
    A(f"v_add_f32 {vT[1]}, v{B}, v{B+1}")
    for r in range(2, 8):
        A(f"v_add_f32 {vT[1]}, {vT[1]}, v{B+r}")
    for r in range(8):
        A(f"v_cvt_pk_bf16_f32 v{B+r}, v{B+r}, v{B+r}")
    A(f"ds_write_b128 {vT[0]}, v[{B}:{B+3}]")
    A(f"ds_write_b128 {vT[0]}, v[{B+4}:{B+7}] offset:16")
    A.wave_red("add", vT[1], sL)
    A(f"v_mov_b32 v{ML}, {sM}")
    A(f"v_mov_b32 v{ML+1}, {sL}")
    A(f"v_mov_b32 v{ML+2}, {sTAG}")
    A(f"v_mov_b32 v{ML+3}, {sTAG}")
    A(f"s_lshl_b32 {sT0}, {sBH}, 7")
    A(f"s_add_u32 {sT0}, {sT0}, {WS_ML}")
    A(f"v_lshl_add_u32 {vZ}, {vLANE}, 4, {sT0}")
    A(f"s_mov_b32 {sT0}, {WS_ZF}")
    A(f"v_writelane_b32 {vZ}, {sT0}, 8")
    A(f"s_lshl_b32 {sT1}, {sWAVE}, 4")
    A(f"v_mov_b32 {vT[0]}, {sT1}")
    A(f"v_mov_b32 {vT[1]}, 1")
    A.setexec(1)
    A(f"ds_write_b128 {vT[0]}, v[{ML}:{ML+3}] offset:{L_TP + 64}")
    A("s_waitcnt lgkmcnt(0)")
    A(f"ds_add_rtn_u32 {vT[1]}, {vT[4]}, {vT[1]} offset:{L_TP + 128}")
    A("s_waitcnt lgkmcnt(0)")
    A(f"v_readfirstlane_b32 {sT0}, {vT[1]}")
    A.setexec(0xff)
    A(f"s_cmp_lg_u32 {sT0}, 3")
    A("s_cbranch_scc1 L_nopub")
    A(f"v_lshlrev_b32 {vT[0]}, 3, {vLANE}")
    A(f"v_lshlrev_b32 {vT[1]}, 4, {vLANE}")
    A(f"ds_read_b64 v[{ML}:{ML+1}], {vT[0]} offset:{L_TP}")
    A(f"ds_read_b128 v[{TW}:{TW+3}], {vT[1]} offset:{L_TP + 64}")
    A(f"s_lshl_b32 {sT0}, s2, 7")
    A(f"s_add_u32 {sT0}, {sT0}, {WS_TAB}")
    A(f"s_lshl_b32 {sT1}, {sHALF}, 6")
    A("s_waitcnt lgkmcnt(0)")
    if not nopub:
        A(f"buffer_store_dwordx4 v[{ML}:{ML+3}], {vT[1]}, s[{sWS}:{sWS+3}], {sT0} offen {psf}")
        A.setexec(0xf)
        A(f"buffer_store_dwordx4 v[{TW}:{TW+3}], {vZ}, s[{sWS}:{sWS+3}], {sT1} offen {psf}")
    A.label("L_nopub")
    A.setexec(ALL)
    vq.CAP = capv
    PP = [QB + n for n in range(8)]
    A("s_waitcnt lgkmcnt(0)")
    for n in range(4):
        A(f"ds_read_b32 v{PP[n]}, {vSC} offset:{n*32}")
    def fcalc():
        vq.wait("ml")
        A(f"s_mov_b32 {sSPIN}, {SPIN}")
        A.label("L_mlchk")
        A(f"v_cmp_ne_u32 vcc, {sTAG}, v{ML+2}")
        A("s_nop 1")
        A("s_and_b32 vcc_lo, vcc_lo, 0x1ff")
        A("s_cbranch_scc0 L_mlok")
        A(f"s_sub_u32 {sSPIN}, {sSPIN}, 1")
        A(f"s_cmp_eq_u32 {sSPIN}, 0")
        A("s_cbranch_scc1 L_mlok")
        A("s_sleep 8")
        A.setexec(0x1ff)
        A(f"buffer_load_dwordx4 v[{ML}:{ML+3}], {vZ}, s[{sWS}:{sWS+3}], 0 offen {plf}")
        A.setexec(ALL)
        A("s_waitcnt vmcnt(0)")
        A("s_branch L_mlchk")
        A.label("L_mlok")
        mm, e = vT[0], vT[1]
        A(f"v_mov_b32 {mm}, v{ML}")
        for stp in Asm.DPP_STEPS[:3]:
            A("s_nop 1")
            A(f"v_max_f32_dpp {mm}, {mm}, {mm} {stp}")
        A(f"v_sub_f32 {e}, v{ML}, {mm}")
        A(f"v_sub_f32 {mm}, {sM}, {mm}")
        A(f"v_mul_f32 {e}, {F(LOG2E)}, {e}")
        A(f"v_mul_f32 {mm}, {F(LOG2E)}, {mm}")
        A(f"v_exp_f32 {e}, {e}")
        A(f"v_exp_f32 {mm}, {mm}")
        A(f"v_mul_f32 {e}, {e}, v{ML+1}")
        for stp in Asm.DPP_STEPS[:3]:
            A("s_nop 1")
            A(f"v_add_f32_dpp {e}, {e}, {e} {stp}")
        A(f"v_rcp_f32 {e}, {e}")
        A("s_nop 0")
        A(f"v_mul_f32 {e}, {e}, {mm}")
        A("s_nop 0")
        A(f"v_readfirstlane_b32 {sF}, {e}")
        A(f"s_mov_b32 s{sFP}, {sF}")
        A(f"s_mov_b32 s{sFP+1}, {sF}")
        for k, m in enumerate((M_LO, M_T1, M_HI)):
            A(f"s_mov_b32 s{sMK+2*k}, 0x{m & 0xffffffff:08x}")
            A(f"s_mov_b32 s{sMK+2*k+1}, 0x{m >> 32:08x}")
        A(f"v_lshrrev_b32 {vT[0]}, 4, {vLANE}")
        A(f"s_lshr_b32 {sT0}, {sWAVE}, 1")
        A(f"s_mul_i32 {sT0}, {sT0}, 24")
        A(f"s_and_b32 {sT1}, {sWAVE}, 1")
        A(f"s_lshl_b32 {sT1}, {sT1}, 2")
        A(f"s_add_u32 {sT0}, {sT0}, {sT1}")
        A(f"v_add_lshl_u32 {vT[0]}, {vT[0]}, {sT0}, 4")
        A(f"v_and_b32 {vT[1]}, 15, {vLANE}")
        A(f"v_min_u32 {vT[1]}, 11, {vT[1]}")
        A(f"v_lshrrev_b32 {vT[2]}, 2, {vT[1]}")
        A(f"v_lshl_add_u32 {vT[0]}, {vT[2]}, 7, {vT[0]}")
        A(f"v_and_b32 {vT[1]}, 3, {vT[1]}")
        A(f"v_lshl_add_u32 {vQ0}, {vT[1]}, 2, {vT[0]}")
        A(f"s_lshl_b32 {sTK}, {sB}, 7")
        A(f"s_add_u32 {sTK}, {sTK}, {WS_CNT}")
        A(f"v_mov_b32 {vZ}, 1")
        A(f"v_lshrrev_b32 {vT[0]}, 4, v0")
        A(f"v_mul_u32_u24 {vT[0]}, 15, {vT[0]}")
        A(f"v_and_b32 {vT[1]}, 15, v0")
        A(f"v_add_u32 {vT[0]}, {vT[0]}, {vT[1]}")
        A(f"v_cmp_eq_u32 vcc, 15, {vT[1]}")
        A(f"v_mov_b32 {vCNT}, 1.0")
        A(f"v_mov_b32 {vMK[0]}, -1")
        A(f"v_cndmask_b32 {vCNT}, 0, {vCNT}, vcc")
        A(f"v_cndmask_b32 {vMK[0]}, {vMK[0]}, 0, vcc")
        A(f"v_cmp_gt_u32 vcc, 160, {vT[0]}")
        for k in range(3):
            col, t = vT[2], vT[3]
            A(f"v_add_u32 {col}, {240*k}, {vT[0]}")
            A(f"v_min_u32 {col}, 639, {col}")
            A(f"v_and_b32 {vYA[k]}, 0x3e0, {col}")
            A(f"v_and_b32 {t}, 7, {col}")
            A(f"v_lshl_add_u32 {vYA[k]}, {t}, 2, {vYA[k]}")
            A(f"v_bfe_u32 {t}, {col}, 3, 2")
            A(f"v_add_lshl_u32 {vYA[k]}, {vYA[k]}, {t}, 2")
        A(f"v_cndmask_b32 {vMK[1]}, 0, {vMK[0]}, vcc")
        A(f"s_mul_i32 {sWQOFF}, {sB}, 3072")
    for n in range(NT):
        slot = slot_of[NT + n]
        bb = B + 4 * (n & 1)
        if n + 4 < NT:
            A(f"ds_read_b32 v{PP[(n+4)%8]}, {vSC} offset:{(n+4)*32}")
            A("s_waitcnt lgkmcnt(4)")
        else:
            A(f"s_waitcnt lgkmcnt({NT-1-n})")
        for r in range(4):
            A(f"v_and_b32 v{bb+r}, v{PP[n%8]}, {vM[r]}")
        vq.wait(("v", n))
        A("s_nop 1")
        for tt in range(3):
            A(f"v_mfma_f32_16x16x32_bf16 v[{O+4*tt}:{O+4*tt+3}], {treg(slot, tt)}, v[{bb}:{bb+3}], v[{O+4*tt}:{O+4*tt+3}]")
        if lift and n == NT - T - lift: vq.CAP = liftcap
        refill(slot)
        wo_step(NT + n)
        if n == NT - T - 1:
            assert wo_left[0] == wo_late
            vq.CAP = cape
            for k in late: ld_wo(k)
            wo_left[0] = 0
        if n == ml_at and not (nopub or nomlx):
            A.setexec(0x1ff)
            vq.op(f"buffer_load_dwordx4 v[{ML}:{ML+3}], {vZ}, s[{sWS}:{sWS+3}], 0 offen {plf}", "ml")
            A.setexec(ALL)
        if n == fc_at:
            fcalc()
    assert wo_left[0] == 0
    st()
    if noend: A("s_endpgm")
    A("s_nop 5")
    for t, off in enumerate((L_P, L_P + 512, L_P + 1024)):
        A(f"s_mov_b64 exec, s[{sMK+2*t}:{sMK+2*t+1}]")
        A(f"v_pk_mul_f32 v[{O+4*t}:{O+4*t+1}], v[{O+4*t}:{O+4*t+1}], s[{sFP}:{sFP+1}]")
        A(f"v_pk_mul_f32 v[{O+4*t+2}:{O+4*t+3}], v[{O+4*t+2}:{O+4*t+3}], s[{sFP}:{sFP+1}]")
        A(f"ds_write_b128 {vA0}, v[{O+4*t}:{O+4*t+3}] offset:{off}")
    A.setexec(1)
    A(f"s_cmp_lg_u32 {sWAVE}, 3")
    A("s_cbranch_scc1 L_notick")
    A(f"buffer_atomic_add {vZ}, {vT[4]}, s[{sWS}:{sWS+3}], {sTK} offen sc0")
    A.label("L_notick")
    A.setexec(ALL)
    A("s_waitcnt lgkmcnt(0)")
    A("s_barrier")
    st()
    assert L_P % 256 == 0
    for k in range(4):
        A(f"ds_read2st64_b32 v[{B+2*k}:{B+2*k+1}], {vQ0} offset0:{L_P//256 + 6*k} offset1:{L_P//256 + 6*k + 3}")
    A("s_waitcnt lgkmcnt(2)")
    A(f"v_pk_add_f32 v[{B}:{B+1}], v[{B}:{B+1}], v[{B+2}:{B+3}]")
    A("s_waitcnt lgkmcnt(0)")
    A(f"v_pk_add_f32 v[{B+4}:{B+5}], v[{B+4}:{B+5}], v[{B+6}:{B+7}]")
    A(f"v_pk_add_f32 v[{B}:{B+1}], v[{B}:{B+1}], v[{B+4}:{B+5}]")
    A(f"v_add_f32 v{B}, v{B}, v{B+1}")
    A(f"v_cvt_pk_bf16_f32 v{B+2}, v{B}, v{B}")
    A(f"v_and_b32 v{B+1}, 0xffff0000, v{B+2}")
    A(f"v_sub_f32 v{B+1}, v{B}, v{B+1}")
    A(f"v_cvt_pk_bf16_f32 v{B+3}, v{B+1}, v{B+1}")
    BO = R0
    YD = R0 + 48
    def omfma(rg, c):
        n = rg * 5 + c
        cc = "0" if rg == 0 else f"v[{YD+4*c}:{YD+4*c+3}]"
        vq.wait(("wo", n))
        A(f"v_mfma_f32_16x16x32_bf16 v[{YD+4*c}:{YD+4*c+3}], a[{4*n}:{4*n+3}], v[{BO+4*rg}:{BO+4*rg+3}], {cc}")
    hi = lambda rg: f"v_mov_b32_dpp v{O+rg}, v{B+2} row_newbcast:{rg} row_mask:0xf bank_mask:0x3"
    lo = lambda rg: f"v_mov_b32_dpp v{O+rg}, v{B+3} row_newbcast:{rg} row_mask:0xf bank_mask:0xc"
    fill = [hi(0), hi(1), hi(2)]
    for rg in range(12):
        fill.append(lo(rg))
        for r in range(4):
            fill.append(f"v_and_b32 v{BO+4*rg+r}, v{O+rg}, {vM[r]}")
        if rg + 3 < 12: fill.append(hi(rg + 3))
    def emit(k):
        for _ in range(k):
            if fill: A(fill.pop(0))
    emit(10)
    NR2 = 6
    for rg in range(NR2):
        for c in range(5):
            omfma(rg, c)
            emit(2)
    emit(99)
    A("s_nop 1")
    def ypieces(c):
        p = [f"v_add_f32_dpp v{YD+4*c+r}, v{YD+4*c+r}, v{YD+4*c+r} row_ror:8 row_mask:0xf bank_mask:0xf" for r in range(4)]
        return p
    def ywrite(c):
        A(f"s_mov_b64 exec, s[{sMK}:{sMK+1}]")
        A(f"ds_write_b128 {vAY}, v[{YD+4*c}:{YD+4*c+3}] offset:{L_YP + c*512}")
        A.setexec(ALL)
    for c in range(5):
        p = ypieces(c - 2) if c >= 2 else []
        for k, rg in enumerate(range(NR2, 12)):
            omfma(rg, c)
            if p and k in (2, 3):
                A(p.pop(0)); A(p.pop(0))
            if c >= 2 and k == 4:
                ywrite(c - 2)
    for x in ypieces(3): A(x)
    ywrite(3)
    A("s_nop 0")
    for x in ypieces(4): A(x)
    ywrite(4)
    A("s_waitcnt lgkmcnt(0)")
    A("s_barrier")
    st()
    for k in range(2):
        for w in range(4):
            A(f"ds_read_b32 v{O+4*k+w}, {vYA[k]} offset:{L_YP + 2560*w}")
    A(f"s_cmp_eq_u32 {sWAVE}, 3")
    A("s_cbranch_scc1 L_two")
    for w in range(4):
        A(f"ds_read_b32 v{O+8+w}, {vYA[2]} offset:{L_YP + 2560*w}")
    A("s_waitcnt lgkmcnt(0)")
    A(f"v_add_f32 v{O+8}, v{O+8}, v{O+9}")
    A(f"v_add_f32 v{O+10}, v{O+10}, v{O+11}")
    A(f"v_add_f32 v{O+8}, v{O+8}, v{O+10}")
    A(f"v_and_or_b32 v{O+8}, v{O+8}, {vMK[1]}, {vCNT}")
    A(f"buffer_atomic_add_f32 v{O+8}, {vA1}, s[{sWS}:{sWS+3}], {sWQOFF} offen offset:{WS_ACC + 2048}")
    A.label("L_two")
    A("s_waitcnt lgkmcnt(0)")
    for k in range(2):
        A(f"v_add_f32 v{O+4*k}, v{O+4*k}, v{O+4*k+1}")
        A(f"v_add_f32 v{O+4*k+2}, v{O+4*k+2}, v{O+4*k+3}")
    for k in range(2):
        A(f"v_add_f32 v{O+4*k}, v{O+4*k}, v{O+4*k+2}")
    for k in range(2):
        A(f"v_and_or_b32 v{O+4*k}, v{O+4*k}, {vMK[0]}, {vCNT}")
        A(f"buffer_atomic_add_f32 v{O+4*k}, {vA1}, s[{sWS}:{sWS+3}], {sWQOFF} offen offset:{WS_ACC + 1024*k}")
    st()
    A(f"s_cmp_lg_u32 {sWAVE}, 3")
    A("s_cbranch_scc1 L_done")
    A("s_waitcnt vmcnt(2)")
    A(f"v_readfirstlane_b32 {sT0}, {vZ}")
    A(f"s_cmp_lg_u32 {sT0}, 0")
    A("s_cbranch_scc1 L_done")
    H = R0
    HN = R0 + 12
    G = R0 + 24
    X = R0 + 36
    XO = R0 + 48
    T1 = R0 + 60
    T2 = R0 + 66
    TB = R0 + 72
    h = [f"v{H+n}" for n in range(11)]
    hn = [f"v{HN+n}" for n in range(11)]
    A("s_load_dwordx2 s[8:9], s[0:1], 0")
    A(f"s_mul_i32 {sT0}, {sB}, 1280")
    A.srd_off(sOUT, 20, sT0, 1280)
    A(f"v_lshrrev_b32 {vT[0]}, 4, {vLANE}")
    A(f"v_mul_u32_u24 {vT[0]}, 15, {vT[0]}")
    A(f"v_and_b32 {vT[2]}, 15, {vLANE}")
    A(f"v_add_lshl_u32 {vT[0]}, {vT[0]}, {vT[2]}, 1")
    A(f"v_cmp_eq_u32 vcc, 15, {vT[2]}")
    A(f"v_mov_b32 {vT[2]}, 0x10000")
    A(f"v_mov_b32 {vMK[1]}, 0")
    A(f"v_cndmask_b32 {vT[0]}, {vT[0]}, {vT[2]}, vcc")
    A.setexec(M_D10)
    A(f"v_mov_b32 {vMK[1]}, -1")
    A.setexec(ALL)
    A(f"v_mov_b32 {vQ0}, {vMK[1]}")
    for r in list(range(G, G + 12)) + list(range(X, X + 12)) + list(range(T1, T1 + 12)) + [H + 11]:
        A(f"v_mov_b32 v{r}, 0")
    A("s_waitcnt lgkmcnt(0)")
    A.srd_off(sX, 8, sT0, 1280)
    for n in range(11):
        A(f"buffer_load_short_d16_hi v{X+n}, {vT[0]}, s[{sX}:{sX+3}], 0 offen offset:{n*120}")
    A(f"v_lshlrev_b32 {vT[1]}, 4, {vLANE}")
    A(f"v_lshlrev_b32 {vT[2]}, 3, {vLANE}")
    A(f"s_mov_b32 {sSPIN}, {SPIN}")
    A.label("L_tabld")
    for k in range(32):
        if k % 4 == 0: A(f"s_mov_b32 {sT0}, {WS_TAB + k*1024}")
        A(f"buffer_load_dwordx4 a[{4*k}:{4*k+3}], {vT[1]}, s[{sWS}:{sWS+3}], {sT0} offen offset:{(k%4)*1024} {plf}")
    A(f"v_mov_b32 {vT[3]}, 0")
    A(f"v_add_u32 {vZ}, 0x10000, {vT[2]}")
    for k in range(32):
        if k % 8 == 0: A(f"s_waitcnt vmcnt({24 - k}) lgkmcnt(0)")
        A(f"v_accvgpr_read_b32 v{TB + (k & 1)}, a{4*k+2}")
        A(f"ds_write_b64 {vT[2] if k < 16 else vZ}, a[{4*k}:{4*k+1}] offset:{L_SC + (k%16)*512}")
        A(f"v_xor_b32 v{TB + (k & 1)}, {sTAG}, v{TB + (k & 1)}")
        if k & 1: A(f"v_or3_b32 {vT[3]}, v{TB}, v{TB+1}, {vT[3]}")
    A(f"v_cmp_ne_u32 vcc, 0, {vT[3]}")
    A(f"s_sub_u32 {sSPIN}, {sSPIN}, 1")
    A("s_waitcnt lgkmcnt(0)")
    A(f"s_cmp_eq_u32 {sSPIN}, 0")
    A("s_cbranch_scc1 L_tabok")
    A("s_cbranch_vccz L_tabok")
    A("s_sleep 8")
    A("s_branch L_tabld")
    A.label("L_tabok")
    A(f"v_mov_b32 {vZ}, {sTAG}")
    A(f"s_mov_b32 {sT1}, {WS_EP}")
    A.setexec(1)
    A(f"buffer_store_dword {vZ}, {vT[4]}, s[{sWS}:{sWS+3}], {sT1} offen sc1")
    A.setexec(ALL)
    A(f"v_lshlrev_b32 {vT[1]}, 2, {vLANE}")
    A(f"s_mov_b32 {sSPIN}, {SPIN}")
    A(f"s_mov_b32 s4, 0x80008000")
    st()
    A.label("L_poll")
    for n in range(11):
        A(f"buffer_load_dword {h[n]}, {vT[1]}, s[{sWS}:{sWS+3}], {sWQOFF} offen offset:{WS_ACC + n*256} sc1")
    A(f"s_sub_u32 {sSPIN}, {sSPIN}, 1")
    A("s_waitcnt vmcnt(0) lgkmcnt(0)")
    A(f"v_min3_f32 {vT[2]}, {h[0]}, {h[1]}, {h[2]}")
    A(f"v_min3_f32 {vT[3]}, {h[3]}, {h[4]}, {h[5]}")
    A(f"v_min3_f32 {vT[2]}, {h[6]}, {h[7]}, {vT[2]}")
    A(f"v_min3_f32 {vT[3]}, {h[8]}, {h[9]}, {vT[3]}")
    A(f"v_min3_f32 {vT[2]}, {h[10]}, {vT[2]}, {vT[3]}")
    A(f"s_cmp_eq_u32 {sSPIN}, 0")
    A("s_cbranch_scc1 L_pollok")
    A(f"v_cmp_neq_f32 vcc, {F(64.0)}, {vT[2]}")
    for n in range(2):
        A.rb(h[n], h[n])
    A("s_or_b32 vcc_lo, vcc_lo, vcc_hi")
    A("s_and_b32 vcc_lo, vcc_lo, s4")
    A("s_cbranch_scc1 L_poll")
    A.label("L_pollok")
    st()
    A.setexec(M_D)
    for n in range(2, 11):
        A.rb(h[n], h[n])
    for n in range(6):
        A(f"v_pk_add_f32 v[{H+2*n}:{H+2*n+1}], v[{H+2*n}:{H+2*n+1}], v[{X+2*n}:{X+2*n+1}]")
    for n in range(11):
        A.rb(h[n], h[n])
    layernorm_seg(A, H, HN, T1, 4, True, vQ0, M_D)
    layernorm_seg(A, HN, HN, T2, 4, False, vQ0, M_D)
    for n in range(11):
        A(f"v_lshrrev_b32 v{X+n}, 15, {hn[n]}")
        A(f"ds_read_u16_d16_hi v{G+n}, v{X+n} offset:{L_SC - 25600}")
    A(f"v_bfi_b32 {hn[10]}, {vQ0}, {hn[10]}, 1.0")
    A(f"v_min3_f32 {vT[2]}, abs({hn[0]}), abs({hn[1]}), abs({hn[2]})")
    A(f"v_max3_f32 {vT[3]}, abs({hn[0]}), abs({hn[1]}), abs({hn[2]})")
    for n in range(3, 11, 2):
        A(f"v_min3_f32 {vT[2]}, abs({hn[n]}), abs({hn[n+1]}), {vT[2]}")
        A(f"v_max3_f32 {vT[3]}, abs({hn[n]}), abs({hn[n+1]}), {vT[3]}")
    A(f"v_cmp_gt_f32 vcc, {F(2.0 ** -27)}, {vT[2]}")
    A(f"v_mov_b32 {vT[2]}, {F(32.0)}")
    A(f"v_cmp_le_f32 s[4:5], {vT[2]}, {vT[3]}")
    A("s_waitcnt lgkmcnt(0)")
    A("s_or_b64 vcc, vcc, s[4:5]")
    A("s_cbranch_scc1 L_direct")
    A.label("L_lookup")
    for n in range(6):
        A(f"v_pk_add_f32 v[{G+2*n}:{G+2*n+1}], v[{G+2*n}:{G+2*n+1}], v[{H+2*n}:{H+2*n+1}]")
    for n in range(6):
        A(f"v_cvt_pk_bf16_f32 v{G+2*n}, v{G+2*n}, v{G+2*n+1}")
    if ost is None:
        for n in range(11):
            op = "buffer_store_short" if n % 2 == 0 else "buffer_store_short_d16_hi"
            A(f"{op} v{G + (n & ~1)}, {vT[0]}, s[{sOUT}:{sOUT+3}], 0 offen offset:{n*120} {osf}")
        A.setexec(ALL)
    else:
        for n in range(11):
            op = "ds_write_b16" if n % 2 == 0 else "ds_write_b16_d16_hi"
            A(f"{op} {vT[0]}, v{G + (n & ~1)} offset:{L_XN + n*120}")
        A.setexec(ALL)
        A(f"v_lshlrev_b32 {vT[1]}, 4, {vLANE}")
        A("s_waitcnt lgkmcnt(0)")
        A(f"ds_read_b128 v[{G}:{G+3}], {vT[1]} offset:{L_XN}")
        A(f"ds_read_b128 v[{G+4}:{G+7}], {vT[1]} offset:{L_XN + 1024}")
        A("s_waitcnt lgkmcnt(1)")
        A(f"buffer_store_dwordx4 v[{G}:{G+3}], {vT[1]}, s[{sOUT}:{sOUT+3}], 0 offen {osf}")
        A("s_waitcnt lgkmcnt(0)")
        A(f"buffer_store_dwordx4 v[{G+4}:{G+7}], {vT[1]}, s[{sOUT}:{sOUT+3}], 0 offen offset:1024 {osf}")
    if stamps:
        A("s_waitcnt vmcnt(0)")
        st()
        st.flush(sWS, WS_STAMP + 65536, sWAVE, vT[0], vT[1])
        if dbg:
            A("s_load_dwordx2 s[4:5], s[0:1], 88")
            A("s_waitcnt lgkmcnt(0)")
            A.srd(16, "s4", "s5", 256)
            A(f"s_lshl_b32 s6, {sB}, 4")
            A(f"v_mov_b32 {vT[1]}, 0")
            A.setexec(1)
            for k, n in enumerate((3, 4, 5, 11)):
                A(f"s_sub_u32 s7, s{76+2*n}, s76")
                A(f"v_mov_b32 {vT[0]}, s7")
                A(f"buffer_store_dword {vT[0]}, {vT[1]}, s[16:19], s6 offen offset:{4*k}")
            A.setexec(ALL)
    A.label("L_done")
    if stamps:
        st.flush(sWS, WS_STAMP, sWAVE, vT[0], vT[1])
    A.label("L_end")
    A("s_endpgm")
    A.label("L_direct")
    A.setexec(ALL)
    A(f"v_lshrrev_b32 {vT[1]}, 3, {vLANE}")
    A(f"v_mul_u32_u24 {vT[1]}, 2320, {vT[1]}")
    A(f"v_and_b32 {vT[2]}, 7, {vLANE}")
    A(f"v_mul_u32_u24 {vT[2]}, 288, {vT[2]}")
    A(f"v_add_u32 {vT[1]}, {vT[1]}, {vT[2]}")
    A(f"v_add_u32 {vT[1]}, {L_W}, {vT[1]}")
    for n in range(11):
        A(f"v_bfe_u32 {vT[2]}, {hn[n]}, 23, 8")
        A(f"v_subrev_u32 {vT[2]}, 100, {vT[2]}")
        A.setexec(M_D)
        A(f"v_cmp_le_u32 s[4:5], 32, {vT[2]}")
        A.setexec(ALL)
        A.label(f"L_dir{n}")
        A("s_nop 1")
        A("s_cmp_eq_u64 s[4:5], 0")
        A(f"s_cbranch_scc1 L_dirx{n}")
        A(f"s_ff1_i32_b64 {sT0}, s[4:5]")
        A(f"v_readlane_b32 {sT1}, {hn[n]}, {sT0}")
        A(f"s_call_b64 s[6:7], L_eval")
        A(f"v_cmp_eq_u32 vcc, {sT1}, {hn[n]}")
        A("s_nop 1")
        A(f"v_cndmask_b32 v{G+n}, v{G+n}, v{TACC}, vcc")
        A("s_andn2_b64 s[4:5], s[4:5], vcc")
        A(f"s_branch L_dir{n}")
        A.label(f"L_dirx{n}")
    A.setexec(M_D)
    A("s_branch L_lookup")
    A.label("L_eval")
    A("s_nop 1")
    A(f"v_mov_b32 v{TX}, {sT1}")
    A(f"v_mov_b32 v{TX+1}, {sT1}")
    A(f"v_mov_b32 v{TACC}, 0")
    A(f"v_mov_b32 v{TACC+1}, 0")
    A(f"v_mov_b32 {vTA}, {vT[1]}")
    A("s_waitcnt lgkmcnt(0)")
    tab_reads()
    for _ in range(3):
        A(f"s_call_b64 s[{sRET}:{sRET+1}], L_tab")
    A(f"v_add_f32 v{TACC}, v{TACC}, v{TACC+1}")
    A.wave_red("add", f"v{TACC}", sT0)
    A(f"v_mov_b32 v{TACC}, {sT0}")
    tab_finish(f"v{TACC}")
    A(f"v_and_b32 v{TACC}, 0xffff0000, v{TACC}")
    A("s_setpc_b64 s[6:7]")
    A.label("L_tab")
    A("s_waitcnt lgkmcnt(0)")
    def P(r): return f"v[{r}:{r+1}]"
    W1, B1, W2 = TW, TW + 8, TW + 16
    for p in range(4): A(f"v_pk_mul_f32 {P(W1+2*p)}, {P(TX)}, {P(W1+2*p)}")
    for k in range(8): A.rb(f"v{W1+k}", f"v{W1+k}")
    for p in range(4): A(f"v_pk_add_f32 {P(W1+2*p)}, {P(W1+2*p)}, {P(B1+2*p)}")
    for k in range(8): A.rb(f"v{W1+k}", f"v{W1+k}")
    for p in range(4): A(f"v_pk_mul_f32 {P(B1+2*p)}, {P(W1+2*p)}, {P(W1+2*p)}")
    for p in range(4): A(f"v_pk_fma_f32 {P(B1+2*p)}, {P(B1+2*p)}, {P(TK1)}, s[{sK0}:{sK0+1}]")
    for p in range(4): A(f"v_pk_mul_f32 {P(B1+2*p)}, {P(B1+2*p)}, {P(W1+2*p)}")
    for k in range(8): A(f"v_exp_f32 v{B1+k}, v{B1+k}")
    for p in range(4): A(f"v_pk_add_f32 {P(B1+2*p)}, {P(B1+2*p)}, s[{sONE}:{sONE+1}]")
    for k in range(8): A(f"v_rcp_f32 v{B1+k}, v{B1+k}")
    for p in range(4): A(f"v_pk_mul_f32 {P(W1+2*p)}, {P(W1+2*p)}, {P(B1+2*p)}")
    for k in range(8): A.rb(f"v{W1+k}", f"v{W1+k}")
    for p in range(4): A(f"v_pk_fma_f32 {P(TACC)}, {P(W1+2*p)}, {P(W2+2*p)}, {P(TACC)}")
    tab_reads()
    A(f"s_setpc_b64 s[{sRET}:{sRET+1}]")
    acc = (NV + 3) // 4 * 4
    return A.text() + kd(KN, acc + 240, 102, acc)

if __name__ == "__main__":
    kw = eval("dict(%s)" % (sys.argv[2] if len(sys.argv) > 2 else ""))
    open(sys.argv[1], "w").write(gen(**kw))
```

```python
import sys
from asmlib import *

KN = "sequential_preLN__mha_block_cached__mixer_token_mlp__decode_kernel"
HDR = open("sequential_preLN__mha_block_cached__mixer_token_mlp__decode.s.ref").read().split("; Override launch")[0]
LOG2E = 1.4426950408889634
WS_ACC, WS_CNT, WS_ZEND = 0, 12288, 16384
WS_ML = 49152
WS_EP = 45056
WS_ZF = 45312
WS_TAB = 65536
WS_STAMP = 524288
WS_QP = 1 << 20
WS_SIZE = 2 << 20
L_XN = 0
L_P = 10240
L_QB = L_P + 6144
L_PH = L_QB + 512
L_W = L_PH + 1536
L_TP = L_W + 8 * 2320
L_YP = L_TP + 256
L_SC = L_YP + 10240
L_QS = L_SC + 8192
L_WQ = L_QS + 3072
L_END = L_SC + 65536 + 8192
M_D, M_D10 = 0x7FFF7FFF7FFF7FFF, 0x000003FF7FFF7FFF
M_LO, M_HI, M_T1 = 0x00FF00FF00FF00FF, 0xFF00FF00FF00FF00, 0xFF00FF0000FF00FF
ALL = (1 << 64) - 1
SPIN = 0x100000

class Stamps:
    def __init__(self, A, on, s0): self.A = A; self.on = on; self.s0 = s0; self.n = 0
    def __call__(self):
        if self.on:
            s = self.s0 + 2 * self.n
            self.A(f"s_memrealtime s[{s}:{s+1}]")
            self.n += 1
    def flush(self, srd, base, swave, v0, v1):
        if not self.on: return
        A = self.A
        A("s_waitcnt lgkmcnt(0)")
        A("s_lshl_b32 s6, s2, 2")
        A(f"s_add_u32 s6, s6, {swave}")
        A("s_lshl_b32 s6, s6, 6")
        A(f"s_add_u32 s6, s6, {base}")
        A(f"v_mov_b32 {v1}, 0")
        A.setexec(1)
        for n in range(self.n):
            A(f"v_mov_b32 {v0}, s{self.s0 + 2*n}")
            A(f"buffer_store_dword {v0}, {v1}, s[{srd}:{srd+3}], s6 offen offset:{4*n}")
        A("s_getreg_b32 s7, hwreg(HW_REG_XCC_ID)")
        A(f"v_mov_b32 {v0}, s7")
        A(f"buffer_store_dword {v0}, {v1}, s[{srd}:{srd+3}], s6 offen offset:60")
        A(f"v_mov_b32 {v0}, s51")
        A(f"buffer_store_dword {v0}, {v1}, s[{srd}:{srd+3}], s6 offen offset:56")
        A.setexec(ALL)

class VQ:
    CAP = 54
    CLASS = False
    def __init__(self, A): self.A = A; self.q = []; self.frac = 0.0
    def room(self, n):
        cap = int(self.CAP)
        self.frac += self.CAP - cap
        if self.frac >= 1.0 - 1e-9:
            self.frac -= 1.0; cap += 1
        if len(self.q) > cap - n:
            self.A(f"s_waitcnt vmcnt({cap - n})")
            self.q = self.q[len(self.q) - (cap - n):]
    def op(self, text, tag, nocap=False):
        if nocap:
            self.A(text); self.q.append(tag); return
        cap = int(self.CAP)
        self.frac += self.CAP - cap
        if self.frac >= 1.0 - 1e-9:
            self.frac -= 1.0; cap += 1
        if self.CLASS and cap < 40:
            idx = [i for i, t in enumerate(self.q) if not (isinstance(t, tuple) and t[0] == "wo")]
            if len(idx) >= cap:
                pos = idx[len(idx) - cap]
                self.A(f"s_waitcnt vmcnt({len(self.q) - 1 - pos})")
                self.q = self.q[pos + 1:]
        elif len(self.q) >= cap:
            self.A(f"s_waitcnt vmcnt({cap - 1})")
            self.q = self.q[-(cap - 1):]
        self.A(text)
        self.q.append(tag)
    def wait(self, tag):
        if tag not in self.q: return
        pos = len(self.q) - 1 - self.q[::-1].index(tag)
        self.A(f"s_waitcnt vmcnt({len(self.q) - 1 - pos})")
        self.q = self.q[pos + 1:]

def gen(T=12, ext=4, rot=13, wo_start=0, stamps=False, kf='nt', vf='nt', wf='nt', tab_start=20,
        n1=3, n1b=1, n1c=1, n2=4, capk=8, capv=6, caph=6, wo_rate=1.0, dbg=False, BL=0, pmul=1, tlb=0, st0=False, wo_late=0, cape=54, lift=4, liftcap=54, poll2=False, tabrot=False, rh=(56,48,48), burst=False, order=(0,1,2), eplate=False, wo2=0, cap0=54, nowo=False, notab=False, noend=False, wosame=False, wob=0, wobcap=True, ccap=False, hb=0, bb_=0, ml_at=28, fc_at=36, ost=None, osf='', wopre='nt', wof='', wopre2=None, noqx=False, nopub=False, wopair='sc1', wolite=0, padto=0, padfrom=0, qsf='sc1 nt', qlf='sc1 nt', psf='sc1 nt', plf='sc1 nt', noqst=False, noqld=False, notabst=False, nomlx=False, notd=False):
    if wof is None: wof = wf
    VQ.CLASS = ccap
    if dbg: stamps = True
    A = Asm()
    A.raw(HDR.rstrip())
    A.raw(f"; @launch grid=(256,1,1) block=(256,1,1) lds={L_END}")
    A.raw('.amdgcn_target "amdgcn-amd-amdhsa--gfx950"')
    A.raw(".text")
    A.raw(f".globl {KN}")
    st = Stamps(A, stamps, 76)
    NT = 64
    STEP = 12288
    REGION = 786432
    sX, sK, sV, sWQ, sWO, sWS = 24, 28, 32, 36, 40, 44
    sOUT = 36
    sTAG, sBS, sQG, sRETRY = "s48", "s49", "s50", "s51"
    sWAVE, sB, sH, sHALF, sBH, sT0, sT1 = "s52", "s53", "s54", "s55", "s56", "s57", "s58"
    sKREL, sVREL, sWB, sOFF, sWQOFF, sWOOFF, sM, sL, sF, sSPIN = "s59", "s60", "s61", "s62", "s63", "s64", "s65", "s66", "s67", "s68"
    sB2, sTB, sJMP = "s69", "s3", "s101"
    sK0, sONE, sRET = 70, 72, 74
    sFP, sMK, sTK = 8, 10, "s16"
    vLANE, vKO, vVO, vQ0, vQ1, vQ2, vWO = "v1", "v2", "v3", "v4", "v5", "v6", "v7"
    vM = ["v8", "v9", "v10", "v11"]
    vA0, vA1, vAY, vSC, vXN, vMAX, vZ = "v12", "v13", "v14", "v15", "v16", "v17", "v18"
    vT = [f"v{i}" for i in range(19, 24)]
    QB = 24
    D = 36
    O = 40
    B = 52
    ML = 60
    TW = 64
    TX, TACC, TK1 = 88, 90, 92
    vTA = "v94"
    XS = 95
    vYA = [vQ1, vQ2, vXN]; vCNT = vMAX; vMK = [f"v{TX}", f"v{TX+1}"]
    R0 = 100
    NV = R0 + 12 * T
    AW = 204
    assert NV <= 256 and ext * 12 <= AW
    vq = VQ(A)

    A.raw(".p2align 8")
    A.raw(f".type {KN},@function")
    A.label(KN)
    A("s_cmp_ge_u32 s2, 256")
    A("s_cbranch_scc1 L_end")
    st()
    if padto: A("s_memrealtime s[76:77]")
    A("s_load_dwordx8 s[8:15], s[0:1], 0")
    A("s_load_dwordx2 s[16:17], s[0:1], 32")
    A("s_load_dwordx2 s[22:23], s[0:1], 96")
    A(f"v_lshrrev_b32 {vT[0]}, 6, v0")
    A(f"v_and_b32 {vLANE}, 63, v0")
    A(f"v_readfirstlane_b32 {sWAVE}, {vT[0]}")
    A(f"s_and_b32 {sH}, s2, 7")
    A(f"s_lshr_b32 {sT0}, s2, 3")
    A(f"s_lshl_b32 {sH}, {sH}, 2")
    A(f"s_and_b32 {sT1}, {sT0}, 3")
    A(f"s_add_u32 {sH}, {sH}, {sT1}")
    A(f"s_lshr_b32 {sBS}, {sT0}, 2")
    A(f"s_lshr_b32 {sB}, {sT0}, 3")
    A(f"s_and_b32 {sHALF}, {sBS}, 1")
    A(f"s_lshl_b32 {sBH}, {sB}, 5")
    A(f"s_add_u32 {sBH}, {sBH}, {sH}")
    q, i, t0, t1 = vT[0], vT[1], vT[2], vT[3]
    A(f"v_lshrrev_b32 {q}, 4, {vLANE}")
    A(f"v_and_b32 {i}, 15, {vLANE}")
    A(f"v_lshrrev_b32 {t0}, 2, {i}")
    A(f"v_mul_u32_u24 {vKO}, 768, {t0}")
    A(f"v_lshl_add_u32 {vKO}, {q}, 6, {vKO}")
    A(f"v_and_b32 {t0}, 3, {i}")
    A(f"v_lshl_add_u32 {vKO}, {t0}, 4, {vKO}")
    A(f"v_mul_u32_u24 {vVO}, 768, {q}")
    A(f"v_lshl_add_u32 {vVO}, {i}, 4, {vVO}")
    A(f"v_mul_u32_u24 {vQ0}, 24576, {q}")
    A(f"v_lshl_add_u32 {vQ0}, {i}, 4, {vQ0}")
    A(f"v_add_u32 {vQ1}, 256, {vQ0}")
    A(f"v_add_u32 {vQ2}, {12288-128}, {vQ0}")
    A(f"v_cmp_gt_u32 vcc, 8, {i}")
    A(f"v_mul_u32_u24 {vWO}, 1280, {q}")
    A(f"v_lshl_add_u32 {vWO}, {i}, 4, {vWO}")
    A(f"v_cndmask_b32 {vQ1}, {vQ2}, {vQ1}, vcc")
    A(f"v_add_u32 {vQ2}, {12288+128}, {vQ0}")
    for r in range(O, O + 12):
        A(f"v_mov_b32 v{r}, 0")
    A(f"v_lshlrev_b32 {t0}, 4, v0")
    A(f"v_lshlrev_b32 {t1}, 2, {vLANE}")
    A(f"s_lshl_b32 {sT1}, {sBH}, 1")
    A(f"s_add_u32 {sT1}, {sT1}, {sHALF}")
    if rh is None:
        A(f"s_mul_i32 {sKREL}, {sT1}, {rot}")
    else:
        A(f"s_mul_i32 {sKREL}, {sHALF}, {rh[0]}")
        A(f"s_mul_i32 {sT0}, {sH}, {rh[1]}")
        A(f"s_add_u32 {sKREL}, {sKREL}, {sT0}")
        A(f"s_mul_i32 {sT0}, {sB}, {rh[2]}")
        A(f"s_add_u32 {sKREL}, {sKREL}, {sT0}")
    A(f"s_and_b32 {sKREL}, {sKREL}, 63")
    A(f"s_mov_b32 {sVREL}, {sKREL}")
    if BL:
        A(f"s_mul_i32 {sJMP}, {sT1}, {pmul}")
        A(f"s_lshr_b32 {sJMP}, {sJMP}, 2")
        A(f"s_lshl_b32 {sJMP}, {sJMP}, 1")
        A(f"s_mul_i32 {sJMP}, {sJMP}, {BL}")
        A(f"s_add_u32 {sJMP}, {sJMP}, 1")
    A(f"s_mul_i32 {sT1}, {sT1}, {REGION}")
    A(f"s_mul_i32 {sWB}, {sWAVE}, 3072")
    A(f"s_mul_i32 {sOFF}, {sBS}, {80*12288}")
    A(f"s_mul_i32 {sT0}, {sH}, 384")
    A(f"s_add_u32 {sOFF}, {sOFF}, {sT0}")
    A(f"s_mul_i32 {sWQOFF}, {sWAVE}, {8*12288}")
    A(f"s_lshr_b32 {sT0}, {sWAVE}, 1")
    A(f"s_mul_i32 {sWOOFF}, {sT0}, {96*1280}")
    A(f"s_and_b32 {sT0}, {sWAVE}, 1")
    A(f"s_mul_i32 {sT0}, {sT0}, {4*1280}")
    A(f"s_add_u32 {sWOOFF}, {sWOOFF}, {sT0}")
    A(f"s_mul_i32 {sT0}, {sWAVE}, 1280")
    A(f"s_mov_b32 {sRETRY}, 0")
    A("s_waitcnt lgkmcnt(0)")
    if st0: st()
    if tabrot:
        A("s_load_dwordx2 s[4:5], s[0:1], 40")
        A("s_lshl_b32 s6, s2, 2")
        A("s_waitcnt lgkmcnt(0)")
        A(f"s_load_dword {sKREL}, s[4:5], s6")
        A("s_waitcnt lgkmcnt(0)")
        A(f"s_and_b32 {sKREL}, {sKREL}, 63")
        A(f"s_mov_b32 {sVREL}, {sKREL}")
    A.srd_off(sX, 8, sT0, 1280)
    for n in range(5):
        vq.op(f"buffer_load_dword v{XS+n}, {t1}, s[{sX}:{sX+3}], 0 offen offset:{n*256}", "x")
    A.srd_off(sWQ, 14, sOFF, 79 * 12288 + 384)
    for k in range(3):
        for t, o in enumerate((vQ0, vQ1, vQ2)):
            r = AW + k * 12 + t * 4
            vq.op(f"buffer_load_dwordx4 a[{r}:{r+3}], {o}, s[{sWQ}:{sWQ+3}], {sWQOFF} offen {wf}", "wq")
        if k < 2: A(f"s_add_u32 {sWQOFF}, {sWQOFF}, {32*12288}")
    A.srd_off(sK, 10, sT1, REGION)
    A.srd_off(sV, 12, sT1, REGION)
    A(f"s_mul_i32 {sT0}, {sH}, 245760")
    A.srd_off(sWO, 16, sT0, 245760)
    A.srd(sWS, "s22", "s23", WS_SIZE)
    A("s_load_dwordx8 s[8:15], s[0:1], 48")
    A("s_load_dwordx2 s[20:21], s[0:1], 80")
    if not eplate: A(f"s_load_dword {sTAG}, s[22:23], {WS_EP}")

    def treg(slot, t):
        if slot < T:
            r = R0 + slot * 12 + t * 4
            return f"v[{r}:{r+3}]"
        r = (slot - T) * 12 + t * 4
        return f"a[{r}:{r+3}]"
    def ld_tile(slot, isv, n):
        rel, srd, off = (sVREL, sV, vVO) if isv else (sKREL, sK, vKO)
        A(f"s_mul_i32 {sOFF}, {rel}, {STEP}")
        A(f"s_add_u32 {sOFF}, {sOFF}, {sWB}")
        if burst: vq.room(3)
        for t in order:
            vq.op(f"buffer_load_dwordx4 {treg(slot, t)}, {off}, s[{srd}:{srd+3}], {sOFF} offen offset:{t*256} {vf if isv else kf}", ("v" if isv else "k", n), nocap=burst)
        A(f"s_add_u32 {rel}, {rel}, {sJMP if (BL and (n + 1) % BL == 0) else 1}")
        A(f"s_and_b32 {rel}, {rel}, 63")
    def ld_wo(n):
        rg, c = divmod(n, 5)
        if nowo:
            A("s_nop 0"); return
        A(f"s_add_u32 {sOFF}, {sWOOFF}, {0 if wosame else rg*8*1280}")
        vq.op(f"buffer_load_dwordx4 a[{4*n}:{4*n+3}], {vWO}, s[{sWO}:{sWO+3}], {sOFF} offen offset:{c*256} {wof}", ("wo", n), nocap=not wobcap)
    kis = [0]
    def head_k(n):
        for _ in range(n):
            if kis[0] < T + ext:
                ld_tile(kis[0], False, kis[0]); kis[0] += 1
    def wo_touch(wopre):
        A(f"s_mul_i32 {sOFF}, {sBS}, 30720")
        A(f"s_mul_i32 {sT0}, {sWAVE}, 7680")
        A(f"s_add_u32 {sOFF}, {sOFF}, {sT0}")
        if wolite:
            if wolite == 2:
                A(f"v_lshlrev_b32 {vZ}, 4, {vLANE}")
                for k in range(8):
                    if k == 7: A.setexec(0xffffffff)
                    if k == 4: A(f"s_add_u32 {sT0}, {sOFF}, 4096")
                    vq.op(f"buffer_load_dwordx4 a[{160+4*k}:{163+4*k}], {vZ}, s[{sWO}:{sWO+3}], {sOFF if k < 4 else sT0} offen offset:{(k%4)*1024} nt", "wop")
                A.setexec((1 << 60) - 1)
                A(f"v_lshlrev_b32 {vZ}, 7, {vLANE}")
                vq.op(f"buffer_load_dword a120, {vZ}, s[{sWO}:{sWO+3}], {sOFF} offen sc1", "wop")
            else:
                A(f"v_lshlrev_b32 {vZ}, 7, {vLANE}")
                A.setexec((1 << 60) - 1)
                for fl in ("nt", "sc1"):
                    for k in range(2):
                        vq.op(f"buffer_load_dword a{120+k}, {vZ}, s[{sWO}:{sWO+3}], {sOFF} offen offset:{64*k} {fl}", "wop")
            A.setexec(ALL)
            return
        A(f"v_lshlrev_b32 {vZ}, 4, {vLANE}")
        for k in range(8):
            if k == 4: A(f"s_add_u32 {sOFF}, {sOFF}, 4096")
            if k == 7: A.setexec(0xffffffff)
            vq.op(f"buffer_load_dwordx4 a[{160+4*k}:{163+4*k}], {vZ}, s[{sWO}:{sWO+3}], {sOFF} offen offset:{(k%4)*1024} {wopre}", "wop")
            if wopair is not None:
                vq.op(f"buffer_load_dwordx4 a[{120+4*k}:{123+4*k}], {vZ}, s[{sWO}:{sWO+3}], {sOFF} offen offset:{(k%4)*1024} {wopair}", "wop")
        A.setexec(ALL)
    if wopre is not None: wo_touch(wopre)
    head_k(1)
    A("s_cmp_lg_u32 s2, 0")
    A("s_cbranch_scc1 L_nozero")
    for n in range(WS_ZEND // 4096):
        A(f"s_movk_i32 {sT0}, {n*4096}")
        A(f"buffer_store_dwordx4 v[{O}:{O+3}], {t0}, s[{sWS}:{sWS+3}], {sT0} offen sc1")
    A.label("L_nozero")
    A("s_waitcnt lgkmcnt(0)")
    sW = 16
    for ptr, dst in ((8, B), (10, B + 4), (12, D)):
        A.srd(sW, f"s{ptr}", f"s{ptr+1}", 3072)
        vq.op(f"buffer_load_dwordx4 v[{dst}:{dst+3}], {t0}, s[{sW}:{sW+3}], 0 offen", "mw")
    A(f"s_load_dword {sB2}, s[14:15], 0")
    def mktag():
        A(f"s_mul_i32 {sTAG}, {sTAG}, 0x2c9277b5")
        A(f"s_add_u32 {sTAG}, {sTAG}, 0x7f4a7c15")
    if eplate: A(f"s_load_dword {sTAG}, s[22:23], {WS_EP}")
    else: mktag()
    jl = vT[2]
    A(f"v_and_b32 {jl}, 7, {vLANE}")
    A(f"v_and_b32 {t1}, 1, {vLANE}")
    A(f"v_cmp_eq_u32 vcc, 1, {t1}")
    A(f"v_mov_b32 {vT[4]}, 0xffff")
    A(f"v_mov_b32 {vM[3]}, 0xffff0000")
    A(f"v_cndmask_b32 {vT[4]}, {vT[4]}, {vM[3]}, vcc")
    A(f"v_lshrrev_b32 {t1}, 1, {jl}")
    for r in range(4):
        A(f"v_cmp_eq_u32 vcc, {r}, {t1}")
        A("s_nop 1")
        A(f"v_cndmask_b32 {vM[r]}, 0, {vT[4]}, vcc")
    A(f"v_lshl_add_u32 {vAY}, {q}, 3, {jl}")
    A(f"v_lshlrev_b32 {vAY}, 4, {vAY}")
    A(f"s_mul_i32 {sT0}, {sWAVE}, 1536")
    A(f"v_add_u32 {vA0}, {sT0}, {vAY}")
    A(f"s_mul_i32 {sT0}, {sWAVE}, 2560")
    A(f"v_add_u32 {vAY}, {sT0}, {vAY}")
    A(f"v_lshrrev_b32 {t1}, 3, {vLANE}")
    A(f"s_mul_i32 {sT1}, {sBS}, 320")
    A(f"s_add_u32 {sT0}, {sT0}, {sT1}")
    A(f"v_lshl_add_u32 {vXN}, {t1}, 2, {sT0}")
    A(f"s_lshl_b32 {sT0}, {sWAVE}, 11")
    A(f"s_add_u32 {sT0}, {sT0}, {L_SC}")
    A(f"v_lshl_add_u32 {vSC}, {t1}, 2, {sT0}")
    A(f"v_mov_b32 {vMAX}, 0xff800000")
    A(f"v_lshlrev_b32 {vA1}, 2, v0")
    A(f"s_lshl_b32 {sT0}, s2, 2")
    A(f"s_add_u32 {sT0}, {sT0}, {sWAVE}")
    A(f"s_lshr_b32 {sT1}, {sT0}, 9")
    A(f"s_lshl_b32 {sT1}, {sT1}, 15")
    A(f"s_and_b32 {sT0}, {sT0}, 511")
    A(f"s_lshl_b32 {sT0}, {sT0}, 3")
    A(f"s_add_u32 {sT0}, {sT0}, 12800")
    A(f"s_or_b32 {sTB}, {sT0}, {sT1}")
    A(f"v_add_lshl_u32 v{TX}, {jl}, {sTB}, 16")
    A(f"v_mov_b32 v{TX+1}, v{TX}")
    A(f"v_mov_b32 v{TACC}, 0")
    A(f"v_mov_b32 v{TACC+1}, 0")
    K0 = -2.0 * 0.7978845608028654 * LOG2E
    A(f"v_mov_b32 v{TK1}, {F(K0 * 0.044715)}")
    A(f"v_mov_b32 v{TK1+1}, {F(K0 * 0.044715)}")
    A(f"s_mov_b32 s{sK0}, {F(K0)}")
    A(f"s_mov_b32 s{sK0+1}, {F(K0)}")
    A(f"s_mov_b32 s{sONE}, 1.0")
    A(f"s_mov_b32 s{sONE+1}, 1.0")
    A(f"v_mul_u32_u24 {vTA}, 2320, {t1}")
    A(f"v_add_u32 {vTA}, {L_W}, {vTA}")
    vq.CAP = cap0
    head_k(n1 - 1)
    vq.wait("x")
    if not st0: st()
    for n in range(5):
        A(f"v_lshlrev_b32 v{TW+2*n}, 16, v{XS+n}")
        A(f"v_and_b32 v{TW+2*n+1}, 0xffff0000, v{XS+n}")
    layernorm_fast(A, TW, QB, TW + 10, 4, True)
    A(f"s_mul_i32 {sT0}, {sWAVE}, 2560")
    A(f"v_lshl_add_u32 {vT[2]}, {vLANE}, 3, {sT0}")
    for n in range(10):
        A(f"v_cvt_pk_bf16_f32 v{QB+n}, v{QB+n}, v{QB+n}")
    for n in range(5):
        A(f"ds_write_b64 {vT[2]}, v[{QB+2*n}:{QB+2*n+1}] offset:{L_XN + n*512}")
    A(f"v_lshlrev_b32 {vZ}, 4, {vLANE}")
    A(f"v_add_u32 {vT[2]}, {sWB}, {vZ}")
    vq.wait("wq")
    A("s_waitcnt lgkmcnt(0)")
    if eplate: mktag()
    A(f"v_add_u32 {vT[2]}, {L_WQ}, {vT[2]}")
    for k in range(3):
        for t in range(3):
            r = AW + k * 12 + t * 4
            A(f"ds_write_b128 {vT[2]}, a[{r}:{r+3}] offset:{k*12288 + t*1024}")
    if wopre2 is not None:
        vq.wait("wop")
        wo_touch(wopre2)
    head_k(n1b)
    vq.wait("mw")
    A("s_waitcnt lgkmcnt(0)")
    A(f"s_cmp_eq_u32 {sWAVE}, 3")
    A("s_cbranch_scc1 L_now")
    for k, src in enumerate((B, B + 4, D)):
        for n in range(4):
            A(f"v_lshlrev_b32 v{TW+8*k+2*n}, 16, v{src+n}")
            A(f"v_and_b32 v{TW+8*k+2*n+1}, 0xffff0000, v{src+n}")
    A(f"v_mul_u32_u24 {vT[3]}, 2731, v0")
    A(f"v_mul_u32_u24 {vT[2]}, 96, v0")
    A(f"v_lshrrev_b32 {vT[3]}, 16, {vT[3]}")
    A(f"v_lshl_add_u32 {vT[2]}, {vT[3]}, 4, {vT[2]}")
    A(f"v_mov_b32 {vT[3]}, 0")
    A(f"ds_write_b32 {vT[3]}, {vT[3]} offset:{L_TP + 128}")
    for k in range(6):
        A(f"ds_write_b128 {vT[2]}, v[{TW+4*k}:{TW+4*k+3}] offset:{L_W + 16*k}")
    A("s_waitcnt lgkmcnt(0)")
    A.label("L_now")
    for n in range(10):
        A(f"ds_read_b32 v{QB+n}, {vXN} offset:{L_XN + n*32}")
    A(f"v_add_u32 {vT[2]}, {L_WQ}, {vZ}")
    A(f"v_mov_b32 {vT[4]}, 0")
    A("s_waitcnt lgkmcnt(0)")
    A("s_barrier")
    A(f"s_or_b32 {sT0}, s2, {sWAVE}")
    A(f"s_cmp_lg_u32 {sT0}, 0")
    A("s_cbranch_scc1 L_noflag")
    for r in range(4):
        A(f"v_mov_b32 v{ML+r}, {sTAG}")
    A(f"s_mov_b32 {sT0}, {WS_ZF}")
    A.setexec(1)
    A(f"buffer_store_dwordx4 v[{ML}:{ML+3}], {vT[4]}, s[{sWS}:{sWS+3}], {sT0} offen sc1")
    A.setexec(ALL)
    A.label("L_noflag")
    def wq_read(n):
        for t in range(3):
            r = AW + (n % 3) * 12 + t * 4
            A(f"ds_read_b128 a[{r}:{r+3}], {vT[2]} offset:{n*3072 + t*1024}")
    for n in range(3): wq_read(n)
    head_k(n1c)
    for n in range(10):
        bb = B + 4 * (n & 1)
        for r in range(4):
            A(f"v_and_b32 v{bb+r}, v{QB+n}, {vM[r]}")
        A(f"s_waitcnt lgkmcnt({3 * min(2, 9 - n)})")
        A("s_nop 0")
        for t in range(3):
            r = AW + (n % 3) * 12 + t * 4
            A(f"v_mfma_f32_16x16x32_bf16 v[{O+4*t}:{O+4*t+3}], a[{r}:{r+3}], v[{bb}:{bb+3}], v[{O+4*t}:{O+4*t+3}]")
        if n + 3 < 10:
            A("s_nop 3")
            wq_read(n + 3)
    def lds_put3():
        A.setexec(M_LO)
        A(f"ds_write_b128 {vA0}, v[{O}:{O+3}] offset:{L_P}")
        A.setexec(M_T1)
        A(f"ds_write_b128 {vA0}, v[{O+4}:{O+7}] offset:{L_P + 512}")
        A.setexec(M_HI)
        A(f"ds_write_b128 {vA0}, v[{O+8}:{O+11}] offset:{L_P + 768 + 256}")
        A.setexec(ALL)
    A(f"s_mul_i32 {sT0}, {sWAVE}, 1536")
    A(f"v_lshl_add_u32 {vT[2]}, {vLANE}, 2, {sT0}")
    A(f"s_lshl_b32 {sT0}, {sH}, 2")
    A(f"s_add_u32 {sT1}, {sT0}, {sWAVE}")
    A(f"s_lshl_b32 {sT1}, {sT1}, 3")
    A(f"s_add_u32 {sT1}, {sT1}, {sBS}")
    A(f"s_lshl_b32 {sT1}, {sT1}, 10")
    A(f"s_add_u32 {sT1}, {sT1}, {WS_QP}")
    A(f"s_add_u32 {sQG}, {sT0}, {sB}")
    A(f"s_lshl_b32 {sQG}, {sQG}, 2")
    A(f"s_add_u32 {sQG}, {sQG}, {sWAVE}")
    A(f"s_lshl_b32 {sQG}, {sQG}, 11")
    A(f"s_add_u32 {sQG}, {sQG}, {WS_QP}")
    lds_put3()
    A("s_waitcnt lgkmcnt(0)")
    for k in range(6):
        A(f"ds_read_b32 v{B+k}, {vT[2]} offset:{L_P + 256*k}")
    A(f"v_mov_b32 v{D+3}, {sTAG}")
    A("s_waitcnt lgkmcnt(0)")
    for k in range(3):
        A(f"v_add_f32 v{D+k}, v{B+k}, v{B+3+k}")
    if not (noqx or noqst): vq.op(f"buffer_store_dwordx4 v[{D}:{D+3}], {vZ}, s[{sWS}:{sWS+3}], {sT1} offen {qsf}", "qst")
    st()
    vq.CAP = caph
    head_k(n2)
    def q_gather(track):
        for k in range(2):
            txt = f"buffer_load_dwordx4 v[{B+4*k}:{B+4*k+3}], {vZ}, s[{sWS}:{sWS+3}], {sQG} offen offset:{1024*k} {qlf}"
            if track: vq.op(txt, "qg")
            else: A(txt)
    if not (noqx or noqld): q_gather(True)
    if tlb:
        A(f"v_lshlrev_b32 {vQ0}, 16, {vLANE}")
        A.setexec(0xfff)
        vq.op(f"buffer_load_dword v{ML}, {vQ0}, s[{sV}:{sV+3}], 0 offen nt", "tlb")
        if tlb > 1:
            vq.op(f"buffer_load_dword v{ML+1}, {vQ0}, s[{sK}:{sK+3}], 0 offen nt", "tlb")
            vq.op(f"buffer_load_dword v{ML+2}, {vQ0}, s[{sWO}:{sWO+3}], 0 offen nt", "tlb")
        A.setexec(ALL)
    head_k(T + ext - kis[0] - hb)
    vq.CAP = 54
    head_k(99)
    q, i, t0, t1 = vT[0], vT[1], vT[2], vT[3]
    A(f"v_and_b32 {t0}, 32, {vLANE}")
    A(f"v_and_b32 {t1}, 3, {vLANE}")
    A(f"v_lshl_add_u32 {t0}, {t1}, 3, {t0}")
    A(f"v_bfe_u32 {t1}, {vLANE}, 2, 3")
    A(f"v_add_lshl_u32 {vXN}, {t0}, {t1}, 1")
    A(f"s_mul_i32 {sT0}, {sWAVE}, 768")
    A(f"v_lshlrev_b32 {vQ0}, 2, {vLANE}")
    A(f"v_add_u32 {vQ1}, {sT0}, {vQ0}")
    A(f"v_and_b32 {t0}, 3, {vLANE}")
    A(f"v_lshl_add_u32 {t0}, {q}, 2, {t0}")
    A(f"v_and_b32 {t1}, 8, {vLANE}")
    A(f"v_add_lshl_u32 {vQ2}, {t0}, {t1}, 4")
    A(f"v_cmp_gt_u32 vcc, 8, {i}")
    A(f"v_add_u32 {t1}, 16, {t0}")
    A(f"v_subrev_u32 {t0}, 8, {t0}")
    A(f"v_cndmask_b32 {t0}, {t0}, {t1}, vcc")
    A(f"v_lshlrev_b32 {t0}, 4, {t0}")
    for r in range(12):
        A(f"v_mov_b32 v{QB+r}, 0")
    vq.wait("qg")
    A(f"s_mov_b32 {sSPIN}, {1 if (noqx or noqst or noqld) else SPIN}")
    A.label("L_qchk")
    A(f"v_cmp_ne_u32 vcc, {sTAG}, v{B+3}")
    A(f"v_cmp_ne_u32 s[4:5], {sTAG}, v{B+7}")
    A("s_nop 1")
    A("s_or_b64 vcc, vcc, s[4:5]")
    A("s_cbranch_scc0 L_qok")
    A(f"s_sub_u32 {sSPIN}, {sSPIN}, 1")
    A(f"s_cmp_eq_u32 {sSPIN}, 0")
    A("s_cbranch_scc1 L_qok")
    A(f"s_add_u32 {sRETRY}, {sRETRY}, 1")
    A("s_sleep 2")
    q_gather(False)
    A("s_waitcnt vmcnt(0)")
    A("s_branch L_qchk")
    A.label("L_qok")
    for k in range(3):
        A(f"v_add_f32 v{B+k}, v{B+k}, v{B+4+k}")
    for k in range(3):
        A(f"ds_write_b32 {vQ1}, v{B+k} offset:{L_QS + 256*k}")
    A("s_waitcnt lgkmcnt(0)")
    A("s_barrier")
    for k in range(12):
        A(f"ds_read_b32 v{O+k}, {vQ0} offset:{L_QS + 256*k}")
    A("s_waitcnt lgkmcnt(0)")
    for k in range(3):
        A(f"v_add_f32 v{O+k}, v{O+k}, v{O+3+k}")
        A(f"v_add_f32 v{O+6+k}, v{O+6+k}, v{O+9+k}")
    for k in range(3):
        A(f"v_add_f32 v{O+k}, v{O+k}, v{O+6+k}")
    for k in range(3):
        A(f"v_cvt_pk_bf16_f32 v{O+k}, v{O+k}, v{O+k}")
    for k in range(3):
        A(f"ds_write_b16 {vXN}, v{O+k} offset:{L_QB + 128*k}")
    A("s_waitcnt lgkmcnt(0)")
    A.setexec(M_LO)
    A(f"ds_read_b128 v[{QB}:{QB+3}], {vQ2} offset:{L_QB}")
    A.setexec(M_HI)
    A(f"ds_read_b128 v[{QB+8}:{QB+11}], {vQ2} offset:{L_QB}")
    A.setexec(M_T1)
    A(f"ds_read_b128 v[{QB+4}:{QB+7}], {t0} offset:{L_QB}")
    A.setexec(ALL)
    for r in range(O, O + 12):
        A(f"v_mov_b32 v{r}, 0")
    def tab_reads():
        for k in range(6):
            A(f"ds_read_b128 v[{TW+4*k}:{TW+4*k+3}], {vTA} offset:{16*k}")
        A(f"v_add_u32 {vTA}, 96, {vTA}")
    A("s_waitcnt lgkmcnt(0)")
    tab_reads()
    ncalls = [0]
    published = [False]
    def tab_finish(dst):
        A.rb(dst, dst)
        A(f"v_add_f32 {dst}, {sB2}, {dst}")
        A(f"v_cvt_pk_bf16_f32 {dst}, {dst}, {dst}")
    def tab_publish():
        ta, tb = f"v{TACC}", f"v{TACC+1}"
        A(f"v_add_f32 {ta}, {ta}, {tb}")
        A("s_nop 1")
        A(f"v_add_f32_dpp {ta}, {ta}, {ta} row_ror:8 row_mask:0xf bank_mask:0xf")
        A(f"v_mov_b32 {tb}, {ta}")
        A("s_nop 1")
        A(f"v_permlane16_swap_b32 {ta}, {tb}")
        A(f"v_add_f32 {ta}, {ta}, {tb}")
        A(f"v_mov_b32 {tb}, {ta}")
        A("s_nop 1")
        A(f"v_permlane32_swap_b32 {ta}, {tb}")
        A(f"v_add_f32 {ta}, {ta}, {tb}")
        tab_finish(ta)
        A(f"s_lshl_b32 {sT0}, {sWAVE}, 4")
        A(f"v_lshl_add_u32 {tb}, {vLANE}, 1, {sT0}")
        A.setexec(0xff)
        A(f"ds_write_b16 {tb}, {ta} offset:{L_TP}")
        A.setexec(ALL)
    A(f"s_lshl_b32 {sB2}, {sB2}, 16")
    st()
    s = vT[0]
    slot_of = list(range(T + ext))
    nxt = [T + ext]
    def refill(slot):
        if slot >= T or nxt[0] >= 2 * NT: return False
        m = nxt[0]; nxt[0] += 1
        slot_of.append(slot)
        ld_tile(slot, m >= NT, m % NT)
        return True
    NR = 4
    NR = 6
    use_order = [rg * 5 + c for rg in range(NR) for c in range(5)] + [rg * 5 + c for c in range(5) for rg in range(NR, 12)]
    late = use_order[60 - wo_late:]
    wo_order = [k for k in list(range(3 * ext, 60)) + list(range(3 * ext)) if k not in late] + late
    wo_left = [60]
    if wob:
        f = -(-3 * ext // 5) * 5
        wo_order = list(range(f, 60)) + list(range(f))
    def wo_step(n):
        if wob:
            if n % wob != wob - 1 or wo_left[0] == 0: return False
            assert wo_order[60 - wo_left[0]] >= 3 * ext or n >= T + ext
            for _ in range(wob):
                ld_wo(wo_order[60 - wo_left[0]]); wo_left[0] -= 1
            return True
        if n < wo_start or wo_left[0] <= wo_late: return False
        if not wo2 and (n - wo_start + 1) * wo_rate < 60 - wo_left[0] + 1 - 1e-9: return False
        k = wo_order[60 - wo_left[0]]
        if k < 3 * ext and n % 1000 < T + k // 3: return False
        ld_wo(k); wo_left[0] -= 1
        return True
    vq.CAP = capk
    for n in range(NT):
        if n == NT - T or wo_left[0] <= wo_late: vq.CAP = capv
        if n >= NT - bb_: vq.CAP = 54
        slot = slot_of[n]
        vq.wait(("k", n))
        for tt in range(3):
            c = "0" if tt == 0 else f"v[{D}:{D+3}]"
            A(f"v_mfma_f32_16x16x32_bf16 v[{D}:{D+3}], {treg(slot, tt)}, v[{QB+4*tt}:{QB+4*tt+3}], {c}")
        if not refill(slot): A("s_nop 6")
        if not wo_step(n): A("s_nop 0")
        if n < wo2: wo_step(n + 1000)
        s2 = vT[1]
        A(f"v_mov_b32_dpp {s}, v{D} quad_perm:[0,0,0,0] row_mask:0xf bank_mask:0xf")
        A(f"v_mov_b32_dpp {s2}, v{D+2} quad_perm:[2,2,2,2] row_mask:0xf bank_mask:0xf")
        A("s_nop 0")
        A(f"v_add_f32_dpp {s}, v{D+1}, {s} quad_perm:[1,1,1,1] row_mask:0xf bank_mask:0xf")
        A(f"v_add_f32_dpp {s2}, v{D+3}, {s2} quad_perm:[3,3,3,3] row_mask:0xf bank_mask:0xf")
        A(f"v_add_f32 {s}, {s}, {s2}")
        A.rb(s, s)
        A(f"v_mul_f32 {s}, {F(192 ** -0.5)}, {s}")
        A.rb(s, s)
        A(f"v_max_f32 {vMAX}, {vMAX}, {s}")
        A(f"ds_write_b32 {vSC}, {s} offset:{n*32}")
        if n >= tab_start:
            if ncalls[0] < 24:
                if not notab: A(f"s_call_b64 s[{sRET}:{sRET+1}], L_tab")
                ncalls[0] += 1
            elif not published[0]:
                published[0] = True
                tab_publish()
    assert published[0]
    st()
    A.wave_red("max", vMAX, sM)
    A(f"s_lshl_b32 {sT0}, {sWAVE}, 11")
    A(f"s_add_u32 {sT0}, {sT0}, {L_SC}")
    A(f"v_lshl_add_u32 {vT[0]}, {vLANE}, 5, {sT0}")
    A("s_waitcnt lgkmcnt(0)")
    A(f"ds_read_b128 v[{B}:{B+3}], {vT[0]}")
    A(f"ds_read_b128 v[{B+4}:{B+7}], {vT[0]} offset:16")
    A("s_waitcnt lgkmcnt(0)")
    for r in range(8):
        A(f"v_subrev_f32 v{B+r}, {sM}, v{B+r}")
    for r in range(8):
        A(f"v_mul_f32 v{B+r}, {F(LOG2E)}, v{B+r}")
    for r in range(8):
        A(f"v_exp_f32 v{B+r}, v{B+r}")
    A("s_nop 0")
    A(f"v_add_f32 {vT[1]}, v{B}, v{B+1}")
    for r in range(2, 8):
        A(f"v_add_f32 {vT[1]}, {vT[1]}, v{B+r}")
    for r in range(8):
        A(f"v_cvt_pk_bf16_f32 v{B+r}, v{B+r}, v{B+r}")
    A(f"ds_write_b128 {vT[0]}, v[{B}:{B+3}]")
    A(f"ds_write_b128 {vT[0]}, v[{B+4}:{B+7}] offset:16")
    A.wave_red("add", vT[1], sL)
    A(f"v_mov_b32 v{ML}, {sM}")
    A(f"v_mov_b32 v{ML+1}, {sL}")
    A(f"v_mov_b32 v{ML+2}, {sTAG}")
    A(f"v_mov_b32 v{ML+3}, {sTAG}")
    A(f"s_lshl_b32 {sT0}, {sBH}, 7")
    A(f"s_add_u32 {sT0}, {sT0}, {WS_ML}")
    A(f"v_lshl_add_u32 {vZ}, {vLANE}, 4, {sT0}")
    A(f"s_mov_b32 {sT0}, {WS_ZF}")
    A(f"v_writelane_b32 {vZ}, {sT0}, 8")
    A(f"s_lshl_b32 {sT1}, {sWAVE}, 4")
    A(f"v_mov_b32 {vT[0]}, {sT1}")
    A(f"v_mov_b32 {vT[1]}, 1")
    A.setexec(1)
    A(f"ds_write_b128 {vT[0]}, v[{ML}:{ML+3}] offset:{L_TP + 64}")
    A("s_waitcnt lgkmcnt(0)")
    A(f"ds_add_rtn_u32 {vT[1]}, {vT[4]}, {vT[1]} offset:{L_TP + 128}")
    A("s_waitcnt lgkmcnt(0)")
    A(f"v_readfirstlane_b32 {sT0}, {vT[1]}")
    A.setexec(0xff)
    A(f"s_cmp_lg_u32 {sT0}, 3")
    A("s_cbranch_scc1 L_nopub")
    A(f"v_lshlrev_b32 {vT[0]}, 3, {vLANE}")
    A(f"v_lshlrev_b32 {vT[1]}, 4, {vLANE}")
    A(f"ds_read_b64 v[{ML}:{ML+1}], {vT[0]} offset:{L_TP}")
    A(f"ds_read_b128 v[{TW}:{TW+3}], {vT[1]} offset:{L_TP + 64}")
    A(f"s_lshl_b32 {sT0}, s2, 7")
    A(f"s_add_u32 {sT0}, {sT0}, {WS_TAB}")
    A(f"s_lshl_b32 {sT1}, {sHALF}, 6")
    A("s_waitcnt lgkmcnt(0)")
    if not nopub:
        A(f"buffer_store_dwordx4 v[{ML}:{ML+3}], {vT[1]}, s[{sWS}:{sWS+3}], {sT0} offen {psf}")
        A.setexec(0xf)
        A(f"buffer_store_dwordx4 v[{TW}:{TW+3}], {vZ}, s[{sWS}:{sWS+3}], {sT1} offen {psf}")
    A.label("L_nopub")
    A.setexec(ALL)
    vq.CAP = capv
    PP = [QB + n for n in range(8)]
    A("s_waitcnt lgkmcnt(0)")
    for n in range(4):
        A(f"ds_read_b32 v{PP[n]}, {vSC} offset:{n*32}")
    def fcalc():
        vq.wait("ml")
        A(f"s_mov_b32 {sSPIN}, {SPIN}")
        A.label("L_mlchk")
        A(f"v_cmp_ne_u32 vcc, {sTAG}, v{ML+2}")
        A("s_nop 1")
        A("s_and_b32 vcc_lo, vcc_lo, 0x1ff")
        A("s_cbranch_scc0 L_mlok")
        A(f"s_sub_u32 {sSPIN}, {sSPIN}, 1")
        A(f"s_cmp_eq_u32 {sSPIN}, 0")
        A("s_cbranch_scc1 L_mlok")
        A("s_sleep 8")
        A.setexec(0x1ff)
        A(f"buffer_load_dwordx4 v[{ML}:{ML+3}], {vZ}, s[{sWS}:{sWS+3}], 0 offen {plf}")
        A.setexec(ALL)
        A("s_waitcnt vmcnt(0)")
        A("s_branch L_mlchk")
        A.label("L_mlok")
        mm, e = vT[0], vT[1]
        A(f"v_mov_b32 {mm}, v{ML}")
        for stp in Asm.DPP_STEPS[:3]:
            A("s_nop 1")
            A(f"v_max_f32_dpp {mm}, {mm}, {mm} {stp}")
        A(f"v_sub_f32 {e}, v{ML}, {mm}")
        A(f"v_sub_f32 {mm}, {sM}, {mm}")
        A(f"v_mul_f32 {e}, {F(LOG2E)}, {e}")
        A(f"v_mul_f32 {mm}, {F(LOG2E)}, {mm}")
        A(f"v_exp_f32 {e}, {e}")
        A(f"v_exp_f32 {mm}, {mm}")
        A(f"v_mul_f32 {e}, {e}, v{ML+1}")
        for stp in Asm.DPP_STEPS[:3]:
            A("s_nop 1")
            A(f"v_add_f32_dpp {e}, {e}, {e} {stp}")
        A(f"v_rcp_f32 {e}, {e}")
        A("s_nop 0")
        A(f"v_mul_f32 {e}, {e}, {mm}")
        A("s_nop 0")
        A(f"v_readfirstlane_b32 {sF}, {e}")
        A(f"s_mov_b32 s{sFP}, {sF}")
        A(f"s_mov_b32 s{sFP+1}, {sF}")
        for k, m in enumerate((M_LO, M_T1, M_HI)):
            A(f"s_mov_b32 s{sMK+2*k}, 0x{m & 0xffffffff:08x}")
            A(f"s_mov_b32 s{sMK+2*k+1}, 0x{m >> 32:08x}")
        A(f"v_lshrrev_b32 {vT[0]}, 4, {vLANE}")
        A(f"s_lshr_b32 {sT0}, {sWAVE}, 1")
        A(f"s_mul_i32 {sT0}, {sT0}, 24")
        A(f"s_and_b32 {sT1}, {sWAVE}, 1")
        A(f"s_lshl_b32 {sT1}, {sT1}, 2")
        A(f"s_add_u32 {sT0}, {sT0}, {sT1}")
        A(f"v_add_lshl_u32 {vT[0]}, {vT[0]}, {sT0}, 4")
        A(f"v_and_b32 {vT[1]}, 15, {vLANE}")
        A(f"v_min_u32 {vT[1]}, 11, {vT[1]}")
        A(f"v_lshrrev_b32 {vT[2]}, 2, {vT[1]}")
        A(f"v_lshl_add_u32 {vT[0]}, {vT[2]}, 7, {vT[0]}")
        A(f"v_and_b32 {vT[1]}, 3, {vT[1]}")
        A(f"v_lshl_add_u32 {vQ0}, {vT[1]}, 2, {vT[0]}")
        A(f"s_lshl_b32 {sTK}, {sB}, 7")
        A(f"s_add_u32 {sTK}, {sTK}, {WS_CNT}")
        A(f"v_mov_b32 {vZ}, 1")
        A(f"v_lshrrev_b32 {vT[0]}, 4, v0")
        A(f"v_mul_u32_u24 {vT[0]}, 15, {vT[0]}")
        A(f"v_and_b32 {vT[1]}, 15, v0")
        A(f"v_add_u32 {vT[0]}, {vT[0]}, {vT[1]}")
        A(f"v_cmp_eq_u32 vcc, 15, {vT[1]}")
        A(f"v_mov_b32 {vCNT}, 1.0")
        A(f"v_mov_b32 {vMK[0]}, -1")
        A(f"v_cndmask_b32 {vCNT}, 0, {vCNT}, vcc")
        A(f"v_cndmask_b32 {vMK[0]}, {vMK[0]}, 0, vcc")
        A(f"v_cmp_gt_u32 vcc, 160, {vT[0]}")
        for k in range(3):
            col, t = vT[2], vT[3]
            A(f"v_add_u32 {col}, {240*k}, {vT[0]}")
            A(f"v_min_u32 {col}, 639, {col}")
            A(f"v_and_b32 {vYA[k]}, 0x3e0, {col}")
            A(f"v_and_b32 {t}, 7, {col}")
            A(f"v_lshl_add_u32 {vYA[k]}, {t}, 2, {vYA[k]}")
            A(f"v_bfe_u32 {t}, {col}, 3, 2")
            A(f"v_add_lshl_u32 {vYA[k]}, {vYA[k]}, {t}, 2")
        A(f"v_cndmask_b32 {vMK[1]}, 0, {vMK[0]}, vcc")
        A(f"s_mul_i32 {sWQOFF}, {sB}, 3072")
    for n in range(NT):
        slot = slot_of[NT + n]
        bb = B + 4 * (n & 1)
        if n + 4 < NT:
            A(f"ds_read_b32 v{PP[(n+4)%8]}, {vSC} offset:{(n+4)*32}")
            A("s_waitcnt lgkmcnt(4)")
        else:
            A(f"s_waitcnt lgkmcnt({NT-1-n})")
        for r in range(4):
            A(f"v_and_b32 v{bb+r}, v{PP[n%8]}, {vM[r]}")
        vq.wait(("v", n))
        A("s_nop 1")
        for tt in range(3):
            A(f"v_mfma_f32_16x16x32_bf16 v[{O+4*tt}:{O+4*tt+3}], {treg(slot, tt)}, v[{bb}:{bb+3}], v[{O+4*tt}:{O+4*tt+3}]")
        if lift and n == NT - T - lift: vq.CAP = liftcap
        refill(slot)
        wo_step(NT + n)
        if n == NT - T - 1:
            assert wo_left[0] == wo_late
            vq.CAP = cape
            for k in late: ld_wo(k)
            wo_left[0] = 0
        if n == ml_at and not (nopub or nomlx):
            A.setexec(0x1ff)
            vq.op(f"buffer_load_dwordx4 v[{ML}:{ML+3}], {vZ}, s[{sWS}:{sWS+3}], 0 offen {plf}", "ml")
            A.setexec(ALL)
        if n == fc_at:
            fcalc()
    assert wo_left[0] == 0
    st()
    if noend: A("s_endpgm")
    A("s_nop 5")
    for t, off in enumerate((L_P, L_P + 512, L_P + 1024)):
        A(f"s_mov_b64 exec, s[{sMK+2*t}:{sMK+2*t+1}]")
        A(f"v_pk_mul_f32 v[{O+4*t}:{O+4*t+1}], v[{O+4*t}:{O+4*t+1}], s[{sFP}:{sFP+1}]")
        A(f"v_pk_mul_f32 v[{O+4*t+2}:{O+4*t+3}], v[{O+4*t+2}:{O+4*t+3}], s[{sFP}:{sFP+1}]")
        A(f"ds_write_b128 {vA0}, v[{O+4*t}:{O+4*t+3}] offset:{off}")
    A.setexec(1)
    A(f"s_cmp_lg_u32 {sWAVE}, 3")
    A("s_cbranch_scc1 L_notick")
    A(f"buffer_atomic_add {vZ}, {vT[4]}, s[{sWS}:{sWS+3}], {sTK} offen sc0")
    A.label("L_notick")
    A.setexec(ALL)
    A("s_waitcnt lgkmcnt(0)")
    A("s_barrier")
    st()
    assert L_P % 256 == 0
    for k in range(4):
        A(f"ds_read2st64_b32 v[{B+2*k}:{B+2*k+1}], {vQ0} offset0:{L_P//256 + 6*k} offset1:{L_P//256 + 6*k + 3}")
    A("s_waitcnt lgkmcnt(2)")
    A(f"v_pk_add_f32 v[{B}:{B+1}], v[{B}:{B+1}], v[{B+2}:{B+3}]")
    A("s_waitcnt lgkmcnt(0)")
    A(f"v_pk_add_f32 v[{B+4}:{B+5}], v[{B+4}:{B+5}], v[{B+6}:{B+7}]")
    A(f"v_pk_add_f32 v[{B}:{B+1}], v[{B}:{B+1}], v[{B+4}:{B+5}]")
    A(f"v_add_f32 v{B}, v{B}, v{B+1}")
    A(f"v_cvt_pk_bf16_f32 v{B+2}, v{B}, v{B}")
    A(f"v_and_b32 v{B+1}, 0xffff0000, v{B+2}")
    A(f"v_sub_f32 v{B+1}, v{B}, v{B+1}")
    A(f"v_cvt_pk_bf16_f32 v{B+3}, v{B+1}, v{B+1}")
    BO = R0
    YD = R0 + 48
    def omfma(rg, c):
        n = rg * 5 + c
        cc = "0" if rg == 0 else f"v[{YD+4*c}:{YD+4*c+3}]"
        vq.wait(("wo", n))
        A(f"v_mfma_f32_16x16x32_bf16 v[{YD+4*c}:{YD+4*c+3}], a[{4*n}:{4*n+3}], v[{BO+4*rg}:{BO+4*rg+3}], {cc}")
    hi = lambda rg: f"v_mov_b32_dpp v{O+rg}, v{B+2} row_newbcast:{rg} row_mask:0xf bank_mask:0x3"
    lo = lambda rg: f"v_mov_b32_dpp v{O+rg}, v{B+3} row_newbcast:{rg} row_mask:0xf bank_mask:0xc"
    fill = [hi(0), hi(1), hi(2)]
    for rg in range(12):
        fill.append(lo(rg))
        for r in range(4):
            fill.append(f"v_and_b32 v{BO+4*rg+r}, v{O+rg}, {vM[r]}")
        if rg + 3 < 12: fill.append(hi(rg + 3))
    def emit(k):
        for _ in range(k):
            if fill: A(fill.pop(0))
    emit(10)
    NR2 = 6
    for rg in range(NR2):
        for c in range(5):
            omfma(rg, c)
            emit(2)
    emit(99)
    A("s_nop 1")
    def ypieces(c):
        p = [f"v_add_f32_dpp v{YD+4*c+r}, v{YD+4*c+r}, v{YD+4*c+r} row_ror:8 row_mask:0xf bank_mask:0xf" for r in range(4)]
        return p
    def ywrite(c):
        A(f"s_mov_b64 exec, s[{sMK}:{sMK+1}]")
        A(f"ds_write_b128 {vAY}, v[{YD+4*c}:{YD+4*c+3}] offset:{L_YP + c*512}")
        A.setexec(ALL)
    for c in range(5):
        p = ypieces(c - 2) if c >= 2 else []
        for k, rg in enumerate(range(NR2, 12)):
            omfma(rg, c)
            if p and k in (2, 3):
                A(p.pop(0)); A(p.pop(0))
            if c >= 2 and k == 4:
                ywrite(c - 2)
    for x in ypieces(3): A(x)
    ywrite(3)
    A("s_nop 0")
    for x in ypieces(4): A(x)
    ywrite(4)
    A("s_waitcnt lgkmcnt(0)")
    A("s_barrier")
    st()
    for k in range(2):
        for w in range(4):
            A(f"ds_read_b32 v{O+4*k+w}, {vYA[k]} offset:{L_YP + 2560*w}")
    A(f"s_cmp_eq_u32 {sWAVE}, 3")
    A("s_cbranch_scc1 L_two")
    for w in range(4):
        A(f"ds_read_b32 v{O+8+w}, {vYA[2]} offset:{L_YP + 2560*w}")
    A("s_waitcnt lgkmcnt(0)")
    A(f"v_add_f32 v{O+8}, v{O+8}, v{O+9}")
    A(f"v_add_f32 v{O+10}, v{O+10}, v{O+11}")
    A(f"v_add_f32 v{O+8}, v{O+8}, v{O+10}")
    A(f"v_and_or_b32 v{O+8}, v{O+8}, {vMK[1]}, {vCNT}")
    A(f"buffer_atomic_add_f32 v{O+8}, {vA1}, s[{sWS}:{sWS+3}], {sWQOFF} offen offset:{WS_ACC + 2048}")
    A.label("L_two")
    A("s_waitcnt lgkmcnt(0)")
    for k in range(2):
        A(f"v_add_f32 v{O+4*k}, v{O+4*k}, v{O+4*k+1}")
        A(f"v_add_f32 v{O+4*k+2}, v{O+4*k+2}, v{O+4*k+3}")
    for k in range(2):
        A(f"v_add_f32 v{O+4*k}, v{O+4*k}, v{O+4*k+2}")
    for k in range(2):
        A(f"v_and_or_b32 v{O+4*k}, v{O+4*k}, {vMK[0]}, {vCNT}")
        A(f"buffer_atomic_add_f32 v{O+4*k}, {vA1}, s[{sWS}:{sWS+3}], {sWQOFF} offen offset:{WS_ACC + 1024*k}")
    st()
    A(f"s_cmp_lg_u32 {sWAVE}, 3")
    A("s_cbranch_scc1 L_done")
    A("s_waitcnt vmcnt(2)")
    A(f"v_readfirstlane_b32 {sT0}, {vZ}")
    A(f"s_cmp_lg_u32 {sT0}, 0")
    A("s_cbranch_scc1 L_done")
    H = R0
    HN = R0 + 12
    G = R0 + 24
    X = R0 + 36
    XO = R0 + 48
    T1 = R0 + 60
    T2 = R0 + 66
    TB = R0 + 72
    h = [f"v{H+n}" for n in range(11)]
    hn = [f"v{HN+n}" for n in range(11)]
    A("s_load_dwordx2 s[8:9], s[0:1], 0")
    A(f"s_mul_i32 {sT0}, {sB}, 1280")
    A.srd_off(sOUT, 20, sT0, 1280)
    A(f"v_lshrrev_b32 {vT[0]}, 4, {vLANE}")
    A(f"v_mul_u32_u24 {vT[0]}, 15, {vT[0]}")
    A(f"v_and_b32 {vT[2]}, 15, {vLANE}")
    A(f"v_add_lshl_u32 {vT[0]}, {vT[0]}, {vT[2]}, 1")
    A(f"v_cmp_eq_u32 vcc, 15, {vT[2]}")
    A(f"v_mov_b32 {vT[2]}, 0x10000")
    A(f"v_mov_b32 {vMK[1]}, 0")
    A(f"v_cndmask_b32 {vT[0]}, {vT[0]}, {vT[2]}, vcc")
    A.setexec(M_D10)
    A(f"v_mov_b32 {vMK[1]}, -1")
    A.setexec(ALL)
    A(f"v_mov_b32 {vQ0}, {vMK[1]}")
    for r in list(range(G, G + 12)) + list(range(X, X + 12)) + list(range(T1, T1 + 12)) + [H + 11]:
        A(f"v_mov_b32 v{r}, 0")
    A("s_waitcnt lgkmcnt(0)")
    A.srd_off(sX, 8, sT0, 1280)
    for n in range(11):
        A(f"buffer_load_short_d16_hi v{X+n}, {vT[0]}, s[{sX}:{sX+3}], 0 offen offset:{n*120}")
    A(f"v_lshlrev_b32 {vT[1]}, 4, {vLANE}")
    A(f"v_lshlrev_b32 {vT[2]}, 3, {vLANE}")
    A(f"s_mov_b32 {sSPIN}, {SPIN}")
    A.label("L_tabld")
    for k in range(32):
        if k % 4 == 0: A(f"s_mov_b32 {sT0}, {WS_TAB + k*1024}")
        A(f"buffer_load_dwordx4 a[{4*k}:{4*k+3}], {vT[1]}, s[{sWS}:{sWS+3}], {sT0} offen offset:{(k%4)*1024} {plf}")
    A(f"v_mov_b32 {vT[3]}, 0")
    A(f"v_add_u32 {vZ}, 0x10000, {vT[2]}")
    for k in range(32):
        if k % 8 == 0: A(f"s_waitcnt vmcnt({24 - k}) lgkmcnt(0)")
        A(f"v_accvgpr_read_b32 v{TB + (k & 1)}, a{4*k+2}")
        A(f"ds_write_b64 {vT[2] if k < 16 else vZ}, a[{4*k}:{4*k+1}] offset:{L_SC + (k%16)*512}")
        A(f"v_xor_b32 v{TB + (k & 1)}, {sTAG}, v{TB + (k & 1)}")
        if k & 1: A(f"v_or3_b32 {vT[3]}, v{TB}, v{TB+1}, {vT[3]}")
    A(f"v_cmp_ne_u32 vcc, 0, {vT[3]}")
    A(f"s_sub_u32 {sSPIN}, {sSPIN}, 1")
    A("s_waitcnt lgkmcnt(0)")
    A(f"s_cmp_eq_u32 {sSPIN}, 0")
    A("s_cbranch_scc1 L_tabok")
    A("s_cbranch_vccz L_tabok")
    A("s_sleep 8")
    A("s_branch L_tabld")
    A.label("L_tabok")
    A(f"v_mov_b32 {vZ}, {sTAG}")
    A(f"s_mov_b32 {sT1}, {WS_EP}")
    A.setexec(1)
    A(f"buffer_store_dword {vZ}, {vT[4]}, s[{sWS}:{sWS+3}], {sT1} offen sc1")
    A.setexec(ALL)
    A(f"v_lshlrev_b32 {vT[1]}, 2, {vLANE}")
    A(f"s_mov_b32 {sSPIN}, {SPIN}")
    A(f"s_mov_b32 s4, 0x80008000")
    st()
    A.label("L_poll")
    for n in range(11):
        A(f"buffer_load_dword {h[n]}, {vT[1]}, s[{sWS}:{sWS+3}], {sWQOFF} offen offset:{WS_ACC + n*256} sc1")
    A(f"s_sub_u32 {sSPIN}, {sSPIN}, 1")
    A("s_waitcnt vmcnt(0) lgkmcnt(0)")
    A(f"v_min3_f32 {vT[2]}, {h[0]}, {h[1]}, {h[2]}")
    A(f"v_min3_f32 {vT[3]}, {h[3]}, {h[4]}, {h[5]}")
    A(f"v_min3_f32 {vT[2]}, {h[6]}, {h[7]}, {vT[2]}")
    A(f"v_min3_f32 {vT[3]}, {h[8]}, {h[9]}, {vT[3]}")
    A(f"v_min3_f32 {vT[2]}, {h[10]}, {vT[2]}, {vT[3]}")
    A(f"s_cmp_eq_u32 {sSPIN}, 0")
    A("s_cbranch_scc1 L_pollok")
    A(f"v_cmp_neq_f32 vcc, {F(64.0)}, {vT[2]}")
    for n in range(2):
        A.rb(h[n], h[n])
    A("s_or_b32 vcc_lo, vcc_lo, vcc_hi")
    A("s_and_b32 vcc_lo, vcc_lo, s4")
    A("s_cbranch_scc1 L_poll")
    A.label("L_pollok")
    st()
    A.setexec(M_D)
    for n in range(2, 11):
        A.rb(h[n], h[n])
    for n in range(6):
        A(f"v_pk_add_f32 v[{H+2*n}:{H+2*n+1}], v[{H+2*n}:{H+2*n+1}], v[{X+2*n}:{X+2*n+1}]")
    for n in range(11):
        A.rb(h[n], h[n])
    layernorm_seg(A, H, HN, T1, 4, True, vQ0, M_D)
    layernorm_seg(A, HN, HN, T2, 4, False, vQ0, M_D)
    for n in range(11):
        A(f"v_lshrrev_b32 v{X+n}, 15, {hn[n]}")
        A(f"ds_read_u16_d16_hi v{G+n}, v{X+n} offset:{L_SC - 25600}")
    A(f"v_bfi_b32 {hn[10]}, {vQ0}, {hn[10]}, 1.0")
    A(f"v_min3_f32 {vT[2]}, abs({hn[0]}), abs({hn[1]}), abs({hn[2]})")
    A(f"v_max3_f32 {vT[3]}, abs({hn[0]}), abs({hn[1]}), abs({hn[2]})")
    for n in range(3, 11, 2):
        A(f"v_min3_f32 {vT[2]}, abs({hn[n]}), abs({hn[n+1]}), {vT[2]}")
        A(f"v_max3_f32 {vT[3]}, abs({hn[n]}), abs({hn[n+1]}), {vT[3]}")
    A(f"v_cmp_gt_f32 vcc, {F(2.0 ** -27)}, {vT[2]}")
    A(f"v_mov_b32 {vT[2]}, {F(32.0)}")
    A(f"v_cmp_le_f32 s[4:5], {vT[2]}, {vT[3]}")
    A("s_waitcnt lgkmcnt(0)")
    A("s_or_b64 vcc, vcc, s[4:5]")
    A("s_cbranch_scc1 L_direct")
    A.label("L_lookup")
    if padto:
        A.label("L_pad")
        A("s_memrealtime s[78:79]")
        A("s_waitcnt lgkmcnt(0)")
        A("s_sub_u32 s78, s78, s76")
        A(f"s_cmp_lt_u32 s78, {padto}")
        A("s_cbranch_scc1 L_pad")
    for n in range(6):
        A(f"v_pk_add_f32 v[{G+2*n}:{G+2*n+1}], v[{G+2*n}:{G+2*n+1}], v[{H+2*n}:{H+2*n+1}]")
    for n in range(6):
        A(f"v_cvt_pk_bf16_f32 v{G+2*n}, v{G+2*n}, v{G+2*n+1}")
    if ost is None:
        for n in range(11):
            op = "buffer_store_short" if n % 2 == 0 else "buffer_store_short_d16_hi"
            A(f"{op} v{G + (n & ~1)}, {vT[0]}, s[{sOUT}:{sOUT+3}], 0 offen offset:{n*120} {osf}")
        A.setexec(ALL)
    else:
        for n in range(11):
            op = "ds_write_b16" if n % 2 == 0 else "ds_write_b16_d16_hi"
            A(f"{op} {vT[0]}, v{G + (n & ~1)} offset:{L_XN + n*120}")
        A.setexec(ALL)
        A(f"v_lshlrev_b32 {vT[1]}, 4, {vLANE}")
        A("s_waitcnt lgkmcnt(0)")
        A(f"ds_read_b128 v[{G}:{G+3}], {vT[1]} offset:{L_XN}")
        A(f"ds_read_b128 v[{G+4}:{G+7}], {vT[1]} offset:{L_XN + 1024}")
        A("s_waitcnt lgkmcnt(1)")
        A(f"buffer_store_dwordx4 v[{G}:{G+3}], {vT[1]}, s[{sOUT}:{sOUT+3}], 0 offen {osf}")
        A("s_waitcnt lgkmcnt(0)")
        A(f"buffer_store_dwordx4 v[{G+4}:{G+7}], {vT[1]}, s[{sOUT}:{sOUT+3}], 0 offen offset:1024 {osf}")
    if stamps:
        A("s_waitcnt vmcnt(0)")
        st()
        st.flush(sWS, WS_STAMP + 65536, sWAVE, vT[0], vT[1])
        if dbg:
            A("s_load_dwordx2 s[4:5], s[0:1], 88")
            A("s_waitcnt lgkmcnt(0)")
            A.srd(16, "s4", "s5", 256)
            A(f"s_lshl_b32 s6, {sB}, 4")
            A(f"v_mov_b32 {vT[1]}, 0")
            A.setexec(1)
            for k, n in enumerate((3, 4, 5, 11)):
                A(f"s_sub_u32 s7, s{76+2*n}, s76")
                A(f"v_mov_b32 {vT[0]}, s7")
                A(f"buffer_store_dword {vT[0]}, {vT[1]}, s[16:19], s6 offen offset:{4*k}")
            A.setexec(ALL)
    A.label("L_done")
    if stamps:
        st.flush(sWS, WS_STAMP, sWAVE, vT[0], vT[1])
    A.label("L_end")
    A("s_endpgm")
    A.label("L_direct")
    A.setexec(ALL)
    A(f"v_lshrrev_b32 {vT[1]}, 3, {vLANE}")
    A(f"v_mul_u32_u24 {vT[1]}, 2320, {vT[1]}")
    A(f"v_and_b32 {vT[2]}, 7, {vLANE}")
    A(f"v_mul_u32_u24 {vT[2]}, 288, {vT[2]}")
    A(f"v_add_u32 {vT[1]}, {vT[1]}, {vT[2]}")
    A(f"v_add_u32 {vT[1]}, {L_W}, {vT[1]}")
    for n in range(11):
        A(f"v_bfe_u32 {vT[2]}, {hn[n]}, 23, 8")
        A(f"v_subrev_u32 {vT[2]}, 100, {vT[2]}")
        A.setexec(M_D)
        A(f"v_cmp_le_u32 s[4:5], 32, {vT[2]}")
        A.setexec(ALL)
        A.label(f"L_dir{n}")
        A("s_nop 1")
        A("s_cmp_eq_u64 s[4:5], 0")
        A(f"s_cbranch_scc1 L_dirx{n}")
        A(f"s_ff1_i32_b64 {sT0}, s[4:5]")
        A(f"v_readlane_b32 {sT1}, {hn[n]}, {sT0}")
        A(f"s_call_b64 s[6:7], L_eval")
        A(f"v_cmp_eq_u32 vcc, {sT1}, {hn[n]}")
        A("s_nop 1")
        A(f"v_cndmask_b32 v{G+n}, v{G+n}, v{TACC}, vcc")
        A("s_andn2_b64 s[4:5], s[4:5], vcc")
        A(f"s_branch L_dir{n}")
        A.label(f"L_dirx{n}")
    A.setexec(M_D)
    A("s_branch L_lookup")
    A.label("L_eval")
    A("s_nop 1")
    A(f"v_mov_b32 v{TX}, {sT1}")
    A(f"v_mov_b32 v{TX+1}, {sT1}")
    A(f"v_mov_b32 v{TACC}, 0")
    A(f"v_mov_b32 v{TACC+1}, 0")
    A(f"v_mov_b32 {vTA}, {vT[1]}")
    A("s_waitcnt lgkmcnt(0)")
    tab_reads()
    for _ in range(3):
        A(f"s_call_b64 s[{sRET}:{sRET+1}], L_tab")
    A(f"v_add_f32 v{TACC}, v{TACC}, v{TACC+1}")
    A.wave_red("add", f"v{TACC}", sT0)
    A(f"v_mov_b32 v{TACC}, {sT0}")
    tab_finish(f"v{TACC}")
    A(f"v_and_b32 v{TACC}, 0xffff0000, v{TACC}")
    A("s_setpc_b64 s[6:7]")
    A.label("L_tab")
    A("s_waitcnt lgkmcnt(0)")
    def P(r): return f"v[{r}:{r+1}]"
    W1, B1, W2 = TW, TW + 8, TW + 16
    for p in range(4): A(f"v_pk_mul_f32 {P(W1+2*p)}, {P(TX)}, {P(W1+2*p)}")
    for k in range(8): A.rb(f"v{W1+k}", f"v{W1+k}")
    for p in range(4): A(f"v_pk_add_f32 {P(W1+2*p)}, {P(W1+2*p)}, {P(B1+2*p)}")
    for k in range(8): A.rb(f"v{W1+k}", f"v{W1+k}")
    for p in range(4): A(f"v_pk_mul_f32 {P(B1+2*p)}, {P(W1+2*p)}, {P(W1+2*p)}")
    for p in range(4): A(f"v_pk_fma_f32 {P(B1+2*p)}, {P(B1+2*p)}, {P(TK1)}, s[{sK0}:{sK0+1}]")
    for p in range(4): A(f"v_pk_mul_f32 {P(B1+2*p)}, {P(B1+2*p)}, {P(W1+2*p)}")
    for k in range(8): A(f"v_exp_f32 v{B1+k}, v{B1+k}")
    for p in range(4): A(f"v_pk_add_f32 {P(B1+2*p)}, {P(B1+2*p)}, s[{sONE}:{sONE+1}]")
    for k in range(8): A(f"v_rcp_f32 v{B1+k}, v{B1+k}")
    for p in range(4): A(f"v_pk_mul_f32 {P(W1+2*p)}, {P(W1+2*p)}, {P(B1+2*p)}")
    for k in range(8): A.rb(f"v{W1+k}", f"v{W1+k}")
    for p in range(4): A(f"v_pk_fma_f32 {P(TACC)}, {P(W1+2*p)}, {P(W2+2*p)}, {P(TACC)}")
    tab_reads()
    A(f"s_setpc_b64 s[{sRET}:{sRET+1}]")
    acc = (NV + 3) // 4 * 4
    return A.text() + kd(KN, acc + 240, 102, acc)

if __name__ == "__main__":
    kw = eval("dict(%s)" % (sys.argv[2] if len(sys.argv) > 2 else ""))
    open(sys.argv[1], "w").write(gen(**kw))
```

```python
import sys
from asmlib import *

KN = "sequential_preLN__mha_block_cached__mixer_token_mlp__decode_kernel"
HDR = open("sequential_preLN__mha_block_cached__mixer_token_mlp__decode.s.ref").read().split("; Override launch")[0]
LOG2E = 1.4426950408889634
WS_ACC, WS_CNT, WS_ZEND = 0, 12288, 16384
WS_ML = 49152
WS_EP = 45056
WS_ZF = 45312
WS_TAB = 65536
WS_STAMP = 524288
WS_QP = 1 << 20
WS_SIZE = 2 << 20
L_XN = 0
L_P = 10240
L_QB = L_P + 6144
L_PH = L_QB + 512
L_W = L_PH + 1536
L_TP = L_W + 8 * 2320
L_YP = L_TP + 256
L_SC = L_YP + 10240
L_QS = L_SC + 8192
L_WQ = L_QS + 4096
L_END = L_SC + 65536 + 8192
M_D, M_D10 = 0x7FFF7FFF7FFF7FFF, 0x000003FF7FFF7FFF
M_LO, M_HI, M_T1 = 0x00FF00FF00FF00FF, 0xFF00FF00FF00FF00, 0xFF00FF0000FF00FF
ALL = (1 << 64) - 1
SPIN = 0x100000

class Stamps:
    def __init__(self, A, on, s0): self.A = A; self.on = on; self.s0 = s0; self.n = 0
    def __call__(self):
        if self.on:
            s = self.s0 + 2 * self.n
            self.A(f"s_memrealtime s[{s}:{s+1}]")
            self.n += 1
    def flush(self, srd, base, swave, v0, v1):
        if not self.on: return
        A = self.A
        A("s_waitcnt lgkmcnt(0)")
        A("s_lshl_b32 s6, s2, 2")
        A(f"s_add_u32 s6, s6, {swave}")
        A("s_lshl_b32 s6, s6, 6")
        A(f"s_add_u32 s6, s6, {base}")
        A(f"v_mov_b32 {v1}, 0")
        A.setexec(1)
        for n in range(self.n):
            A(f"v_mov_b32 {v0}, s{self.s0 + 2*n}")
            A(f"buffer_store_dword {v0}, {v1}, s[{srd}:{srd+3}], s6 offen offset:{4*n}")
        A("s_getreg_b32 s7, hwreg(HW_REG_XCC_ID)")
        A(f"v_mov_b32 {v0}, s7")
        A(f"buffer_store_dword {v0}, {v1}, s[{srd}:{srd+3}], s6 offen offset:60")
        A(f"v_mov_b32 {v0}, s51")
        A(f"buffer_store_dword {v0}, {v1}, s[{srd}:{srd+3}], s6 offen offset:56")
        A.setexec(ALL)

class VQ:
    CAP = 54
    CLASS = False
    def __init__(self, A): self.A = A; self.q = []; self.frac = 0.0
    def room(self, n):
        cap = int(self.CAP)
        self.frac += self.CAP - cap
        if self.frac >= 1.0 - 1e-9:
            self.frac -= 1.0; cap += 1
        if len(self.q) > cap - n:
            self.A(f"s_waitcnt vmcnt({cap - n})")
            self.q = self.q[len(self.q) - (cap - n):]
    def op(self, text, tag, nocap=False):
        if nocap:
            self.A(text); self.q.append(tag); return
        cap = int(self.CAP)
        self.frac += self.CAP - cap
        if self.frac >= 1.0 - 1e-9:
            self.frac -= 1.0; cap += 1
        if self.CLASS and cap < 40:
            idx = [i for i, t in enumerate(self.q) if not (isinstance(t, tuple) and t[0] == "wo")]
            if len(idx) >= cap:
                pos = idx[len(idx) - cap]
                self.A(f"s_waitcnt vmcnt({len(self.q) - 1 - pos})")
                self.q = self.q[pos + 1:]
        elif len(self.q) >= cap:
            self.A(f"s_waitcnt vmcnt({cap - 1})")
            self.q = self.q[-(cap - 1):]
        self.A(text)
        self.q.append(tag)
    def wait(self, tag):
        if tag not in self.q: return
        pos = len(self.q) - 1 - self.q[::-1].index(tag)
        self.A(f"s_waitcnt vmcnt({len(self.q) - 1 - pos})")
        self.q = self.q[pos + 1:]

def gen(T=12, ext=4, rot=13, wo_start=0, stamps=False, kf='nt', vf='nt', wf='nt', tab_start=20,
        n1=4, n1b=1, n1c=1, n2=3, capk=8, capv=6, caph=6, wo_rate=1.0, dbg=False, BL=0, pmul=1, tlb=0, st0=False, wo_late=0, cape=54, lift=4, liftcap=54, poll2=False, tabrot=False, rh=(56,48,48), burst=False, order=(0,1,2), eplate=False, wo2=0, cap0=54, nowo=False, notab=False, noend=False, wosame=False, wob=0, wobcap=True, ccap=False, hb=0, bb_=0, ml_at=28, fc_at=36, ost=None, osf='', wopre='nt', wof='', wopre2=None, noqx=False, nopub=False, wopair='sc1', wolite=0, padto=0, padfrom=0, fst=False, warm=0, wqline=True, pump=(10, 25), capq=None, nq=0, capg=None, ng=0, qsf='sc1 nt', qlf='sc1 nt', psf='sc1 nt', plf='sc1 nt', noqst=False, noqld=False, notabst=False, nomlx=False, notd=False):
    if wof is None: wof = wf
    VQ.CLASS = ccap
    if dbg: stamps = True
    A = Asm()
    A.raw(HDR.rstrip())
    A.raw(f"; @launch grid=(256,1,1) block=(256,1,1) lds={L_END}")
    A.raw('.amdgcn_target "amdgcn-amd-amdhsa--gfx950"')
    A.raw(".text")
    A.raw(f".globl {KN}")
    st = Stamps(A, stamps, 76)
    NT = 64
    STEP = 12288
    REGION = 786432
    sX, sK, sV, sWQ, sWO, sWS = 24, 28, 32, 36, 40, 44
    sOUT = 36
    sTAG, sBS, sQG, sRETRY = "s48", "s49", "s50", "s51"
    sWAVE, sB, sH, sHALF, sBH, sT0, sT1 = "s52", "s53", "s54", "s55", "s56", "s57", "s58"
    sKREL, sVREL, sWB, sOFF, sWQOFF, sWOOFF, sM, sL, sF, sSPIN = "s59", "s60", "s61", "s62", "s63", "s64", "s65", "s66", "s67", "s68"
    sB2, sTB, sJMP = "s69", "s3", "s101"
    sK0, sONE, sRET = 70, 72, 74
    sFP, sMK, sTK = 8, 10, "s16"
    vLANE, vKO, vVO, vQ0, vQ1, vQ2, vWO = "v1", "v2", "v3", "v4", "v5", "v6", "v7"
    vM = ["v8", "v9", "v10", "v11"]
    vA0, vA1, vAY, vSC, vXN, vMAX, vZ = "v12", "v13", "v14", "v15", "v16", "v17", "v18"
    vT = [f"v{i}" for i in range(19, 24)]
    QB = 24
    D = 36
    O = 40
    B = 52
    ML = 60
    TW = 64
    TX, TACC, TK1 = 88, 90, 92
    vTA = "v94"
    XS = 95
    vYA = [vQ1, vQ2, vXN]; vCNT = vMAX; vMK = [f"v{TX}", f"v{TX+1}"]
    R0 = 100
    NV = R0 + 12 * T
    AW = 204
    assert NV <= 256 and ext * 12 <= AW
    vq = VQ(A)

    A.raw(".p2align 8")
    A.raw(f".type {KN},@function")
    A.label(KN)
    A("s_cmp_ge_u32 s2, 256")
    A("s_cbranch_scc1 L_end")
    st()
    if padto: A("s_memrealtime s[76:77]")
    A("s_load_dwordx8 s[8:15], s[0:1], 0")
    A("s_load_dwordx2 s[16:17], s[0:1], 32")
    A("s_load_dwordx2 s[22:23], s[0:1], 96")
    A(f"v_lshrrev_b32 {vT[0]}, 6, v0")
    A(f"v_and_b32 {vLANE}, 63, v0")
    A(f"v_readfirstlane_b32 {sWAVE}, {vT[0]}")
    A(f"s_and_b32 {sH}, s2, 7")
    A(f"s_lshr_b32 {sT0}, s2, 3")
    A(f"s_lshl_b32 {sH}, {sH}, 2")
    A(f"s_and_b32 {sT1}, {sT0}, 3")
    A(f"s_add_u32 {sH}, {sH}, {sT1}")
    A(f"s_lshr_b32 {sBS}, {sT0}, 2")
    A(f"s_lshr_b32 {sB}, {sT0}, 3")
    A(f"s_and_b32 {sHALF}, {sBS}, 1")
    A(f"s_lshl_b32 {sBH}, {sB}, 5")
    A(f"s_add_u32 {sBH}, {sBH}, {sH}")
    q, i, t0, t1 = vT[0], vT[1], vT[2], vT[3]
    A(f"v_lshrrev_b32 {q}, 4, {vLANE}")
    A(f"v_and_b32 {i}, 15, {vLANE}")
    A(f"v_lshrrev_b32 {t0}, 2, {i}")
    A(f"v_mul_u32_u24 {vKO}, 768, {t0}")
    A(f"v_lshl_add_u32 {vKO}, {q}, 6, {vKO}")
    A(f"v_and_b32 {t0}, 3, {i}")
    A(f"v_lshl_add_u32 {vKO}, {t0}, 4, {vKO}")
    A(f"v_mul_u32_u24 {vVO}, 768, {q}")
    A(f"v_lshl_add_u32 {vVO}, {i}, 4, {vVO}")
    A(f"v_lshrrev_b32 {vQ0}, 3, {vLANE}")
    A(f"v_mul_u32_u24 {vQ0}, 12288, {vQ0}")
    A(f"v_and_b32 {vQ1}, 7, {vLANE}")
    A(f"v_lshl_add_u32 {vQ0}, {vQ1}, 4, {vQ0}")
    A(f"v_mul_u32_u24 {vWO}, 1280, {q}")
    A(f"v_lshl_add_u32 {vWO}, {i}, 4, {vWO}")
    for r in range(O, O + 12):
        A(f"v_mov_b32 v{r}, 0")
    A(f"v_lshlrev_b32 {t0}, 4, v0")
    A(f"v_lshlrev_b32 {t1}, 2, {vLANE}")
    A(f"s_lshl_b32 {sT1}, {sBH}, 1")
    A(f"s_add_u32 {sT1}, {sT1}, {sHALF}")
    if rh is None:
        A(f"s_mul_i32 {sKREL}, {sT1}, {rot}")
    else:
        A(f"s_mul_i32 {sKREL}, {sHALF}, {rh[0]}")
        A(f"s_mul_i32 {sT0}, {sH}, {rh[1]}")
        A(f"s_add_u32 {sKREL}, {sKREL}, {sT0}")
        A(f"s_mul_i32 {sT0}, {sB}, {rh[2]}")
        A(f"s_add_u32 {sKREL}, {sKREL}, {sT0}")
    A(f"s_and_b32 {sKREL}, {sKREL}, 63")
    A(f"s_mov_b32 {sVREL}, {sKREL}")
    if BL:
        A(f"s_mul_i32 {sJMP}, {sT1}, {pmul}")
        A(f"s_lshr_b32 {sJMP}, {sJMP}, 2")
        A(f"s_lshl_b32 {sJMP}, {sJMP}, 1")
        A(f"s_mul_i32 {sJMP}, {sJMP}, {BL}")
        A(f"s_add_u32 {sJMP}, {sJMP}, 1")
    A(f"s_mul_i32 {sT1}, {sT1}, {REGION}")
    A(f"s_mul_i32 {sWB}, {sWAVE}, 3072")
    A(f"s_mul_i32 {sOFF}, {sH}, 384")
    A(f"s_mul_i32 {sWQOFF}, {sBS}, 240")
    A(f"s_lshl_b32 {sT0}, {sWAVE}, 3")
    A(f"s_add_u32 {sM}, {sWQOFF}, {sT0}")
    A(f"s_mul_i32 {sT0}, {sM}, 1639")
    A(f"s_lshr_b32 {sT0}, {sT0}, 20")
    A(f"s_mul_i32 {sL}, {sT0}, 640")
    A(f"s_sub_u32 {sM}, {sM}, {sL}")
    A(f"s_mul_i32 {sM}, {sM}, 12288")
    A(f"s_lshl_b32 {sT0}, {sT0}, 7")
    A(f"s_add_u32 {sM}, {sM}, {sT0}")
    A(f"s_lshr_b32 {sT0}, {sWAVE}, 1")
    A(f"s_mul_i32 {sWOOFF}, {sT0}, {96*1280}")
    A(f"s_and_b32 {sT0}, {sWAVE}, 1")
    A(f"s_mul_i32 {sT0}, {sT0}, {4*1280}")
    A(f"s_add_u32 {sWOOFF}, {sWOOFF}, {sT0}")
    A(f"s_mul_i32 {sT0}, {sWAVE}, 1280")
    A(f"s_mov_b32 {sRETRY}, 0")
    A("s_waitcnt lgkmcnt(0)")
    if st0: st()
    if tabrot:
        A("s_load_dwordx2 s[4:5], s[0:1], 40")
        A("s_lshl_b32 s6, s2, 2")
        A("s_waitcnt lgkmcnt(0)")
        A(f"s_load_dword {sKREL}, s[4:5], s6")
        A("s_waitcnt lgkmcnt(0)")
        A(f"s_and_b32 {sKREL}, {sKREL}, 63")
        A(f"s_mov_b32 {sVREL}, {sKREL}")
    if warm:
        A.srd_off(sK, 10, sT1, REGION)
        A.srd_off(sWQ, 14, sOFF, 79 * 12288 + 384)
        A(f"s_mul_i32 s4, {sH}, 245760")
        A.srd_off(sWO, 16, "s4", 245760)
        A(f"s_mul_i32 s4, {sKREL}, {STEP}")
        A.setexec(1)
        vq.op(f"buffer_load_dword a100, {t1}, s[{sK}:{sK+3}], s4 offen nt", "warm")
        vq.op(f"buffer_load_dword a101, {t1}, s[{sWO}:{sWO+3}], 0 offen nt", "warm")
        vq.op(f"buffer_load_dword a102, {t1}, s[{sWQ}:{sWQ+3}], 0 offen nt", "warm")
        A.setexec(ALL)
    A.srd_off(sX, 8, sT0, 1280)
    for n in range(5):
        vq.op(f"buffer_load_dword v{XS+n}, {t1}, s[{sX}:{sX+3}], 0 offen offset:{n*256}", "x")
    A.srd_off(sWQ, 14, sOFF, 639 * 12288 + 384)
    for k in range(8):
        if k == 7:
            A(f"s_cmp_ge_u32 {sWAVE}, 2")
            A(f"s_cselect_b32 {sM}, 0x7000000, {sM}")
        vq.op(f"buffer_load_dwordx4 a[{AW+4*k}:{AW+4*k+3}], {vQ0}, s[{sWQ}:{sWQ+3}], {sM} offen {wf}", "wq")
        if k < 7:
            A(f"s_add_u32 {sM}, {sM}, {32*12288}")
            A(f"s_cmp_ge_u32 {sM}, {640*12288}")
            A(f"s_cselect_b32 {sL}, {640*12288 - 128}, 0")
            A(f"s_sub_u32 {sM}, {sM}, {sL}")
    A.srd_off(sK, 10, sT1, REGION)
    A.srd_off(sV, 12, sT1, REGION)
    A(f"s_mul_i32 {sT0}, {sH}, 245760")
    A.srd_off(sWO, 16, sT0, 245760)
    A.srd(sWS, "s22", "s23", WS_SIZE)
    A("s_load_dwordx8 s[8:15], s[0:1], 48")
    A("s_load_dwordx2 s[20:21], s[0:1], 80")
    if not eplate: A(f"s_load_dword {sTAG}, s[22:23], {WS_EP}")

    def treg(slot, t):
        if slot < T:
            r = R0 + slot * 12 + t * 4
            return f"v[{r}:{r+3}]"
        r = (slot - T) * 12 + t * 4
        return f"a[{r}:{r+3}]"
    def ld_tile(slot, isv, n):
        rel, srd, off = (sVREL, sV, vVO) if isv else (sKREL, sK, vKO)
        A(f"s_mul_i32 {sOFF}, {rel}, {STEP}")
        A(f"s_add_u32 {sOFF}, {sOFF}, {sWB}")
        if burst: vq.room(3)
        for t in order:
            vq.op(f"buffer_load_dwordx4 {treg(slot, t)}, {off}, s[{srd}:{srd+3}], {sOFF} offen offset:{t*256} {vf if isv else kf}", ("v" if isv else "k", n), nocap=burst)
        A(f"s_add_u32 {rel}, {rel}, {sJMP if (BL and (n + 1) % BL == 0) else 1}")
        A(f"s_and_b32 {rel}, {rel}, 63")
    def ld_wo(n):
        rg, c = divmod(n, 5)
        if nowo:
            A("s_nop 0"); return
        A(f"s_add_u32 {sOFF}, {sWOOFF}, {0 if wosame else rg*8*1280}")
        vq.op(f"buffer_load_dwordx4 a[{4*n}:{4*n+3}], {vWO}, s[{sWO}:{sWO+3}], {sOFF} offen offset:{c*256} {wof}", ("wo", n), nocap=not wobcap)
    kis = [0]
    def head_k(n):
        for _ in range(n):
            if kis[0] < T + ext:
                ld_tile(kis[0], False, kis[0]); kis[0] += 1
    def wo_touch(wopre):
        A(f"s_mul_i32 {sOFF}, {sBS}, 30720")
        A(f"s_mul_i32 {sT0}, {sWAVE}, 7680")
        A(f"s_add_u32 {sOFF}, {sOFF}, {sT0}")
        if wolite:
            if wolite == 2:
                A(f"v_lshlrev_b32 {vZ}, 4, {vLANE}")
                for k in range(8):
                    if k == 7: A.setexec(0xffffffff)
                    if k == 4: A(f"s_add_u32 {sT0}, {sOFF}, 4096")
                    vq.op(f"buffer_load_dwordx4 a[{160+4*k}:{163+4*k}], {vZ}, s[{sWO}:{sWO+3}], {sOFF if k < 4 else sT0} offen offset:{(k%4)*1024} nt", "wop")
                A.setexec((1 << 60) - 1)
                A(f"v_lshlrev_b32 {vZ}, 7, {vLANE}")
                vq.op(f"buffer_load_dword a120, {vZ}, s[{sWO}:{sWO+3}], {sOFF} offen sc1", "wop")
            else:
                A(f"v_lshlrev_b32 {vZ}, 7, {vLANE}")
                A.setexec((1 << 60) - 1)
                for fl in ("nt", "sc1"):
                    for k in range(2):
                        vq.op(f"buffer_load_dword a{120+k}, {vZ}, s[{sWO}:{sWO+3}], {sOFF} offen offset:{64*k} {fl}", "wop")
            A.setexec(ALL)
            return
        A(f"v_lshlrev_b32 {vZ}, 4, {vLANE}")
        for k in range(8):
            if k == 4: A(f"s_add_u32 {sOFF}, {sOFF}, 4096")
            if k == 7: A.setexec(0xffffffff)
            vq.op(f"buffer_load_dwordx4 a[{160+4*k}:{163+4*k}], {vZ}, s[{sWO}:{sWO+3}], {sOFF} offen offset:{(k%4)*1024} {wopre}", "wop")
            if wopair is not None:
                vq.op(f"buffer_load_dwordx4 a[{120+4*k}:{123+4*k}], {vZ}, s[{sWO}:{sWO+3}], {sOFF} offen offset:{(k%4)*1024} {wopair}", "wop")
        A.setexec(ALL)
    if wopre is not None: wo_touch(wopre)
    head_k(1)
    A("s_cmp_lg_u32 s2, 0")
    A("s_cbranch_scc1 L_nozero")
    for n in range(WS_ZEND // 4096):
        A(f"s_movk_i32 {sT0}, {n*4096}")
        A(f"buffer_store_dwordx4 v[{O}:{O+3}], {t0}, s[{sWS}:{sWS+3}], {sT0} offen sc1")
    A.label("L_nozero")
    A("s_waitcnt lgkmcnt(0)")
    sW = 16
    for ptr, dst in ((8, B), (10, B + 4), (12, D)):
        A.srd(sW, f"s{ptr}", f"s{ptr+1}", 3072)
        vq.op(f"buffer_load_dwordx4 v[{dst}:{dst+3}], {t0}, s[{sW}:{sW+3}], 0 offen", "mw")
    A(f"s_load_dword {sB2}, s[14:15], 0")
    def mktag():
        A(f"s_mul_i32 {sTAG}, {sTAG}, 0x2c9277b5")
        A(f"s_add_u32 {sTAG}, {sTAG}, 0x7f4a7c15")
    if eplate: A(f"s_load_dword {sTAG}, s[22:23], {WS_EP}")
    else: mktag()
    jl = vT[2]
    A(f"v_and_b32 {jl}, 7, {vLANE}")
    A(f"v_and_b32 {t1}, 1, {vLANE}")
    A(f"v_cmp_eq_u32 vcc, 1, {t1}")
    A(f"v_mov_b32 {vT[4]}, 0xffff")
    A(f"v_mov_b32 {vM[3]}, 0xffff0000")
    A(f"v_cndmask_b32 {vT[4]}, {vT[4]}, {vM[3]}, vcc")
    A(f"v_lshrrev_b32 {t1}, 1, {jl}")
    for r in range(4):
        A(f"v_cmp_eq_u32 vcc, {r}, {t1}")
        A("s_nop 1")
        A(f"v_cndmask_b32 {vM[r]}, 0, {vT[4]}, vcc")
    A(f"v_lshl_add_u32 {vAY}, {q}, 3, {jl}")
    A(f"v_lshlrev_b32 {vAY}, 4, {vAY}")
    A(f"s_mul_i32 {sT0}, {sWAVE}, 1536")
    A(f"v_add_u32 {vA0}, {sT0}, {vAY}")
    A(f"s_mul_i32 {sT0}, {sWAVE}, 2560")
    A(f"v_add_u32 {vAY}, {sT0}, {vAY}")
    A(f"v_lshrrev_b32 {t1}, 3, {vLANE}")
    A(f"v_lshl_add_u32 {vXN}, {t1}, 2, {sT0}")
    A(f"s_lshl_b32 {sT0}, {sWAVE}, 11")
    A(f"s_add_u32 {sT0}, {sT0}, {L_SC}")
    A(f"v_lshl_add_u32 {vSC}, {t1}, 2, {sT0}")
    A(f"v_mov_b32 {vMAX}, 0xff800000")
    A(f"v_lshlrev_b32 {vA1}, 2, v0")
    A(f"s_lshl_b32 {sT0}, s2, 2")
    A(f"s_add_u32 {sT0}, {sT0}, {sWAVE}")
    A(f"s_lshr_b32 {sT1}, {sT0}, 9")
    A(f"s_lshl_b32 {sT1}, {sT1}, 15")
    A(f"s_and_b32 {sT0}, {sT0}, 511")
    A(f"s_lshl_b32 {sT0}, {sT0}, 3")
    A(f"s_add_u32 {sT0}, {sT0}, 12800")
    A(f"s_or_b32 {sTB}, {sT0}, {sT1}")
    A(f"v_add_lshl_u32 v{TX}, {jl}, {sTB}, 16")
    A(f"v_mov_b32 v{TX+1}, v{TX}")
    A(f"v_mov_b32 v{TACC}, 0")
    A(f"v_mov_b32 v{TACC+1}, 0")
    K0 = -2.0 * 0.7978845608028654 * LOG2E
    A(f"v_mov_b32 v{TK1}, {F(K0 * 0.044715)}")
    A(f"v_mov_b32 v{TK1+1}, {F(K0 * 0.044715)}")
    A(f"s_mov_b32 s{sK0}, {F(K0)}")
    A(f"s_mov_b32 s{sK0+1}, {F(K0)}")
    A(f"s_mov_b32 s{sONE}, 1.0")
    A(f"s_mov_b32 s{sONE+1}, 1.0")
    A(f"v_mul_u32_u24 {vTA}, 2320, {t1}")
    A(f"v_add_u32 {vTA}, {L_W}, {vTA}")
    vq.CAP = cap0
    head_k(n1 - 1)
    vq.wait("x")
    if not st0: st()
    for n in range(5):
        A(f"v_lshlrev_b32 v{TW+2*n}, 16, v{XS+n}")
        A(f"v_and_b32 v{TW+2*n+1}, 0xffff0000, v{XS+n}")
    layernorm_fast(A, TW, QB, TW + 10, 4, True)
    A(f"s_mul_i32 {sT0}, {sWAVE}, 2560")
    A(f"v_lshl_add_u32 {vT[2]}, {vLANE}, 3, {sT0}")
    for n in range(10):
        A(f"v_cvt_pk_bf16_f32 v{QB+n}, v{QB+n}, v{QB+n}")
    for n in range(5):
        A(f"ds_write_b64 {vT[2]}, v[{QB+2*n}:{QB+2*n+1}] offset:{L_XN + n*512}")
    A(f"v_lshlrev_b32 {vZ}, 4, {vLANE}")
    A(f"s_lshl_b32 {sT0}, {sWAVE}, 10")
    A(f"s_add_u32 {sT0}, {sT0}, {L_WQ}")
    A(f"v_add_u32 {vT[2]}, {sT0}, {vZ}")
    vq.wait("wq")
    A("s_waitcnt lgkmcnt(0)")
    if eplate: mktag()
    for k in range(8):
        A(f"ds_write_b128 {vT[2]}, a[{AW+4*k}:{AW+4*k+3}] offset:{k*4096}")
    if wopre2 is not None:
        vq.wait("wop")
        wo_touch(wopre2)
    head_k(n1b)
    vq.wait("mw")
    A("s_waitcnt lgkmcnt(0)")
    A(f"s_cmp_eq_u32 {sWAVE}, 3")
    A("s_cbranch_scc1 L_now")
    for k, src in enumerate((B, B + 4, D)):
        for n in range(4):
            A(f"v_lshlrev_b32 v{TW+8*k+2*n}, 16, v{src+n}")
            A(f"v_and_b32 v{TW+8*k+2*n+1}, 0xffff0000, v{src+n}")
    A(f"v_mul_u32_u24 {vT[3]}, 2731, v0")
    A(f"v_mul_u32_u24 {vT[2]}, 96, v0")
    A(f"v_lshrrev_b32 {vT[3]}, 16, {vT[3]}")
    A(f"v_lshl_add_u32 {vT[2]}, {vT[3]}, 4, {vT[2]}")
    A(f"v_mov_b32 {vT[3]}, 0")
    A(f"ds_write_b32 {vT[3]}, {vT[3]} offset:{L_TP + 128}")
    for k in range(6):
        A(f"ds_write_b128 {vT[2]}, v[{TW+4*k}:{TW+4*k+3}] offset:{L_W + 16*k}")
    A("s_waitcnt lgkmcnt(0)")
    A.label("L_now")
    XP = [QB + n for n in range(10)] + [TW + n for n in range(20)]
    for u in range(3):
        A(f"s_add_u32 {sT0}, {sWQOFF}, {80*u}")
        A(f"s_mul_i32 {sT1}, {sT0}, 1639")
        A(f"s_lshr_b32 {sT1}, {sT1}, 20")
        A(f"s_mul_i32 {sT1}, {sT1}, 640")
        A(f"s_sub_u32 {sT0}, {sT0}, {sT1}")
        A(f"s_lshl_b32 {sT0}, {sT0}, 2")
        A(f"v_add_u32 {vT[3]}, {sT0}, {vXN}")
        if u: A("s_waitcnt lgkmcnt(4)")
        for n in range(10):
            A(f"ds_read_b32 v{XP[10*u+n]}, {vT[3]} offset:{L_XN + n*32}")
    A(f"v_add_u32 {vT[2]}, {L_WQ}, {vZ}")
    A(f"v_mov_b32 {vT[4]}, 0")
    A("s_waitcnt lgkmcnt(0)")
    A("s_barrier")
    A(f"s_or_b32 {sT0}, s2, {sWAVE}")
    A(f"s_cmp_lg_u32 {sT0}, 0")
    A("s_cbranch_scc1 L_noflag")
    for r in range(4):
        A(f"v_mov_b32 v{ML+r}, {sTAG}")
    A(f"s_mov_b32 {sT0}, {WS_ZF}")
    A.setexec(1)
    A(f"buffer_store_dwordx4 v[{ML}:{ML+3}], {vT[4]}, s[{sWS}:{sWS+3}], {sT0} offen sc1")
    A.setexec(ALL)
    A.label("L_noflag")
    def wq_read(n):
        r = AW + (n % 8) * 4
        A(f"ds_read_b128 a[{r}:{r+3}], {vT[2]} offset:{n*1024}")
    for n in range(7): wq_read(n)
    head_k(n1c)
    for n in range(30):
        bb = B + 4 * (n & 1)
        for r in range(4):
            A(f"v_and_b32 v{bb+r}, v{XP[n]}, {vM[r]}")
        if n + 7 < 30: wq_read(n + 7)
        else: A("s_nop 0")
        A(f"s_waitcnt lgkmcnt({min(7, 29 - n)})")
        r = AW + (n % 8) * 4
        u = n // 10
        A(f"v_mfma_f32_16x16x32_bf16 v[{O+4*u}:{O+4*u+3}], a[{r}:{r+3}], v[{bb}:{bb+3}], v[{O+4*u}:{O+4*u+3}]")
        if n in pump: head_k(1)
    def lds_put3():
        A.setexec(M_LO)
        A(f"ds_write_b128 {vA0}, v[{O}:{O+3}] offset:{L_P}")
        A.setexec(M_T1)
        A(f"ds_write_b128 {vA0}, v[{O+4}:{O+7}] offset:{L_P + 512}")
        A.setexec(M_HI)
        A(f"ds_write_b128 {vA0}, v[{O+8}:{O+11}] offset:{L_P + 768 + 256}")
        A.setexec(ALL)
    A(f"s_cmp_eq_u32 {sBS}, 5")
    A(f"s_cselect_b32 s4, 0, 1.0")
    A(f"s_cselect_b32 s6, 1.0, 0")
    A(f"s_cselect_b32 s5, 0, 1.0")
    A(f"s_cselect_b32 s7, 0xffffff, 0")
    A(f"s_cmp_eq_u32 {sBS}, 2")
    A(f"s_cselect_b32 s5, 0, s5")
    A(f"s_cselect_b32 s7, 0xffffff, s7")
    A(f"s_cmp_gt_u32 {sBS}, 2")
    A(f"s_addc_u32 {sT1}, {sBS}, 0")
    A(f"s_cmp_gt_u32 {sBS}, 5")
    A(f"s_addc_u32 {sT1}, {sT1}, 0")
    A(f"s_mul_i32 {sT1}, {sT1}, 384")
    A(f"s_lshl_b32 {sT0}, {sH}, 2")
    A(f"s_add_u32 {sQG}, {sT0}, {sWAVE}")
    A(f"s_lshl_b32 {sQG}, {sQG}, 12")
    A(f"s_add_u32 {sT1}, {sT1}, {sQG}")
    A(f"s_add_u32 {sT1}, {sT1}, {WS_QP}")
    A(f"s_add_u32 {sQG}, {sT0}, {sB}")
    A(f"s_lshl_b32 {sQG}, {sQG}, 2")
    A(f"s_add_u32 {sQG}, {sQG}, {sWAVE}")
    A(f"s_lshl_b32 {sQG}, {sQG}, 10")
    A(f"s_add_u32 {sQG}, {sQG}, {WS_QP}")
    for r in range(4):
        A(f"v_fmac_f32 v{O+r}, s4, v{O+4+r}")
    for r in range(4):
        A(f"v_fmac_f32 v{O+r}, s5, v{O+8+r}")
    for r in range(4):
        A(f"v_fmac_f32 v{O+8+r}, s6, v{O+4+r}")
    A.setexec(M_T1)
    A(f"ds_write_b128 {vA0}, v[{O}:{O+3}] offset:{L_P}")
    A(f"ds_write_b128 {vA0}, v[{O+8}:{O+11}] offset:{L_P + 512}")
    A.setexec(ALL)
    A(f"s_mul_i32 {sT0}, {sWAVE}, 1536")
    A(f"v_and_b32 {vT[2]}, 31, {vLANE}")
    A(f"v_lshrrev_b32 {vT[3]}, 5, {vLANE}")
    A(f"v_mul_u32_u24 {vQ0}, 384, {vT[3]}")
    A(f"v_lshl_add_u32 {vQ0}, {vT[2]}, 4, {vQ0}")
    A(f"v_lshl_add_u32 {vT[2]}, {vT[2]}, 2, {sT0}")
    A(f"v_lshl_add_u32 {vT[2]}, {vT[3]}, 9, {vT[2]}")
    A("s_waitcnt lgkmcnt(0)")
    for k in range(6):
        A(f"ds_read_b32 v{B+k}, {vT[2]} offset:{L_P + 88*(k%3) + 256*(k//3)}")
    A(f"v_mov_b32 v{D+3}, {sTAG}")
    A("s_waitcnt lgkmcnt(0)")
    for k in range(3):
        A(f"v_add_f32 v{D+k}, v{B+k}, v{B+3+k}")
    A("s_mov_b32 exec_lo, 0xffffff")
    A("s_mov_b32 exec_hi, s7")
    vq.op(f"buffer_store_dwordx4 v[{D}:{D+3}], {vQ0}, s[{sWS}:{sWS+3}], {sT1} offen {qsf}", "qst")
    A.setexec(ALL)
    A(f"s_cmp_eq_u32 {sWAVE}, 3")
    A(f"s_cselect_b32 {sF}, 0xffff, -1")
    st()
    if nq:
        vq.CAP = capq
        head_k(nq)
    vq.CAP = caph
    head_k(n2 - nq)
    def q_gather(track):
        A(f"s_mov_b32 exec_hi, {sF}")
        txt = f"buffer_load_dwordx4 v[{B}:{B+3}], {vZ}, s[{sWS}:{sWS+3}], {sQG} offen {qlf}"
        if track: vq.op(txt, "qg")
        else: A(txt)
        A.setexec(ALL)
    if not (noqx or noqld): q_gather(True)
    if tlb:
        A(f"v_lshlrev_b32 {vQ0}, 16, {vLANE}")
        A.setexec(0xfff)
        vq.op(f"buffer_load_dword v{ML}, {vQ0}, s[{sV}:{sV+3}], 0 offen nt", "tlb")
        if tlb > 1:
            vq.op(f"buffer_load_dword v{ML+1}, {vQ0}, s[{sK}:{sK+3}], 0 offen nt", "tlb")
            vq.op(f"buffer_load_dword v{ML+2}, {vQ0}, s[{sWO}:{sWO+3}], 0 offen nt", "tlb")
        A.setexec(ALL)
    if ng:
        vq.CAP = capg
        head_k(ng)
        vq.CAP = caph
    head_k(T + ext - kis[0] - hb)
    vq.CAP = 54
    head_k(99)
    q, i, t0, t1 = vT[0], vT[1], vT[2], vT[3]
    A(f"v_and_b32 {t0}, 32, {vLANE}")
    A(f"v_and_b32 {t1}, 3, {vLANE}")
    A(f"v_lshl_add_u32 {t0}, {t1}, 3, {t0}")
    A(f"v_bfe_u32 {t1}, {vLANE}, 2, 3")
    A(f"v_add_lshl_u32 {vXN}, {t0}, {t1}, 1")
    A(f"v_lshlrev_b32 {vQ1}, 4, v0")
    A(f"v_mul_u32_u24 {t0}, 47, {vLANE}")
    A(f"v_lshrrev_b32 {t0}, 10, {t0}")
    A(f"v_mul_u32_u24 {t1}, 348, {t0}")
    A(f"v_sub_u32 {vQ0}, {vZ}, {t1}")
    A(f"v_and_b32 {t0}, 3, {vLANE}")
    A(f"v_lshl_add_u32 {t0}, {q}, 2, {t0}")
    A(f"v_and_b32 {t1}, 8, {vLANE}")
    A(f"v_add_lshl_u32 {vQ2}, {t0}, {t1}, 4")
    A(f"v_cmp_gt_u32 vcc, 8, {i}")
    A(f"v_add_u32 {t1}, 16, {t0}")
    A(f"v_subrev_u32 {t0}, 8, {t0}")
    A(f"v_cndmask_b32 {t0}, {t0}, {t1}, vcc")
    A(f"v_lshlrev_b32 {t0}, 4, {t0}")
    for r in range(12):
        A(f"v_mov_b32 v{QB+r}, 0")
    vq.wait("qg")
    A(f"s_mov_b32 {sSPIN}, {1 if (noqx or noqst or noqld) else SPIN}")
    A.label("L_qchk")
    A(f"v_cmp_ne_u32 vcc, {sTAG}, v{B+3}")
    A("s_nop 1")
    A(f"s_and_b32 vcc_hi, vcc_hi, {sF}")
    A("s_or_b32 vcc_lo, vcc_lo, vcc_hi")
    A("s_cbranch_scc0 L_qok")
    A(f"s_sub_u32 {sSPIN}, {sSPIN}, 1")
    A(f"s_cmp_eq_u32 {sSPIN}, 0")
    A("s_cbranch_scc1 L_qok")
    A(f"s_add_u32 {sRETRY}, {sRETRY}, 1")
    A("s_sleep 2")
    q_gather(False)
    A("s_waitcnt vmcnt(0)")
    A("s_branch L_qchk")
    A.label("L_qok")
    A(f"ds_write_b128 {vQ1}, v[{B}:{B+3}] offset:{L_QS}")
    A("s_waitcnt lgkmcnt(0)")
    A("s_barrier")
    RD = [O, O + 3, O + 4, O + 1, O + 5, O + 6, O + 7, O + 2, O + 8, O + 9]
    for k in range(10):
        A(f"ds_read_b32 v{RD[k]}, {vQ0} offset:{L_QS + 384*k}")
    A("s_waitcnt lgkmcnt(0)")
    A(f"v_add_f32 v{O}, v{O}, v{O+3}")
    A(f"v_add_f32 v{O+1}, v{O+1}, v{O+5}")
    A(f"v_add_f32 v{O+2}, v{O+2}, v{O+8}")
    A(f"v_add_f32 v{O+6}, v{O+6}, v{O+7}")
    A(f"v_add_f32 v{O}, v{O}, v{O+4}")
    A(f"v_add_f32 v{O+2}, v{O+2}, v{O+9}")
    A(f"v_add_f32 v{O+1}, v{O+1}, v{O+6}")
    for k in range(3):
        A(f"v_cvt_pk_bf16_f32 v{O+k}, v{O+k}, v{O+k}")
    for k in range(3):
        A(f"ds_write_b16 {vXN}, v{O+k} offset:{L_QB + 128*k}")
    A("s_waitcnt lgkmcnt(0)")
    A.setexec(M_LO)
    A(f"ds_read_b128 v[{QB}:{QB+3}], {vQ2} offset:{L_QB}")
    A.setexec(M_HI)
    A(f"ds_read_b128 v[{QB+8}:{QB+11}], {vQ2} offset:{L_QB}")
    A.setexec(M_T1)
    A(f"ds_read_b128 v[{QB+4}:{QB+7}], {t0} offset:{L_QB}")
    A.setexec(ALL)
    for r in range(O, O + 12):
        A(f"v_mov_b32 v{r}, 0")
    def tab_reads():
        for k in range(6):
            A(f"ds_read_b128 v[{TW+4*k}:{TW+4*k+3}], {vTA} offset:{16*k}")
        A(f"v_add_u32 {vTA}, 96, {vTA}")
    A("s_waitcnt lgkmcnt(0)")
    tab_reads()
    ncalls = [0]
    published = [False]
    def tab_finish(dst):
        A.rb(dst, dst)
        A(f"v_add_f32 {dst}, {sB2}, {dst}")
        A(f"v_cvt_pk_bf16_f32 {dst}, {dst}, {dst}")
    def tab_publish():
        ta, tb = f"v{TACC}", f"v{TACC+1}"
        A(f"v_add_f32 {ta}, {ta}, {tb}")
        A("s_nop 1")
        A(f"v_add_f32_dpp {ta}, {ta}, {ta} row_ror:8 row_mask:0xf bank_mask:0xf")
        A(f"v_mov_b32 {tb}, {ta}")
        A("s_nop 1")
        A(f"v_permlane16_swap_b32 {ta}, {tb}")
        A(f"v_add_f32 {ta}, {ta}, {tb}")
        A(f"v_mov_b32 {tb}, {ta}")
        A("s_nop 1")
        A(f"v_permlane32_swap_b32 {ta}, {tb}")
        A(f"v_add_f32 {ta}, {ta}, {tb}")
        tab_finish(ta)
        A(f"s_lshl_b32 {sT0}, {sWAVE}, 4")
        A(f"v_lshl_add_u32 {tb}, {vLANE}, 1, {sT0}")
        A.setexec(0xff)
        A(f"ds_write_b16 {tb}, {ta} offset:{L_TP}")
        A.setexec(ALL)
    A(f"s_lshl_b32 {sB2}, {sB2}, 16")
    st()
    s = vT[0]
    slot_of = list(range(T + ext))
    nxt = [T + ext]
    def refill(slot):
        if slot >= T or nxt[0] >= 2 * NT: return False
        m = nxt[0]; nxt[0] += 1
        slot_of.append(slot)
        ld_tile(slot, m >= NT, m % NT)
        return True
    NR = 4
    NR = 6
    use_order = [rg * 5 + c for rg in range(NR) for c in range(5)] + [rg * 5 + c for c in range(5) for rg in range(NR, 12)]
    late = use_order[60 - wo_late:]
    wo_order = [k for k in list(range(3 * ext, 60)) + list(range(3 * ext)) if k not in late] + late
    wo_left = [60]
    if wob:
        f = -(-3 * ext // 5) * 5
        wo_order = list(range(f, 60)) + list(range(f))
    def wo_step(n):
        if wob:
            if n % wob != wob - 1 or wo_left[0] == 0: return False
            assert wo_order[60 - wo_left[0]] >= 3 * ext or n >= T + ext
            for _ in range(wob):
                ld_wo(wo_order[60 - wo_left[0]]); wo_left[0] -= 1
            return True
        if n < wo_start or wo_left[0] <= wo_late: return False
        if not wo2 and (n - wo_start + 1) * wo_rate < 60 - wo_left[0] + 1 - 1e-9: return False
        k = wo_order[60 - wo_left[0]]
        if k < 3 * ext and n % 1000 < T + k // 3: return False
        ld_wo(k); wo_left[0] -= 1
        return True
    vq.CAP = capk
    for n in range(NT):
        if n == NT - T or wo_left[0] <= wo_late: vq.CAP = capv
        if n >= NT - bb_: vq.CAP = 54
        slot = slot_of[n]
        vq.wait(("k", n))
        for tt in range(3):
            c = "0" if tt == 0 else f"v[{D}:{D+3}]"
            A(f"v_mfma_f32_16x16x32_bf16 v[{D}:{D+3}], {treg(slot, tt)}, v[{QB+4*tt}:{QB+4*tt+3}], {c}")
        if not refill(slot): A("s_nop 6")
        if not wo_step(n): A("s_nop 0")
        if n < wo2: wo_step(n + 1000)
        s2 = vT[1]
        A(f"v_mov_b32_dpp {s}, v{D} quad_perm:[0,0,0,0] row_mask:0xf bank_mask:0xf")
        A(f"v_mov_b32_dpp {s2}, v{D+2} quad_perm:[2,2,2,2] row_mask:0xf bank_mask:0xf")
        A("s_nop 0")
        A(f"v_add_f32_dpp {s}, v{D+1}, {s} quad_perm:[1,1,1,1] row_mask:0xf bank_mask:0xf")
        A(f"v_add_f32_dpp {s2}, v{D+3}, {s2} quad_perm:[3,3,3,3] row_mask:0xf bank_mask:0xf")
        A(f"v_add_f32 {s}, {s}, {s2}")
        A.rb(s, s)
        A(f"v_mul_f32 {s}, {F(192 ** -0.5)}, {s}")
        A.rb(s, s)
        A(f"v_max_f32 {vMAX}, {vMAX}, {s}")
        A(f"ds_write_b32 {vSC}, {s} offset:{n*32}")
        if n >= tab_start:
            if ncalls[0] < 24:
                if not notab: A(f"s_call_b64 s[{sRET}:{sRET+1}], L_tab")
                ncalls[0] += 1
            elif not published[0]:
                published[0] = True
                tab_publish()
    assert published[0]
    st()
    A.wave_red("max", vMAX, sM)
    A(f"s_lshl_b32 {sT0}, {sWAVE}, 11")
    A(f"s_add_u32 {sT0}, {sT0}, {L_SC}")
    A(f"v_lshl_add_u32 {vT[0]}, {vLANE}, 5, {sT0}")
    A("s_waitcnt lgkmcnt(0)")
    A(f"ds_read_b128 v[{B}:{B+3}], {vT[0]}")
    A(f"ds_read_b128 v[{B+4}:{B+7}], {vT[0]} offset:16")
    A("s_waitcnt lgkmcnt(0)")
    for r in range(8):
        A(f"v_subrev_f32 v{B+r}, {sM}, v{B+r}")
    for r in range(8):
        A(f"v_mul_f32 v{B+r}, {F(LOG2E)}, v{B+r}")
    for r in range(8):
        A(f"v_exp_f32 v{B+r}, v{B+r}")
    A("s_nop 0")
    A(f"v_add_f32 {vT[1]}, v{B}, v{B+1}")
    for r in range(2, 8):
        A(f"v_add_f32 {vT[1]}, {vT[1]}, v{B+r}")
    for r in range(8):
        A(f"v_cvt_pk_bf16_f32 v{B+r}, v{B+r}, v{B+r}")
    A(f"ds_write_b128 {vT[0]}, v[{B}:{B+3}]")
    A(f"ds_write_b128 {vT[0]}, v[{B+4}:{B+7}] offset:16")
    A.wave_red("add", vT[1], sL)
    A(f"v_mov_b32 v{ML}, {sM}")
    A(f"v_mov_b32 v{ML+1}, {sL}")
    A(f"v_mov_b32 v{ML+2}, {sTAG}")
    A(f"v_mov_b32 v{ML+3}, {sTAG}")
    A(f"s_lshl_b32 {sT0}, {sBH}, 7")
    A(f"s_add_u32 {sT0}, {sT0}, {WS_ML}")
    A(f"v_lshl_add_u32 {vZ}, {vLANE}, 4, {sT0}")
    A(f"s_mov_b32 {sT0}, {WS_ZF}")
    A(f"v_writelane_b32 {vZ}, {sT0}, 8")
    A(f"s_lshl_b32 {sT1}, {sWAVE}, 4")
    A(f"v_mov_b32 {vT[0]}, {sT1}")
    A(f"v_mov_b32 {vT[1]}, 1")
    A.setexec(1)
    A(f"ds_write_b128 {vT[0]}, v[{ML}:{ML+3}] offset:{L_TP + 64}")
    A("s_waitcnt lgkmcnt(0)")
    A(f"ds_add_rtn_u32 {vT[1]}, {vT[4]}, {vT[1]} offset:{L_TP + 128}")
    A("s_waitcnt lgkmcnt(0)")
    A(f"v_readfirstlane_b32 {sT0}, {vT[1]}")
    A.setexec(0xff)
    A(f"s_cmp_lg_u32 {sT0}, 3")
    A("s_cbranch_scc1 L_nopub")
    A(f"v_lshlrev_b32 {vT[0]}, 3, {vLANE}")
    A(f"v_lshlrev_b32 {vT[1]}, 4, {vLANE}")
    A(f"ds_read_b64 v[{ML}:{ML+1}], {vT[0]} offset:{L_TP}")
    A(f"ds_read_b128 v[{TW}:{TW+3}], {vT[1]} offset:{L_TP + 64}")
    A(f"s_lshl_b32 {sT0}, s2, 7")
    A(f"s_add_u32 {sT0}, {sT0}, {WS_TAB}")
    A(f"s_lshl_b32 {sT1}, {sHALF}, 6")
    A("s_waitcnt lgkmcnt(0)")
    if not nopub:
        A(f"buffer_store_dwordx4 v[{ML}:{ML+3}], {vT[1]}, s[{sWS}:{sWS+3}], {sT0} offen {psf}")
        A.setexec(0xf)
        A(f"buffer_store_dwordx4 v[{TW}:{TW+3}], {vZ}, s[{sWS}:{sWS+3}], {sT1} offen {psf}")
    A.label("L_nopub")
    A.setexec(ALL)
    vq.CAP = capv
    PP = [QB + n for n in range(8)]
    A("s_waitcnt lgkmcnt(0)")
    for n in range(4):
        A(f"ds_read_b32 v{PP[n]}, {vSC} offset:{n*32}")
    def fcalc():
        vq.wait("ml")
        A(f"s_mov_b32 {sSPIN}, {SPIN}")
        A.label("L_mlchk")
        A(f"v_cmp_ne_u32 vcc, {sTAG}, v{ML+2}")
        A("s_nop 1")
        A("s_and_b32 vcc_lo, vcc_lo, 0x1ff")
        A("s_cbranch_scc0 L_mlok")
        A(f"s_sub_u32 {sSPIN}, {sSPIN}, 1")
        A(f"s_cmp_eq_u32 {sSPIN}, 0")
        A("s_cbranch_scc1 L_mlok")
        A("s_sleep 8")
        A.setexec(0x1ff)
        A(f"buffer_load_dwordx4 v[{ML}:{ML+3}], {vZ}, s[{sWS}:{sWS+3}], 0 offen {plf}")
        A.setexec(ALL)
        A("s_waitcnt vmcnt(0)")
        A("s_branch L_mlchk")
        A.label("L_mlok")
        mm, e = vT[0], vT[1]
        A(f"v_mov_b32 {mm}, v{ML}")
        for stp in Asm.DPP_STEPS[:3]:
            A("s_nop 1")
            A(f"v_max_f32_dpp {mm}, {mm}, {mm} {stp}")
        A(f"v_sub_f32 {e}, v{ML}, {mm}")
        A(f"v_sub_f32 {mm}, {sM}, {mm}")
        A(f"v_mul_f32 {e}, {F(LOG2E)}, {e}")
        A(f"v_mul_f32 {mm}, {F(LOG2E)}, {mm}")
        A(f"v_exp_f32 {e}, {e}")
        A(f"v_exp_f32 {mm}, {mm}")
        A(f"v_mul_f32 {e}, {e}, v{ML+1}")
        for stp in Asm.DPP_STEPS[:3]:
            A("s_nop 1")
            A(f"v_add_f32_dpp {e}, {e}, {e} {stp}")
        A(f"v_rcp_f32 {e}, {e}")
        A("s_nop 0")
        A(f"v_mul_f32 {e}, {e}, {mm}")
        A("s_nop 0")
        A(f"v_readfirstlane_b32 {sF}, {e}")
        A(f"s_mov_b32 s{sFP}, {sF}")
        A(f"s_mov_b32 s{sFP+1}, {sF}")
        for k, m in enumerate((M_LO, M_T1, M_HI)):
            A(f"s_mov_b32 s{sMK+2*k}, 0x{m & 0xffffffff:08x}")
            A(f"s_mov_b32 s{sMK+2*k+1}, 0x{m >> 32:08x}")
        A(f"v_lshrrev_b32 {vT[0]}, 4, {vLANE}")
        A(f"s_lshr_b32 {sT0}, {sWAVE}, 1")
        A(f"s_mul_i32 {sT0}, {sT0}, 24")
        A(f"s_and_b32 {sT1}, {sWAVE}, 1")
        A(f"s_lshl_b32 {sT1}, {sT1}, 2")
        A(f"s_add_u32 {sT0}, {sT0}, {sT1}")
        A(f"v_add_lshl_u32 {vT[0]}, {vT[0]}, {sT0}, 4")
        A(f"v_and_b32 {vT[1]}, 15, {vLANE}")
        A(f"v_min_u32 {vT[1]}, 11, {vT[1]}")
        A(f"v_lshrrev_b32 {vT[2]}, 2, {vT[1]}")
        A(f"v_lshl_add_u32 {vT[0]}, {vT[2]}, 7, {vT[0]}")
        A(f"v_and_b32 {vT[1]}, 3, {vT[1]}")
        A(f"v_lshl_add_u32 {vQ0}, {vT[1]}, 2, {vT[0]}")
        A(f"s_lshl_b32 {sTK}, {sB}, 7")
        A(f"s_add_u32 {sTK}, {sTK}, {WS_CNT}")
        A(f"v_mov_b32 {vZ}, 1")
        A(f"v_lshrrev_b32 {vT[0]}, 4, v0")
        A(f"v_mul_u32_u24 {vT[0]}, 15, {vT[0]}")
        A(f"v_and_b32 {vT[1]}, 15, v0")
        A(f"v_add_u32 {vT[0]}, {vT[0]}, {vT[1]}")
        A(f"v_cmp_eq_u32 vcc, 15, {vT[1]}")
        A(f"v_mov_b32 {vCNT}, 1.0")
        A(f"v_mov_b32 {vMK[0]}, -1")
        A(f"v_cndmask_b32 {vCNT}, 0, {vCNT}, vcc")
        A(f"v_cndmask_b32 {vMK[0]}, {vMK[0]}, 0, vcc")
        A(f"v_cmp_gt_u32 vcc, 160, {vT[0]}")
        for k in range(3):
            col, t = vT[2], vT[3]
            A(f"v_add_u32 {col}, {240*k}, {vT[0]}")
            A(f"v_min_u32 {col}, 639, {col}")
            A(f"v_and_b32 {vYA[k]}, 0x3e0, {col}")
            A(f"v_and_b32 {t}, 7, {col}")
            A(f"v_lshl_add_u32 {vYA[k]}, {t}, 2, {vYA[k]}")
            A(f"v_bfe_u32 {t}, {col}, 3, 2")
            A(f"v_add_lshl_u32 {vYA[k]}, {vYA[k]}, {t}, 2")
        A(f"v_cndmask_b32 {vMK[1]}, 0, {vMK[0]}, vcc")
        A(f"s_mul_i32 {sWQOFF}, {sB}, 3072")
    for n in range(NT):
        slot = slot_of[NT + n]
        bb = B + 4 * (n & 1)
        if n + 4 < NT:
            A(f"ds_read_b32 v{PP[(n+4)%8]}, {vSC} offset:{(n+4)*32}")
            A("s_waitcnt lgkmcnt(4)")
        else:
            A(f"s_waitcnt lgkmcnt({NT-1-n})")
        for r in range(4):
            A(f"v_and_b32 v{bb+r}, v{PP[n%8]}, {vM[r]}")
        vq.wait(("v", n))
        A("s_nop 1")
        for tt in range(3):
            A(f"v_mfma_f32_16x16x32_bf16 v[{O+4*tt}:{O+4*tt+3}], {treg(slot, tt)}, v[{bb}:{bb+3}], v[{O+4*tt}:{O+4*tt+3}]")
        if lift and n == NT - T - lift: vq.CAP = liftcap
        refill(slot)
        wo_step(NT + n)
        if n == NT - T - 1:
            assert wo_left[0] == wo_late
            vq.CAP = cape
            for k in late: ld_wo(k)
            wo_left[0] = 0
        if n == ml_at and not (nopub or nomlx):
            A.setexec(0x1ff)
            vq.op(f"buffer_load_dwordx4 v[{ML}:{ML+3}], {vZ}, s[{sWS}:{sWS+3}], 0 offen {plf}", "ml")
            A.setexec(ALL)
        if n == fc_at:
            fcalc()
    assert wo_left[0] == 0
    st()
    if noend: A("s_endpgm")
    A("s_nop 5")
    for t, off in enumerate((L_P, L_P + 512, L_P + 1024)):
        A(f"s_mov_b64 exec, s[{sMK+2*t}:{sMK+2*t+1}]")
        A(f"v_pk_mul_f32 v[{O+4*t}:{O+4*t+1}], v[{O+4*t}:{O+4*t+1}], s[{sFP}:{sFP+1}]")
        A(f"v_pk_mul_f32 v[{O+4*t+2}:{O+4*t+3}], v[{O+4*t+2}:{O+4*t+3}], s[{sFP}:{sFP+1}]")
        A(f"ds_write_b128 {vA0}, v[{O+4*t}:{O+4*t+3}] offset:{off}")
    A.setexec(1)
    A(f"s_cmp_lg_u32 {sWAVE}, 3")
    A("s_cbranch_scc1 L_notick")
    A(f"buffer_atomic_add {vZ}, {vT[4]}, s[{sWS}:{sWS+3}], {sTK} offen sc0")
    A.label("L_notick")
    A.setexec(ALL)
    A("s_waitcnt lgkmcnt(0)")
    A("s_barrier")
    st()
    assert L_P % 256 == 0
    for k in range(4):
        A(f"ds_read2st64_b32 v[{B+2*k}:{B+2*k+1}], {vQ0} offset0:{L_P//256 + 6*k} offset1:{L_P//256 + 6*k + 3}")
    A("s_waitcnt lgkmcnt(2)")
    A(f"v_pk_add_f32 v[{B}:{B+1}], v[{B}:{B+1}], v[{B+2}:{B+3}]")
    A("s_waitcnt lgkmcnt(0)")
    A(f"v_pk_add_f32 v[{B+4}:{B+5}], v[{B+4}:{B+5}], v[{B+6}:{B+7}]")
    A(f"v_pk_add_f32 v[{B}:{B+1}], v[{B}:{B+1}], v[{B+4}:{B+5}]")
    A(f"v_add_f32 v{B}, v{B}, v{B+1}")
    A(f"v_cvt_pk_bf16_f32 v{B+2}, v{B}, v{B}")
    A(f"v_and_b32 v{B+1}, 0xffff0000, v{B+2}")
    A(f"v_sub_f32 v{B+1}, v{B}, v{B+1}")
    A(f"v_cvt_pk_bf16_f32 v{B+3}, v{B+1}, v{B+1}")
    BO = R0
    YD = R0 + 48
    def omfma(rg, c):
        n = rg * 5 + c
        cc = "0" if rg == 0 else f"v[{YD+4*c}:{YD+4*c+3}]"
        vq.wait(("wo", n))
        A(f"v_mfma_f32_16x16x32_bf16 v[{YD+4*c}:{YD+4*c+3}], a[{4*n}:{4*n+3}], v[{BO+4*rg}:{BO+4*rg+3}], {cc}")
    hi = lambda rg: f"v_mov_b32_dpp v{O+rg}, v{B+2} row_newbcast:{rg} row_mask:0xf bank_mask:0x3"
    lo = lambda rg: f"v_mov_b32_dpp v{O+rg}, v{B+3} row_newbcast:{rg} row_mask:0xf bank_mask:0xc"
    fill = [hi(0), hi(1), hi(2)]
    for rg in range(12):
        fill.append(lo(rg))
        for r in range(4):
            fill.append(f"v_and_b32 v{BO+4*rg+r}, v{O+rg}, {vM[r]}")
        if rg + 3 < 12: fill.append(hi(rg + 3))
    def emit(k):
        for _ in range(k):
            if fill: A(fill.pop(0))
    emit(10)
    NR2 = 6
    for rg in range(NR2):
        for c in range(5):
            omfma(rg, c)
            emit(2)
    emit(99)
    A("s_nop 1")
    def ypieces(c):
        p = [f"v_add_f32_dpp v{YD+4*c+r}, v{YD+4*c+r}, v{YD+4*c+r} row_ror:8 row_mask:0xf bank_mask:0xf" for r in range(4)]
        return p
    def ywrite(c):
        A(f"s_mov_b64 exec, s[{sMK}:{sMK+1}]")
        A(f"ds_write_b128 {vAY}, v[{YD+4*c}:{YD+4*c+3}] offset:{L_YP + c*512}")
        A.setexec(ALL)
    for c in range(5):
        p = ypieces(c - 2) if c >= 2 else []
        for k, rg in enumerate(range(NR2, 12)):
            omfma(rg, c)
            if p and k in (2, 3):
                A(p.pop(0)); A(p.pop(0))
            if c >= 2 and k == 4:
                ywrite(c - 2)
    for x in ypieces(3): A(x)
    ywrite(3)
    A("s_nop 0")
    for x in ypieces(4): A(x)
    ywrite(4)
    A("s_waitcnt lgkmcnt(0)")
    A("s_barrier")
    st()
    for k in range(2):
        for w in range(4):
            A(f"ds_read_b32 v{O+4*k+w}, {vYA[k]} offset:{L_YP + 2560*w}")
    A(f"s_cmp_eq_u32 {sWAVE}, 3")
    A("s_cbranch_scc1 L_two")
    for w in range(4):
        A(f"ds_read_b32 v{O+8+w}, {vYA[2]} offset:{L_YP + 2560*w}")
    A("s_waitcnt lgkmcnt(0)")
    A(f"v_add_f32 v{O+8}, v{O+8}, v{O+9}")
    A(f"v_add_f32 v{O+10}, v{O+10}, v{O+11}")
    A(f"v_add_f32 v{O+8}, v{O+8}, v{O+10}")
    A(f"v_and_or_b32 v{O+8}, v{O+8}, {vMK[1]}, {vCNT}")
    A(f"buffer_atomic_add_f32 v{O+8}, {vA1}, s[{sWS}:{sWS+3}], {sWQOFF} offen offset:{WS_ACC + 2048}")
    A.label("L_two")
    A("s_waitcnt lgkmcnt(0)")
    for k in range(2):
        A(f"v_add_f32 v{O+4*k}, v{O+4*k}, v{O+4*k+1}")
        A(f"v_add_f32 v{O+4*k+2}, v{O+4*k+2}, v{O+4*k+3}")
    for k in range(2):
        A(f"v_add_f32 v{O+4*k}, v{O+4*k}, v{O+4*k+2}")
    for k in range(2):
        A(f"v_and_or_b32 v{O+4*k}, v{O+4*k}, {vMK[0]}, {vCNT}")
        A(f"buffer_atomic_add_f32 v{O+4*k}, {vA1}, s[{sWS}:{sWS+3}], {sWQOFF} offen offset:{WS_ACC + 1024*k}")
    st()
    A(f"s_cmp_lg_u32 {sWAVE}, 3")
    A("s_cbranch_scc1 L_done")
    A("s_waitcnt vmcnt(2)")
    A(f"v_readfirstlane_b32 {sT0}, {vZ}")
    A(f"s_cmp_lg_u32 {sT0}, 0")
    A("s_cbranch_scc1 L_done")
    H = R0
    HN = R0 + 12
    G = R0 + 24
    X = R0 + 36
    XO = R0 + 48
    T1 = R0 + 60
    T2 = R0 + 66
    TB = R0 + 72
    h = [f"v{H+n}" for n in range(11)]
    hn = [f"v{HN+n}" for n in range(11)]
    A("s_load_dwordx2 s[8:9], s[0:1], 0")
    A(f"s_mul_i32 {sT0}, {sB}, 1280")
    A.srd_off(sOUT, 20, sT0, 1280)
    A(f"v_lshrrev_b32 {vT[0]}, 4, {vLANE}")
    A(f"v_mul_u32_u24 {vT[0]}, 15, {vT[0]}")
    A(f"v_and_b32 {vT[2]}, 15, {vLANE}")
    A(f"v_add_lshl_u32 {vT[0]}, {vT[0]}, {vT[2]}, 1")
    A(f"v_cmp_eq_u32 vcc, 15, {vT[2]}")
    A(f"v_mov_b32 {vT[2]}, 0x10000")
    A(f"v_mov_b32 {vMK[1]}, 0")
    A(f"v_cndmask_b32 {vT[0]}, {vT[0]}, {vT[2]}, vcc")
    A.setexec(M_D10)
    A(f"v_mov_b32 {vMK[1]}, -1")
    A.setexec(ALL)
    A(f"v_mov_b32 {vQ0}, {vMK[1]}")
    for r in list(range(G, G + 12)) + list(range(X, X + 12)) + list(range(T1, T1 + 12)) + [H + 11]:
        A(f"v_mov_b32 v{r}, 0")
    A("s_waitcnt lgkmcnt(0)")
    A.srd_off(sX, 8, sT0, 1280)
    for n in range(11):
        A(f"buffer_load_short_d16_hi v{X+n}, {vT[0]}, s[{sX}:{sX+3}], 0 offen offset:{n*120}")
    A(f"v_lshlrev_b32 {vT[1]}, 4, {vLANE}")
    A(f"v_lshlrev_b32 {vT[2]}, 3, {vLANE}")
    A(f"s_mov_b32 {sSPIN}, {SPIN}")
    A.label("L_tabld")
    for k in range(32):
        if k % 4 == 0: A(f"s_mov_b32 {sT0}, {WS_TAB + k*1024}")
        A(f"buffer_load_dwordx4 a[{4*k}:{4*k+3}], {vT[1]}, s[{sWS}:{sWS+3}], {sT0} offen offset:{(k%4)*1024} {plf}")
    A(f"v_mov_b32 {vT[3]}, 0")
    A(f"v_add_u32 {vZ}, 0x10000, {vT[2]}")
    for k in range(32):
        if k % 8 == 0: A(f"s_waitcnt vmcnt({24 - k}) lgkmcnt(0)")
        A(f"v_accvgpr_read_b32 v{TB + (k & 1)}, a{4*k+2}")
        A(f"ds_write_b64 {vT[2] if k < 16 else vZ}, a[{4*k}:{4*k+1}] offset:{L_SC + (k%16)*512}")
        A(f"v_xor_b32 v{TB + (k & 1)}, {sTAG}, v{TB + (k & 1)}")
        if k & 1: A(f"v_or3_b32 {vT[3]}, v{TB}, v{TB+1}, {vT[3]}")
    A(f"v_cmp_ne_u32 vcc, 0, {vT[3]}")
    A(f"s_sub_u32 {sSPIN}, {sSPIN}, 1")
    A("s_waitcnt lgkmcnt(0)")
    A(f"s_cmp_eq_u32 {sSPIN}, 0")
    A("s_cbranch_scc1 L_tabok")
    A("s_cbranch_vccz L_tabok")
    A("s_sleep 8")
    A("s_branch L_tabld")
    A.label("L_tabok")
    A(f"v_mov_b32 {vZ}, {sTAG}")
    A(f"s_mov_b32 {sT1}, {WS_EP}")
    A.setexec(1)
    A(f"buffer_store_dword {vZ}, {vT[4]}, s[{sWS}:{sWS+3}], {sT1} offen sc1")
    A.setexec(ALL)
    A(f"v_lshlrev_b32 {vT[1]}, 2, {vLANE}")
    A(f"s_mov_b32 {sSPIN}, {SPIN}")
    A(f"s_mov_b32 s4, 0x80008000")
    st()
    A.label("L_poll")
    for n in range(11):
        A(f"buffer_load_dword {h[n]}, {vT[1]}, s[{sWS}:{sWS+3}], {sWQOFF} offen offset:{WS_ACC + n*256} sc1")
    A(f"s_sub_u32 {sSPIN}, {sSPIN}, 1")
    A("s_waitcnt vmcnt(0) lgkmcnt(0)")
    A(f"v_min3_f32 {vT[2]}, {h[0]}, {h[1]}, {h[2]}")
    A(f"v_min3_f32 {vT[3]}, {h[3]}, {h[4]}, {h[5]}")
    A(f"v_min3_f32 {vT[2]}, {h[6]}, {h[7]}, {vT[2]}")
    A(f"v_min3_f32 {vT[3]}, {h[8]}, {h[9]}, {vT[3]}")
    A(f"v_min3_f32 {vT[2]}, {h[10]}, {vT[2]}, {vT[3]}")
    A(f"s_cmp_eq_u32 {sSPIN}, 0")
    A("s_cbranch_scc1 L_pollok")
    A(f"v_cmp_neq_f32 vcc, {F(64.0)}, {vT[2]}")
    for n in range(2):
        A.rb(h[n], h[n])
    A("s_or_b32 vcc_lo, vcc_lo, vcc_hi")
    A("s_and_b32 vcc_lo, vcc_lo, s4")
    A("s_cbranch_scc1 L_poll")
    A.label("L_pollok")
    st()
    A.setexec(M_D)
    for n in range(2, 11):
        A.rb(h[n], h[n])
    for n in range(6):
        A(f"v_pk_add_f32 v[{H+2*n}:{H+2*n+1}], v[{H+2*n}:{H+2*n+1}], v[{X+2*n}:{X+2*n+1}]")
    for n in range(11):
        A.rb(h[n], h[n])
    if fst: A("s_memrealtime s[86:87]")
    layernorm_seg(A, H, HN, T1, 4, True, vQ0, M_D)
    if fst: A("s_memrealtime s[88:89]")
    layernorm_seg(A, HN, HN, T2, 4, False, vQ0, M_D)
    if fst: A("s_memrealtime s[90:91]")
    for n in range(11):
        A(f"v_lshrrev_b32 v{X+n}, 15, {hn[n]}")
        A(f"ds_read_u16_d16_hi v{G+n}, v{X+n} offset:{L_SC - 25600}")
    A(f"v_bfi_b32 {hn[10]}, {vQ0}, {hn[10]}, 1.0")
    A(f"v_min3_f32 {vT[2]}, abs({hn[0]}), abs({hn[1]}), abs({hn[2]})")
    A(f"v_max3_f32 {vT[3]}, abs({hn[0]}), abs({hn[1]}), abs({hn[2]})")
    for n in range(3, 11, 2):
        A(f"v_min3_f32 {vT[2]}, abs({hn[n]}), abs({hn[n+1]}), {vT[2]}")
        A(f"v_max3_f32 {vT[3]}, abs({hn[n]}), abs({hn[n+1]}), {vT[3]}")
    A(f"v_cmp_gt_f32 vcc, {F(2.0 ** -27)}, {vT[2]}")
    A(f"v_mov_b32 {vT[2]}, {F(32.0)}")
    A(f"v_cmp_le_f32 s[4:5], {vT[2]}, {vT[3]}")
    A("s_waitcnt lgkmcnt(0)")
    A("s_or_b64 vcc, vcc, s[4:5]")
    A("s_cbranch_scc1 L_direct")
    A.label("L_lookup")
    if fst: A("s_memrealtime s[92:93]")
    if padto:
        A.label("L_pad")
        A("s_memrealtime s[78:79]")
        A("s_waitcnt lgkmcnt(0)")
        A("s_sub_u32 s78, s78, s76")
        A(f"s_cmp_lt_u32 s78, {padto}")
        A("s_cbranch_scc1 L_pad")
    for n in range(6):
        A(f"v_pk_add_f32 v[{G+2*n}:{G+2*n+1}], v[{G+2*n}:{G+2*n+1}], v[{H+2*n}:{H+2*n+1}]")
    for n in range(6):
        A(f"v_cvt_pk_bf16_f32 v{G+2*n}, v{G+2*n}, v{G+2*n+1}")
    if ost is None:
        for n in range(11):
            op = "buffer_store_short" if n % 2 == 0 else "buffer_store_short_d16_hi"
            A(f"{op} v{G + (n & ~1)}, {vT[0]}, s[{sOUT}:{sOUT+3}], 0 offen offset:{n*120} {osf}")
        A.setexec(ALL)
    else:
        for n in range(11):
            op = "ds_write_b16" if n % 2 == 0 else "ds_write_b16_d16_hi"
            A(f"{op} {vT[0]}, v{G + (n & ~1)} offset:{L_XN + n*120}")
        A.setexec(ALL)
        A(f"v_lshlrev_b32 {vT[1]}, 4, {vLANE}")
        A("s_waitcnt lgkmcnt(0)")
        A(f"ds_read_b128 v[{G}:{G+3}], {vT[1]} offset:{L_XN}")
        A(f"ds_read_b128 v[{G+4}:{G+7}], {vT[1]} offset:{L_XN + 1024}")
        A("s_waitcnt lgkmcnt(1)")
        A(f"buffer_store_dwordx4 v[{G}:{G+3}], {vT[1]}, s[{sOUT}:{sOUT+3}], 0 offen {osf}")
        A("s_waitcnt lgkmcnt(0)")
        A(f"buffer_store_dwordx4 v[{G+4}:{G+7}], {vT[1]}, s[{sOUT}:{sOUT+3}], 0 offen offset:1024 {osf}")
    if stamps:
        if fst: A("s_memrealtime s[94:95]")
        A("s_waitcnt vmcnt(0)")
        st()
        st.flush(sWS, WS_STAMP + 65536, sWAVE, vT[0], vT[1])
        if dbg:
            A("s_load_dwordx2 s[4:5], s[0:1], 88")
            A("s_waitcnt lgkmcnt(0)")
            A.srd(16, "s4", "s5", 256)
            A(f"s_lshl_b32 s6, {sB}, 4")
            A(f"v_mov_b32 {vT[1]}, 0")
            A.setexec(1)
            for k, n in enumerate((3, 4, 5, 11)):
                A(f"s_sub_u32 s7, s{76+2*n}, s76")
                A(f"v_mov_b32 {vT[0]}, s7")
                A(f"buffer_store_dword {vT[0]}, {vT[1]}, s[16:19], s6 offen offset:{4*k}")
            A.setexec(ALL)
    A.label("L_done")
    if stamps:
        st.flush(sWS, WS_STAMP, sWAVE, vT[0], vT[1])
    A.label("L_end")
    A("s_endpgm")
    A.label("L_direct")
    A.setexec(ALL)
    A(f"v_lshrrev_b32 {vT[1]}, 3, {vLANE}")
    A(f"v_mul_u32_u24 {vT[1]}, 2320, {vT[1]}")
    A(f"v_and_b32 {vT[2]}, 7, {vLANE}")
    A(f"v_mul_u32_u24 {vT[2]}, 288, {vT[2]}")
    A(f"v_add_u32 {vT[1]}, {vT[1]}, {vT[2]}")
    A(f"v_add_u32 {vT[1]}, {L_W}, {vT[1]}")
    for n in range(11):
        A(f"v_bfe_u32 {vT[2]}, {hn[n]}, 23, 8")
        A(f"v_subrev_u32 {vT[2]}, 100, {vT[2]}")
        A.setexec(M_D)
        A(f"v_cmp_le_u32 s[4:5], 32, {vT[2]}")
        A.setexec(ALL)
        A.label(f"L_dir{n}")
        A("s_nop 1")
        A("s_cmp_eq_u64 s[4:5], 0")
        A(f"s_cbranch_scc1 L_dirx{n}")
        A(f"s_ff1_i32_b64 {sT0}, s[4:5]")
        A(f"v_readlane_b32 {sT1}, {hn[n]}, {sT0}")
        A(f"s_call_b64 s[6:7], L_eval")
        A(f"v_cmp_eq_u32 vcc, {sT1}, {hn[n]}")
        A("s_nop 1")
        A(f"v_cndmask_b32 v{G+n}, v{G+n}, v{TACC}, vcc")
        A("s_andn2_b64 s[4:5], s[4:5], vcc")
        A(f"s_branch L_dir{n}")
        A.label(f"L_dirx{n}")
    A.setexec(M_D)
    A("s_branch L_lookup")
    A.label("L_eval")
    A("s_nop 1")
    A(f"v_mov_b32 v{TX}, {sT1}")
    A(f"v_mov_b32 v{TX+1}, {sT1}")
    A(f"v_mov_b32 v{TACC}, 0")
    A(f"v_mov_b32 v{TACC+1}, 0")
    A(f"v_mov_b32 {vTA}, {vT[1]}")
    A("s_waitcnt lgkmcnt(0)")
    tab_reads()
    for _ in range(3):
        A(f"s_call_b64 s[{sRET}:{sRET+1}], L_tab")
    A(f"v_add_f32 v{TACC}, v{TACC}, v{TACC+1}")
    A.wave_red("add", f"v{TACC}", sT0)
    A(f"v_mov_b32 v{TACC}, {sT0}")
    tab_finish(f"v{TACC}")
    A(f"v_and_b32 v{TACC}, 0xffff0000, v{TACC}")
    A("s_setpc_b64 s[6:7]")
    A.label("L_tab")
    A("s_waitcnt lgkmcnt(0)")
    def P(r): return f"v[{r}:{r+1}]"
    W1, B1, W2 = TW, TW + 8, TW + 16
    for p in range(4): A(f"v_pk_mul_f32 {P(W1+2*p)}, {P(TX)}, {P(W1+2*p)}")
    for k in range(8): A.rb(f"v{W1+k}", f"v{W1+k}")
    for p in range(4): A(f"v_pk_add_f32 {P(W1+2*p)}, {P(W1+2*p)}, {P(B1+2*p)}")
    for k in range(8): A.rb(f"v{W1+k}", f"v{W1+k}")
    for p in range(4): A(f"v_pk_mul_f32 {P(B1+2*p)}, {P(W1+2*p)}, {P(W1+2*p)}")
    for p in range(4): A(f"v_pk_fma_f32 {P(B1+2*p)}, {P(B1+2*p)}, {P(TK1)}, s[{sK0}:{sK0+1}]")
    for p in range(4): A(f"v_pk_mul_f32 {P(B1+2*p)}, {P(B1+2*p)}, {P(W1+2*p)}")
    for k in range(8): A(f"v_exp_f32 v{B1+k}, v{B1+k}")
    for p in range(4): A(f"v_pk_add_f32 {P(B1+2*p)}, {P(B1+2*p)}, s[{sONE}:{sONE+1}]")
    for k in range(8): A(f"v_rcp_f32 v{B1+k}, v{B1+k}")
    for p in range(4): A(f"v_pk_mul_f32 {P(W1+2*p)}, {P(W1+2*p)}, {P(B1+2*p)}")
    for k in range(8): A.rb(f"v{W1+k}", f"v{W1+k}")
    for p in range(4): A(f"v_pk_fma_f32 {P(TACC)}, {P(W1+2*p)}, {P(W2+2*p)}, {P(TACC)}")
    tab_reads()
    A(f"s_setpc_b64 s[{sRET}:{sRET+1}]")
    acc = (NV + 3) // 4 * 4
    return A.text() + kd(KN, acc + 240, 102, acc)

if __name__ == "__main__":
    kw = eval("dict(%s)" % (sys.argv[2] if len(sys.argv) > 2 else ""))
    open(sys.argv[1], "w").write(gen(**kw))
```

```python
import sys
from asmlib import *

KN = "sequential_preLN__mha_block_cached__mixer_token_mlp__decode_kernel"
HDR = open("sequential_preLN__mha_block_cached__mixer_token_mlp__decode.s.ref").read().split("; Override launch")[0]
LOG2E = 1.4426950408889634
WS_ACC, WS_CNT, WS_ZEND = 0, 12288, 16384
WS_ML = 49152
WS_EP = 45056
WS_ZF = 45312
WS_TAB = 65536
WS_STAMP = 524288
WS_QP = 1 << 20
WS_SIZE = 2 << 20
L_XN = 0
L_P = 10240
L_QB = L_P + 6144
L_PH = L_QB + 512
L_W = L_PH + 1536
L_TP = L_W + 8 * 2320
L_YP = L_TP + 256
L_SC = L_YP + 10240
L_QS = L_SC + 8192
L_WQ = L_QS + 4096
L_END = L_SC + 65536 + 8192
M_D, M_D10 = 0x7FFF7FFF7FFF7FFF, 0x000003FF7FFF7FFF
M_LO, M_HI, M_T1 = 0x00FF00FF00FF00FF, 0xFF00FF00FF00FF00, 0xFF00FF0000FF00FF
ALL = (1 << 64) - 1
SPIN = 0x100000

class Stamps:
    def __init__(self, A, on, s0): self.A = A; self.on = on; self.s0 = s0; self.n = 0
    def __call__(self):
        if self.on:
            s = self.s0 + 2 * self.n
            self.A(f"s_memrealtime s[{s}:{s+1}]")
            self.n += 1
    def flush(self, srd, base, swave, v0, v1):
        if not self.on: return
        A = self.A
        A("s_waitcnt lgkmcnt(0)")
        A("s_lshl_b32 s6, s2, 2")
        A(f"s_add_u32 s6, s6, {swave}")
        A("s_lshl_b32 s6, s6, 6")
        A(f"s_add_u32 s6, s6, {base}")
        A(f"v_mov_b32 {v1}, 0")
        A.setexec(1)
        for n in range(self.n):
            A(f"v_mov_b32 {v0}, s{self.s0 + 2*n}")
            A(f"buffer_store_dword {v0}, {v1}, s[{srd}:{srd+3}], s6 offen offset:{4*n}")
        A("s_getreg_b32 s7, hwreg(HW_REG_XCC_ID)")
        A(f"v_mov_b32 {v0}, s7")
        A(f"buffer_store_dword {v0}, {v1}, s[{srd}:{srd+3}], s6 offen offset:60")
        A(f"v_mov_b32 {v0}, s51")
        A(f"buffer_store_dword {v0}, {v1}, s[{srd}:{srd+3}], s6 offen offset:56")
        A.setexec(ALL)

class VQ:
    CAP = 54
    CLASS = False
    def __init__(self, A): self.A = A; self.q = []; self.frac = 0.0
    def room(self, n):
        cap = int(self.CAP)
        self.frac += self.CAP - cap
        if self.frac >= 1.0 - 1e-9:
            self.frac -= 1.0; cap += 1
        if len(self.q) > cap - n:
            self.A(f"s_waitcnt vmcnt({cap - n})")
            self.q = self.q[len(self.q) - (cap - n):]
    def op(self, text, tag, nocap=False):
        if nocap:
            self.A(text); self.q.append(tag); return
        cap = int(self.CAP)
        self.frac += self.CAP - cap
        if self.frac >= 1.0 - 1e-9:
            self.frac -= 1.0; cap += 1
        if self.CLASS and cap < 40:
            idx = [i for i, t in enumerate(self.q) if not (isinstance(t, tuple) and t[0] == "wo")]
            if len(idx) >= cap:
                pos = idx[len(idx) - cap]
                self.A(f"s_waitcnt vmcnt({len(self.q) - 1 - pos})")
                self.q = self.q[pos + 1:]
        elif len(self.q) >= cap:
            self.A(f"s_waitcnt vmcnt({cap - 1})")
            self.q = self.q[-(cap - 1):]
        self.A(text)
        self.q.append(tag)
    def wait(self, tag):
        if tag not in self.q: return
        pos = len(self.q) - 1 - self.q[::-1].index(tag)
        self.A(f"s_waitcnt vmcnt({len(self.q) - 1 - pos})")
        self.q = self.q[pos + 1:]

def gen(T=12, ext=4, rot=13, wo_start=0, stamps=False, kf='nt', vf='nt', wf='nt', tab_start=20,
        n1=4, n1b=1, n1c=1, n2=3, capk=8, capv=6, caph=6, wo_rate=1.0, dbg=False, BL=0, pmul=1, tlb=0, st0=False, wo_late=0, cape=54, lift=4, liftcap=54, poll2=False, tabrot=False, rh=(56,48,48), burst=False, order=(0,1,2), eplate=False, wo2=0, cap0=54, nowo=False, notab=False, noend=False, wosame=False, wob=0, wobcap=True, ccap=False, hb=0, bb_=0, ml_at=28, fc_at=36, ost=None, osf='', wopre='nt', wof='', wopre2=None, noqx=False, nopub=False, wopair='sc1', wolite=0, padto=0, padfrom=0, fst=False, warm=0, wqline=True, pump=(10, 25), midat=0, midg=0, dry=False, capq=None, nq=0, capg=None, ng=0, qsf='sc1 nt', qlf='sc1 nt', psf='sc1 nt', plf='sc1 nt', noqst=False, noqld=False, notabst=False, nomlx=False, notd=False):
    if wof is None: wof = wf
    VQ.CLASS = ccap
    if dbg: stamps = True
    A = Asm()
    A.raw(HDR.rstrip())
    A.raw(f"; @launch grid=(256,1,1) block=(256,1,1) lds={L_END}")
    A.raw('.amdgcn_target "amdgcn-amd-amdhsa--gfx950"')
    A.raw(".text")
    A.raw(f".globl {KN}")
    st = Stamps(A, stamps, 76)
    NT = 64
    STEP = 12288
    REGION = 786432
    sX, sK, sV, sWQ, sWO, sWS = 24, 28, 32, 36, 40, 44
    sOUT = 36
    sTAG, sBS, sQG, sRETRY = "s48", "s49", "s50", "s51"
    sWAVE, sB, sH, sHALF, sBH, sT0, sT1 = "s52", "s53", "s54", "s55", "s56", "s57", "s58"
    sKREL, sVREL, sWB, sOFF, sWQOFF, sWOOFF, sM, sL, sF, sSPIN = "s59", "s60", "s61", "s62", "s63", "s64", "s65", "s66", "s67", "s68"
    sB2, sTB, sJMP = "s69", "s3", "s101"
    sK0, sONE, sRET = 70, 72, 74
    sFP, sMK, sTK = 8, 10, "s16"
    vLANE, vKO, vVO, vQ0, vQ1, vQ2, vWO = "v1", "v2", "v3", "v4", "v5", "v6", "v7"
    vM = ["v8", "v9", "v10", "v11"]
    vA0, vA1, vAY, vSC, vXN, vMAX, vZ = "v12", "v13", "v14", "v15", "v16", "v17", "v18"
    vT = [f"v{i}" for i in range(19, 24)]
    QB = 24
    D = 36
    O = 40
    B = 52
    ML = 60
    TW = 64
    TX, TACC, TK1 = 88, 90, 92
    vTA = "v94"
    XS = 95
    vYA = [vQ1, vQ2, vXN]; vCNT = vMAX; vMK = [f"v{TX}", f"v{TX+1}"]
    vSM = [f"v{TW+20}", f"v{TW+21}"]; vIDX = f"v{TW+22}"
    R0 = 100
    NV = R0 + 12 * T
    AW = 204
    assert NV <= 256 and ext * 12 <= AW
    vq = VQ(A)

    A.raw(".p2align 8")
    A.raw(f".type {KN},@function")
    A.label(KN)
    A("s_cmp_ge_u32 s2, 256")
    A("s_cbranch_scc1 L_end")
    st()
    if padto: A("s_memrealtime s[76:77]")
    A("s_load_dwordx8 s[8:15], s[0:1], 0")
    A("s_load_dwordx2 s[16:17], s[0:1], 32")
    A("s_load_dwordx2 s[22:23], s[0:1], 96")
    A(f"v_lshrrev_b32 {vT[0]}, 6, v0")
    A(f"v_and_b32 {vLANE}, 63, v0")
    A(f"v_readfirstlane_b32 {sWAVE}, {vT[0]}")
    A(f"s_and_b32 {sH}, s2, 7")
    A(f"s_lshr_b32 {sT0}, s2, 3")
    A(f"s_lshl_b32 {sH}, {sH}, 2")
    A(f"s_and_b32 {sT1}, {sT0}, 3")
    A(f"s_add_u32 {sH}, {sH}, {sT1}")
    A(f"s_lshr_b32 {sBS}, {sT0}, 2")
    A(f"s_lshr_b32 {sB}, {sT0}, 3")
    A(f"s_and_b32 {sHALF}, {sBS}, 1")
    A(f"s_lshl_b32 {sBH}, {sB}, 5")
    A(f"s_add_u32 {sBH}, {sBH}, {sH}")
    q, i, t0, t1 = vT[0], vT[1], vT[2], vT[3]
    A(f"v_lshrrev_b32 {q}, 4, {vLANE}")
    A(f"v_and_b32 {i}, 15, {vLANE}")
    A(f"v_lshrrev_b32 {t0}, 2, {i}")
    A(f"v_mul_u32_u24 {vKO}, 768, {t0}")
    A(f"v_lshl_add_u32 {vKO}, {q}, 6, {vKO}")
    A(f"v_and_b32 {t0}, 3, {i}")
    A(f"v_lshl_add_u32 {vKO}, {t0}, 4, {vKO}")
    A(f"v_mul_u32_u24 {vVO}, 768, {q}")
    A(f"v_lshl_add_u32 {vVO}, {i}, 4, {vVO}")
    A(f"v_lshrrev_b32 {vQ0}, 3, {vLANE}")
    A(f"v_mul_u32_u24 {vQ0}, 12288, {vQ0}")
    A(f"v_and_b32 {vQ1}, 7, {vLANE}")
    A(f"v_lshl_add_u32 {vQ0}, {vQ1}, 4, {vQ0}")
    A(f"v_mul_u32_u24 {vWO}, 1280, {q}")
    A(f"v_lshl_add_u32 {vWO}, {i}, 4, {vWO}")
    for r in range(O, O + 12):
        A(f"v_mov_b32 v{r}, 0")
    A(f"v_lshlrev_b32 {t0}, 4, v0")
    A(f"v_lshlrev_b32 {t1}, 2, {vLANE}")
    A(f"s_lshl_b32 {sT1}, {sBH}, 1")
    A(f"s_add_u32 {sT1}, {sT1}, {sHALF}")
    if rh is None:
        A(f"s_mul_i32 {sKREL}, {sT1}, {rot}")
    else:
        A(f"s_mul_i32 {sKREL}, {sHALF}, {rh[0]}")
        A(f"s_mul_i32 {sT0}, {sH}, {rh[1]}")
        A(f"s_add_u32 {sKREL}, {sKREL}, {sT0}")
        A(f"s_mul_i32 {sT0}, {sB}, {rh[2]}")
        A(f"s_add_u32 {sKREL}, {sKREL}, {sT0}")
    A(f"s_and_b32 {sKREL}, {sKREL}, 63")
    A(f"s_mov_b32 {sVREL}, {sKREL}")
    if BL:
        A(f"s_mul_i32 {sJMP}, {sT1}, {pmul}")
        A(f"s_lshr_b32 {sJMP}, {sJMP}, 2")
        A(f"s_lshl_b32 {sJMP}, {sJMP}, 1")
        A(f"s_mul_i32 {sJMP}, {sJMP}, {BL}")
        A(f"s_add_u32 {sJMP}, {sJMP}, 1")
    A(f"s_mul_i32 {sT1}, {sT1}, {REGION}")
    A(f"s_mul_i32 {sWB}, {sWAVE}, 3072")
    A(f"s_mul_i32 {sOFF}, {sH}, 384")
    A(f"s_mul_i32 {sWQOFF}, {sBS}, 240")
    A(f"s_lshl_b32 {sT0}, {sWAVE}, 3")
    A(f"s_add_u32 {sM}, {sWQOFF}, {sT0}")
    A(f"s_mul_i32 {sT0}, {sM}, 1639")
    A(f"s_lshr_b32 {sT0}, {sT0}, 20")
    A(f"s_mul_i32 {sL}, {sT0}, 640")
    A(f"s_sub_u32 {sM}, {sM}, {sL}")
    A(f"s_mul_i32 {sM}, {sM}, 12288")
    A(f"s_lshl_b32 {sT0}, {sT0}, 7")
    A(f"s_add_u32 {sM}, {sM}, {sT0}")
    A(f"s_lshr_b32 {sT0}, {sWAVE}, 1")
    A(f"s_mul_i32 {sWOOFF}, {sT0}, {96*1280}")
    A(f"s_and_b32 {sT0}, {sWAVE}, 1")
    A(f"s_mul_i32 {sT0}, {sT0}, {4*1280}")
    A(f"s_add_u32 {sWOOFF}, {sWOOFF}, {sT0}")
    A(f"s_mul_i32 {sT0}, {sWAVE}, 1280")
    A(f"s_mov_b32 {sRETRY}, 0")
    A("s_waitcnt lgkmcnt(0)")
    if st0: st()
    if tabrot:
        A("s_load_dwordx2 s[4:5], s[0:1], 40")
        A("s_lshl_b32 s6, s2, 2")
        A("s_waitcnt lgkmcnt(0)")
        A(f"s_load_dword {sKREL}, s[4:5], s6")
        A("s_waitcnt lgkmcnt(0)")
        A(f"s_and_b32 {sKREL}, {sKREL}, 63")
        A(f"s_mov_b32 {sVREL}, {sKREL}")
    if warm:
        A.srd_off(sK, 10, sT1, REGION)
        A.srd_off(sWQ, 14, sOFF, 79 * 12288 + 384)
        A(f"s_mul_i32 s4, {sH}, 245760")
        A.srd_off(sWO, 16, "s4", 245760)
        A(f"s_mul_i32 s4, {sKREL}, {STEP}")
        A.setexec(1)
        vq.op(f"buffer_load_dword a100, {t1}, s[{sK}:{sK+3}], s4 offen nt", "warm")
        vq.op(f"buffer_load_dword a101, {t1}, s[{sWO}:{sWO+3}], 0 offen nt", "warm")
        vq.op(f"buffer_load_dword a102, {t1}, s[{sWQ}:{sWQ+3}], 0 offen nt", "warm")
        A.setexec(ALL)
    A.srd_off(sX, 8, sT0, 1280)
    for n in range(5):
        vq.op(f"buffer_load_dword v{XS+n}, {t1}, s[{sX}:{sX+3}], 0 offen offset:{n*256}", "x")
    A.srd_off(sWQ, 14, sOFF, 639 * 12288 + 384)
    for k in range(8):
        if k == 7:
            A(f"s_cmp_ge_u32 {sWAVE}, 2")
            A(f"s_cselect_b32 {sM}, 0x7000000, {sM}")
        vq.op(f"buffer_load_dwordx4 a[{AW+4*k}:{AW+4*k+3}], {vQ0}, s[{sWQ}:{sWQ+3}], {sM} offen {wf}", "wq")
        if k < 7:
            A(f"s_add_u32 {sM}, {sM}, {32*12288}")
            A(f"s_cmp_ge_u32 {sM}, {640*12288}")
            A(f"s_cselect_b32 {sL}, {640*12288 - 128}, 0")
            A(f"s_sub_u32 {sM}, {sM}, {sL}")
    A.srd_off(sK, 10, sT1, REGION)
    A.srd_off(sV, 12, sT1, REGION)
    A(f"s_mul_i32 {sT0}, {sH}, 245760")
    A.srd_off(sWO, 16, sT0, 245760)
    A.srd(sWS, "s22", "s23", WS_SIZE)
    A("s_load_dwordx8 s[8:15], s[0:1], 48")
    A("s_load_dwordx2 s[20:21], s[0:1], 80")
    if not eplate: A(f"s_load_dword {sTAG}, s[22:23], {WS_EP}")

    def treg(slot, t):
        if slot < T:
            r = R0 + slot * 12 + t * 4
            return f"v[{r}:{r+3}]"
        r = (slot - T) * 12 + t * 4
        return f"a[{r}:{r+3}]"
    def ld_tile(slot, isv, n):
        rel, srd, off = (sVREL, sV, vVO) if isv else (sKREL, sK, vKO)
        A(f"s_mul_i32 {sOFF}, {rel}, {STEP}")
        A(f"s_add_u32 {sOFF}, {sOFF}, {sWB}")
        if burst: vq.room(3)
        for t in order:
            vq.op(f"buffer_load_dwordx4 {treg(slot, t)}, {off}, s[{srd}:{srd+3}], {sOFF} offen offset:{t*256} {vf if isv else kf}", ("v" if isv else "k", n), nocap=burst)
        A(f"s_add_u32 {rel}, {rel}, {sJMP if (BL and (n + 1) % BL == 0) else 1}")
        A(f"s_and_b32 {rel}, {rel}, 63")
    def ld_wo(n):
        p_, c = divmod(n >> 1, 5)
        rg = 2 * p_ + (n & 1)
        if nowo:
            A("s_nop 0"); return
        A(f"s_add_u32 {sOFF}, {sWOOFF}, {0 if wosame else rg*8*1280}")
        vq.op(f"buffer_load_dwordx4 a[{4*n}:{4*n+3}], {vWO}, s[{sWO}:{sWO+3}], {sOFF} offen offset:{c*256} {wof}", ("wo", n), nocap=not wobcap)
    kis = [0]
    def head_k(n):
        for _ in range(n):
            if kis[0] < T + ext:
                ld_tile(kis[0], False, kis[0]); kis[0] += 1
    def wo_touch(wopre):
        A(f"s_mul_i32 {sOFF}, {sBS}, 30720")
        A(f"s_mul_i32 {sT0}, {sWAVE}, 7680")
        A(f"s_add_u32 {sOFF}, {sOFF}, {sT0}")
        if wolite:
            if wolite == 2:
                A(f"v_lshlrev_b32 {vZ}, 4, {vLANE}")
                for k in range(8):
                    if k == 7: A.setexec(0xffffffff)
                    if k == 4: A(f"s_add_u32 {sT0}, {sOFF}, 4096")
                    vq.op(f"buffer_load_dwordx4 a[{160+4*k}:{163+4*k}], {vZ}, s[{sWO}:{sWO+3}], {sOFF if k < 4 else sT0} offen offset:{(k%4)*1024} nt", "wop")
                A.setexec((1 << 60) - 1)
                A(f"v_lshlrev_b32 {vZ}, 7, {vLANE}")
                vq.op(f"buffer_load_dword a120, {vZ}, s[{sWO}:{sWO+3}], {sOFF} offen sc1", "wop")
            else:
                A(f"v_lshlrev_b32 {vZ}, 7, {vLANE}")
                A.setexec((1 << 60) - 1)
                for fl in ("nt", "sc1"):
                    for k in range(2):
                        vq.op(f"buffer_load_dword a{120+k}, {vZ}, s[{sWO}:{sWO+3}], {sOFF} offen offset:{64*k} {fl}", "wop")
            A.setexec(ALL)
            return
        A(f"v_lshlrev_b32 {vZ}, 4, {vLANE}")
        for k in range(8):
            if k == 4: A(f"s_add_u32 {sOFF}, {sOFF}, 4096")
            if k == 7: A.setexec(0xffffffff)
            vq.op(f"buffer_load_dwordx4 a[{160+4*k}:{163+4*k}], {vZ}, s[{sWO}:{sWO+3}], {sOFF} offen offset:{(k%4)*1024} {wopre}", "wop")
            if wopair is not None:
                vq.op(f"buffer_load_dwordx4 a[{120+4*k}:{123+4*k}], {vZ}, s[{sWO}:{sWO+3}], {sOFF} offen offset:{(k%4)*1024} {wopair}", "wop")
        A.setexec(ALL)
    if wopre is not None: wo_touch(wopre)
    head_k(1)
    A("s_cmp_lg_u32 s2, 0")
    A("s_cbranch_scc1 L_nozero")
    for n in range(WS_ZEND // 4096):
        A(f"s_movk_i32 {sT0}, {n*4096}")
        A(f"buffer_store_dwordx4 v[{O}:{O+3}], {t0}, s[{sWS}:{sWS+3}], {sT0} offen sc1")
    A.label("L_nozero")
    A("s_waitcnt lgkmcnt(0)")
    sW = 16
    for ptr, dst in ((8, B), (10, B + 4), (12, D)):
        A.srd(sW, f"s{ptr}", f"s{ptr+1}", 3072)
        vq.op(f"buffer_load_dwordx4 v[{dst}:{dst+3}], {t0}, s[{sW}:{sW+3}], 0 offen", "mw")
    A(f"s_load_dword {sB2}, s[14:15], 0")
    def mktag():
        A(f"s_mul_i32 {sTAG}, {sTAG}, 0x2c9277b5")
        A(f"s_add_u32 {sTAG}, {sTAG}, 0x7f4a7c15")
    if eplate: A(f"s_load_dword {sTAG}, s[22:23], {WS_EP}")
    else: mktag()
    jl = vT[2]
    A(f"v_and_b32 {jl}, 7, {vLANE}")
    A(f"v_and_b32 {t1}, 1, {vLANE}")
    A(f"v_cmp_eq_u32 vcc, 1, {t1}")
    A(f"v_mov_b32 {vT[4]}, 0xffff")
    A(f"v_mov_b32 {vM[3]}, 0xffff0000")
    A(f"v_cndmask_b32 {vT[4]}, {vT[4]}, {vM[3]}, vcc")
    A(f"v_lshrrev_b32 {t1}, 1, {jl}")
    for r in range(4):
        A(f"v_cmp_eq_u32 vcc, {r}, {t1}")
        A("s_nop 1")
        A(f"v_cndmask_b32 {vM[r]}, 0, {vT[4]}, vcc")
    A(f"v_lshl_add_u32 {vAY}, {q}, 3, {jl}")
    A(f"v_lshlrev_b32 {vAY}, 4, {vAY}")
    A(f"s_mul_i32 {sT0}, {sWAVE}, 1536")
    A(f"v_add_u32 {vA0}, {sT0}, {vAY}")
    A(f"s_mul_i32 {sT0}, {sWAVE}, 2560")
    A(f"v_lshrrev_b32 {t1}, 3, {vLANE}")
    A(f"v_lshl_add_u32 {vXN}, {t1}, 2, {sT0}")
    A(f"s_lshl_b32 {sT0}, {sWAVE}, 11")
    A(f"s_add_u32 {sT0}, {sT0}, {L_SC}")
    A(f"v_lshl_add_u32 {vSC}, {t1}, 2, {sT0}")
    A(f"v_mov_b32 {vMAX}, 0xff800000")
    A(f"v_lshlrev_b32 {vA1}, 2, v0")
    A(f"s_lshl_b32 {sT0}, s2, 2")
    A(f"s_add_u32 {sT0}, {sT0}, {sWAVE}")
    A(f"s_lshr_b32 {sT1}, {sT0}, 9")
    A(f"s_lshl_b32 {sT1}, {sT1}, 15")
    A(f"s_and_b32 {sT0}, {sT0}, 511")
    A(f"s_lshl_b32 {sT0}, {sT0}, 3")
    A(f"s_add_u32 {sT0}, {sT0}, 12800")
    A(f"s_or_b32 {sTB}, {sT0}, {sT1}")
    A(f"v_add_lshl_u32 v{TX}, {jl}, {sTB}, 16")
    A(f"v_mov_b32 v{TX+1}, v{TX}")
    A(f"v_mov_b32 v{TACC}, 0")
    A(f"v_mov_b32 v{TACC+1}, 0")
    K0 = -2.0 * 0.7978845608028654 * LOG2E
    A(f"v_mov_b32 v{TK1}, {F(K0 * 0.044715)}")
    A(f"v_mov_b32 v{TK1+1}, {F(K0 * 0.044715)}")
    A(f"s_mov_b32 s{sK0}, {F(K0)}")
    A(f"s_mov_b32 s{sK0+1}, {F(K0)}")
    A(f"s_mov_b32 s{sONE}, 1.0")
    A(f"s_mov_b32 s{sONE+1}, 1.0")
    A(f"v_mul_u32_u24 {vTA}, 2320, {t1}")
    A(f"v_add_u32 {vTA}, {L_W}, {vTA}")
    vq.CAP = cap0
    head_k(n1 - 1)
    vq.wait("x")
    if not st0: st()
    for n in range(5):
        A(f"v_lshlrev_b32 v{TW+2*n}, 16, v{XS+n}")
        A(f"v_and_b32 v{TW+2*n+1}, 0xffff0000, v{XS+n}")
    layernorm_fast(A, TW, QB, TW + 10, 4, True)
    A(f"s_mul_i32 {sT0}, {sWAVE}, 2560")
    A(f"v_lshl_add_u32 {vT[2]}, {vLANE}, 3, {sT0}")
    for n in range(10):
        A(f"v_cvt_pk_bf16_f32 v{QB+n}, v{QB+n}, v{QB+n}")
    for n in range(5):
        A(f"ds_write_b64 {vT[2]}, v[{QB+2*n}:{QB+2*n+1}] offset:{L_XN + n*512}")
    A(f"v_lshlrev_b32 {vZ}, 4, {vLANE}")
    A(f"s_lshl_b32 {sT0}, {sWAVE}, 10")
    A(f"s_add_u32 {sT0}, {sT0}, {L_WQ}")
    A(f"v_add_u32 {vT[2]}, {sT0}, {vZ}")
    vq.wait("wq")
    A("s_waitcnt lgkmcnt(0)")
    if eplate: mktag()
    for k in range(8):
        A(f"ds_write_b128 {vT[2]}, a[{AW+4*k}:{AW+4*k+3}] offset:{k*4096}")
    if wopre2 is not None:
        vq.wait("wop")
        wo_touch(wopre2)
    head_k(n1b)
    vq.wait("mw")
    A("s_waitcnt lgkmcnt(0)")
    A(f"s_cmp_eq_u32 {sWAVE}, 3")
    A("s_cbranch_scc1 L_now")
    for k, src in enumerate((B, B + 4, D)):
        for n in range(4):
            A(f"v_lshlrev_b32 v{TW+8*k+2*n}, 16, v{src+n}")
            A(f"v_and_b32 v{TW+8*k+2*n+1}, 0xffff0000, v{src+n}")
    A(f"v_mul_u32_u24 {vT[3]}, 2731, v0")
    A(f"v_mul_u32_u24 {vT[2]}, 96, v0")
    A(f"v_lshrrev_b32 {vT[3]}, 16, {vT[3]}")
    A(f"v_lshl_add_u32 {vT[2]}, {vT[3]}, 4, {vT[2]}")
    A(f"v_mov_b32 {vT[3]}, 0")
    A(f"ds_write_b32 {vT[3]}, {vT[3]} offset:{L_TP + 128}")
    for k in range(6):
        A(f"ds_write_b128 {vT[2]}, v[{TW+4*k}:{TW+4*k+3}] offset:{L_W + 16*k}")
    A("s_waitcnt lgkmcnt(0)")
    A.label("L_now")
    XP = [QB + n for n in range(10)] + [TW + n for n in range(20)]
    for u in range(3):
        A(f"s_add_u32 {sT0}, {sWQOFF}, {80*u}")
        A(f"s_mul_i32 {sT1}, {sT0}, 1639")
        A(f"s_lshr_b32 {sT1}, {sT1}, 20")
        A(f"s_mul_i32 {sT1}, {sT1}, 640")
        A(f"s_sub_u32 {sT0}, {sT0}, {sT1}")
        A(f"s_lshl_b32 {sT0}, {sT0}, 2")
        A(f"v_add_u32 {vT[3]}, {sT0}, {vXN}")
        if u: A("s_waitcnt lgkmcnt(4)")
        for n in range(10):
            A(f"ds_read_b32 v{XP[10*u+n]}, {vT[3]} offset:{L_XN + n*32}")
    A(f"v_add_u32 {vT[2]}, {L_WQ}, {vZ}")
    A(f"v_mov_b32 {vT[4]}, 0")
    A("s_waitcnt lgkmcnt(0)")
    A("s_barrier")
    A(f"s_or_b32 {sT0}, s2, {sWAVE}")
    A(f"s_cmp_lg_u32 {sT0}, 0")
    A("s_cbranch_scc1 L_noflag")
    for r in range(4):
        A(f"v_mov_b32 v{ML+r}, {sTAG}")
    A(f"s_mov_b32 {sT0}, {WS_ZF}")
    A.setexec(1)
    A(f"buffer_store_dwordx4 v[{ML}:{ML+3}], {vT[4]}, s[{sWS}:{sWS+3}], {sT0} offen sc1")
    A.setexec(ALL)
    A.label("L_noflag")
    def wq_read(n):
        r = AW + (n % 8) * 4
        A(f"ds_read_b128 a[{r}:{r+3}], {vT[2]} offset:{n*1024}")
    for n in range(7): wq_read(n)
    head_k(n1c)
    for n in range(30):
        bb = B + 4 * (n & 1)
        for r in range(4):
            A(f"v_and_b32 v{bb+r}, v{XP[n]}, {vM[r]}")
        if n + 7 < 30: wq_read(n + 7)
        else: A("s_nop 0")
        A(f"s_waitcnt lgkmcnt({min(7, 29 - n)})")
        r = AW + (n % 8) * 4
        u = n // 10
        A(f"v_mfma_f32_16x16x32_bf16 v[{O+4*u}:{O+4*u+3}], a[{r}:{r+3}], v[{bb}:{bb+3}], v[{O+4*u}:{O+4*u+3}]")
        if n in pump: head_k(1)
    def lds_put3():
        A.setexec(M_LO)
        A(f"ds_write_b128 {vA0}, v[{O}:{O+3}] offset:{L_P}")
        A.setexec(M_T1)
        A(f"ds_write_b128 {vA0}, v[{O+4}:{O+7}] offset:{L_P + 512}")
        A.setexec(M_HI)
        A(f"ds_write_b128 {vA0}, v[{O+8}:{O+11}] offset:{L_P + 768 + 256}")
        A.setexec(ALL)
    A(f"s_cmp_eq_u32 {sBS}, 5")
    A(f"s_cselect_b32 s4, 0, 1.0")
    A(f"s_cselect_b32 s6, 1.0, 0")
    A(f"s_cselect_b32 s5, 0, 1.0")
    A(f"s_cselect_b32 s7, 0xffffff, 0")
    A(f"s_cmp_eq_u32 {sBS}, 2")
    A(f"s_cselect_b32 s5, 0, s5")
    A(f"s_cselect_b32 s7, 0xffffff, s7")
    A(f"s_cmp_gt_u32 {sBS}, 2")
    A(f"s_addc_u32 {sT1}, {sBS}, 0")
    A(f"s_cmp_gt_u32 {sBS}, 5")
    A(f"s_addc_u32 {sT1}, {sT1}, 0")
    A(f"s_mul_i32 {sT1}, {sT1}, 384")
    A(f"s_lshl_b32 {sT0}, {sH}, 2")
    A(f"s_add_u32 {sQG}, {sT0}, {sWAVE}")
    A(f"s_lshl_b32 {sQG}, {sQG}, 12")
    A(f"s_add_u32 {sT1}, {sT1}, {sQG}")
    A(f"s_add_u32 {sT1}, {sT1}, {WS_QP}")
    A(f"s_add_u32 {sQG}, {sT0}, {sB}")
    A(f"s_lshl_b32 {sQG}, {sQG}, 2")
    A(f"s_add_u32 {sQG}, {sQG}, {sWAVE}")
    A(f"s_lshl_b32 {sQG}, {sQG}, 10")
    A(f"s_add_u32 {sQG}, {sQG}, {WS_QP}")
    for r in range(4):
        A(f"v_fmac_f32 v{O+r}, s4, v{O+4+r}")
    for r in range(4):
        A(f"v_fmac_f32 v{O+r}, s5, v{O+8+r}")
    for r in range(4):
        A(f"v_fmac_f32 v{O+8+r}, s6, v{O+4+r}")
    A.setexec(M_T1)
    A(f"ds_write_b128 {vA0}, v[{O}:{O+3}] offset:{L_P}")
    A(f"ds_write_b128 {vA0}, v[{O+8}:{O+11}] offset:{L_P + 512}")
    A.setexec(ALL)
    A(f"s_mul_i32 {sT0}, {sWAVE}, 1536")
    A(f"v_and_b32 {vT[2]}, 31, {vLANE}")
    A(f"v_lshrrev_b32 {vT[3]}, 5, {vLANE}")
    A(f"v_mul_u32_u24 {vQ0}, 384, {vT[3]}")
    A(f"v_lshl_add_u32 {vQ0}, {vT[2]}, 4, {vQ0}")
    A(f"v_lshl_add_u32 {vT[2]}, {vT[2]}, 2, {sT0}")
    A(f"v_lshl_add_u32 {vT[2]}, {vT[3]}, 9, {vT[2]}")
    A("s_waitcnt lgkmcnt(0)")
    for k in range(6):
        A(f"ds_read_b32 v{B+k}, {vT[2]} offset:{L_P + 88*(k%3) + 256*(k//3)}")
    A(f"v_mov_b32 v{D+3}, {sTAG}")
    A("s_waitcnt lgkmcnt(0)")
    for k in range(3):
        A(f"v_add_f32 v{D+k}, v{B+k}, v{B+3+k}")
    A("s_mov_b32 exec_lo, 0xffffff")
    A("s_mov_b32 exec_hi, s7")
    vq.op(f"buffer_store_dwordx4 v[{D}:{D+3}], {vQ0}, s[{sWS}:{sWS+3}], {sT1} offen {qsf}", "qst")
    A.setexec(ALL)
    A(f"s_cmp_eq_u32 {sWAVE}, 3")
    A(f"s_cselect_b32 {sF}, 0xffff, -1")
    st()
    if nq:
        vq.CAP = capq
        head_k(nq)
    vq.CAP = caph
    head_k(n2 - nq)
    def q_gather(track):
        A(f"s_mov_b32 exec_hi, {sF}")
        txt = f"buffer_load_dwordx4 v[{B}:{B+3}], {vZ}, s[{sWS}:{sWS+3}], {sQG} offen {qlf}"
        if track: vq.op(txt, "qg")
        else: A(txt)
        A.setexec(ALL)
    if not (noqx or noqld): q_gather(True)
    if midg:
        for k in range(1, 4):
            A(f"s_xor_b32 {sT0}, {sQG}, {4096*k}")
            vq.op(f"buffer_load_dwordx4 a[{100+4*k}:{103+4*k}], {vZ}, s[{sWS}:{sWS+3}], {sT0} offen {qlf}", "qg2")
    if tlb:
        A(f"v_lshlrev_b32 {vQ0}, 16, {vLANE}")
        A.setexec(0xfff)
        vq.op(f"buffer_load_dword v{ML}, {vQ0}, s[{sV}:{sV+3}], 0 offen nt", "tlb")
        if tlb > 1:
            vq.op(f"buffer_load_dword v{ML+1}, {vQ0}, s[{sK}:{sK+3}], 0 offen nt", "tlb")
            vq.op(f"buffer_load_dword v{ML+2}, {vQ0}, s[{sWO}:{sWO+3}], 0 offen nt", "tlb")
        A.setexec(ALL)
    if ng:
        vq.CAP = capg
        head_k(ng)
        vq.CAP = caph
    head_k(T + ext - kis[0] - hb)
    vq.CAP = 54
    head_k(99)
    q, i, t0, t1 = vT[0], vT[1], vT[2], vT[3]
    A(f"v_and_b32 {t0}, 32, {vLANE}")
    A(f"v_and_b32 {t1}, 3, {vLANE}")
    A(f"v_lshl_add_u32 {t0}, {t1}, 3, {t0}")
    A(f"v_bfe_u32 {t1}, {vLANE}, 2, 3")
    A(f"v_add_lshl_u32 {vXN}, {t0}, {t1}, 1")
    A(f"v_lshlrev_b32 {vQ1}, 4, v0")
    A(f"v_mul_u32_u24 {t0}, 47, {vLANE}")
    A(f"v_lshrrev_b32 {t0}, 10, {t0}")
    A(f"v_mul_u32_u24 {t1}, 348, {t0}")
    A(f"v_sub_u32 {vQ0}, {vZ}, {t1}")
    A(f"v_and_b32 {t0}, 3, {vLANE}")
    A(f"v_lshl_add_u32 {t0}, {q}, 2, {t0}")
    A(f"v_and_b32 {t1}, 8, {vLANE}")
    A(f"v_add_lshl_u32 {vQ2}, {t0}, {t1}, 4")
    A(f"v_cmp_gt_u32 vcc, 8, {i}")
    A(f"v_add_u32 {t1}, 16, {t0}")
    A(f"v_subrev_u32 {t0}, 8, {t0}")
    A(f"v_cndmask_b32 {t0}, {t0}, {t1}, vcc")
    A(f"v_lshlrev_b32 {t0}, 4, {t0}")
    for r in range(12):
        A(f"v_mov_b32 v{QB+r}, 0")
    vq.wait("qg")
    A(f"s_mov_b32 {sSPIN}, {1 if (noqx or noqst or noqld) else SPIN}")
    A.label("L_qchk")
    A(f"v_cmp_ne_u32 vcc, {sTAG}, v{B+3}")
    A("s_nop 1")
    A(f"s_and_b32 vcc_hi, vcc_hi, {sF}")
    A("s_or_b32 vcc_lo, vcc_lo, vcc_hi")
    A("s_cbranch_scc0 L_qok")
    A(f"s_sub_u32 {sSPIN}, {sSPIN}, 1")
    A(f"s_cmp_eq_u32 {sSPIN}, 0")
    A("s_cbranch_scc1 L_qok")
    A(f"s_add_u32 {sRETRY}, {sRETRY}, 1")
    A("s_sleep 2")
    q_gather(False)
    A("s_waitcnt vmcnt(0)")
    A("s_branch L_qchk")
    A.label("L_qok")
    A(f"ds_write_b128 {vQ1}, v[{B}:{B+3}] offset:{L_QS}")
    A("s_waitcnt lgkmcnt(0)")
    A("s_barrier")
    RD = [O, O + 3, O + 4, O + 1, O + 5, O + 6, O + 7, O + 2, O + 8, O + 9]
    for k in range(10):
        A(f"ds_read_b32 v{RD[k]}, {vQ0} offset:{L_QS + 384*k}")
    A("s_waitcnt lgkmcnt(0)")
    A(f"v_add_f32 v{O}, v{O}, v{O+3}")
    A(f"v_add_f32 v{O+1}, v{O+1}, v{O+5}")
    A(f"v_add_f32 v{O+2}, v{O+2}, v{O+8}")
    A(f"v_add_f32 v{O+6}, v{O+6}, v{O+7}")
    A(f"v_add_f32 v{O}, v{O}, v{O+4}")
    A(f"v_add_f32 v{O+2}, v{O+2}, v{O+9}")
    A(f"v_add_f32 v{O+1}, v{O+1}, v{O+6}")
    for k in range(3):
        A(f"v_cvt_pk_bf16_f32 v{O+k}, v{O+k}, v{O+k}")
    for k in range(3):
        A(f"ds_write_b16 {vXN}, v{O+k} offset:{L_QB + 128*k}")
    A("s_waitcnt lgkmcnt(0)")
    A.setexec(M_LO)
    A(f"ds_read_b128 v[{QB}:{QB+3}], {vQ2} offset:{L_QB}")
    A.setexec(M_HI)
    A(f"ds_read_b128 v[{QB+8}:{QB+11}], {vQ2} offset:{L_QB}")
    A.setexec(M_T1)
    A(f"ds_read_b128 v[{QB+4}:{QB+7}], {t0} offset:{L_QB}")
    A.setexec(ALL)
    for r in range(O, O + 12):
        A(f"v_mov_b32 v{r}, 0")
    def tab_reads():
        for k in range(6):
            A(f"ds_read_b128 v[{TW+4*k}:{TW+4*k+3}], {vTA} offset:{16*k}")
        A(f"v_add_u32 {vTA}, 96, {vTA}")
    A("s_waitcnt lgkmcnt(0)")
    tab_reads()
    ncalls = [0]
    published = [False]
    def tab_finish(dst):
        A.rb(dst, dst)
        A(f"v_add_f32 {dst}, {sB2}, {dst}")
        A(f"v_cvt_pk_bf16_f32 {dst}, {dst}, {dst}")
    def tab_publish():
        ta, tb = f"v{TACC}", f"v{TACC+1}"
        A(f"v_add_f32 {ta}, {ta}, {tb}")
        A("s_nop 1")
        A(f"v_add_f32_dpp {ta}, {ta}, {ta} row_ror:8 row_mask:0xf bank_mask:0xf")
        A(f"v_mov_b32 {tb}, {ta}")
        A("s_nop 1")
        A(f"v_permlane16_swap_b32 {ta}, {tb}")
        A(f"v_add_f32 {ta}, {ta}, {tb}")
        A(f"v_mov_b32 {tb}, {ta}")
        A("s_nop 1")
        A(f"v_permlane32_swap_b32 {ta}, {tb}")
        A(f"v_add_f32 {ta}, {ta}, {tb}")
        tab_finish(ta)
        A(f"s_lshl_b32 {sT0}, {sWAVE}, 4")
        A(f"v_lshl_add_u32 {tb}, {vLANE}, 1, {sT0}")
        A.setexec(0xff)
        A(f"ds_write_b16 {tb}, {ta} offset:{L_TP}")
        A.setexec(ALL)
    A(f"s_lshl_b32 {sB2}, {sB2}, 16")
    st()
    s = vT[0]
    slot_of = list(range(T + ext))
    nxt = [T + ext]
    def refill(slot):
        if slot >= T or nxt[0] >= 2 * NT: return False
        m = nxt[0]; nxt[0] += 1
        slot_of.append(slot)
        ld_tile(slot, m >= NT, m % NT)
        return True
    NR = 4
    use_order = list(range(60))
    late = use_order[60 - wo_late:]
    wo_order = [k for k in list(range(3 * ext, 60)) + list(range(3 * ext)) if k not in late] + late
    wo_left = [60]
    if wob:
        f = -(-3 * ext // 5) * 5
        wo_order = list(range(f, 60)) + list(range(f))
    def wo_step(n):
        if wob:
            if n % wob != wob - 1 or wo_left[0] == 0: return False
            assert wo_order[60 - wo_left[0]] >= 3 * ext or n >= T + ext
            for _ in range(wob):
                ld_wo(wo_order[60 - wo_left[0]]); wo_left[0] -= 1
            return True
        if n < wo_start or wo_left[0] <= wo_late: return False
        if not wo2 and (n - wo_start + 1) * wo_rate < 60 - wo_left[0] + 1 - 1e-9: return False
        k = wo_order[60 - wo_left[0]]
        if k < 3 * ext and n % 1000 < T + k // 3: return False
        ld_wo(k); wo_left[0] -= 1
        return True
    vq.CAP = capk
    for n in range(NT):
        if n == NT - T or wo_left[0] <= wo_late: vq.CAP = capv
        if n >= NT - bb_: vq.CAP = 54
        slot = slot_of[n]
        vq.wait(("k", n))
        for tt in range(3):
            c = "0" if tt == 0 else f"v[{D}:{D+3}]"
            A(f"v_mfma_f32_16x16x32_bf16 v[{D}:{D+3}], {treg(slot, tt)}, v[{QB+4*tt}:{QB+4*tt+3}], {c}")
        if not refill(slot): A("s_nop 6")
        if not wo_step(n): A("s_nop 0")
        if n < wo2: wo_step(n + 1000)
        s2 = vT[1]
        A(f"v_mov_b32_dpp {s}, v{D} quad_perm:[0,0,0,0] row_mask:0xf bank_mask:0xf")
        A(f"v_mov_b32_dpp {s2}, v{D+2} quad_perm:[2,2,2,2] row_mask:0xf bank_mask:0xf")
        A("s_nop 0")
        A(f"v_add_f32_dpp {s}, v{D+1}, {s} quad_perm:[1,1,1,1] row_mask:0xf bank_mask:0xf")
        A(f"v_add_f32_dpp {s2}, v{D+3}, {s2} quad_perm:[3,3,3,3] row_mask:0xf bank_mask:0xf")
        A(f"v_add_f32 {s}, {s}, {s2}")
        A.rb(s, s)
        A(f"v_mul_f32 {s}, {F(192 ** -0.5)}, {s}")
        A.rb(s, s)
        A(f"v_max_f32 {vMAX}, {vMAX}, {s}")
        A(f"ds_write_b32 {vSC}, {s} offset:{n*32}")
        if n >= tab_start:
            if ncalls[0] < 24:
                if not notab: A(f"s_call_b64 s[{sRET}:{sRET+1}], L_tab")
                ncalls[0] += 1
            elif not published[0]:
                published[0] = True
                tab_publish()
    assert published[0]
    st()
    A.wave_red("max", vMAX, sM)
    A(f"s_lshl_b32 {sT0}, {sWAVE}, 11")
    A(f"s_add_u32 {sT0}, {sT0}, {L_SC}")
    A(f"v_lshl_add_u32 {vT[0]}, {vLANE}, 5, {sT0}")
    A("s_waitcnt lgkmcnt(0)")
    A(f"ds_read_b128 v[{B}:{B+3}], {vT[0]}")
    A(f"ds_read_b128 v[{B+4}:{B+7}], {vT[0]} offset:16")
    A("s_waitcnt lgkmcnt(0)")
    for r in range(8):
        A(f"v_subrev_f32 v{B+r}, {sM}, v{B+r}")
    for r in range(8):
        A(f"v_mul_f32 v{B+r}, {F(LOG2E)}, v{B+r}")
    for r in range(8):
        A(f"v_exp_f32 v{B+r}, v{B+r}")
    A("s_nop 0")
    A(f"v_add_f32 {vT[1]}, v{B}, v{B+1}")
    for r in range(2, 8):
        A(f"v_add_f32 {vT[1]}, {vT[1]}, v{B+r}")
    for r in range(8):
        A(f"v_cvt_pk_bf16_f32 v{B+r}, v{B+r}, v{B+r}")
    A(f"ds_write_b128 {vT[0]}, v[{B}:{B+3}]")
    A(f"ds_write_b128 {vT[0]}, v[{B+4}:{B+7}] offset:16")
    A.wave_red("add", vT[1], sL)
    A(f"v_mov_b32 v{ML}, {sM}")
    A(f"v_mov_b32 v{ML+1}, {sL}")
    A(f"v_mov_b32 v{ML+2}, {sTAG}")
    A(f"v_mov_b32 v{ML+3}, {sTAG}")
    A(f"s_lshl_b32 {sT0}, {sBH}, 7")
    A(f"s_add_u32 {sT0}, {sT0}, {WS_ML}")
    A(f"v_lshl_add_u32 {vZ}, {vLANE}, 4, {sT0}")
    A(f"s_mov_b32 {sT0}, {WS_ZF}")
    A(f"v_writelane_b32 {vZ}, {sT0}, 8")
    A(f"s_lshl_b32 {sT1}, {sWAVE}, 4")
    A(f"v_mov_b32 {vT[0]}, {sT1}")
    A(f"v_mov_b32 {vT[1]}, 1")
    A.setexec(1)
    A(f"ds_write_b128 {vT[0]}, v[{ML}:{ML+3}] offset:{L_TP + 64}")
    A("s_waitcnt lgkmcnt(0)")
    A(f"ds_add_rtn_u32 {vT[1]}, {vT[4]}, {vT[1]} offset:{L_TP + 128}")
    A("s_waitcnt lgkmcnt(0)")
    A(f"v_readfirstlane_b32 {sT0}, {vT[1]}")
    A.setexec(0xff)
    A(f"s_cmp_lg_u32 {sT0}, 3")
    A("s_cbranch_scc1 L_nopub")
    A(f"v_lshlrev_b32 {vT[0]}, 3, {vLANE}")
    A(f"v_lshlrev_b32 {vT[1]}, 4, {vLANE}")
    A(f"ds_read_b64 v[{ML}:{ML+1}], {vT[0]} offset:{L_TP}")
    A(f"ds_read_b128 v[{TW}:{TW+3}], {vT[1]} offset:{L_TP + 64}")
    A(f"s_lshl_b32 {sT0}, s2, 7")
    A(f"s_add_u32 {sT0}, {sT0}, {WS_TAB}")
    A(f"s_lshl_b32 {sT1}, {sHALF}, 6")
    A("s_waitcnt lgkmcnt(0)")
    if not nopub:
        A(f"buffer_store_dwordx4 v[{ML}:{ML+3}], {vT[1]}, s[{sWS}:{sWS+3}], {sT0} offen {psf}")
        A.setexec(0xf)
        A(f"buffer_store_dwordx4 v[{TW}:{TW+3}], {vZ}, s[{sWS}:{sWS+3}], {sT1} offen {psf}")
    A.label("L_nopub")
    A.setexec(ALL)
    vq.CAP = capv
    PP = [QB + n for n in range(8)]
    A("s_waitcnt lgkmcnt(0)")
    for n in range(4):
        A(f"ds_read_b32 v{PP[n]}, {vSC} offset:{n*32}")
    def fcalc():
        vq.wait("ml")
        A(f"s_mov_b32 {sSPIN}, {SPIN}")
        A.label("L_mlchk")
        A(f"v_cmp_ne_u32 vcc, {sTAG}, v{ML+2}")
        A("s_nop 1")
        A("s_and_b32 vcc_lo, vcc_lo, 0x1ff")
        A("s_cbranch_scc0 L_mlok")
        A(f"s_sub_u32 {sSPIN}, {sSPIN}, 1")
        A(f"s_cmp_eq_u32 {sSPIN}, 0")
        A("s_cbranch_scc1 L_mlok")
        A("s_sleep 8")
        A.setexec(0x1ff)
        A(f"buffer_load_dwordx4 v[{ML}:{ML+3}], {vZ}, s[{sWS}:{sWS+3}], 0 offen {plf}")
        A.setexec(ALL)
        A("s_waitcnt vmcnt(0)")
        A("s_branch L_mlchk")
        A.label("L_mlok")
        mm, e = vT[0], vT[1]
        A(f"v_mov_b32 {mm}, v{ML}")
        for stp in Asm.DPP_STEPS[:3]:
            A("s_nop 1")
            A(f"v_max_f32_dpp {mm}, {mm}, {mm} {stp}")
        A(f"v_sub_f32 {e}, v{ML}, {mm}")
        A(f"v_sub_f32 {mm}, {sM}, {mm}")
        A(f"v_mul_f32 {e}, {F(LOG2E)}, {e}")
        A(f"v_mul_f32 {mm}, {F(LOG2E)}, {mm}")
        A(f"v_exp_f32 {e}, {e}")
        A(f"v_exp_f32 {mm}, {mm}")
        A(f"v_mul_f32 {e}, {e}, v{ML+1}")
        for stp in Asm.DPP_STEPS[:3]:
            A("s_nop 1")
            A(f"v_add_f32_dpp {e}, {e}, {e} {stp}")
        A(f"v_rcp_f32 {e}, {e}")
        A("s_nop 0")
        A(f"v_mul_f32 {e}, {e}, {mm}")
        A("s_nop 0")
        A(f"v_readfirstlane_b32 {sF}, {e}")
        A(f"s_mov_b32 s{sFP}, {sF}")
        A(f"s_mov_b32 s{sFP+1}, {sF}")
        for k, m in enumerate((M_LO, M_T1, M_HI)):
            A(f"s_mov_b32 s{sMK+2*k}, 0x{m & 0xffffffff:08x}")
            A(f"s_mov_b32 s{sMK+2*k+1}, 0x{m >> 32:08x}")
        A(f"s_lshr_b32 {sT0}, {sWAVE}, 1")
        A(f"s_mul_i32 {sT0}, {sT0}, 24")
        A(f"s_and_b32 {sT1}, {sWAVE}, 1")
        A(f"s_lshl_b32 {sT1}, {sT1}, 2")
        A(f"s_add_u32 {sT0}, {sT0}, {sT1}")
        A(f"v_bfe_u32 {vT[0]}, {vLANE}, 4, 1")
        A(f"v_and_b32 {vT[1]}, 1, {vLANE}")
        A(f"v_lshl_add_u32 {vT[0]}, {vT[0]}, 1, {vT[1]}")
        A(f"v_add_lshl_u32 {vT[0]}, {vT[0]}, {sT0}, 4")
        A(f"v_and_b32 {vT[1]}, 14, {vLANE}")
        A(f"v_min_u32 {vT[1]}, 10, {vT[1]}")
        A(f"v_lshrrev_b32 {vT[2]}, 5, {vLANE}")
        A(f"v_add_u32 {vT[1]}, {vT[1]}, {vT[2]}")
        A(f"v_lshrrev_b32 {vT[2]}, 2, {vT[1]}")
        A(f"v_lshl_add_u32 {vT[0]}, {vT[2]}, 7, {vT[0]}")
        A(f"v_and_b32 {vT[1]}, 3, {vT[1]}")
        A(f"v_lshl_add_u32 {vQ0}, {vT[1]}, 2, {vT[0]}")
        A(f"v_and_b32 {vT[0]}, 4, {vLANE}")
        A(f"v_cmp_eq_u32 vcc, 0, {vT[0]}")
        A(f"v_mov_b32 {vT[1]}, -1")
        A(f"v_and_b32 {vT[2]}, 3, {vLANE}")
        A(f"v_cndmask_b32 {vSM[0]}, 0, {vT[1]}, vcc")
        A(f"v_not_b32 {vSM[1]}, {vSM[0]}")
        A(f"v_mul_u32_u24 {vIDX}, 0x5555, {vT[2]}")
        for r in range(20):
            A(f"v_mov_b32 v{TW+r}, 0")
        A(f"v_and_b32 {vT[0]}, 15, {vLANE}")
        A(f"v_bfe_u32 {vT[1]}, {vLANE}, 4, 1")
        A(f"v_lshl_add_u32 {vT[0]}, {vT[0]}, 1, {vT[1]}")
        A(f"s_mul_i32 {sT0}, {sWAVE}, 2560")
        A(f"v_lshl_add_u32 {vAY}, {vT[0]}, 4, {sT0}")
        A(f"s_lshl_b32 {sTK}, {sB}, 7")
        A(f"s_add_u32 {sTK}, {sTK}, {WS_CNT}")
        A(f"v_mov_b32 {vZ}, 1")
        A(f"v_lshrrev_b32 {vT[0]}, 4, v0")
        A(f"v_mul_u32_u24 {vT[0]}, 15, {vT[0]}")
        A(f"v_and_b32 {vT[1]}, 15, v0")
        A(f"v_add_u32 {vT[0]}, {vT[0]}, {vT[1]}")
        A(f"v_cmp_eq_u32 vcc, 15, {vT[1]}")
        A(f"v_mov_b32 {vCNT}, 1.0")
        A(f"v_mov_b32 {vMK[0]}, -1")
        A(f"v_cndmask_b32 {vCNT}, 0, {vCNT}, vcc")
        A(f"v_cndmask_b32 {vMK[0]}, {vMK[0]}, 0, vcc")
        A(f"v_cmp_gt_u32 vcc, 160, {vT[0]}")
        for k in range(3):
            col, t = vT[2], vT[3]
            A(f"v_add_u32 {col}, {240*k}, {vT[0]}")
            A(f"v_min_u32 {col}, 639, {col}")
            A(f"v_lshlrev_b32 {vYA[k]}, 2, {col}")
        A(f"v_cndmask_b32 {vMK[1]}, 0, {vMK[0]}, vcc")
        A(f"s_mul_i32 {sWQOFF}, {sB}, 3072")
    for n in range(NT):
        slot = slot_of[NT + n]
        bb = B + 4 * (n & 1)
        if n + 4 < NT:
            A(f"ds_read_b32 v{PP[(n+4)%8]}, {vSC} offset:{(n+4)*32}")
            A("s_waitcnt lgkmcnt(4)")
        else:
            A(f"s_waitcnt lgkmcnt({NT-1-n})")
        for r in range(4):
            A(f"v_and_b32 v{bb+r}, v{PP[n%8]}, {vM[r]}")
        vq.wait(("v", n))
        A("s_nop 1")
        for tt in range(3):
            A(f"v_mfma_f32_16x16x32_bf16 v[{O+4*tt}:{O+4*tt+3}], {treg(slot, tt)}, v[{bb}:{bb+3}], v[{O+4*tt}:{O+4*tt+3}]")
        if lift and n == NT - T - lift: vq.CAP = liftcap
        refill(slot)
        wo_step(NT + n)
        if n == NT - T - 1:
            assert wo_left[0] == wo_late
            vq.CAP = cape
            for k in late: ld_wo(k)
            wo_left[0] = 0
        if n == ml_at and not (nopub or nomlx):
            A.setexec(0x1ff)
            vq.op(f"buffer_load_dwordx4 v[{ML}:{ML+3}], {vZ}, s[{sWS}:{sWS+3}], 0 offen {plf}", "ml")
            A.setexec(ALL)
        if midat and n in (19, 35, 51):
            A(f"s_and_b32 {sT0}, {sBS}, {midat - 1}")
            A(f"s_mul_i32 {sT0}, {sT0}, 3072")
            A(f"s_add_u32 {sT0}, {sT0}, {131072 + (n // 16) * 32768}")
            for k in range(3):
                vq.op(f"buffer_atomic_add_f32 {vT[4]}, {vA1}, s[{sWS}:{sWS+3}], {sT0} offen offset:{1024*k}", "mid", nocap=True)
        if n == fc_at:
            fcalc()
    assert wo_left[0] == 0
    st()
    if noend: A("s_endpgm")
    A("s_nop 5")
    for t, off in enumerate((L_P, L_P + 512, L_P + 1024)):
        A(f"s_mov_b64 exec, s[{sMK+2*t}:{sMK+2*t+1}]")
        A(f"v_pk_mul_f32 v[{O+4*t}:{O+4*t+1}], v[{O+4*t}:{O+4*t+1}], s[{sFP}:{sFP+1}]")
        A(f"v_pk_mul_f32 v[{O+4*t+2}:{O+4*t+3}], v[{O+4*t+2}:{O+4*t+3}], s[{sFP}:{sFP+1}]")
        A(f"ds_write_b128 {vA0}, v[{O+4*t}:{O+4*t+3}] offset:{off}")
    A.setexec(1)
    A(f"s_cmp_lg_u32 {sWAVE}, 3")
    A("s_cbranch_scc1 L_notick")
    A(f"buffer_atomic_add {vZ}, {vT[4]}, s[{sWS}:{sWS+3}], {sTK} offen sc0")
    A.label("L_notick")
    A.setexec(ALL)
    A("s_waitcnt lgkmcnt(0)")
    A("s_barrier")
    st()
    assert L_P % 256 == 0
    for k in range(4):
        A(f"ds_read2st64_b32 v[{B+2*k}:{B+2*k+1}], {vQ0} offset0:{L_P//256 + 6*k} offset1:{L_P//256 + 6*k + 3}")
    A("s_waitcnt lgkmcnt(2)")
    A(f"v_pk_add_f32 v[{B}:{B+1}], v[{B}:{B+1}], v[{B+2}:{B+3}]")
    A("s_waitcnt lgkmcnt(0)")
    A(f"v_pk_add_f32 v[{B+4}:{B+5}], v[{B+4}:{B+5}], v[{B+6}:{B+7}]")
    A(f"v_pk_add_f32 v[{B}:{B+1}], v[{B}:{B+1}], v[{B+4}:{B+5}]")
    A(f"v_add_f32 v{B}, v{B}, v{B+1}")
    A.rb(f"v{B+1}", f"v{B}")
    A(f"v_sub_f32 v{B+1}, v{B}, v{B+1}")
    A(f"v_cvt_pk_bf16_f32 v{B+2}, v{B}, v{B+1}")
    A("s_nop 1")
    BO = R0
    YD = TW
    def omfma(p, c):
        n = (p * 5 + c) * 2
        vq.wait(("wo", n)); vq.wait(("wo", n + 1))
        A(f"v_smfmac_f32_16x16x64_bf16 v[{YD+4*c}:{YD+4*c+3}], v[{BO+4*p}:{BO+4*p+3}], a[{4*n}:{4*n+7}], {vIDX}")
    fill = [f"v_and_b32_dpp v{BO+2*k+r}, v{B+2}, {vSM[r]} row_newbcast:{k} row_mask:0xf bank_mask:0xf" for k in range(12) for r in range(2)]
    def emit(k):
        for _ in range(k):
            if fill: A(fill.pop(0))
    emit(6)
    NP = 4
    for p in range(NP):
        for c in range(5):
            omfma(p, c)
            emit(1)
    assert not fill
    for c in range(5):
        for p in range(NP, 6):
            omfma(p, c)
    A("s_mov_b32 exec_hi, 0")
    for c in range(5):
        if c: A("s_nop 0")
        A(f"ds_write_b128 {vAY}, v[{YD+4*c}:{YD+4*c+3}] offset:{L_YP + c*512}")
    A.setexec(ALL)
    A("s_waitcnt lgkmcnt(0)")
    A("s_barrier")
    st()
    for k in range(2):
        for w in range(4):
            A(f"ds_read_b32 v{O+4*k+w}, {vYA[k]} offset:{L_YP + 2560*w}")
    A(f"s_cmp_eq_u32 {sWAVE}, 3")
    A("s_cbranch_scc1 L_two")
    for w in range(4):
        A(f"ds_read_b32 v{O+8+w}, {vYA[2]} offset:{L_YP + 2560*w}")
    A("s_waitcnt lgkmcnt(0)")
    A(f"v_add_f32 v{O+8}, v{O+8}, v{O+9}")
    A(f"v_add_f32 v{O+10}, v{O+10}, v{O+11}")
    A(f"v_add_f32 v{O+8}, v{O+8}, v{O+10}")
    A(f"v_and_or_b32 v{O+8}, v{O+8}, {vMK[1]}, {vCNT}")
    A(f"buffer_atomic_add_f32 v{O+8}, {vA1}, s[{sWS}:{sWS+3}], {sWQOFF} offen offset:{WS_ACC + 2048}")
    A.label("L_two")
    A("s_waitcnt lgkmcnt(0)")
    for k in range(2):
        A(f"v_add_f32 v{O+4*k}, v{O+4*k}, v{O+4*k+1}")
        A(f"v_add_f32 v{O+4*k+2}, v{O+4*k+2}, v{O+4*k+3}")
    for k in range(2):
        A(f"v_add_f32 v{O+4*k}, v{O+4*k}, v{O+4*k+2}")
    for k in range(2):
        A(f"v_and_or_b32 v{O+4*k}, v{O+4*k}, {vMK[0]}, {vCNT}")
        A(f"buffer_atomic_add_f32 v{O+4*k}, {vA1}, s[{sWS}:{sWS+3}], {sWQOFF} offen offset:{WS_ACC + 1024*k}")
    st()
    A(f"s_cmp_lg_u32 {sWAVE}, 3")
    A("s_cbranch_scc1 L_done")
    A("s_waitcnt vmcnt(2)")
    A(f"v_readfirstlane_b32 {sT0}, {vZ}")
    A(f"s_cmp_lg_u32 {sT0}, 0")
    A("s_cbranch_scc1 L_done")
    H = R0
    HN = R0 + 12
    G = R0 + 24
    X = R0 + 36
    XO = R0 + 48
    T1 = R0 + 60
    T2 = R0 + 66
    TB = R0 + 72
    h = [f"v{H+n}" for n in range(11)]
    hn = [f"v{HN+n}" for n in range(11)]
    A("s_load_dwordx2 s[8:9], s[0:1], 0")
    A(f"s_mul_i32 {sT0}, {sB}, 1280")
    A.srd_off(sOUT, 20, sT0, 1280)
    A(f"v_lshrrev_b32 {vT[0]}, 4, {vLANE}")
    A(f"v_mul_u32_u24 {vT[0]}, 15, {vT[0]}")
    A(f"v_and_b32 {vT[2]}, 15, {vLANE}")
    A(f"v_add_lshl_u32 {vT[0]}, {vT[0]}, {vT[2]}, 1")
    A(f"v_cmp_eq_u32 vcc, 15, {vT[2]}")
    A(f"v_mov_b32 {vT[2]}, 0x10000")
    A(f"v_mov_b32 {vMK[1]}, 0")
    A(f"v_cndmask_b32 {vT[0]}, {vT[0]}, {vT[2]}, vcc")
    A.setexec(M_D10)
    A(f"v_mov_b32 {vMK[1]}, -1")
    A.setexec(ALL)
    A(f"v_mov_b32 {vQ0}, {vMK[1]}")
    for r in list(range(X, X + 12)) + ([] if dry else list(range(G, G + 12)) + list(range(T1, T1 + 12)) + [H + 11]):
        A(f"v_mov_b32 v{r}, 0")
    A("s_waitcnt lgkmcnt(0)")
    A.srd_off(sX, 8, sT0, 1280)
    for n in range(11):
        A(f"buffer_load_short_d16_hi v{X+n}, {vT[0]}, s[{sX}:{sX+3}], 0 offen offset:{n*120}")
    A(f"v_lshlrev_b32 {vT[1]}, 4, {vLANE}")
    A(f"v_lshlrev_b32 {vT[2]}, 3, {vLANE}")
    A(f"s_mov_b32 {sSPIN}, {SPIN}")
    A.label("L_tabld")
    for k in range(32):
        if k % 4 == 0: A(f"s_mov_b32 {sT0}, {WS_TAB + k*1024}")
        A(f"buffer_load_dwordx4 a[{4*k}:{4*k+3}], {vT[1]}, s[{sWS}:{sWS+3}], {sT0} offen offset:{(k%4)*1024} {plf}")
    A(f"v_mov_b32 {vT[3]}, 0")
    A(f"v_add_u32 {vZ}, 0x10000, {vT[2]}")
    for k in range(32):
        if k % 8 == 0: A(f"s_waitcnt vmcnt({24 - k}) lgkmcnt(0)")
        A(f"v_accvgpr_read_b32 v{TB + (k & 1)}, a{4*k+2}")
        A(f"ds_write_b64 {vT[2] if k < 16 else vZ}, a[{4*k}:{4*k+1}] offset:{L_SC + (k%16)*512}")
        A(f"v_xor_b32 v{TB + (k & 1)}, {sTAG}, v{TB + (k & 1)}")
        if k & 1: A(f"v_or3_b32 {vT[3]}, v{TB}, v{TB+1}, {vT[3]}")
    A(f"v_cmp_ne_u32 vcc, 0, {vT[3]}")
    A(f"s_sub_u32 {sSPIN}, {sSPIN}, 1")
    A("s_waitcnt lgkmcnt(0)")
    A(f"s_cmp_eq_u32 {sSPIN}, 0")
    A("s_cbranch_scc1 L_tabok")
    A("s_cbranch_vccz L_tabok")
    A("s_sleep 8")
    A("s_branch L_tabld")
    A.label("L_tabok")
    A(f"v_mov_b32 {vZ}, {sTAG}")
    A(f"s_mov_b32 {sT1}, {WS_EP}")
    A.setexec(1)
    A(f"buffer_store_dword {vZ}, {vT[4]}, s[{sWS}:{sWS+3}], {sT1} offen sc1")
    A.setexec(ALL)
    if dry:
        A(f"s_mov_b32 s{sOUT+2}, 0")
        A(f"s_mov_b32 {sRETRY}, 1")
        A("s_branch L_pollok")
        A.label("L_start")
        A.setexec(ALL)
        A(f"s_mov_b32 s{sOUT+2}, 1280")
        A(f"s_mov_b32 {sRETRY}, 0")
        for r in list(range(G, G + 12)) + list(range(T1, T1 + 12)) + [H + 11]:
            A(f"v_mov_b32 v{r}, 0")
    A(f"v_lshlrev_b32 {vT[1]}, 2, {vLANE}")
    A(f"s_mov_b32 {sSPIN}, {SPIN}")
    A(f"s_mov_b32 s4, 0x80008000")
    st()
    A.label("L_poll")
    for n in range(11):
        A(f"buffer_load_dword {h[n]}, {vT[1]}, s[{sWS}:{sWS+3}], {sWQOFF} offen offset:{WS_ACC + n*256} sc1")
    A(f"s_sub_u32 {sSPIN}, {sSPIN}, 1")
    A("s_waitcnt vmcnt(0) lgkmcnt(0)")
    A(f"v_min3_f32 {vT[2]}, {h[0]}, {h[1]}, {h[2]}")
    A(f"v_min3_f32 {vT[3]}, {h[3]}, {h[4]}, {h[5]}")
    A(f"v_min3_f32 {vT[2]}, {h[6]}, {h[7]}, {vT[2]}")
    A(f"v_min3_f32 {vT[3]}, {h[8]}, {h[9]}, {vT[3]}")
    A(f"v_min3_f32 {vT[2]}, {h[10]}, {vT[2]}, {vT[3]}")
    A(f"s_cmp_eq_u32 {sSPIN}, 0")
    A("s_cbranch_scc1 L_pollok")
    A(f"v_cmp_neq_f32 vcc, {F(64.0)}, {vT[2]}")
    for n in range(2):
        A.rb(h[n], h[n])
    A("s_or_b32 vcc_lo, vcc_lo, vcc_hi")
    A("s_and_b32 vcc_lo, vcc_lo, s4")
    A("s_cbranch_scc1 L_poll")
    A.label("L_pollok")
    st()
    A.setexec(M_D)
    for n in range(2, 11):
        A.rb(h[n], h[n])
    for n in range(6):
        A(f"v_pk_add_f32 v[{H+2*n}:{H+2*n+1}], v[{H+2*n}:{H+2*n+1}], v[{X+2*n}:{X+2*n+1}]")
    for n in range(11):
        A.rb(h[n], h[n])
    if fst: A("s_memrealtime s[86:87]")
    layernorm_seg(A, H, HN, T1, 4, True, vQ0, M_D)
    if fst: A("s_memrealtime s[88:89]")
    layernorm_seg(A, HN, HN, T2, 4, False, vQ0, M_D)
    if fst: A("s_memrealtime s[90:91]")
    for n in range(11):
        A(f"v_lshrrev_b32 v{XO+n}, 15, {hn[n]}")
        A(f"ds_read_u16_d16_hi v{G+n}, v{XO+n} offset:{L_SC - 25600}")
    A(f"v_bfi_b32 {hn[10]}, {vQ0}, {hn[10]}, 1.0")
    A(f"v_min3_f32 {vT[2]}, abs({hn[0]}), abs({hn[1]}), abs({hn[2]})")
    A(f"v_max3_f32 {vT[3]}, abs({hn[0]}), abs({hn[1]}), abs({hn[2]})")
    for n in range(3, 11, 2):
        A(f"v_min3_f32 {vT[2]}, abs({hn[n]}), abs({hn[n+1]}), {vT[2]}")
        A(f"v_max3_f32 {vT[3]}, abs({hn[n]}), abs({hn[n+1]}), {vT[3]}")
    A(f"v_cmp_gt_f32 vcc, {F(2.0 ** -27)}, {vT[2]}")
    A(f"v_mov_b32 {vT[2]}, {F(32.0)}")
    A(f"v_cmp_le_f32 s[4:5], {vT[2]}, {vT[3]}")
    A("s_waitcnt lgkmcnt(0)")
    A("s_or_b64 vcc, vcc, s[4:5]")
    A("s_cbranch_scc1 L_direct")
    A.label("L_lookup")
    if fst: A("s_memrealtime s[92:93]")
    if padto:
        A.label("L_pad")
        A("s_memrealtime s[78:79]")
        A("s_waitcnt lgkmcnt(0)")
        A("s_sub_u32 s78, s78, s76")
        A(f"s_cmp_lt_u32 s78, {padto}")
        A("s_cbranch_scc1 L_pad")
    for n in range(6):
        A(f"v_pk_add_f32 v[{G+2*n}:{G+2*n+1}], v[{G+2*n}:{G+2*n+1}], v[{H+2*n}:{H+2*n+1}]")
    for n in range(6):
        A(f"v_cvt_pk_bf16_f32 v{G+2*n}, v{G+2*n}, v{G+2*n+1}")
    if ost is None:
        for n in range(11):
            op = "buffer_store_short" if n % 2 == 0 else "buffer_store_short_d16_hi"
            A(f"{op} v{G + (n & ~1)}, {vT[0]}, s[{sOUT}:{sOUT+3}], 0 offen offset:{n*120} {osf}")
        if dry:
            A(f"s_cmp_lg_u32 {sRETRY}, 0")
            A("s_cbranch_scc1 L_start")
        A.setexec(ALL)
    else:
        for n in range(11):
            op = "ds_write_b16" if n % 2 == 0 else "ds_write_b16_d16_hi"
            A(f"{op} {vT[0]}, v{G + (n & ~1)} offset:{L_XN + n*120}")
        A.setexec(ALL)
        A(f"v_lshlrev_b32 {vT[1]}, 4, {vLANE}")
        A("s_waitcnt lgkmcnt(0)")
        A(f"ds_read_b128 v[{G}:{G+3}], {vT[1]} offset:{L_XN}")
        A(f"ds_read_b128 v[{G+4}:{G+7}], {vT[1]} offset:{L_XN + 1024}")
        A("s_waitcnt lgkmcnt(1)")
        A(f"buffer_store_dwordx4 v[{G}:{G+3}], {vT[1]}, s[{sOUT}:{sOUT+3}], 0 offen {osf}")
        A("s_waitcnt lgkmcnt(0)")
        A(f"buffer_store_dwordx4 v[{G+4}:{G+7}], {vT[1]}, s[{sOUT}:{sOUT+3}], 0 offen offset:1024 {osf}")
    if stamps:
        if fst: A("s_memrealtime s[94:95]")
        A("s_waitcnt vmcnt(0)")
        st()
        st.flush(sWS, WS_STAMP + 65536, sWAVE, vT[0], vT[1])
        if dbg:
            A("s_load_dwordx2 s[4:5], s[0:1], 88")
            A("s_waitcnt lgkmcnt(0)")
            A.srd(16, "s4", "s5", 256)
            A(f"s_lshl_b32 s6, {sB}, 4")
            A(f"v_mov_b32 {vT[1]}, 0")
            A.setexec(1)
            for k, n in enumerate((3, 4, 5, 11)):
                A(f"s_sub_u32 s7, s{76+2*n}, s76")
                A(f"v_mov_b32 {vT[0]}, s7")
                A(f"buffer_store_dword {vT[0]}, {vT[1]}, s[16:19], s6 offen offset:{4*k}")
            A.setexec(ALL)
    A.label("L_done")
    if stamps:
        st.flush(sWS, WS_STAMP, sWAVE, vT[0], vT[1])
    A.label("L_end")
    A("s_endpgm")
    A.label("L_direct")
    if dry:
        A(f"s_cmp_lg_u32 {sRETRY}, 0")
        A("s_cbranch_scc1 L_lookup")
    A.setexec(ALL)
    A(f"v_lshrrev_b32 {vT[1]}, 3, {vLANE}")
    A(f"v_mul_u32_u24 {vT[1]}, 2320, {vT[1]}")
    A(f"v_and_b32 {vT[2]}, 7, {vLANE}")
    A(f"v_mul_u32_u24 {vT[2]}, 288, {vT[2]}")
    A(f"v_add_u32 {vT[1]}, {vT[1]}, {vT[2]}")
    A(f"v_add_u32 {vT[1]}, {L_W}, {vT[1]}")
    for n in range(11):
        A(f"v_bfe_u32 {vT[2]}, {hn[n]}, 23, 8")
        A(f"v_subrev_u32 {vT[2]}, 100, {vT[2]}")
        A.setexec(M_D)
        A(f"v_cmp_le_u32 s[4:5], 32, {vT[2]}")
        A.setexec(ALL)
        A.label(f"L_dir{n}")
        A("s_nop 1")
        A("s_cmp_eq_u64 s[4:5], 0")
        A(f"s_cbranch_scc1 L_dirx{n}")
        A(f"s_ff1_i32_b64 {sT0}, s[4:5]")
        A(f"v_readlane_b32 {sT1}, {hn[n]}, {sT0}")
        A(f"s_call_b64 s[6:7], L_eval")
        A(f"v_cmp_eq_u32 vcc, {sT1}, {hn[n]}")
        A("s_nop 1")
        A(f"v_cndmask_b32 v{G+n}, v{G+n}, v{TACC}, vcc")
        A("s_andn2_b64 s[4:5], s[4:5], vcc")
        A(f"s_branch L_dir{n}")
        A.label(f"L_dirx{n}")
    A.setexec(M_D)
    A("s_branch L_lookup")
    A.label("L_eval")
    A("s_nop 1")
    A(f"v_mov_b32 v{TX}, {sT1}")
    A(f"v_mov_b32 v{TX+1}, {sT1}")
    A(f"v_mov_b32 v{TACC}, 0")
    A(f"v_mov_b32 v{TACC+1}, 0")
    A(f"v_mov_b32 {vTA}, {vT[1]}")
    A("s_waitcnt lgkmcnt(0)")
    tab_reads()
    for _ in range(3):
        A(f"s_call_b64 s[{sRET}:{sRET+1}], L_tab")
    A(f"v_add_f32 v{TACC}, v{TACC}, v{TACC+1}")
    A.wave_red("add", f"v{TACC}", sT0)
    A(f"v_mov_b32 v{TACC}, {sT0}")
    tab_finish(f"v{TACC}")
    A(f"v_and_b32 v{TACC}, 0xffff0000, v{TACC}")
    A("s_setpc_b64 s[6:7]")
    A.label("L_tab")
    A("s_waitcnt lgkmcnt(0)")
    def P(r): return f"v[{r}:{r+1}]"
    W1, B1, W2 = TW, TW + 8, TW + 16
    for p in range(4): A(f"v_pk_mul_f32 {P(W1+2*p)}, {P(TX)}, {P(W1+2*p)}")
    for k in range(8): A.rb(f"v{W1+k}", f"v{W1+k}")
    for p in range(4): A(f"v_pk_add_f32 {P(W1+2*p)}, {P(W1+2*p)}, {P(B1+2*p)}")
    for k in range(8): A.rb(f"v{W1+k}", f"v{W1+k}")
    for p in range(4): A(f"v_pk_mul_f32 {P(B1+2*p)}, {P(W1+2*p)}, {P(W1+2*p)}")
    for p in range(4): A(f"v_pk_fma_f32 {P(B1+2*p)}, {P(B1+2*p)}, {P(TK1)}, s[{sK0}:{sK0+1}]")
    for p in range(4): A(f"v_pk_mul_f32 {P(B1+2*p)}, {P(B1+2*p)}, {P(W1+2*p)}")
    for k in range(8): A(f"v_exp_f32 v{B1+k}, v{B1+k}")
    for p in range(4): A(f"v_pk_add_f32 {P(B1+2*p)}, {P(B1+2*p)}, s[{sONE}:{sONE+1}]")
    for k in range(8): A(f"v_rcp_f32 v{B1+k}, v{B1+k}")
    for p in range(4): A(f"v_pk_mul_f32 {P(W1+2*p)}, {P(W1+2*p)}, {P(B1+2*p)}")
    for k in range(8): A.rb(f"v{W1+k}", f"v{W1+k}")
    for p in range(4): A(f"v_pk_fma_f32 {P(TACC)}, {P(W1+2*p)}, {P(W2+2*p)}, {P(TACC)}")
    tab_reads()
    A(f"s_setpc_b64 s[{sRET}:{sRET+1}]")
    acc = (NV + 3) // 4 * 4
    return A.text() + kd(KN, acc + 240, 102, acc)

if __name__ == "__main__":
    kw = eval("dict(%s)" % (sys.argv[2] if len(sys.argv) > 2 else ""))
    open(sys.argv[1], "w").write(gen(**kw))
```
